```python
import torch

def _softmax(x, axis=-1):
    return torch.softmax(x, dim=axis)

def _gelu(x):
    return torch.nn.functional.gelu(x, approximate='tanh')

def _silu(x):
    return torch.nn.functional.silu(x)

def _sigmoid(x):
    return torch.sigmoid(x)

def _layernorm(x, axis=-1, eps=1e-05):
    m = x.mean(dim=axis, keepdim=True)
    v = x.var(dim=axis, keepdim=True, unbiased=False)
    return (x - m) / torch.sqrt(v + eps)

def _scatter_add(tgt, idx, src, axis=0):
    return tgt.clone().index_add_(axis, idx, src)

def _segment_sum(src, seg, n):
    out = torch.zeros((n,) + src.shape[1:], dtype=src.dtype)
    return out.index_add_(0, seg, src)

def _pad(x, pw):
    flat = tuple((v for pair in reversed(pw) for v in pair))
    return torch.nn.functional.pad(x, flat)
kernel_name = 'adaLN_cond__ssm_conv_h3__dense_activation_silu__prompt'

def setup_inputs():

    _w = lambda a: (lambda t: t.to(torch.bfloat16) if t.is_floating_point() else t)(torch.as_tensor(a))

    def _A_setup():
        B, S, D = (1, 2048, 512)
        ks = 4
        return {'q': _w((lambda *s: torch.randn(*s, dtype=torch.bfloat16) * 0.05)(B, S, D)), 'k': _w((lambda *s: torch.randn(*s, dtype=torch.bfloat16) * 0.8)(B, S, D)), 'v': _w((lambda *s: torch.randn(*s, dtype=torch.bfloat16) * 0.8)(B, S, D)), 'shift_k': _w((lambda *s: torch.randn(*s, dtype=torch.bfloat16) * 0.8)(D, ks) * 0.5), 'ssm_k': _w((lambda *s: torch.randn(*s, dtype=torch.bfloat16) * 0.8)(D, S) * (1.0 / S ** 0.5)), 'ssm_D': _w((lambda *s: torch.randn(*s, dtype=torch.bfloat16) * 0.8)(D))}
    _A_in = _A_setup()

    def _B_setup():
        B, S, D, F = (1, 2048, 512, 1792)
        return {'x': _w((lambda *s: torch.randn(*s, dtype=torch.bfloat16) * 0.05)(B, S, D)), 'w1': _w((lambda *s: torch.randn(*s, dtype=torch.bfloat16) * 3.2)(D, F) * D ** (-0.5)), 'w2': _w((lambda *s: torch.randn(*s, dtype=torch.bfloat16) * 0.8)(F, D) * F ** (-0.5))}
    _B_in = _B_setup()
    return {'A_q': _A_in['q'], 'A_k': _A_in['k'], 'A_v': _A_in['v'], 'A_shift_k': _A_in['shift_k'], 'A_ssm_k': _A_in['ssm_k'], 'A_ssm_D': _A_in['ssm_D'], 'B_x': _B_in['x'], 'B_w1': _B_in['w1'], 'B_w2': _B_in['w2'], 'c': _w((lambda *s: torch.randn(*s, dtype=torch.bfloat16) * 0.2)(1, 512) * 8.0), 'w_mod': _w((lambda *s: torch.randn(*s, dtype=torch.bfloat16) * 0.2)(512, 6 * 512) * 512 ** (-0.5) * 8.0)}

def reference(A_q, A_k, A_v, A_shift_k, A_ssm_k, A_ssm_D, B_x, B_w1, B_w2, c, w_mod):

    def _A_ref(q, k, v, shift_k, ssm_k, ssm_D):
        B, S, D = q.shape
        ks = shift_k.shape[-1]
        k_pad = _pad(k, ((0, 0), (ks - 1, 0), (0, 0)))
        k_shift = torch.zeros_like(k)
        for t in range(ks):
            k_shift = k_shift + k_pad[:, t:t + S, :] * shift_k[:, ks - 1 - t][None, None, :]
        kv = k_shift * v
        L = 2 * S
        kv_pad = _pad(kv, ((0, 0), (0, S), (0, 0)))
        kf_pad = _pad(ssm_k, ((0, 0), (0, S)))
        kv_f = (lambda x, axes=(-2, -1): torch.fft.rfft2(x.float(), dim=axes))(kv_pad[:, None, :, :], axes=(1, 2))
        kf_f = (lambda x, axes=(-2, -1): torch.fft.rfft2(x.float(), dim=axes))(kf_pad[:, None, :], axes=(1, 2))
        kf_f = (lambda x, *d: x.permute(*d))(kf_f, 1, 2, 0)
        y_f = kv_f * kf_f[None, :, :, :]
        y = (lambda x, s, axes=(-2, -1): torch.fft.irfft2(x, s=s, dim=axes).to(torch.bfloat16))(y_f, (1, L), axes=(1, 2))[:, 0, :S, :]
        y = y + kv * ssm_D[None, None, :]
        return q * y

    def _B_ref(x, w1, w2):
        h = torch.einsum('bsd,df->bsf', x, w1)
        h = _silu(h)
        out = torch.einsum('bsf,fd->bsd', h, w2)
        return out
    x = A_q
    mod = (_silu(c) @ w_mod).reshape(c.shape[0], 6, 1, -1)
    sa, ca, ga, sb, cb, gb = (mod[:, 0].clone(), mod[:, 1].clone(), mod[:, 2].clone(), mod[:, 3].clone(), mod[:, 4].clone(), mod[:, 5].clone())
    h = _layernorm(x, axis=-1) * (1 + ca) + sa
    x = x + ga * _A_ref(h, A_k, A_v, A_shift_k, A_ssm_k, A_ssm_D)
    h = _layernorm(x, axis=-1) * (1 + cb) + sb
    x = x + gb * _B_ref(h, B_w1, B_w2)
    return x
```

```python
import re

def v(n, c=1): return f"v{n}" if c == 1 else f"v[{n}:{n+c-1}]"
def a(n, c=1): return f"a{n}" if c == 1 else f"a[{n}:{n+c-1}]"
def s(n, c=1): return f"s{n}" if c == 1 else f"s[{n}:{n+c-1}]"

TRANS = ("v_exp_f32", "v_log_f32", "v_rcp_f32", "v_rsq_f32", "v_sqrt_f32", "v_sin_f32", "v_cos_f32", "v_rcp_iflag_f32")
_REG = re.compile(r"^-?\|?(?:abs\()?([vas])(?:(\d+)|\[(\d+):(\d+)\])\)?\|?$")

def regs_of(op):
    op = op.strip()
    if op == "vcc": return {("s", "vcc")}
    if op == "exec": return {("s", "exec")}
    if op == "m0": return {("s", "m0")}
    m = _REG.match(op)
    if not m: return set()
    k = m.group(1)
    if m.group(2) is not None: lo = hi = int(m.group(2))
    else: lo, hi = int(m.group(3)), int(m.group(4))
    return {(k, i) for i in range(lo, hi + 1)}

class Ins:
    def __init__(self, text):
        self.text = text
        t = text.split(";")[0].strip()
        parts = t.split(None, 1)
        self.op = parts[0]
        rest = parts[1] if len(parts) > 1 else ""
        ops = [x.strip() for x in rest.split(",")] if rest else []
        mods = ""
        if ops:
            last = ops[-1].split()
            k = 0
            while len(ops) > 1 and ("[" in ops[-1] and "]" not in ops[-1] or ops[-1].count("]") > ops[-1].count("[")):
                ops[-2] = ops[-2] + "," + ops[-1]; ops.pop()
            toks = []
            for i, o in enumerate(ops):
                w = o.split()
                toks.append(w[0] if w else "")
                if len(w) > 1: mods += " " + " ".join(w[1:])
            ops = toks
        self.ops = ops; self.mods = mods
        op = self.op
        self.is_mfma = op.startswith("v_mfma")
        self.is_valu = op.startswith("v_") and not self.is_mfma
        self.is_salu = op.startswith("s_")
        self.is_ds = op.startswith("ds_")
        self.is_vmem = op.startswith(("buffer_", "global_", "flat_"))
        self.is_trans = any(op.startswith(x) for x in TRANS)
        self.is_dot = op.startswith("v_dot")
        self.is_dpp = "_dpp" in op or any(x in mods for x in ("quad_perm", "row_shr", "row_shl", "row_ror", "row_bcast", "row_mirror", "row_half_mirror", "wave_sh", "wave_ro", "row_newbcast"))
        self.is_permlane = op.startswith("v_permlane")
        self.is_lds_dma = (self.is_vmem and (" lds" in mods or "_lds_" in op))
        self.passes = 0
        if self.is_mfma:
            self.passes = 8 if "32x32x16" in op else 4
        w, r = set(), set()
        R = [regs_of(o) for o in ops]
        self.srcc = set(); self.srcab = set(); self.storedata = set(); self.wide_store = False
        if self.is_mfma:
            w |= R[0]; self.srcab = R[1] | R[2]; self.srcc = R[3]; r |= self.srcab | self.srcc
        elif self.is_permlane:
            w |= R[0] | R[1]; r |= R[0] | R[1]
        elif op.startswith("v_cmp"):
            w |= R[0]
            for x in R[1:]: r |= x
            if op.startswith("v_cmpx"): w |= {("s", "exec")}
        elif op.startswith(("v_add_co", "v_sub_co", "v_addc_co", "v_subb_co")):
            w |= R[0] | R[1]
            for x in R[2:]: r |= x
        elif self.is_valu:
            w |= R[0]
            for x in R[1:]: r |= x
            if op.startswith(("v_fmac", "v_dot2c", "v_pk_fmac", "v_writelane")) or self.is_dpp: r |= R[0]
            if op.startswith("v_cndmask") and len(ops) == 3: r |= {("s", "vcc")}
        elif self.is_ds:
            if op.startswith(("ds_read", "ds_bpermute", "ds_permute", "ds_swizzle")) or "_rtn" in op:
                w |= R[0]
                for x in R[1:]: r |= x
            else:
                for x in R: r |= x
        elif self.is_vmem:
            if "store" in op:
                for x in R: r |= x
                d = R[0] if op.startswith("buffer_") else R[1]
                self.storedata = d; self.wide_store = op.endswith(("x3", "x4"))
            elif "atomic" in op:
                for x in R: r |= x
                if "sc0" in mods: w |= R[0]
            elif self.is_lds_dma:
                for x in R: r |= x
                r |= {("s", "m0")}
            elif op.startswith("buffer_inv") or op.startswith("buffer_wbl2"):
                pass
            else:
                w |= R[0]
                for x in R[1:]: r |= x
        elif self.is_salu:
            if op.startswith(("s_cmp", "s_cbranch", "s_branch", "s_waitcnt", "s_nop", "s_barrier", "s_sleep", "s_endpgm", "s_setprio", "s_bitcmp")):
                for x in R: r |= x
            else:
                if R: w |= R[0]
                for x in R[1:]: r |= x
                if "saveexec" in op: w |= {("s", "exec")}
        self.w, self.r = w, r
        self.states = 1
        if op == "s_nop": self.states = int(ops[0], 0) + 1

def required(p, c):
    n = 0
    pv = {x for x in p.w if x[0] in "va"}
    ps = {x for x in p.w if x[0] == "s"}
    if p.is_valu:
        if pv & c.r:
            if c.is_dpp: n = max(n, 2)
            if c.is_permlane: n = max(n, 2)
            if c.is_mfma: n = max(n, 2)
            if c.op.startswith(("v_readlane", "v_readfirstlane")): n = max(n, 1)
            if p.is_trans and c.is_valu and not c.is_trans: n = max(n, 1)
            if p.is_trans and c.is_valu: n = max(n, 1)
            if "sdwa" in p.op and c.is_valu: n = max(n, 1)
        if p.is_dot and (pv & (c.r | c.w)):
            same = c.op == p.op
            if not same: n = max(n, 3)
            else:
                cab = set()
                for o in c.ops[1:3]: cab |= regs_of(o)
                if pv & cab: n = max(n, 3)
        if ps & c.r:
            if c.is_valu or c.is_mfma: n = max(n, 2)
            if c.op.startswith(("v_readlane", "v_writelane")): n = max(n, 4)
            if c.is_vmem: n = max(n, 5)
            if c.is_salu: n = max(n, 1)
        if ("s", "exec") in ps:
            if c.is_dpp: n = max(n, 5)
            if c.is_mfma or c.is_permlane or c.op.startswith(("v_readlane", "v_readfirstlane", "v_writelane")): n = max(n, 4)
    if p.is_salu and ("s", "m0") in ps and c.is_lds_dma: n = max(n, 1)
    if p.is_mfma:
        big = p.passes == 8
        if c.is_mfma:
            if pv & c.srcab: n = max(n, 12 if big else 8)
            if pv & c.srcc:
                if not (c.srcc == pv and c.passes == p.passes): n = max(n, 10 if big else 6)
            elif pv & c.w: n = max(n, 12 if big else 8)
        elif (c.is_valu or c.is_vmem or c.is_ds) and (pv & (c.r | c.w)):
            n = max(n, 12 if big else 8)
        if c.is_valu and (p.srcc & c.w): n = max(n, 7 if big else 3)
    if p.is_vmem and p.wide_store and (p.storedata & c.w):
        n = max(n, 2 if c.is_valu else 1)
    return n

class Asm:
    def __init__(self):
        self.items = []
    def __call__(self, text):
        for line in text.split("\n"):
            line = line.strip()
            if not line: continue
            if line.startswith(";"):
                self.items.append(("c", line))
            elif line.endswith(":"):
                self.items.append(("l", line[:-1]))
            elif line.startswith("."):
                self.items.append(("d", line))
            else:
                self.items.append(("i", Ins(line)))
    def label(self, n): self.items.append(("l", n))
    def pad(self):
        MAXD = 13
        changed = True
        total = 0
        start = 0
        while changed:
            changed = False
            items = self.items
            idx = [i for i, it in enumerate(items) if it[0] == "i"]
            labels = {}
            for i, it in enumerate(items):
                if it[0] == "l": labels[it[1]] = i
            branches_to = {}
            for i in idx:
                ins = items[i][1]
                if ins.op.startswith(("s_cbranch", "s_branch")):
                    branches_to.setdefault(labels[ins.ops[0]], []).append(i)
            def preds(i):
                out = []
                j = i - 1
                while j >= 0:
                    k = items[j][0]
                    if k == "i":
                        if items[j][1].op not in ("s_branch", "s_endpgm"): out.append(j)
                        break
                    if k == "l": out += branches_to.get(j, [])
                    j -= 1
                return out
            for i in idx:
                if i < start: continue
                c = items[i][1]
                need = 0
                stack = [(p, 0) for p in preds(i)]
                seen = {}
                while stack:
                    j, d = stack.pop()
                    if seen.get(j, 99) <= d: continue
                    seen[j] = d
                    p = items[j][1]
                    rq = required(p, c)
                    if rq > d: need = max(need, rq - d)
                    d2 = d + p.states
                    if d2 < MAXD:
                        for q in preds(j): stack.append((q, d2))
                if need > 0:
                    items.insert(i, ("i", Ins(f"s_nop {need-1}")))
                    total += 1
                    changed = True
                    start = i
                    break
            if not changed and start > 0:
                start = 0
                changed = True
        return total
    def autowait(self):
        items = self.items
        out = []
        vm, lg = [], []
        saved = {}
        dead = False
        def parse_wait(ins):
            t = ins.text
            m = re.search(r"vmcnt\((\d+)\)", t); n = re.search(r"lgkmcnt\((\d+)\)", t)
            return (int(m.group(1)) if m else None, int(n.group(1)) if n else None)
        def live(q):
            k = [i for i, x in enumerate(q) if x]
            return q[k[0]:] if k else []
        for k, x in items:
            if k == "l":
                if x in saved:
                    svm, slg = saved[x]
                    if dead: vm, lg = list(svm), list(slg)
                    else:
                        assert live(svm) == live(vm) and live(slg) == live(lg), f"autowait: states differ at {x}"
                        if len(svm) < len(vm): vm = list(svm)
                        if len(slg) < len(lg): lg = list(slg)
                dead = False
                out.append((k, x)); continue
            if k != "i":
                out.append((k, x)); continue
            ins = x
            if ins.op == "s_waitcnt":
                a_, b_ = parse_wait(ins)
                if a_ is not None: vm = vm[len(vm) - a_:] if a_ < len(vm) else vm
                if a_ == 0: vm = []
                if b_ is not None: lg = lg[len(lg) - b_:] if b_ < len(lg) else lg
                if b_ == 0: lg = []
                out.append((k, x)); continue
            touch = ins.r | ins.w
            nv = nl = None
            for i, d in enumerate(vm):
                if d & touch: nv = len(vm) - 1 - i
            for i, d in enumerate(lg):
                if d & touch: nl = len(lg) - 1 - i
            if nv is not None or nl is not None:
                w = "s_waitcnt"
                if nv is not None:
                    nv = min(nv, 63); w += f" vmcnt({nv})"; vm = vm[len(vm) - nv:] if nv else []
                if nl is not None:
                    nl = min(nl, 15); w += f" lgkmcnt({nl})"; lg = lg[len(lg) - nl:] if nl else []
                out.append(("i", Ins(w)))
            if ins.is_vmem and not ins.op.startswith(("buffer_inv", "buffer_wbl2")): vm.append(set(y for y in ins.w if y[0] in "va"))
            if ins.is_ds: lg.append(set(y for y in ins.w if y[0] in "va"))
            if ins.op.startswith(("s_cbranch", "s_branch")):
                tgt = ins.ops[0]
                if tgt in saved:
                    svm, slg = saved[tgt]
                    assert live(svm) == live(vm) and live(slg) == live(lg), f"autowait: states differ for {tgt}"
                saved.setdefault(tgt, (list(vm), list(lg)))
                if ins.op == "s_branch": dead = True
            if ins.op == "s_endpgm": vm, lg, dead = [], [], True
            out.append((k, x))
        self.items = out
    def text(self):
        out = []
        for k, x in self.items:
            if k == "i": out.append("    " + x.text)
            elif k == "l": out.append(x + ":")
            elif k == "d": out.append(x)
            else: out.append("    " + x)
        return "\n".join(out) + "\n"
```

```python
import sys
sys.path.insert(0, "dev")
from asmlib import Asm, v, a, s

NAME = "adaLN_cond__ssm_conv_h3__dense_activation_silu__prompt"

WS_REC = 0
WS_X1 = 4 << 20
WS_X1C = 6 << 20
WS_H = 8 << 20
WS_STAT = 16 << 20
WS_MODP = (16 << 20) + 65536
WS_SYNC = 17 << 20
WS_SIZE = 18 << 20

S_WG = 2; S_WAVE = 3
SRD_Q, SRD_K, SRD_V, SRD_SSMK, SRD_W1, SRD_W2, SRD_WMOD, SRD_OUT, SRD_WS, SRD_SHK, SRD_C, SRD_SSMD = [4 + 4 * i for i in range(12)]
S_DBG = 52
S_T = 54
S_SELLO, S_SELHI, S_ONES = 96, 97, 98

KARG = {SRD_Q: (0, 2097152), SRD_K: (8, 2097152), SRD_V: (16, 2097152), SRD_SHK: (24, 4096), SRD_SSMK: (32, 2097152),
        SRD_SSMD: (40, 1024), SRD_W1: (56, 512 * 1792 * 2), SRD_W2: (64, 512 * 1792 * 2), SRD_C: (72, 1024),
        SRD_WMOD: (80, 512 * 3072 * 2), SRD_OUT: (88, 2097152), SRD_WS: (104, WS_SIZE)}

STAGE = 4
LOG2E = 0x3fb8aa3b
NLOG2E = 0xbfb8aa3b

def setup(A, srds, exit_label):
    A(f"s_cmp_ge_u32 s{S_WG}, 256")
    A(f"s_cbranch_scc1 {exit_label}")
    for r in srds:
        A(f"s_load_dwordx2 {s(r,2)}, s[0:1], {KARG[r][0]}")
    for r in srds:
        A(f"s_mov_b32 s{r+2}, {KARG[r][1]}")
        A(f"s_mov_b32 s{r+3}, 0x20000")
    A(f"v_lshrrev_b32 v1, 6, v0")
    A(f"s_mov_b32 s{S_SELLO}, 0x05040100")
    A(f"v_readfirstlane_b32 s{S_WAVE}, v1")
    A(f"s_mov_b32 s{S_SELHI}, 0x07060302")
    A(f"s_mov_b32 s{S_ONES}, 0x3f803f80")

def dma_voff(A, d0, d1, lane, rowstride, tmp):
    A(f"v_lshrrev_b32 v{tmp}, 3, v{lane}")
    A(f"v_and_b32 v{d1}, 2, v{tmp}")
    A(f"v_lshlrev_b32 v{d1}, 5, v{d1}")
    A(f"v_and_b32 v{d0}, 7, v{lane}")
    A(f"v_lshlrev_b32 v{d0}, 4, v{d0}")
    A(f"v_xor_b32 v{d0}, v{d0}, v{d1}")
    A(f"s_mov_b32 s{S_T+40}, {rowstride}")
    A(f"v_mul_lo_u32 v{tmp}, v{tmp}, s{S_T+40}")
    A(f"v_add_u32 v{d0}, v{d0}, v{tmp}")
    A(f"v_xor_b32 v{d1}, 32, v{d0}")

LDS_GM = 0
LDS_SC = 16384

def phase0(A, SC):
    sc = " sc1" if SC else ""
    T = S_T
    VK, VV, VQ, VSH, VST, VC = 10, 28, 36, 44, 48, 56
    A(f"s_lshr_b32 s{T}, s{S_WG}, 1")
    A(f"s_and_b32 s{T+1}, s{S_WG}, 1")
    A(f"s_lshl_b32 s{T+1}, s{T+1}, 7")
    A(f"v_lshrrev_b32 v3, 1, v0")
    A(f"v_add_u32 v5, s{T+1}, v3")
    A(f"v_and_b32 v4, 1, v0")
    A(f"v_and_b32 v2, 63, v0")
    A(f"v_lshlrev_b32 v6, 2, v5")
    A(f"v_lshl_add_u32 v6, v4, 10, v6")
    A(f"s_lshl_b32 s{T+2}, s{T}, 14")
    for g in range(1, 4):
        A(f"s_add_u32 s{T+2+g}, s{T+2}, {4096*g}")
    A(f"v_lshlrev_b32 v7, 4, v5")
    A(f"s_sub_u32 s{T+6}, s{T+2}, 3072")
    A(f"v_add_u32 v8, s{T+6}, v6")
    A(f"v_add_u32 v9, 1024, v8")
    A(f"v_add_u32 v57, 2048, v8")
    A("s_waitcnt lgkmcnt(0)")
    A(f"buffer_load_dwordx4 {v(VSH,4)}, v7, {s(SRD_SHK,4)}, 0 offen")
    A(f"buffer_load_dword v{VK}, v8, {s(SRD_K,4)}, 0 offen")
    A(f"buffer_load_dword v{VK+1}, v9, {s(SRD_K,4)}, 0 offen")
    A(f"buffer_load_dword v{VK+2}, v57, {s(SRD_K,4)}, 0 offen")
    for r in range(15):
        A(f"buffer_load_dword v{VK+3+r}, v6, {s(SRD_K,4)}, s{T+2+(r>>2)} offen offset:{1024*(r&3)}")
    for j in range(8):
        A(f"buffer_load_dword v{VV+j}, v6, {s(SRD_V,4)}, s{T+2+(j>>1)} offen offset:{2048*(j&1)}")
    for j in range(8):
        A(f"buffer_load_dword v{VQ+j}, v6, {s(SRD_Q,4)}, s{T+2+(j>>1)} offen offset:{2048*(j&1)}")
    A(f"s_lshl_b32 s{T+7}, s{S_WG}, 2")
    A(f"s_add_u32 s{T+7}, s{T+7}, s{S_WAVE}")
    A(f"s_lshl_b32 s{T+8}, s{T+7}, 11")
    A(f"v_lshlrev_b32 v58, 4, v2")
    A(f"buffer_load_dwordx4 {v(VST,4)}, v58, {s(SRD_Q,4)}, s{T+8} offen")
    A(f"buffer_load_dwordx4 {v(VST+4,4)}, v58, {s(SRD_Q,4)}, s{T+8} offen offset:1024")
    A(f"s_mul_i32 s{T+9}, s{S_WG}, 1366")
    A(f"s_lshr_b32 s{T+9}, s{T+9}, 16")
    A(f"s_mul_i32 s{T+10}, s{T+9}, 48")
    A(f"s_sub_u32 s{T+10}, s{S_WG}, s{T+10}")
    A(f"v_and_b32 v59, 127, v0")
    A(f"v_lshlrev_b32 v59, 1, v59")
    A(f"s_lshl_b32 s{T+11}, s{T+9}, 8")
    A(f"buffer_load_ushort v{VC}, v59, {s(SRD_C,4)}, s{T+11} offen")
    dma_voff(A, 60, 61, 2, 6144, 62)
    A(f"s_lshl_b32 s{T+12}, s{T+9}, 7")
    A(f"s_lshl_b32 s{T+13}, s{S_WAVE}, 5")
    A(f"s_add_u32 s{T+12}, s{T+12}, s{T+13}")
    A(f"s_mul_i32 s{T+12}, s{T+12}, 6144")
    A(f"s_lshl_b32 s{T+13}, s{T+10}, 7")
    A(f"s_add_u32 s{T+12}, s{T+12}, s{T+13}")
    A(f"s_lshl_b32 s{T+13}, s{S_WAVE}, 12")
    A(f"s_add_u32 m0, s{T+13}, {LDS_GM}")
    for i in range(4):
        if i:
            A(f"s_add_u32 m0, m0, 1024")
            A(f"s_add_u32 s{T+12}, s{T+12}, {8*6144}")
        A(f"buffer_load_dwordx4 v{60+(i&1)}, {s(SRD_WMOD,4)}, s{T+12} offen lds")
    later = 8 + 2 + 1 + 4
    A("; ---- kv ----")
    VW, VP, VKS, VVU, VU, VX = 64, 68, 86, 102, 120, 128
    A(f"s_waitcnt vmcnt({later+8})")
    A(f"v_alignbit_b32 v{VW}, v{VSH+1}, v{VSH+1}, 16")
    A(f"v_alignbit_b32 v{VW+1}, v{VSH}, v{VSH}, 16")
    A(f"v_alignbit_b32 v{VW+2}, v{VSH+3}, v{VSH+3}, 16")
    A(f"v_alignbit_b32 v{VW+3}, v{VSH+2}, v{VSH+2}, 16")
    for j in range(9):
        A(f"v_perm_b32 v{VP+2*j}, v{VK+2*j+1}, v{VK+2*j}, s{S_SELLO}")
        A(f"v_perm_b32 v{VP+2*j+1}, v{VK+2*j+1}, v{VK+2*j}, s{S_SELHI}")
    for j in range(8):
        for c in range(2):
            A(f"v_dot2_f32_bf16 v{VKS+2*j+c}, v{VP+2*j+c}, v{VW+2*c}, 0")
    for j in range(8):
        for c in range(2):
            A(f"v_dot2_f32_bf16 v{VKS+2*j+c}, v{VP+2*j+2+c}, v{VW+2*c+1}, v{VKS+2*j+c}")
    A(f"s_waitcnt vmcnt({later})")
    for j in range(8):
        A(f"v_lshlrev_b32 v{VVU+2*j}, 16, v{VV+j}")
        A(f"v_and_b32 v{VVU+2*j+1}, 0xffff0000, v{VV+j}")
    for j in range(8):
        A(f"v_pk_mul_f32 {v(VKS+2*j,2)}, {v(VKS+2*j,2)}, {v(VVU+2*j,2)}")
    for c in range(2):
        for q in range(4):
            A(f"v_cvt_pk_bf16_f32 v{VU+4*c+q}, v{VKS+2*(7-2*q)+c}, v{VKS+2*(6-2*q)+c}")
    A(f"v_lshlrev_b32 v63, 14, v5")
    A(f"v_lshl_add_u32 v63, v4, 4, v63")
    A(f"s_lshl_b32 s{T+14}, s{T}, 7")
    if WS_REC: A(f"s_add_u32 s{T+14}, s{T+14}, {WS_REC}")
    A(f"buffer_store_dwordx4 {v(VU,4)}, v63, {s(SRD_WS,4)}, s{T+14} offen{sc}")
    A(f"buffer_store_dwordx4 {v(VU+4,4)}, v63, {s(SRD_WS,4)}, s{T+14} offen offset:32{sc}")
    A(f"s_waitcnt vmcnt({later-8+2})")
    for c in range(2):
        for q in range(4):
            A(f"v_perm_b32 v{VX+4*c+q}, v{VQ+6-2*q}, v{VQ+7-2*q}, s{S_SELHI if c else S_SELLO}")
    A(f"buffer_store_dwordx4 {v(VX,4)}, v63, {s(SRD_WS,4)}, s{T+14} offen offset:64{sc}")
    A(f"buffer_store_dwordx4 {v(VX+4,4)}, v63, {s(SRD_WS,4)}, s{T+14} offen offset:96{sc}")
    A(f"s_waitcnt vmcnt({4+4+1})")
    R = 136
    for r in range(2):
        A(f"v_dot2_f32_bf16 v{R+2*r}, v{VST+4*r}, s{S_ONES}, 0")
        A(f"v_dot2_f32_bf16 v{R+2*r+1}, v{VST+4*r}, v{VST+4*r}, 0")
    for q in range(1, 4):
        for r in range(2):
            A(f"v_dot2_f32_bf16 v{R+2*r}, v{VST+4*r+q}, s{S_ONES}, v{R+2*r}")
            A(f"v_dot2_f32_bf16 v{R+2*r+1}, v{VST+4*r+q}, v{VST+4*r+q}, v{R+2*r+1}")
    for m in ("row_shr:1", "row_shr:2", "row_shr:4", "row_shr:8"):
        for i in range(4):
            A(f"v_add_f32_dpp v{R+i}, v{R+i}, v{R+i} {m} row_mask:0xf bank_mask:0xf bound_ctrl:0")
    for m, rm in (("row_bcast:15", "0xa"), ("row_bcast:31", "0xc")):
        for i in range(4):
            A(f"v_add_f32_dpp v{R+i}, v{R+i}, v{R+i} {m} row_mask:{rm} bank_mask:0xf")
    ln_finish(A, [(R, R+1, R+4, R+6), (R+2, R+3, R+5, R+7)], R + 8)
    A(f"s_waitcnt vmcnt({4+4})")
    X = 150
    A(f"v_lshlrev_b32 v{X}, 16, v{VC}")
    A(f"v_mul_f32 v{X+1}, {hex(NLOG2E)}, v{X}")
    A(f"v_exp_f32 v{X+1}, v{X+1}")
    A(f"v_add_f32 v{X+1}, 1.0, v{X+1}")
    A(f"v_rcp_f32 v{X+1}, v{X+1}")
    A(f"v_mul_f32 v{X+1}, v{X}, v{X+1}")
    A(f"v_cvt_pk_bf16_f32 v{X+1}, v{X+1}, v{X+1}")
    A(f"ds_write_b16 v59, v{X+1} offset:{LDS_SC}")
    A(f"s_lshl_b32 s{T+15}, s{T+7}, 3")
    A(f"s_add_u32 s{T+15}, s{T+15}, {WS_STAT}")
    A(f"v_mov_b32 v{X+2}, 0")
    A(f"v_mov_b32 v{X+3}, 8192")
    A("s_lshl_b64 exec, 1, 63")
    A(f"buffer_store_dwordx2 {v(R+4,2)}, v{X+2}, {s(SRD_WS,4)}, s{T+15} offen{sc}")
    A(f"buffer_store_dwordx2 {v(R+6,2)}, v{X+3}, {s(SRD_WS,4)}, s{T+15} offen{sc}")
    A("s_mov_b64 exec, -1")
    A(f"s_waitcnt vmcnt(2) lgkmcnt(0)")
    A("s_barrier")
    return T

def ln_finish(A, rows, tmp, scale=None):
    for i, (su, sq, o1, o2) in enumerate(rows):
        A(f"v_mul_f32 v{su}, 0x3b000000, v{su}")
        A(f"v_mul_f32 v{sq}, 0x3b000000, v{sq}")
    for i, (su, sq, o1, o2) in enumerate(rows):
        A(f"v_fma_f32 v{sq}, -v{su}, v{su}, v{sq}")
    for i, (su, sq, o1, o2) in enumerate(rows):
        A(f"v_max_f32 v{sq}, 0, v{sq}")
    for i, (su, sq, o1, o2) in enumerate(rows):
        A(f"v_cvt_pk_bf16_f32 v{tmp+i}, v{su}, v{sq}")
    for i, (su, sq, o1, o2) in enumerate(rows):
        A(f"v_lshlrev_b32 v{su}, 16, v{tmp+i}")
        A(f"v_and_b32 v{sq}, 0xffff0000, v{tmp+i}")
    for i, (su, sq, o1, o2) in enumerate(rows):
        A(f"v_add_f32 v{sq}, 0x3727c5ac, v{sq}")
    for i, (su, sq, o1, o2) in enumerate(rows):
        A(f"v_cvt_pk_bf16_f32 v{sq}, v{sq}, v{sq}")
    for i, (su, sq, o1, o2) in enumerate(rows):
        A(f"v_lshlrev_b32 v{sq}, 16, v{sq}")
    for i, (su, sq, o1, o2) in enumerate(rows):
        A(f"v_sqrt_f32 v{sq}, v{sq}")
    for i, (su, sq, o1, o2) in enumerate(rows):
        A(f"v_cvt_pk_bf16_f32 v{sq}, v{sq}, v{sq}")
    for i, (su, sq, o1, o2) in enumerate(rows):
        A(f"v_lshlrev_b32 v{sq}, 16, v{sq}")
    for i, (su, sq, o1, o2) in enumerate(rows):
        A(f"v_rcp_f32 v{o1}, v{sq}")
    for i, (su, sq, o1, o2) in enumerate(rows):
        if scale is not None: A(f"v_mul_f32 v{o1}, {scale}, v{o1}")
    for i, (su, sq, o1, o2) in enumerate(rows):
        A(f"v_mul_f32 v{o2}, -v{su}, v{o1}")

def gemv(A, SC, skip):
    sc = " sc1" if SC else ""
    T = S_T
    A(f"s_cmp_ge_u32 s{S_WG}, 192")
    A(f"s_cbranch_scc1 {skip}")
    B = 64
    A(f"v_lshrrev_b32 v{B}, 4, v2")
    A(f"v_bfe_u32 v{B+1}, v2, 2, 2")
    A(f"v_lshl_add_u32 v{B+2}, v{B}, 3, v{B+1}")
    A(f"v_lshlrev_b32 v{B+2}, 7, v{B+2}")
    A(f"v_and_b32 v{B+3}, 2, v{B+1}")
    A(f"v_and_b32 v{B+4}, 1, v{B}")
    A(f"v_or_b32 v{B+3}, v{B+3}, v{B+4}")
    A(f"v_xor_b32 v{B+3}, s{S_WAVE}, v{B+3}")
    A(f"v_lshl_add_u32 v{B+2}, v{B+3}, 5, v{B+2}")
    A(f"v_and_b32 v{B+3}, 3, v2")
    A(f"v_lshl_add_u32 v{B+2}, v{B+3}, 3, v{B+2}")
    A(f"v_lshlrev_b32 v{B+5}, 4, v{B}")
    FA, FB, ACC = 72, 88, 104
    for e in range(4):
        A(f"ds_read_b128 {v(FA+4*e,4)}, v{B+5} offset:{LDS_SC+64*e}")
        A(f"ds_read_b64_tr_b16 {v(FB+4*e,2)}, v{B+2} offset:{LDS_GM+4096*e}")
        A(f"ds_read_b64_tr_b16 {v(FB+4*e+2,2)}, v{B+2} offset:{LDS_GM+4096*e+512}")
    for e in range(4):
        A(f"s_waitcnt lgkmcnt({9-3*e})")
        A(f"v_mfma_f32_16x16x32_bf16 {v(ACC,4)}, {v(FA+4*e,4)}, {v(FB+4*e,4)}, {'0' if e == 0 else v(ACC,4)}")
    A(f"s_mul_i32 s{T+16}, s{T+9}, {3072*4}")
    A(f"s_lshl_b32 s{T+17}, s{T+10}, 8")
    A(f"s_add_u32 s{T+16}, s{T+16}, s{T+17}")
    A(f"s_lshl_b32 s{T+17}, s{S_WAVE}, 6")
    A(f"s_add_u32 s{T+16}, s{T+16}, s{T+17}")
    A(f"s_add_u32 s{T+16}, s{T+16}, {WS_MODP}")
    A(f"v_lshlrev_b32 v{B}, 2, v2")
    A("s_mov_b64 exec, 0xffff")
    A(f"buffer_store_dword v{ACC}, v{B}, {s(SRD_WS,4)}, s{T+16} offen{sc}")
    A("s_mov_b64 exec, -1")
    A(f"{skip}:")


LDS_REC = 0
LDS_KC = 18432
LDS_CARRY = 35328
TSETS = ([7, 4, 3, 0], [6, 5, 2, 1])

def conv_kcopy(A):
    T = S_T
    A(f"s_lshr_b32 s{T}, s{S_WAVE}, 1")
    A(f"s_and_b32 s{T+1}, s{S_WAVE}, 1")
    A(f"s_lshl_b32 s{T+2}, s{S_WG}, 1")
    A(f"s_add_u32 s{T+2}, s{T+2}, s{T}")
    A(f"s_lshl_b32 s{T+3}, s{T+2}, 12")
    A(f"s_mul_i32 s{T+4}, s{S_WAVE}, 4224")
    A(f"s_add_u32 s{T+4}, s{T+4}, {LDS_KC}")
    A(f"s_lshl_b32 s{T+5}, s{T+1}, 2")
    A(f"s_sub_u32 s{T+5}, 4, s{T+5}")
    A(f"v_lshlrev_b32 v3, 4, v2")
    A(f"v_add_u32 v3, s{T+5}, v3")
    A(f"s_add_u32 m0, s{T+4}, 32")
    A(f"v_mov_b32 v4, 0")
    A(f"buffer_load_dword v5, v4, {s(SRD_SSMK,4)}, s{T+3} offen")
    for i in range(4):
        A(f"buffer_load_dwordx4 v3, {s(SRD_SSMK,4)}, s{T+3} offen offset:{1024*i} lds")

def conv_kcopy_pad(A):
    T = S_T
    A(f"s_mul_i32 s{T+5}, s{T+1}, 64")
    A(f"s_add_u32 s{T+5}, s{T+5}, 7")
    A(f"v_cmp_eq_u32 vcc, s{T+5}, v2")
    A(f"v_lshlrev_b32 v6, 2, v2")
    A(f"v_add_u32 v6, s{T+4}, v6")
    A(f"v_cndmask_b32 v5, 0, v5, vcc")
    A("s_mov_b64 exec, 0xff")
    A(f"ds_write_b32 v6, v5")
    A("s_mov_b64 exec, -1")

def conv(A, SC, tag):
    sc = " sc1" if SC else ""
    T = S_T
    VAB, VAA, VAE = 8, 16, 17
    VST = 24
    VKX = 56
    VGH, VX0 = 72, 88
    ACC = 104
    FR = (136, 196)
    A(f"v_lshrrev_b32 v3, 3, v2")
    A(f"v_lshlrev_b32 v3, 7, v3")
    A(f"v_lshrrev_b32 v4, 4, v2")
    A(f"v_and_b32 v7, 7, v2")
    A(f"v_xor_b32 v7, v7, v4")
    A(f"v_lshl_add_u32 v3, v7, 4, v3")
    A(f"v_xor_b32 v7, 64, v3")
    A(f"s_lshl_b32 s{T+6}, s{S_WG}, 14")
    A(f"s_lshl_b32 s{T+7}, s{S_WAVE}, 12")
    A(f"s_add_u32 s{T+6}, s{T+6}, s{T+7}")
    if WS_REC: A(f"s_add_u32 s{T+6}, s{T+6}, {WS_REC}")
    A(f"s_add_u32 m0, s{T+7}, {LDS_REC+2048}")
    for i in range(4):
        A(f"buffer_load_dwordx4 v{7 if i&1 else 3}, {s(SRD_WS,4)}, s{T+6} offen offset:{1024*i} lds{sc}")
    A(f"v_and_b32 v21, 3, v2")
    A(f"s_movk_i32 s{T+8}, 12288")
    A(f"v_mul_lo_u32 v21, v21, s{T+8}")
    A(f"v_bfe_u32 v22, v2, 2, 2")
    A(f"v_lshl_add_u32 v21, v22, 11, v21")
    A(f"v_add_u32 v23, 2048, v21")
    A(f"v_cmp_eq_u32 vcc, 3, v22")
    A(f"s_lshl_b32 s{T+9}, s{T+2}, 2")
    A(f"s_add_u32 s{T+9}, s{T+9}, {WS_MODP}")
    A(f"v_cndmask_b32 v21, v21, v23, vcc")
    A(f"buffer_load_dword v21, v21, {s(SRD_WS,4)}, s{T+9} offen{sc}")
    A(f"s_lshl_b32 s{T+10}, s{T+2}, 1")
    A(f"v_mov_b32 v22, 0")
    A(f"buffer_load_ushort v22, v22, {s(SRD_SSMD,4)}, s{T+10} offen")
    A(f"v_and_b32 v6, 15, v2")
    A(f"v_lshlrev_b32 v23, 6, v6")
    A(f"v_lshl_add_u32 v23, v4, 4, v23")
    A(f"v_lshlrev_b32 v18, 3, v0")
    A(f"v_mov_b32 v{VGH}, 0")
    A(f"v_mov_b32 v{VGH+1}, 0")
    A(f"ds_write_b64 v18, {v(VGH,2)} offset:{LDS_REC}")
    A(f"s_mul_i32 s{T+11}, s{T}, 2080")
    A(f"s_add_u32 s{T+11}, s{T+11}, {LDS_CARRY}")
    A(f"v_mov_b32 v18, s{T+11}")
    A(f"ds_write_b32 v18, v{VGH}")
    A(f"s_lshl_b32 s{T+12}, s{T}, 1")
    for b in range(4):
        A(f"v_sub_u32 v18, v6, v4")
        A(f"v_add_u32 v18, {16-4*b}, v18")
        A(f"v_bfe_u32 v19, v18, 1, 3")
        A(f"v_xor_b32 v19, s{T+12}, v19")
        A(f"v_lshlrev_b32 v18, 7, v18")
        A(f"v_lshl_add_u32 v{VAB+2*b}, v19, 4, v18")
        A(f"v_xor_b32 v{VAB+2*b+1}, 16, v{VAB+2*b}")
    A(f"v_bfe_u32 v18, v2, 2, 2")
    A(f"v_and_b32 v19, 1, v18")
    A(f"v_add_u32 v18, 1, v18")
    A(f"v_lshrrev_b32 v18, 1, v18")
    A(f"v_and_b32 v20, 3, v2")
    A(f"v_add_u32 v18, v18, v20")
    A(f"v_lshlrev_b32 v18, 3, v18")
    A(f"v_lshl_add_u32 v18, v4, 5, v18")
    A(f"s_movk_i32 s{T+13}, 4224")
    A(f"v_mul_lo_u32 v19, v19, s{T+13}")
    A(f"s_mul_i32 s{T+13}, s{T}, 8448")
    A(f"s_add_u32 s{T+13}, s{T+13}, {LDS_KC}")
    A(f"v_add3_u32 v{VAA}, v18, v19, s{T+13}")
    A(f"v_bfe_u32 v19, v6, 1, 3")
    A(f"v_xor_b32 v19, s{T+12}, v19")
    A(f"v_lshlrev_b32 v18, 7, v6")
    A(f"v_lshl_add_u32 v18, v19, 4, v18")
    A(f"v_sub_u32 v19, 3, v4")
    A(f"v_lshl_add_u32 v{VAE}, v19, 2, v18")
    A(f"v_xor_b32 v{VAE+1}, 16, v{VAE}")
    A(f"v_xor_b32 v{VAE+2}, 64, v{VAE}")
    A(f"v_xor_b32 v{VAE+3}, 80, v{VAE}")
    A(f"s_cmp_eq_u32 s{T+1}, 1")
    A(f"s_cbranch_scc1 L_conv1{tag}")
    for par in range(2):
        TS = TSETS[par]
        if par: A(f"L_conv1{tag}:")
        for ti, J in enumerate(TS):
            A(f"s_mov_b32 s{T+14}, {WS_STAT + 1024*J}")
            A(f"s_mov_b32 s{T+15}, {WS_STAT + 8192 + 1024*J}")
            A(f"buffer_load_dwordx4 {v(VST+4*ti,4)}, v23, {s(SRD_WS,4)}, s{T+14} offen{sc}")
            A(f"buffer_load_dwordx4 {v(VST+16+4*ti,4)}, v23, {s(SRD_WS,4)}, s{T+15} offen{sc}")
        A("s_waitcnt vmcnt(10) lgkmcnt(0)")
        A("s_barrier")
        FA = (136, 168); FB = (a, a)
        def afrag(buf, a_): return 136 + 32 * buf + 4 * a_
        def bfrag(buf, p, d): return 64 * buf + 32 * p + 4 * d
        def reads(b):
            buf = b & 1
            seq = []; sa_ = set(); sb_ = set()
            for a_ in range(8):
                for J in TS:
                    if J < a_: continue
                    if a_ not in sa_:
                        sa_.add(a_)
                        for h in range(2):
                            seq.append(f"ds_read_b64_tr_b16 {v(afrag(buf,a_)+2*h,2)}, v{VAA} offset:{512*a_+128*b+16*h}")
                    if J - a_ not in sb_:
                        sb_.add(J - a_)
                        for p in range(2):
                            seq.append(f"ds_read_b128 {a(bfrag(buf,p,J-a_),4)}, v{VAB+2*b+p} offset:{LDS_REC+2048*(J-a_)}")
            return seq
        for x in reads(0): A(x)
        for ti, J in enumerate(TS):
            for k in range(4):
                A(f"ds_read_b32 v{VKX+4*ti+k}, v{VAE+k} offset:{LDS_REC+2048+2048*J}")
        started = set()
        for b in range(4):
            nxt = reads(b + 1) if b < 3 else []
            for a_ in range(8):
                for J in TS:
                    if J < a_: continue
                    for p in range(2):
                        acc = ACC + 8 * TS.index(J) + 4 * p
                        c = v(acc, 4) if (J, p) in started else "0"
                        started.add((J, p))
                        A(f"v_mfma_f32_16x16x32_bf16 {v(acc,4)}, {v(afrag(b&1,a_),4)}, {a(bfrag(b&1,p,J-a_),4)}, {c}")
                        if nxt: A(nxt.pop(0))
            assert not nxt
        A(f"v_lshl_add_u32 v18, v6, 2, v4")
        A(f"v_lshl_add_u32 v18, v18, 2, s{T+11}")
        for ti, J in enumerate(TS):
            A(f"ds_write_b32 v18, v{ACC+8*ti+7} offset:{256*J+4}")
        A(f"v_add_f32_dpp v21, v21, v21 quad_perm:[1,0,3,2] row_mask:0xf bank_mask:0xf")
        A(f"v_add_f32_dpp v21, v21, v21 quad_perm:[2,3,0,1] row_mask:0xf bank_mask:0xf")
        A(f"v_cvt_pk_bf16_f32 v21, v21, v21")
        A(f"v_lshlrev_b32 v21, 16, v21")
        A(f"v_add_f32 v19, 1.0, v21")
        A(f"v_cvt_pk_bf16_f32 v19, v19, v19")
        A(f"v_lshlrev_b32 v19, 16, v19")
        A(f"v_readlane_b32 s{T+16}, v21, 0")
        A(f"v_readlane_b32 s{T+17}, v19, 4")
        A(f"v_readlane_b32 s{T+18}, v21, 8")
        A(f"v_readlane_b32 s{T+19}, v19, 12")
        A(f"v_mov_b32 v20, s{T+18}")
        A(f"v_mul_f32 v8, s{T+17}, v20")
        A(f"v_mul_f32 v9, s{T+16}, v20")
        A(f"v_lshlrev_b32 v10, 16, v22")
        A(f"v_mov_b32 v11, s{T+19}")
        U = 136
        for ti in range(4):
            kd = VKX + 4 * ti
            kv, x = U + 8 * ti, U + 8 * ti + 4
            for base, d in ((kv, kd), (x, kd + 2)):
                A(f"v_and_b32 v{base}, 0xffff0000, v{d}")
                A(f"v_and_b32 v{base+1}, 0xffff0000, v{d+1}")
                A(f"v_lshlrev_b32 v{base+2}, 16, v{d}")
                A(f"v_lshlrev_b32 v{base+3}, 16, v{d+1}")
        for ti in range(4):
            kv, x = U + 8 * ti, U + 8 * ti + 4
            for h in range(2):
                g = VGH + 4 * ti + 2 * h
                A(f"v_pk_fma_f32 {v(g,2)}, {v(x+2*h,2)}, {v(VST+4*ti+2*h,2)}, {v(VST+16+4*ti+2*h,2)}")
                A(f"v_pk_mul_f32 {v(kv+2*h,2)}, {v(kv+2*h,2)}, v[10:11] op_sel:[0,0] op_sel_hi:[1,0]")
                A(f"v_pk_fma_f32 {v(g,2)}, {v(g,2)}, v[8:9], v[8:9] op_sel:[0,0,1] op_sel_hi:[1,0,1]")
                A(f"v_pk_fma_f32 {v(VX0+4*ti+2*h,2)}, {v(g,2)}, {v(kv+2*h,2)}, {v(x+2*h,2)}")
        A("s_waitcnt lgkmcnt(0)")
        A("s_barrier")
        for ti, J in enumerate(TS):
            A(f"ds_read_b32 v{VKX+ti}, v18 offset:{256*J}")
        for ti in range(4):
            z0, z1, g, x0 = ACC + 8 * ti, ACC + 8 * ti + 4, VGH + 4 * ti, VX0 + 4 * ti
            for h in range(2):
                A(f"v_pk_fma_f32 {v(x0+2*h,2)}, {v(g+2*h,2)}, {v(z0+2*h,2)}, {v(x0+2*h,2)}")
            for r in range(1, 4):
                A(f"v_fmac_f32 v{x0+r}, v{g+r}, v{z1+r-1}")
        for ti in range(4):
            A(f"v_fmac_f32 v{VX0+4*ti}, v{VGH+4*ti}, v{VKX+ti}")
        O1, O2 = 136, 144
        for ti in range(4):
            x0 = VX0 + 4 * ti
            for h in range(2):
                A(f"v_cvt_pk_bf16_f32 v{O1+2*ti+h}, v{x0+2*h}, v{x0+2*h+1}")
                A(f"v_pk_mul_f32 {v(x0+2*h,2)}, {v(x0+2*h,2)}, v[10:11] op_sel:[0,1] op_sel_hi:[1,1]")
            for h in range(2):
                A(f"v_cvt_pk_bf16_f32 v{O2+2*ti+h}, v{x0+2*h}, v{x0+2*h+1}")
        A(f"v_lshlrev_b32 v18, 5, v6")
        A(f"v_lshrrev_b32 v19, 1, v4")
        A(f"v_lshl_add_u32 v18, v19, 4, v18")
        A(f"v_and_b32 v19, 1, v4")
        A(f"s_lshl_b32 s{T+14}, s{T+2}, 12")
        A(f"s_add_u32 s{T+15}, s{T+14}, {WS_X1C}")
        A(f"s_add_u32 s{T+14}, s{T+14}, {WS_X1}")
        for u in range(2):
            A(f"v_mul_i32_i24 v20, {512*(TS[2*u+1]-TS[2*u])}, v19")
            A(f"v_add3_u32 v{12+u}, v18, v20, 0")
            A(f"v_add_u32 v{12+u}, {512*TS[2*u]}, v{12+u}")
        for O in (O2, O1):
            for u in range(2):
                A(f"v_permlane16_swap_b32 v{O+4*u}, v{O+4*u+2}")
                A(f"v_permlane16_swap_b32 v{O+4*u+1}, v{O+4*u+3}")
        for O, so in ((O2, T + 15), (O1, T + 14)):
            for u in range(2):
                A(f"buffer_store_dwordx4 {v(O+4*u,4)}, v{12+u}, {s(SRD_WS,4)}, s{so} offen{sc}")
        if par == 0: A(f"s_branch L_convdone{tag}")
    A(f"L_convdone{tag}:")


H_SCALE = -0.6931471805599453
LDS_XC = 0
LDS_X1 = 65536
LDS_MODV = 131072
LDS_ST2 = 133120
LDS_GB = 134144
S_RB, S_J = 90, 91

def ffn_ids(A):
    A(f"s_and_b32 s{S_RB}, s{S_WG}, 7")
    A(f"s_lshl_b32 s{S_RB}, s{S_RB}, 2")
    A(f"s_bfe_u32 s{S_J}, s{S_WG}, 0x20003")
    A(f"s_add_u32 s{S_RB}, s{S_RB}, s{S_J}")
    A(f"s_lshr_b32 s{S_J}, s{S_WG}, 5")

def tr_addr32(A, d, tmp, rowmul, base_sgpr=None, lane=2):
    A(f"v_lshrrev_b32 v{tmp}, 5, v{lane}")
    A(f"v_bfe_u32 v{tmp+1}, v{lane}, 2, 2")
    A(f"v_lshl_add_u32 v{d}, v{tmp}, {3 if rowmul == 8 else 2}, v{tmp+1}")
    A(f"v_lshlrev_b32 v{d}, 7, v{d}")
    A(f"v_and_b32 v{tmp+1}, 2, v{tmp+1}")
    if rowmul == 8: A(f"v_or_b32 v{tmp+1}, v{tmp+1}, v{tmp}")
    A(f"v_bfe_u32 v{tmp}, v{lane}, 4, 1")
    A(f"v_xor_b32 v{tmp+1}, v{tmp+1}, v{tmp}")
    A(f"v_lshl_add_u32 v{d}, v{tmp+1}, 5, v{d}")
    A(f"v_and_b32 v{tmp}, 3, v{lane}")
    A(f"v_lshl_add_u32 v{d}, v{tmp}, 3, v{d}")
    if base_sgpr is not None: A(f"v_add_u32 v{d}, s{base_sgpr}, v{d}")

def dma_loop(A, srd, v0_, v1_, soff, step, n, tag, sc=""):
    cnt = S_T + 41
    A(f"s_mov_b32 s{cnt}, {n//2}")
    A(f"L_dma{tag}:")
    A(f"buffer_load_dwordx4 v{v0_}, {s(srd,4)}, s{soff} offen lds{sc}")
    A(f"s_add_u32 m0, m0, 1024")
    A(f"s_add_u32 s{soff}, s{soff}, {step}")
    A(f"buffer_load_dwordx4 v{v1_}, {s(srd,4)}, s{soff} offen lds{sc}")
    A(f"s_add_u32 m0, m0, 1024")
    A(f"s_add_u32 s{soff}, s{soff}, {step}")
    A(f"s_sub_u32 s{cnt}, s{cnt}, 1")
    A(f"s_cmp_lg_u32 s{cnt}, 0")
    A(f"s_cbranch_scc1 L_dma{tag}")

VW1 = 240
def w1_prepare(A):
    T = S_T
    dma_voff(A, VW1, VW1 + 1, 2, 3584, 244)
    A(f"s_cmp_eq_u32 s{S_WAVE}, 3")
    A(f"s_cbranch_scc0 L_w1a")
    for k in range(2):
        A(f"v_lshrrev_b32 v244, 3, v2")
        A(f"s_movk_i32 s{T}, 3584")
        A(f"v_mul_lo_u32 v244, v244, s{T}")
        A(f"v_sub_u32 v245, v{VW1+k}, v244")
        A(f"v_bfe_u32 v246, v245, 6, 1")
        A(f"s_mov_b32 s{T}, {256*3584-64}")
        A(f"v_mul_lo_u32 v246, v246, s{T}")
        A(f"v_add_u32 v{VW1+k}, v{VW1+k}, v246")
    A("L_w1a:")
    A(f"s_lshl_b32 s{T}, s{S_WAVE}, 15")
    if LDS_XC: A(f"s_add_u32 s{T}, s{T}, {LDS_XC}")
    tr_addr32(A, VW1 + 2, 244, 8, T)
    A(f"v_xor_b32 v{VW1+3}, 64, v{VW1+2}")

def w1_issue(A, rnd, tag):
    T = S_T
    A(f"s_mul_i32 s{T+42}, s{S_J}, 448")
    A(f"s_lshl_b32 s{T}, s{S_WAVE}, 7")
    A(f"s_add_u32 s{T+42}, s{T+42}, s{T}")
    if rnd: A(f"s_add_u32 s{T+42}, s{T+42}, {256*3584}")
    A(f"s_lshl_b32 m0, s{S_WAVE}, 15")
    if LDS_XC: A(f"s_add_u32 m0, m0, {LDS_XC}")
    dma_loop(A, SRD_W1, VW1, VW1 + 1, T + 42, 8 * 3584, 32, tag)

def w1_read(A, rnd):
    for e in range(16):
        for t in range(2):
            for h in range(2):
                A(f"ds_read_b64_tr_b16 {a((32*t+16*rnd+e)*4+2*h,2)}, v{VW1+2+t} offset:{2048*e+512*h}")

def modvec(A, SC):
    sc = " sc1" if SC else ""
    T = S_T
    A(f"v_lshlrev_b32 v3, 3, v0")
    for p in range(4):
        A(f"s_mov_b32 s{T+p}, {WS_MODP + 12288*p + 1536*4}")
    for p in range(4):
        A(f"buffer_load_dwordx2 {v(8+4*p,2)}, v3, {s(SRD_WS,4)}, s{T+p} offen{sc}")
        A(f"buffer_load_dwordx2 {v(10+4*p,2)}, v3, {s(SRD_WS,4)}, s{T+p} offen offset:2048{sc}")
    for k in range(2):
        A(f"v_pk_add_f32 {v(8+2*k,2)}, {v(8+2*k,2)}, {v(12+2*k,2)}")
        A(f"v_pk_add_f32 {v(16+2*k,2)}, {v(16+2*k,2)}, {v(20+2*k,2)}")
    for k in range(2):
        A(f"v_pk_add_f32 {v(8+2*k,2)}, {v(8+2*k,2)}, {v(16+2*k,2)}")
    A(f"v_cvt_pk_bf16_f32 v8, v8, v9")
    A(f"v_cvt_pk_bf16_f32 v10, v10, v11")
    A(f"v_lshlrev_b32 v12, 16, v10")
    A(f"v_and_b32 v13, 0xffff0000, v10")
    A(f"v_add_f32 v12, 1.0, v12")
    A(f"v_add_f32 v13, 1.0, v13")
    A(f"v_cvt_pk_bf16_f32 v10, v12, v13")
    A(f"v_lshlrev_b32 v3, 2, v0")
    A(f"ds_write_b32 v3, v10 offset:{LDS_MODV-65536*2+65536*2 if False else 0}" if False else f"v_add_u32 v3, {LDS_MODV}, v3")
    A(f"ds_write_b32 v3, v10")
    A(f"ds_write_b32 v3, v8 offset:1024")

def gbvec(A, SC):
    sc = " sc1" if SC else ""
    T = S_T
    A(f"v_lshlrev_b32 v3, 2, v2")
    A(f"s_lshl_b32 s{T+4}, s{S_J}, 8")
    for p in range(4):
        A(f"s_add_u32 s{T+p}, s{T+4}, {WS_MODP + 12288*p + 2560*4}")
    for p in range(4):
        A(f"buffer_load_dword v{24+p}, v3, {s(SRD_WS,4)}, s{T+p} offen{sc}")
    A(f"v_add_f32 v24, v24, v25")
    A(f"v_add_f32 v26, v26, v27")
    A(f"v_add_f32 v24, v24, v26")
    A(f"v_cvt_pk_bf16_f32 v24, v24, v24")
    A(f"v_lshlrev_b32 v24, 16, v24")
    A(f"v_mul_f32 v24, 0xbf317218, v24")
    A(f"v_add_u32 v3, {LDS_GB}, v3")
    A(f"ds_write_b32 v3, v24")

VCS, VSBW = 64, 96
ACC1 = 128
def w1frag(w3, t, e):
    if w3: return (e if e < 16 else 32 + e - 16) * 4
    return (32 * t + e) * 4

def colsums(A):
    A("; ---- column sums ----")
    A(f"v_and_b32 v3, 1, v2")
    A(f"v_lshlrev_b32 v3, 10, v3")
    A(f"v_lshrrev_b32 v4, 5, v2")
    A(f"v_lshl_add_u32 v3, v4, 4, v3")
    A(f"v_add_u32 v3, {LDS_MODV}, v3")
    A(f"v_mov_b32 v4, {hex(NLOG2E)}")
    A(f"s_cmp_eq_u32 s{S_WAVE}, 3")
    A(f"s_cbranch_scc1 L_cs3")
    for w3 in (0, 1):
        if w3: A("L_cs3:")
        NB = 8
        for e in range(NB): A(f"ds_read_b128 {v(8+4*e,4)}, v3 offset:{32*e}")
        for e in range(32):
            for t in range(1 if w3 else 2):
                c = "0" if e == 0 else v(VSBW + 16 * t, 16)
                A(f"v_mfma_f32_32x32x16_bf16 {v(VSBW+16*t,16)}, {a(w1frag(w3,t,e),4)}, {v(8+4*(e%NB),4)}, {c}")
            if e + NB < 32: A(f"ds_read_b128 {v(8+4*(e%NB),4)}, v3 offset:{32*(e+NB)}")
        for r in range(16 if w3 else 32):
            A(f"v_mov_b32_dpp v{VCS+r}, v{VSBW+r} quad_perm:[0,0,2,2] row_mask:0xf bank_mask:0xf")
            A(f"v_mul_f32_dpp v{VSBW+r}, v{VSBW+r}, v4 quad_perm:[1,1,3,3] row_mask:0xf bank_mask:0xf")
        if not w3: A("s_branch L_csdone")
    A("L_csdone:")

def silu_ops(acc, t, rin, mr, tmp, out, packed):
    L = []
    for g0 in range(0, 16, 4):
        if packed:
            for h in range(2):
                r = g0 + 2 * h
                L.append(f"v_pk_fma_f32 {v(tmp+2*h,2)}, {v(VCS+16*t+r,2)}, {v(rin,2)}, {v(VSBW+16*t+r,2)} op_sel:[0,1,0] op_sel_hi:[1,1,1]")
            for h in range(2):
                r = g0 + 2 * h
                L.append(f"v_pk_fma_f32 {v(acc+r,2)}, {v(acc+r,2)}, {v(rin,2)}, {v(tmp+2*h,2)} op_sel:[0,0,0] op_sel_hi:[1,0,1]")
        else:
            for i in range(4): L.append(f"v_fma_f32 v{tmp+i}, v{mr}, v{VCS+16*t+g0+i}, v{VSBW+16*t+g0+i}")
            for i in range(4): L.append(f"v_fma_f32 v{acc+g0+i}, v{acc+g0+i}, v{rin}, v{tmp+i}")
        for i in range(4): L.append(f"v_exp_f32 v{tmp+i}, v{acc+g0+i}")
        if packed:
            for h in range(2): L.append(f"v_pk_add_f32 {v(tmp+2*h,2)}, {v(tmp+2*h,2)}, 1.0 op_sel_hi:[1,0]")
        else:
            for i in range(4): L.append(f"v_add_f32 v{tmp+i}, 1.0, v{tmp+i}")
        for i in range(4): L.append(f"v_rcp_f32 v{tmp+i}, v{tmp+i}")
        if packed:
            for h in range(2): L.append(f"v_pk_mul_f32 {v(tmp+2*h,2)}, {v(tmp+2*h,2)}, {v(acc+g0+2*h,2)}")
        else:
            for i in range(4): L.append(f"v_mul_f32 v{tmp+i}, v{tmp+i}, v{acc+g0+i}")
        for h in range(2): L.append(f"v_cvt_pk_bf16_f32 v{out+g0//2+h}, v{tmp+2*h}, v{tmp+2*h+1}")
    return L

def cost(ins):
    return 8 if ins.startswith(("v_exp", "v_rcp")) else 4

def gemm1(A, SC):
    sc = " sc1" if SC else ""
    T = S_T
    VXA = 8
    XF = 192
    VRS = 14
    TMP, OUT = 20, 24
    dma_voff(A, 3, 4, 2, 4096, 5)
    A(f"s_bitcmp1_b32 s{S_WAVE}, 0")
    A(f"s_cbranch_scc0 L_g1a")
    A(f"v_mov_b32 v3, v4")
    A("L_g1a:")
    A(f"s_lshl_b32 s{T}, s{S_WAVE}, 15")
    A(f"s_lshl_b32 s{T+1}, s{S_RB}, 7")
    A(f"s_add_u32 s{T}, s{T}, s{T+1}")
    A(f"s_add_u32 s{T+1}, s{T}, {WS_X1}")
    A(f"s_add_u32 s{T}, s{T}, {WS_X1C}")
    A(f"s_lshl_b32 s{T+2}, s{S_WAVE}, 10")
    for i in range(16):
        A(f"s_add_u32 m0, s{T+2}, {LDS_XC + 4096*i}")
        if i: A(f"s_add_u32 s{T}, s{T}, 131072")
        A(f"buffer_load_dwordx4 v3, {s(SRD_WS,4)}, s{T} offen lds{sc}")
        A(f"s_add_u32 m0, s{T+2}, {LDS_X1 + 4096*i}")
        if i: A(f"s_add_u32 s{T+1}, s{T+1}, 131072")
        A(f"buffer_load_dwordx4 v3, {s(SRD_WS,4)}, s{T+1} offen lds{sc}")
    tr_addr32(A, VXA, 5, 8)
    A(f"v_xor_b32 v{VXA+1}, 64, v{VXA}")
    A(f"v_lshlrev_b32 v18, 4, v2")
    A(f"s_mul_i32 s{T+3}, s{S_RB}, {2*112*1024}")
    A(f"s_mul_i32 s{T+4}, s{S_J}, {14*1024}")
    A(f"s_add_u32 s{T+3}, s{T+3}, s{T+4}")
    A(f"s_lshl_b32 s{T+4}, s{S_WAVE}, 12")
    A(f"s_add_u32 s{T+3}, s{T+3}, s{T+4}")
    A(f"s_add_u32 s{T+3}, s{T+3}, {WS_H}")
    A(f"s_add_u32 s{T+4}, s{T+3}, {112*1024}")
    A(f"v_and_b32 v19, 31, v2")
    A(f"v_lshlrev_b32 v19, 2, v19")
    A(f"v_add_u32 v19, {LDS_ST2+256}, v19")
    def xread(slot, st, e):
        return [f"ds_read_b64_tr_b16 {v(XF+4*slot+2*h,2)}, v{VXA+st} offset:{LDS_XC+2048*e+512*h}" for h in range(2)]
    def hstore(st, t, out):
        return [f"buffer_store_dwordx4 {v(out+4*k,4)}, v18, {s(SRD_WS,4)}, s{T+3+st} offen offset:{2048*t+1024*k}{sc}" for k in range(2)]
    def checkpoint(c):
        A(f"s_waitcnt vmcnt({24-8*c})")
        A("s_barrier")
    def read_rs():
        return [f"ds_read_b32 v{VRS+2*st+k}, v19 offset:{256*k+128*st}" for st in range(2) for k in range(2)]
    A(f"s_cmp_eq_u32 s{S_WAVE}, 3")
    A(f"s_cbranch_scc1 L_g1w3")
    NB = 4
    for c in range(4):
        checkpoint(c)
        for e in range(8 * c, 8 * c + NB):
            for x in xread(e % 8, 0, e): A(x)
        for e in range(8 * c, 8 * c + 8):
            for t in range(2):
                cc = "0" if e == 0 else v(ACC1 + 16 * t, 16)
                A(f"v_mfma_f32_32x32x16_bf16 {v(ACC1+16*t,16)}, {a(w1frag(0,t,e),4)}, {v(XF+4*(e%8),4)}, {cc}")
            if e + NB < 8 * c + 8:
                for x in xread((e + NB) % 8, 0, e + NB): A(x)
            elif c == 3:
                for x in xread((e + NB) % 8, 1, e + NB - 32): A(x)
    fill = []
    for t in range(2):
        fill += silu_ops(ACC1 + 16 * t, t, VRS, VRS + 1, TMP, OUT + 8 * t, False) + hstore(0, t, OUT + 8 * t)
    for e in range(32):
        for t in range(2):
            cc = "0" if e == 0 else v(ACC1 + 32 + 16 * t, 16)
            A(f"v_mfma_f32_32x32x16_bf16 {v(ACC1+32+16*t,16)}, {a(w1frag(0,t,e),4)}, {v(XF+4*(e%8),4)}, {cc}")
            budget = 24
            if t == 0 and e + NB < 32:
                for x in xread((e + NB) % 8, 1, e + NB): A(x)
                budget -= 8
            if e == 2 and t == 1:
                A("s_barrier")
                for x in read_rs(): A(x)
            if e >= 4:
                while fill and budget >= cost(fill[0]):
                    budget -= cost(fill[0]); A(fill.pop(0))
    for x in fill: A(x)
    for t in range(2):
        for x in silu_ops(ACC1 + 32 + 16 * t, t, VRS + 2, VRS + 3, TMP, OUT + 8 * t, True) + hstore(1, t, OUT + 8 * t): A(x)
    A("s_branch L_g1done")
    A("L_g1w3:")
    A(f"v_lshrrev_b32 v5, 4, v2")
    A(f"v_bfe_u32 v6, v2, 2, 2")
    A(f"v_lshl_add_u32 v10, v5, 3, v6")
    A(f"v_lshlrev_b32 v10, 7, v10")
    A(f"v_and_b32 v6, 2, v6")
    A(f"v_and_b32 v7, 1, v5")
    A(f"v_or_b32 v6, v6, v7")
    A(f"v_lshl_add_u32 v10, v6, 5, v10")
    A(f"v_and_b32 v6, 3, v2")
    A(f"v_lshl_add_u32 v10, v6, 3, v10")
    A(f"v_add_u32 v10, {LDS_X1}, v10")
    for i in range(1, 4): A(f"v_xor_b32 v{10+i}, {32*i}, v10")
    ONES, GR, SM = 40, ACC1 + 32, ACC1 + 48
    for i in range(4): A(f"v_mov_b32 v{ONES+i}, s{S_ONES}")
    def sread(e, i):
        return [f"ds_read_b64_tr_b16 {v(XF+4*((4*e+i)%8)+2*h,2)}, v{10+i} offset:{4096*e+512*h}" for h in range(2)]
    for c in range(4):
        checkpoint(c)
        seq = [(e, i) for e in range(4 * c, 4 * c + 4) for i in range(4)]
        for (e, i) in seq[:6]:
            for x in sread(e, i): A(x)
        for n, (e, i) in enumerate(seq):
            f = v(XF + 4 * ((4 * e + i) % 8), 4)
            A(f"v_mfma_f32_16x16x32_bf16 {v(GR+4*i,4)}, {f}, {f}, {'0' if e == 0 else v(GR+4*i,4)}")
            A(f"v_mfma_f32_16x16x32_bf16 {v(SM+4*i,4)}, {v(ONES,4)}, {f}, {'0' if e == 0 else v(SM+4*i,4)}")
            if n + 6 < len(seq):
                for x in sread(*seq[n + 6]): A(x)
    for e in range(NB):
        for x in xread(e, 0, e): A(x)
    A(f"s_mov_b32 s{T+6}, 0x22222222")
    A(f"s_mov_b32 s{T+7}, 0x22222222")
    A(f"s_mov_b32 s{T+8}, 0x44444444")
    A(f"s_mov_b32 s{T+9}, 0x44444444")
    A(f"s_mov_b32 s{T+10}, 0x88888888")
    A(f"s_mov_b32 s{T+11}, 0x88888888")
    A(f"v_and_b32 v6, 15, v2")
    A(f"v_lshlrev_b32 v6, 2, v6")
    A(f"v_add_u32 v6, {LDS_ST2}, v6")
    for r in range(1, 4):
        for i in range(4):
            A(f"v_cndmask_b32 v{GR+4*i}, v{GR+4*i}, v{GR+4*i+r}, {s(T+4+2*r,2)}")
    A(f"s_mov_b32 exec_lo, 0x00f0000f")
    A(f"s_mov_b32 exec_hi, 0xf0000f00")
    for i in range(4): A(f"ds_write_b32 v6, v{GR+4*i} offset:{64*i}")
    A("s_mov_b64 exec, -1")
    for i in range(1, 4):
        A(f"v_mov_b32_dpp v{SM}, v{SM+4*i} quad_perm:[0,1,2,3] row_mask:{hex(1<<i)} bank_mask:0xf")
    A(f"v_lshlrev_b32 v6, 2, v2")
    A(f"v_add_u32 v6, {LDS_ST2}, v6")
    A("s_waitcnt lgkmcnt(0)")
    A(f"ds_read_b32 v{GR}, v6")
    ln_finish(A, [(SM, GR, GR + 1, GR + 2)], GR + 3, hex(NLOG2E))
    A(f"ds_write_b32 v6, v{GR+1} offset:256")
    A(f"ds_write_b32 v6, v{GR+2} offset:512")
    A("s_waitcnt lgkmcnt(0)")
    A("s_barrier")
    for x in read_rs(): A(x)
    fill = []
    for st in range(2):
        for e in range(32):
            cc = "0" if e == 0 else v(ACC1 + 16 * st, 16)
            A(f"v_mfma_f32_32x32x16_bf16 {v(ACC1+16*st,16)}, {a(w1frag(1,0,e),4)}, {v(XF+4*(e%8),4)}, {cc}")
            budget = 24
            n = 32 * st + e + NB
            if n < 64:
                for x in xread(n % 8, n // 32, n % 32): A(x)
                budget -= 8
            if st == 1 and e >= 2:
                while fill and budget >= cost(fill[0]):
                    budget -= cost(fill[0]); A(fill.pop(0))
        if st == 0: fill = silu_ops(ACC1, 0, VRS, VRS + 1, TMP, OUT, False) + hstore(0, 0, OUT)
    for x in fill: A(x)
    for x in silu_ops(ACC1 + 16, 0, VRS + 2, VRS + 3, TMP, OUT + 8, True) + hstore(1, 0, OUT + 8): A(x)
    A("L_g1done:")

LDS_W2 = 0
LDS_XR = 114688
LDS_RED = 0
VW2 = 240

def w2_prepare(A):
    T = S_T
    dma_voff(A, VW2, VW2 + 1, 2, 1024, 246)
    A(f"s_mul_i32 s{T}, s{S_WAVE}, 28672")
    if LDS_W2: A(f"s_add_u32 s{T}, s{T}, {LDS_W2}")
    tr_addr32(A, VW2 + 2, 246, 4, None)
    A(f"s_lshr_b32 s{T+1}, s{S_WAVE}, 1")
    A(f"s_lshl_b32 s{T+1}, s{T+1}, 6")
    A(f"v_xor_b32 v{VW2+2}, s{T+1}, v{VW2+2}")
    A(f"v_add_u32 v{VW2+2}, s{T}, v{VW2+2}")
    A(f"v_xor_b32 v{VW2+3}, 32, v{VW2+2}")
    A(f"v_xor_b32 v{VW2+4}, 64, v{VW2+2}")
    A(f"v_xor_b32 v{VW2+5}, 96, v{VW2+2}")

def w2_issue(A, rnd, tag):
    T = S_T
    A(f"s_mul_i32 s{T+42}, s{S_WAVE}, {448*1024}")
    A(f"s_lshl_b32 s{T}, s{S_J}, 7")
    A(f"s_add_u32 s{T+42}, s{T+42}, s{T}")
    if rnd: A(f"s_add_u32 s{T+42}, s{T+42}, {224*1024}")
    A(f"s_mul_i32 m0, s{S_WAVE}, 28672")
    if LDS_W2: A(f"s_add_u32 m0, m0, {LDS_W2}")
    dma_loop(A, SRD_W2, VW2, VW2 + 1, T + 42, 8 * 1024, 28, tag)

def w2_read(A, rnd):
    for e in range(14):
        for u in range(2):
            for h in range(2):
                A(f"ds_read_b64_tr_b16 {a((28*u+14*rnd+e)*4+2*h,2)}, v{VW2+2+2*u+h} offset:{2048*e+1024*h}")

VXR = 8
def xres_read(A, base_rows_sgpr):
    T = S_T
    tr_addr32(A, 3, 4, 4, None)
    A(f"s_and_b32 s{T}, s{S_WAVE}, 1")
    A(f"s_lshl_b32 s{T}, s{T}, 6")
    A(f"v_xor_b32 v3, s{T}, v3")
    A(f"s_lshr_b32 s{T}, s{S_WAVE}, 1")
    A(f"s_lshl_b32 s{T}, s{T}, 12")
    A(f"s_add_u32 s{T}, s{T}, s{base_rows_sgpr}")
    A(f"v_add_u32 v3, s{T}, v3")
    A(f"v_xor_b32 v4, 32, v3")
    for k in range(4):
        A(f"ds_read_b64_tr_b16 {v(VXR+2*k,2)}, v{3+(k&1)} offset:{1024*k}")
    A(f"v_lshrrev_b32 v5, 5, v2")
    A(f"v_lshlrev_b32 v5, 4, v5")
    A(f"s_lshr_b32 s{T}, s{S_WAVE}, 1")
    A(f"s_lshl_b32 s{T}, s{T}, 7")
    A(f"s_add_u32 s{T}, s{T}, {LDS_GB}")
    A(f"v_add_u32 v5, s{T}, v5")
    for k in range(4):
        A(f"ds_read_b128 {v(16+4*k,4)}, v5 offset:{32*k}")

def gemm2(A, SC):
    sc = " sc1" if SC else ""
    T = S_T
    ACC = 32
    HF = 96; NB = 18
    A(f"v_lshlrev_b32 v6, 4, v2")
    A(f"s_lshl_b32 s{T}, s{S_RB}, 1")
    A(f"s_and_b32 s{T+1}, s{S_WAVE}, 1")
    A(f"s_add_u32 s{T+2}, s{T}, s{T+1}")
    A(f"s_xor_b32 s{T+3}, s{T+2}, 1")
    A(f"s_mul_i32 s{T+4}, s{S_WAVE}, {28*1024}")
    A(f"s_add_u32 s{T+4}, s{T+4}, {WS_H}")
    for st in range(2):
        A(f"s_mul_i32 s{T+2+st}, s{T+2+st}, {112*1024}")
        A(f"s_add_u32 s{T+2+st}, s{T+2+st}, s{T+4}")
    def hload(e):
        L = []
        if e and e % 4 == 0:
            L += [f"s_add_u32 s{T+2}, s{T+2}, 4096", f"s_add_u32 s{T+3}, s{T+3}, 4096"]
        for st in range(2):
            L.append(f"buffer_load_dwordx4 {v(HF+8*(e%NB)+4*st,4)}, v6, {s(SRD_WS,4)}, s{T+2+st} offen offset:{1024*(e%4)}{sc}")
        return L
    for e in range(NB):
        for x in hload(e): A(x)
    for e in range(28):
        for u in range(2):
            for st in range(2):
                acc = ACC + 32 * u + 16 * st
                A(f"v_mfma_f32_32x32x16_bf16 {v(acc,16)}, {a((28*u+e)*4,4)}, {v(HF+8*(e%NB)+4*st,4)}, {'0' if e == 0 else v(acc,16)}")
        if e + NB < 28:
            for x in hload(e + NB): A(x)
    A("s_barrier")
    for k in range(1, 4):
        A(f"s_xor_b32 s{T+5}, s{S_WAVE}, {k}")
        A(f"s_mul_i32 s{T+5}, s{T+5}, 12288")
        A(f"s_add_u32 s{T+5}, s{T+5}, {LDS_RED + 4096*(k-1)}")
        A(f"v_add_u32 v7, s{T+5}, v6")
        for q in range(4):
            A(f"ds_write_b128 v7, {v(ACC+16*k+4*q,4)} offset:{1024*q}")
    A(f"s_mul_i32 s{T+5}, s{S_WAVE}, 12288")
    if LDS_RED: A(f"s_add_u32 s{T+5}, s{T+5}, {LDS_RED}")
    A(f"v_add_u32 v7, s{T+5}, v6")
    A("s_waitcnt lgkmcnt(0)")
    A("s_barrier")
    for k in range(3):
        for q in range(4):
            A(f"ds_read_b128 {v(HF+16*k+4*q,4)}, v7 offset:{4096*k+1024*q}")
    XU = HF + 48
    for k in range(8):
        A(f"v_lshlrev_b32 v{XU+2*k}, 16, v{VXR+k}")
        A(f"v_and_b32 v{XU+2*k+1}, 0xffff0000, v{VXR+k}")
    A(f"v_and_b32 v3, 31, v2")
    A(f"v_lshlrev_b32 v3, 10, v3")
    A(f"v_lshrrev_b32 v4, 5, v2")
    A(f"v_lshl_add_u32 v3, v4, 4, v3")
    A(f"s_lshl_b32 s{T+5}, s{S_RB}, 1")
    A(f"s_add_u32 s{T+5}, s{T+5}, s{T+1}")
    A(f"s_lshl_b32 s{T+5}, s{T+5}, 15")
    A(f"s_lshl_b32 s{T+6}, s{S_J}, 7")
    A(f"s_add_u32 s{T+5}, s{T+5}, s{T+6}")
    A(f"s_lshr_b32 s{T+6}, s{S_WAVE}, 1")
    A(f"s_lshl_b32 s{T+6}, s{T+6}, 6")
    A(f"s_add_u32 s{T+5}, s{T+5}, s{T+6}")
    for k in range(3):
        for r in range(0, 16, 2):
            A(f"v_pk_add_f32 {v(ACC+r,2)}, {v(ACC+r,2)}, {v(HF+16*k+r,2)}")
    for r in range(0, 16, 2):
        A(f"v_pk_fma_f32 {v(ACC+r,2)}, {v(ACC+r,2)}, {v(16+r,2)}, {v(XU+r,2)}")
    for r in range(0, 16, 2):
        A(f"v_cvt_pk_bf16_f32 v{HF+r//2}, v{ACC+r}, v{ACC+r+1}")
    for kk in range(2):
        A(f"v_permlane32_swap_b32 v{HF+4*kk}, v{HF+4*kk+2}")
        A(f"v_permlane32_swap_b32 v{HF+4*kk+1}, v{HF+4*kk+3}")
    for kk in range(2):
        A(f"buffer_store_dwordx4 {v(HF+4*kk,4)}, v3, {s(SRD_OUT,4)}, s{T+5} offen offset:{32*kk}")

def kernel_head(A, name):
    A(".text")
    A(f".globl {name}")
    A(".p2align 8")
    A(f".type {name},@function")
    A(f"{name}:")

def kd(name, vgpr, acc, sgpr=102):
    return f""".section .rodata,"a"
.p2align 6
.amdhsa_kernel {name}
  .amdhsa_next_free_vgpr {vgpr}
  .amdhsa_next_free_sgpr {sgpr}
  .amdhsa_accum_offset {acc}
  .amdhsa_group_segment_fixed_size 0
  .amdhsa_kernarg_size 112
  .amdhsa_user_sgpr_count 2
  .amdhsa_user_sgpr_kernarg_segment_ptr 1
  .amdhsa_system_sgpr_workgroup_id_x 1
  .amdhsa_float_denorm_mode_32 3
.end_amdhsa_kernel
"""

HEADER = open("cdna_kernels/" + NAME + ".s.ref").read().split("; Override launch")[0]

def build_split(upto=4):
    kernels = []
    A = Asm()
    A('.amdgcn_target "amdgcn-amd-amdhsa--gfx950"')
    kernel_head(A, "p0_kernel")
    setup(A, [SRD_SHK, SRD_K, SRD_V, SRD_Q, SRD_C, SRD_WMOD, SRD_WS], "L_p0_end")
    phase0(A, False)
    gemv(A, False, "L_p0_nogemv")
    A("L_p0_end:")
    A("s_endpgm")
    kernels.append(("p0_kernel", 256, 32768, 256, 256))
    kernel_head(A, "p1_kernel")
    setup(A, [SRD_SSMK, SRD_WS, SRD_SSMD], "L_p1_end")
    A("v_and_b32 v2, 63, v0")
    A("s_waitcnt lgkmcnt(0)")
    conv_kcopy(A)
    conv_kcopy_pad(A)
    conv(A, False, "")
    A("L_p1_end:")
    A("s_endpgm")
    kernels.append(("p1_kernel", 256, 40960, 384, 256))
    kernel_head(A, "p2_kernel")
    setup(A, [SRD_W1, SRD_WS], "L_p2_end")
    A("v_and_b32 v2, 63, v0")
    ffn_ids(A)
    w1_prepare(A)
    A("s_waitcnt lgkmcnt(0)")
    w1_issue(A, 0, "w1a")
    modvec(A, False)
    A("s_waitcnt vmcnt(0)")
    w1_read(A, 0)
    A("s_waitcnt lgkmcnt(0)")
    A(f"s_cmp_eq_u32 s{S_WAVE}, 3")
    A(f"s_cbranch_scc1 L_p2_skip")
    w1_issue(A, 1, "w1b")
    A("s_waitcnt vmcnt(0)")
    w1_read(A, 1)
    A("s_waitcnt lgkmcnt(0)")
    A("L_p2_skip:")
    A("s_barrier")
    colsums(A)
    gemm1(A, False)
    A("L_p2_end:")
    A("s_endpgm")
    kernels.append(("p2_kernel", 256, 140000, 512, 256))
    kernel_head(A, "p3_kernel")
    setup(A, [SRD_W2, SRD_WS, SRD_OUT], "L_p3_end")
    A("v_and_b32 v2, 63, v0")
    ffn_ids(A)
    w2_prepare(A)
    A("s_waitcnt lgkmcnt(0)")
    T = S_T
    dma_voff(A, 3, 4, 2, 4096, 5)
    A(f"s_lshl_b32 s{T}, s{S_J}, 18")
    A(f"s_lshl_b32 s{T+1}, s{S_WAVE}, 16")
    A(f"s_add_u32 s{T}, s{T}, s{T+1}")
    A(f"s_lshl_b32 s{T+1}, s{S_RB}, 7")
    A(f"s_add_u32 s{T}, s{T}, s{T+1}")
    A(f"s_add_u32 s{T}, s{T}, {WS_X1}")
    A(f"s_lshl_b32 s{T+1}, s{S_WAVE}, 11")
    A(f"s_add_u32 m0, s{T+1}, {LDS_XR}")
    A(f"buffer_load_dwordx4 v3, {s(SRD_WS,4)}, s{T} offen lds")
    A(f"s_add_u32 m0, m0, 1024")
    A(f"s_add_u32 s{T}, s{T}, 32768")
    A(f"buffer_load_dwordx4 v4, {s(SRD_WS,4)}, s{T} offen lds")
    w2_issue(A, 0, "w2a")
    gbvec(A, False)
    A("s_waitcnt vmcnt(0) lgkmcnt(0)")
    A("s_barrier")
    w2_read(A, 0)
    A(f"s_mov_b32 s{T+20}, {LDS_XR}")
    xres_read(A, T + 20)
    A("s_waitcnt lgkmcnt(0)")
    w2_issue(A, 1, "w2b")
    A("s_waitcnt vmcnt(0)")
    w2_read(A, 1)
    gemm2(A, False)
    A("L_p3_end:")
    A("s_endpgm")
    kernels.append(("p3_kernel", 256, 140000, 512, 256))
    A.autowait()
    A.pad()
    head = HEADER
    for n, thr, lds, vg, ac in kernels:
        head += f"; @launch kernel={n} grid=(256,1,1) block=({thr},1,1) lds={lds}\n"
    out = head + A.text()
    for n, thr, lds, vg, ac in kernels:
        out += kd(n, vg, ac)
    return out

if __name__ == "__main__":
    path = sys.argv[1] if len(sys.argv) > 1 else "k.s"
    open(path, "w").write(build_split())
    print("wrote", path)
```

```python
import re

def v(n, c=1): return f"v{n}" if c == 1 else f"v[{n}:{n+c-1}]"
def a(n, c=1): return f"a{n}" if c == 1 else f"a[{n}:{n+c-1}]"
def s(n, c=1): return f"s{n}" if c == 1 else f"s[{n}:{n+c-1}]"

TRANS = ("v_exp_f32", "v_log_f32", "v_rcp_f32", "v_rsq_f32", "v_sqrt_f32", "v_sin_f32", "v_cos_f32", "v_rcp_iflag_f32")
_REG = re.compile(r"^-?\|?(?:abs\()?([vas])(?:(\d+)|\[(\d+):(\d+)\])\)?\|?$")

def regs_of(op):
    op = op.strip()
    if op == "vcc": return {("s", "vcc")}
    if op == "exec": return {("s", "exec")}
    if op == "m0": return {("s", "m0")}
    m = _REG.match(op)
    if not m: return set()
    k = m.group(1)
    if m.group(2) is not None: lo = hi = int(m.group(2))
    else: lo, hi = int(m.group(3)), int(m.group(4))
    return {(k, i) for i in range(lo, hi + 1)}

class Ins:
    def __init__(self, text):
        self.text = text
        t = text.split(";")[0].strip()
        parts = t.split(None, 1)
        self.op = parts[0]
        rest = parts[1] if len(parts) > 1 else ""
        ops = [x.strip() for x in rest.split(",")] if rest else []
        mods = ""
        if ops:
            last = ops[-1].split()
            k = 0
            while len(ops) > 1 and ("[" in ops[-1] and "]" not in ops[-1] or ops[-1].count("]") > ops[-1].count("[")):
                ops[-2] = ops[-2] + "," + ops[-1]; ops.pop()
            toks = []
            for i, o in enumerate(ops):
                w = o.split()
                toks.append(w[0] if w else "")
                if len(w) > 1: mods += " " + " ".join(w[1:])
            ops = toks
        self.ops = ops; self.mods = mods
        op = self.op
        self.is_mfma = op.startswith("v_mfma")
        self.is_valu = op.startswith("v_") and not self.is_mfma
        self.is_salu = op.startswith("s_")
        self.is_ds = op.startswith("ds_")
        self.is_vmem = op.startswith(("buffer_", "global_", "flat_"))
        self.is_trans = any(op.startswith(x) for x in TRANS)
        self.is_dot = op.startswith("v_dot")
        self.is_dpp = "_dpp" in op or any(x in mods for x in ("quad_perm", "row_shr", "row_shl", "row_ror", "row_bcast", "row_mirror", "row_half_mirror", "wave_sh", "wave_ro", "row_newbcast"))
        self.is_permlane = op.startswith("v_permlane")
        self.is_lds_dma = (self.is_vmem and (" lds" in mods or "_lds_" in op))
        self.passes = 0
        if self.is_mfma:
            self.passes = 8 if "32x32x16" in op else 4
        w, r = set(), set()
        R = [regs_of(o) for o in ops]
        self.srcc = set(); self.srcab = set(); self.storedata = set(); self.wide_store = False
        if self.is_mfma:
            w |= R[0]; self.srcab = R[1] | R[2]; self.srcc = R[3]; r |= self.srcab | self.srcc
        elif self.is_permlane:
            w |= R[0] | R[1]; r |= R[0] | R[1]
        elif op.startswith("v_cmp"):
            w |= R[0]
            for x in R[1:]: r |= x
            if op.startswith("v_cmpx"): w |= {("s", "exec")}
        elif op.startswith(("v_add_co", "v_sub_co", "v_addc_co", "v_subb_co")):
            w |= R[0] | R[1]
            for x in R[2:]: r |= x
        elif self.is_valu:
            w |= R[0]
            for x in R[1:]: r |= x
            if op.startswith(("v_fmac", "v_dot2c", "v_pk_fmac", "v_writelane")) or self.is_dpp: r |= R[0]
            if op.startswith("v_cndmask") and len(ops) == 3: r |= {("s", "vcc")}
        elif self.is_ds:
            if op.startswith(("ds_read", "ds_bpermute", "ds_permute", "ds_swizzle")) or "_rtn" in op:
                w |= R[0]
                for x in R[1:]: r |= x
            else:
                for x in R: r |= x
        elif self.is_vmem:
            if "store" in op:
                for x in R: r |= x
                d = R[0] if op.startswith("buffer_") else R[1]
                self.storedata = d; self.wide_store = op.endswith(("x3", "x4"))
            elif "atomic" in op:
                for x in R: r |= x
                if "sc0" in mods: w |= R[0]
            elif self.is_lds_dma:
                for x in R: r |= x
                r |= {("s", "m0")}
            elif op.startswith("buffer_inv") or op.startswith("buffer_wbl2"):
                pass
            else:
                w |= R[0]
                for x in R[1:]: r |= x
        elif self.is_salu:
            if op.startswith(("s_cmp", "s_cbranch", "s_branch", "s_waitcnt", "s_nop", "s_barrier", "s_sleep", "s_endpgm", "s_setprio", "s_bitcmp")):
                for x in R: r |= x
            else:
                if R: w |= R[0]
                for x in R[1:]: r |= x
                if "saveexec" in op: w |= {("s", "exec")}
        self.w, self.r = w, r
        self.states = 1
        if op == "s_nop": self.states = int(ops[0], 0) + 1

def required(p, c):
    n = 0
    pv = {x for x in p.w if x[0] in "va"}
    ps = {x for x in p.w if x[0] == "s"}
    if p.is_valu:
        if pv & c.r:
            if c.is_dpp: n = max(n, 2)
            if c.is_permlane: n = max(n, 2)
            if c.is_mfma: n = max(n, 2)
            if c.op.startswith(("v_readlane", "v_readfirstlane")): n = max(n, 1)
            if p.is_trans and c.is_valu and not c.is_trans: n = max(n, 1)
            if p.is_trans and c.is_valu: n = max(n, 1)
            if "sdwa" in p.op and c.is_valu: n = max(n, 1)
        if p.is_dot and (pv & (c.r | c.w)):
            same = c.op == p.op
            if not same: n = max(n, 3)
            else:
                cab = set()
                for o in c.ops[1:3]: cab |= regs_of(o)
                if pv & cab: n = max(n, 3)
        if ps & c.r:
            if c.is_valu or c.is_mfma: n = max(n, 2)
            if c.op.startswith(("v_readlane", "v_writelane")): n = max(n, 4)
            if c.is_vmem: n = max(n, 5)
            if c.is_salu: n = max(n, 1)
        if ("s", "exec") in ps:
            if c.is_dpp: n = max(n, 5)
            if c.is_mfma or c.is_permlane or c.op.startswith(("v_readlane", "v_readfirstlane", "v_writelane")): n = max(n, 4)
    if p.is_salu and ("s", "m0") in ps and c.is_lds_dma: n = max(n, 1)
    if p.is_mfma:
        big = p.passes == 8
        if c.is_mfma:
            if pv & c.srcab: n = max(n, 12 if big else 8)
            if pv & c.srcc:
                if not (c.srcc == pv and c.passes == p.passes): n = max(n, 10 if big else 6)
            elif pv & c.w: n = max(n, 12 if big else 8)
        elif (c.is_valu or c.is_vmem or c.is_ds) and (pv & (c.r | c.w)):
            n = max(n, 12 if big else 8)
        if c.is_valu and (p.srcc & c.w): n = max(n, 7 if big else 3)
    if p.is_vmem and p.wide_store and (p.storedata & c.w):
        n = max(n, 2 if c.is_valu else 1)
    return n

class Asm:
    def __init__(self):
        self.items = []
    def __call__(self, text):
        for line in text.split("\n"):
            line = line.strip()
            if not line: continue
            if line.startswith(";"):
                self.items.append(("c", line))
            elif line.endswith(":"):
                self.items.append(("l", line[:-1]))
            elif line.startswith("."):
                self.items.append(("d", line))
            else:
                self.items.append(("i", Ins(line)))
    def label(self, n): self.items.append(("l", n))
    def pad(self):
        MAXD = 13
        changed = True
        total = 0
        start = 0
        while changed:
            changed = False
            items = self.items
            idx = [i for i, it in enumerate(items) if it[0] == "i"]
            labels = {}
            for i, it in enumerate(items):
                if it[0] == "l": labels[it[1]] = i
            branches_to = {}
            for i in idx:
                ins = items[i][1]
                if ins.op.startswith(("s_cbranch", "s_branch")):
                    branches_to.setdefault(labels[ins.ops[0]], []).append(i)
            def preds(i):
                out = []
                j = i - 1
                while j >= 0:
                    k = items[j][0]
                    if k == "i":
                        if items[j][1].op not in ("s_branch", "s_endpgm", "s_setpc_b64"): out.append(j)
                        break
                    if k == "l": out += branches_to.get(j, [])
                    j -= 1
                return out
            for i in idx:
                if i < start: continue
                c = items[i][1]
                need = 0
                stack = [(p, 0) for p in preds(i)]
                seen = {}
                while stack:
                    j, d = stack.pop()
                    if seen.get(j, 99) <= d: continue
                    seen[j] = d
                    p = items[j][1]
                    rq = required(p, c)
                    if rq > d: need = max(need, rq - d)
                    d2 = d + p.states
                    if d2 < MAXD:
                        for q in preds(j): stack.append((q, d2))
                if need > 0:
                    items.insert(i, ("i", Ins(f"s_nop {need-1}")))
                    total += 1
                    changed = True
                    start = i
                    break
            if not changed and start > 0:
                start = 0
                changed = True
        return total
    def autowait(self):
        out = []
        vm, lg = [], []
        saved = {}
        dead = False
        def merge(p, q):
            d = {}
            for regs, n in p + q:
                d[regs] = min(n, d.get(regs, 1 << 30))
            return sorted(d.items(), key=lambda x: -x[1])
        seen = set()
        for k, x in self.items:
            if k == "l":
                seen.add(x)
                if x in saved:
                    svm, slg = saved[x]
                    if dead: vm, lg = list(svm), list(slg)
                    else: vm, lg = merge(vm, svm), merge(lg, slg)
                if not x.startswith("L_stub"): dead = False
                out.append((k, x)); continue
            if k != "i":
                out.append((k, x)); continue
            ins = x
            if ins.op == "s_waitcnt":
                m = re.search(r"vmcnt\((\d+)\)", ins.text); n = re.search(r"lgkmcnt\((\d+)\)", ins.text)
                if m: vm = [e for e in vm if e[1] < int(m.group(1))]
                if n: lg = [e for e in lg if e[1] < int(n.group(1))]
                out.append((k, x)); continue
            touch = ins.r | ins.w
            nv = min([n for d, n in vm if d & touch], default=None)
            nl = min([n for d, n in lg if d & touch], default=None)
            if nv is not None or nl is not None:
                w = "s_waitcnt"
                if nv is not None:
                    nv = min(nv, 63); w += f" vmcnt({nv})"; vm = [e for e in vm if e[1] < nv]
                if nl is not None:
                    nl = min(nl, 15); w += f" lgkmcnt({nl})"; lg = [e for e in lg if e[1] < nl]
                out.append(("i", Ins(w)))
            dst = frozenset(y for y in ins.w if y[0] in "va") if "nowait" not in ins.text else frozenset()
            if ins.is_vmem and not ins.op.startswith(("buffer_inv", "buffer_wbl2")):
                vm = [(d, n + 1) for d, n in vm] + ([(dst, 0)] if dst else [])
            if ins.is_ds:
                lg = [(d, n + 1) for d, n in lg] + ([(dst, 0)] if dst else [])
            if ins.op.startswith(("s_cbranch", "s_branch")):
                tgt = ins.ops[0]
                if tgt not in seen:
                    if tgt in saved: saved[tgt] = (merge(saved[tgt][0], vm), merge(saved[tgt][1], lg))
                    else: saved[tgt] = (list(vm), list(lg))
                if ins.op == "s_branch": dead = True
            if ins.op == "s_endpgm": vm, lg, dead = [], [], True
            if ins.op == "s_setpc_b64": dead = True
            out.append((k, x))
        self.items = out
    def text(self):
        out = []
        for k, x in self.items:
            if k == "i": out.append("    " + x.text)
            elif k == "l": out.append(x + ":")
            elif k == "d": out.append(x)
            else: out.append("    " + x)
        return "\n".join(out) + "\n"
```

```python
import sys
sys.path.insert(0, "dev")
from asmlib import Asm, v, a, s

NAME = "adaLN_cond__ssm_conv_h3__dense_activation_silu__prompt"
STAGE = 4
REC_LAYOUT = 2
H_SCALE = -0.6931471805599453

WS_REC = 0
WS_X1 = 4 << 20
WS_X1C = 6 << 20
WS_H = 8 << 20
WS_STAT = 16 << 20
WS_MODP = (16 << 20) + 65536
WS_SYNC = 17 << 20
WS_PROF = (17 << 20) + (512 << 10)
WS_SIZE = 18 << 20
CNT_A, FLG_A, CNT_B, FLG_B, CNT_2, FLG_2, FLG_3 = 0, 16, 32, 48, 64, 80, 128

S_WG = 2; S_WAVE = 3
SRD_Q, SRD_K, SRD_V, SRD_SSMK, SRD_W1, SRD_W2, SRD_WMOD, SRD_OUT, SRD_WS, SRD_SHK, SRD_C, SRD_SSMD = [4 + 4 * i for i in range(12)]
S_DBG = 52
T = 54
S_PI, S_PM, S_PS, S_PE = 88, 89, 90, 91
S_RB, S_J, S_RL, S_CH, S_CARRY, S_SPIN = 92, 93, 94, 95, 96, 97
S_TMP = 98
S_SELLO, S_SELHI, S_ONES = 99, 100, 101

KARG = {SRD_Q: (0, 2097152), SRD_K: (8, 2097152), SRD_V: (16, 2097152), SRD_SHK: (24, 4096), SRD_SSMK: (32, 2097152),
        SRD_SSMD: (40, 1024), SRD_W1: (56, 512 * 1792 * 2), SRD_W2: (64, 512 * 1792 * 2), SRD_C: (72, 1024),
        SRD_WMOD: (80, 512 * 3072 * 2), SRD_OUT: (88, 2097152), SRD_WS: (104, WS_SIZE)}
NLOG2E = 0xbfb8aa3b

LDS_XC = 0
LDS_X1 = 65536
LDS_GM = 98304
LDS_SC = 114688
LDS_REC = 98304
LDS_CARRY = 116736
LDS_KC = 131072
LDS_MODV = 147968
LDS_CS = 150144
LDS_ST2 = 152192
LDS_GB = 152960
LDS_RED = 0
LDS_TOTAL = 163840

V_LANE = 2
VW1 = 240
VW2 = 246

class Opt:
    prof = False; cyc = False
    w1_depth = 8
    conv_pieces = 16
O = Opt()

_stamps = []
STAMPS = {}
def stamp(A, name):
    if not O.prof: return
    n = len(_stamps); _stamps.append(name)
    assert n < 12
    A(f"s_memtime s[74:75]" if O.cyc else f"s_memrealtime s[74:75]")
    A("s_waitcnt lgkmcnt(0)")
    A(f"s_mov_b32 s{76+n}, s74")
def stamp_flush(A, kidx):
    global _stamps
    if not O.prof: return
    A(f"s_lshl_b32 s74, s{S_WG}, 2")
    A(f"s_add_u32 s74, s74, s{S_WAVE}")
    A(f"s_lshl_b32 s74, s74, 6")
    A(f"s_add_u32 s74, s74, {WS_PROF + kidx*65536}")
    A("v_mov_b32 v254, 0")
    for n in range(len(_stamps)):
        A(f"v_mov_b32 v255, s{76+n}")
        A(f"buffer_store_dword v255, v254, {s(SRD_WS,4)}, s74 offen offset:{4*n}")
    STAMPS[kidx] = list(_stamps)
    _stamps = []

def dma_voff(A, d0, d1, rowstride, tmp):
    A(f"v_lshrrev_b32 v{tmp}, 3, v{V_LANE}")
    A(f"v_and_b32 v{d1}, 2, v{tmp}")
    A(f"v_lshlrev_b32 v{d1}, 5, v{d1}")
    A(f"v_and_b32 v{d0}, 7, v{V_LANE}")
    A(f"v_lshlrev_b32 v{d0}, 4, v{d0}")
    A(f"v_xor_b32 v{d0}, v{d0}, v{d1}")
    A(f"v_mul_u32_u24 v{tmp}, {rowstride}, v{tmp}")
    A(f"v_add_u32 v{d0}, v{d0}, v{tmp}")
    A(f"v_xor_b32 v{d1}, 32, v{d0}")

def tr_addr32(A, d, tmp, rowmul):
    L = V_LANE
    A(f"v_lshrrev_b32 v{tmp}, 5, v{L}")
    A(f"v_bfe_u32 v{tmp+1}, v{L}, 2, 2")
    A(f"v_lshl_add_u32 v{d}, v{tmp}, {3 if rowmul == 8 else 2}, v{tmp+1}")
    A(f"v_lshlrev_b32 v{d}, 7, v{d}")
    A(f"v_and_b32 v{tmp+1}, 2, v{tmp+1}")
    if rowmul == 8: A(f"v_or_b32 v{tmp+1}, v{tmp+1}, v{tmp}")
    A(f"v_bfe_u32 v{tmp}, v{L}, 4, 1")
    A(f"v_xor_b32 v{tmp+1}, v{tmp+1}, v{tmp}")
    A(f"v_lshl_add_u32 v{d}, v{tmp+1}, 5, v{d}")
    A(f"v_and_b32 v{tmp}, 3, v{L}")
    A(f"v_lshl_add_u32 v{d}, v{tmp}, 3, v{d}")

def tr_addr16(A, d, tmp):
    L = V_LANE
    A(f"v_lshrrev_b32 v{tmp}, 4, v{L}")
    A(f"v_bfe_u32 v{tmp+1}, v{L}, 2, 2")
    A(f"v_lshl_add_u32 v{d}, v{tmp}, 3, v{tmp+1}")
    A(f"v_lshlrev_b32 v{d}, 7, v{d}")
    A(f"v_and_b32 v{tmp+1}, 2, v{tmp+1}")
    A(f"v_and_b32 v{tmp}, 1, v{tmp}")
    A(f"v_or_b32 v{tmp+1}, v{tmp+1}, v{tmp}")
    A(f"v_lshl_add_u32 v{d}, v{tmp+1}, 5, v{d}")
    A(f"v_and_b32 v{tmp}, 3, v{L}")
    A(f"v_lshl_add_u32 v{d}, v{tmp}, 3, v{d}")

def ln_finish(A, rows, tmp, scale=None):
    steps = [
        lambda su, sq, o1, o2, t: [f"v_mul_f32 v{su}, 0x3b000000, v{su}", f"v_mul_f32 v{sq}, 0x3b000000, v{sq}"],
        lambda su, sq, o1, o2, t: [f"v_fma_f32 v{sq}, -v{su}, v{su}, v{sq}"],
        lambda su, sq, o1, o2, t: [f"v_max_f32 v{sq}, 0, v{sq}"],
        lambda su, sq, o1, o2, t: [f"v_cvt_pk_bf16_f32 v{t}, v{su}, v{sq}"],
        lambda su, sq, o1, o2, t: [f"v_lshlrev_b32 v{su}, 16, v{t}", f"v_and_b32 v{sq}, 0xffff0000, v{t}"],
        lambda su, sq, o1, o2, t: [f"v_add_f32 v{sq}, 0x3727c5ac, v{sq}"],
        lambda su, sq, o1, o2, t: [f"v_cvt_pk_bf16_f32 v{sq}, v{sq}, v{sq}"],
        lambda su, sq, o1, o2, t: [f"v_lshlrev_b32 v{sq}, 16, v{sq}"],
        lambda su, sq, o1, o2, t: [f"v_sqrt_f32 v{sq}, v{sq}"],
        lambda su, sq, o1, o2, t: [f"v_cvt_pk_bf16_f32 v{sq}, v{sq}, v{sq}"],
        lambda su, sq, o1, o2, t: [f"v_lshlrev_b32 v{sq}, 16, v{sq}"],
        lambda su, sq, o1, o2, t: [f"v_rcp_f32 v{o1}, v{sq}"],
        lambda su, sq, o1, o2, t: [f"v_mul_f32 v{o1}, {scale}, v{o1}"] if scale else [],
        lambda su, sq, o1, o2, t: [f"v_mul_f32 v{o2}, -v{su}, v{o1}"],
    ]
    for st in steps:
        for i, r in enumerate(rows):
            for x in st(*r, tmp + i): A(x)

_uid = [0]
def uid():
    _uid[0] += 1; return _uid[0]

def signal(A, cnt, flag):
    u = uid()
    A(f"s_and_b32 s{S_TMP}, s{S_WG}, 15")
    A(f"s_lshl_b32 s{S_TMP}, s{S_TMP}, 7")
    A(f"s_add_u32 s{S_TMP}, s{S_TMP}, {WS_SYNC}")
    A("s_mov_b64 exec, 1")
    A(f"v_mov_b32 v252, {128*cnt}")
    A(f"v_mov_b32 v253, 1")
    A(f"buffer_atomic_add v253, v252, {s(SRD_WS,4)}, s{S_TMP} offen sc0 sc1")
    A("s_waitcnt vmcnt(0)")
    A(f"v_cmp_eq_u32 vcc, 15, v253")
    A(f"v_mov_b32 v252, {128*flag}")
    A(f"v_mov_b32 v253, 1")
    A(f"s_cbranch_vccz L_sig{u}")
    A(f"buffer_store_dword v253, v252, {s(SRD_WS,4)}, s{S_TMP} offen sc1")
    A(f"L_sig{u}:")
    A("s_mov_b64 exec, -1")

def poll(A, nlanes, stride, base_sgpr_or_imm, want=1):
    u = uid()
    A(f"s_mov_b64 exec, {hex((1 << nlanes) - 1)}")
    A(f"v_mul_u32_u24 v252, {stride}, v{V_LANE}")
    if isinstance(base_sgpr_or_imm, int): A(f"s_mov_b32 s{S_TMP}, {base_sgpr_or_imm}")
    else: A(f"s_mov_b32 s{S_TMP}, {base_sgpr_or_imm}")
    A(f"s_mov_b32 s{S_SPIN}, 0x80000")
    A(f"L_poll{u}:")
    A(f"buffer_load_dword v253, v252, {s(SRD_WS,4)}, s{S_TMP} offen sc1")
    A(f"s_sub_u32 s{S_SPIN}, s{S_SPIN}, 1")
    A(f"s_cbranch_scc1 L_pollx{u}")
    A("s_waitcnt vmcnt(0)")
    A(f"v_cmp_ne_u32 vcc, {want}, v253")
    A(f"s_cbranch_vccz L_pollx{u}")
    A("s_sleep 1")
    A(f"s_branch L_poll{u}")
    A(f"L_pollx{u}:")
    A("s_waitcnt vmcnt(0)")
    A("s_mov_b64 exec, -1")

def only_wave3(A, body):
    u = uid()
    A(f"s_cmp_eq_u32 s{S_WAVE}, 3")
    A(f"s_cbranch_scc0 L_w3_{u}")
    body()
    A(f"L_w3_{u}:")

def split_wave3(A, others, w3):
    u = uid()
    A(f"s_cmp_eq_u32 s{S_WAVE}, 3")
    A(f"s_cbranch_scc1 L_s3a_{u}")
    others()
    A(f"s_branch L_s3b_{u}")
    A(f"L_s3a_{u}:")
    w3()
    A(f"L_s3b_{u}:")

def w1_begin(A, rnd):
    A(f"s_lshl_b32 s{S_PI}, s{S_RL}, 3")
    A(f"s_lshl_b32 s{S_PE}, s{S_J}, 3")
    if rnd: A(f"s_add_u32 s{S_PE}, s{S_PE}, 32")
    A(f"s_lshl_b32 s{S_PM}, s{S_WAVE}, 15")
    A(f"s_mul_i32 s{S_PS}, s{S_J}, 448")
    A(f"s_lshl_b32 s{S_TMP}, s{S_WAVE}, 7")
    A(f"s_add_u32 s{S_PS}, s{S_PS}, s{S_TMP}")

def w1_piece(par, w3=False):
    L = [f"s_and_b32 s{S_TMP}, s{S_PI}, 31",
         f"s_lshl_b32 m0, s{S_TMP}, 10",
         f"s_add_u32 s{S_TMP}, s{S_TMP}, s{S_PE}",
         f"s_add_u32 m0, m0, s{S_PM}"]
    if w3:
        L += [f"s_bitcmp1_b32 s{S_TMP}, 5",
              f"s_cselect_b64 vcc, -1, 0",
              f"s_and_b32 s{S_TMP}, s{S_TMP}, 31",
              f"v_cndmask_b32 v252, v{VW1+par}, v{VW1+4+par}, vcc"]
    else:
        L += [f"s_and_b32 s{S_TMP}, s{S_TMP}, 63"]
    L += [f"s_mul_i32 s{S_TMP}, s{S_TMP}, {8*3584}",
          f"s_add_u32 s{S_PI}, s{S_PI}, 1",
          f"s_add_u32 s{S_TMP}, s{S_TMP}, s{S_PS}",
          f"buffer_load_dwordx4 v{252 if w3 else VW1+par}, {s(SRD_W1,4)}, s{S_TMP} offen lds"]
    return L

def stream(A, piece, n, depth):
    u = uid()
    A(f"s_mov_b32 s{S_SPIN}, {n//2}")
    A(f"L_st{u}:")
    for par in range(2):
        for x in piece(par): A(x)
        if depth: A(f"s_waitcnt vmcnt({depth-1})")
    A(f"s_sub_u32 s{S_SPIN}, s{S_SPIN}, 1")
    A(f"s_cmp_lg_u32 s{S_SPIN}, 0")
    A(f"s_cbranch_scc1 L_st{u}")

def w1_read(A, rnd):
    for e in range(16):
        for t in range(2):
            for h in range(2):
                A(f"ds_read_b64_tr_b16 {a((32*t+16*rnd+e)*4+2*h,2)}, v{VW1+2+t} offset:{2048*e+512*h}")

def w1frag(w3, t, e):
    if w3: return (e if e < 16 else 32 + e - 16) * 4
    return (32 * t + e) * 4

def prologue(A):
    A(f"s_cmp_ge_u32 s{S_WG}, 256")
    A(f"s_cbranch_scc1 L_end")
    order = [SRD_SHK, SRD_K, SRD_V, SRD_Q, SRD_WS, SRD_C, SRD_WMOD, SRD_SSMK, SRD_SSMD, SRD_W1, SRD_W2, SRD_OUT]
    for r in order[:5]:
        A(f"s_load_dwordx2 {s(r,2)}, s[0:1], {KARG[r][0]}")
    A(f"s_getpc_b64 s[{T}:{T+1}]")
    A("L_pc:")
    A(f"s_bfe_u32 s{T+2}, s{S_WG}, 0x30003")
    A(f"s_lshl_b32 s{T+2}, s{T+2}, 13")
    A(f"v_lshlrev_b32 v3, 7, v0")
    A(f"v_add_u32 v3, s{T+2}, v3")
    A(f"v_min_u32 v3, L_end-L_pc, v3")
    A(f"v_cmp_gt_u32 vcc, 64, v0")
    A(f"s_and_saveexec_b64 s[{T+4}:{T+5}], vcc")
    A(f"s_cbranch_execz L_nopf")
    A(f"global_load_dword v255, v3, s[{T}:{T+1}] ; nowait")
    A("L_nopf:")
    A("s_mov_b64 exec, -1")
    for r in order[5:]:
        A(f"s_load_dwordx2 {s(r,2)}, s[0:1], {KARG[r][0]}")
    A(f"s_load_dwordx2 {s(S_DBG,2)}, s[0:1], 96")
    for r in order:
        A(f"s_mov_b32 s{r+2}, {KARG[r][1]}")
        A(f"s_mov_b32 s{r+3}, 0x20000")
    A(f"v_lshrrev_b32 v1, 6, v0")
    A(f"s_mov_b32 s{S_SELLO}, 0x05040100")
    A(f"v_readfirstlane_b32 s{S_WAVE}, v1")
    A(f"s_mov_b32 s{S_SELHI}, 0x07060302")
    A(f"s_mov_b32 s{S_ONES}, 0x3f803f80")
    A(f"v_and_b32 v{V_LANE}, 63, v0")
    A(f"s_and_b32 s{S_RB}, s{S_WG}, 7")
    A(f"s_lshl_b32 s{S_RB}, s{S_RB}, 2")
    A(f"s_bfe_u32 s{S_RL}, s{S_WG}, 0x20003")
    A(f"s_add_u32 s{S_RB}, s{S_RB}, s{S_RL}")
    A(f"s_lshr_b32 s{S_J}, s{S_WG}, 5")

def phase0(A):
    VK, VV, VQ, VSH, VST, VC = 10, 28, 36, 44, 48, 56
    A(f"s_lshr_b32 s{T}, s{S_WG}, 1")
    A(f"s_and_b32 s{T+1}, s{S_WG}, 1")
    A(f"s_lshl_b32 s{T+1}, s{T+1}, 2")
    A(f"s_add_u32 s{T+1}, s{T+1}, s{S_WAVE}")
    A(f"s_lshl_b32 s{T+1}, s{T+1}, 5")
    A(f"v_and_b32 v3, 31, v{V_LANE}")
    A(f"v_add_u32 v5, s{T+1}, v3")
    A(f"v_lshrrev_b32 v4, 5, v{V_LANE}")
    A(f"v_lshlrev_b32 v6, 2, v5")
    A(f"v_lshl_add_u32 v6, v4, 10, v6")
    A(f"s_lshl_b32 s{T+2}, s{T}, 14")
    for g in range(1, 4):
        A(f"s_add_u32 s{T+2+g}, s{T+2}, {4096*g}")
    A(f"v_lshlrev_b32 v7, 4, v5")
    A(f"s_sub_u32 s{T+6}, s{T+2}, 3072")
    A(f"v_add_u32 v8, s{T+6}, v6")
    A(f"v_add_u32 v9, 1024, v8")
    A(f"v_add_u32 v57, 2048, v8")
    A(f"v_lshlrev_b32 v252, 11, v{V_LANE}")
    A(f"s_lshl_b32 s{T+7}, s{S_WG}, 7")
    A(f"v_mov_b32 v253, {128*FLG_3}")
    A(f"v_cmp_eq_u32 vcc, 6, v{V_LANE}")
    A(f"s_add_u32 s{T+7}, s{T+7}, {WS_SYNC}")
    A(f"v_cndmask_b32 v252, v252, v253, vcc")
    A(f"v_mov_b32 v253, 0")
    A(f"s_cmp_lt_u32 s{S_WG}, 16")
    A(f"s_cselect_b32 s{T+8}, 0x7f, 0x40")
    A("s_waitcnt lgkmcnt(0)")
    stamp(A, "start")
    def clr():
        A(f"s_mov_b32 exec_lo, s{T+8}")
        A(f"s_mov_b32 exec_hi, 0")
        A(f"buffer_store_dword v253, v252, {s(SRD_WS,4)}, s{T+7} offen sc1")
        A("s_mov_b64 exec, -1")
    only_wave3(A, clr)
    A(f"buffer_load_dwordx4 {v(VSH,4)}, v7, {s(SRD_SHK,4)}, 0 offen")
    A(f"buffer_load_dword v{VK}, v8, {s(SRD_K,4)}, 0 offen")
    A(f"buffer_load_dword v{VK+1}, v9, {s(SRD_K,4)}, 0 offen")
    A(f"buffer_load_dword v{VK+2}, v57, {s(SRD_K,4)}, 0 offen")
    for r in range(15):
        A(f"buffer_load_dword v{VK+3+r}, v6, {s(SRD_K,4)}, s{T+2+(r>>2)} offen offset:{1024*(r&3)}")
    for j in range(8):
        A(f"buffer_load_dword v{VV+j}, v6, {s(SRD_V,4)}, s{T+2+(j>>1)} offen offset:{2048*(j&1)}")
    for j in range(8):
        A(f"buffer_load_dword v{VQ+j}, v6, {s(SRD_Q,4)}, s{T+2+(j>>1)} offen offset:{2048*(j&1)}")
    A(f"s_lshl_b32 s{T+7}, s{S_WG}, 2")
    A(f"s_add_u32 s{T+7}, s{T+7}, s{S_WAVE}")
    A(f"s_lshl_b32 s{T+8}, s{T+7}, 11")
    A(f"v_lshlrev_b32 v58, 4, v{V_LANE}")
    A(f"buffer_load_dwordx4 {v(VST,4)}, v58, {s(SRD_Q,4)}, s{T+8} offen")
    A(f"buffer_load_dwordx4 {v(VST+4,4)}, v58, {s(SRD_Q,4)}, s{T+8} offen offset:1024")
    A(f"s_mul_i32 s{T+9}, s{S_WG}, 1366")
    A(f"s_lshr_b32 s{T+9}, s{T+9}, 16")
    A(f"s_mul_i32 s{T+10}, s{T+9}, 48")
    A(f"s_sub_u32 s{T+10}, s{S_WG}, s{T+10}")
    A(f"v_and_b32 v59, 127, v0")
    A(f"v_lshlrev_b32 v59, 1, v59")
    A(f"s_lshl_b32 s{T+11}, s{T+9}, 8")
    A(f"buffer_load_ushort v{VC}, v59, {s(SRD_C,4)}, s{T+11} offen")
    dma_voff(A, 60, 61, 6144, 62)
    A(f"s_lshl_b32 s{T+12}, s{T+9}, 7")
    A(f"s_lshl_b32 s{T+13}, s{S_WAVE}, 5")
    A(f"s_add_u32 s{T+12}, s{T+12}, s{T+13}")
    A(f"s_mul_i32 s{T+12}, s{T+12}, 6144")
    A(f"s_lshl_b32 s{T+13}, s{T+10}, 7")
    A(f"s_add_u32 s{T+12}, s{T+12}, s{T+13}")
    A(f"s_lshl_b32 s{T+13}, s{S_WAVE}, 12")
    A(f"s_add_u32 m0, s{T+13}, {LDS_GM}")
    for i in range(4):
        if i:
            A(f"s_add_u32 m0, m0, 1024")
            A(f"s_add_u32 s{T+12}, s{T+12}, {8*6144}")
        A(f"buffer_load_dwordx4 v{60+(i&1)}, {s(SRD_WMOD,4)}, s{T+12} offen lds")
    A(f"s_lshr_b32 s{T+11}, s{S_WAVE}, 1")
    A(f"s_lshl_b32 s{S_CH}, s{S_WG}, 1")
    A(f"s_add_u32 s{S_CH}, s{S_CH}, s{T+11}")
    A(f"s_mul_i32 s{S_CARRY}, s{T+11}, 2080")
    A(f"s_add_u32 s{S_CARRY}, s{S_CARRY}, {LDS_CARRY}")
    A(f"s_lshl_b32 s{T+12}, s{S_CH}, 12")
    A(f"s_mul_i32 s{T+13}, s{S_WAVE}, 4224")
    A(f"s_add_u32 s{T+13}, s{T+13}, {LDS_KC}")
    A(f"s_and_b32 s{T+11}, s{S_WAVE}, 1")
    A(f"s_lshl_b32 s{T+14}, s{T+11}, 2")
    A(f"s_sub_u32 s{T+14}, 4, s{T+14}")
    A(f"v_add_u32 v62, s{T+14}, v58")
    A(f"s_add_u32 m0, s{T+13}, 32")
    A(f"v_mov_b32 v63, 0")
    A(f"buffer_load_dword v63, v63, {s(SRD_SSMK,4)}, s{T+12} offen")
    for i in range(4):
        A(f"buffer_load_dwordx4 v62, {s(SRD_SSMK,4)}, s{T+12} offen offset:{1024*i} lds")
    nload = 1 + 18 + 8 + 8 + 2 + 1 + 4 + 5
    def ready():
        A(f"s_cmp_lt_u32 s{S_WG}, 16")
        A(f"s_cbranch_scc0 L_nordy")
        A(f"s_waitcnt vmcnt({nload})")
        A("s_mov_b64 exec, 1")
        A(f"v_mov_b32 v252, 0")
        A(f"v_mov_b32 v253, 1")
        A(f"global_atomic_add v252, v253, {s(S_DBG,2)} sc1")
        A("s_mov_b64 exec, -1")
        A("L_nordy:")
    only_wave3(A, ready)
    dma_voff(A, VW1, VW1 + 1, 3584, 64)
    def w3adj():
        for k in range(2):
            A(f"v_bfe_u32 v64, v{VW1+k}, 6, 1")
            A(f"s_mov_b32 s{T+14}, {256*3584}")
            A(f"v_mul_lo_u32 v65, v64, s{T+14}")
            A(f"v_lshlrev_b32 v64, 6, v64")
            A(f"v_sub_u32 v{VW1+k}, v{VW1+k}, v64")
            A(f"v_sub_u32 v64, s{T+14}, v65")
            A(f"v_add_u32 v{VW1+4+k}, v{VW1+k}, v64")
            A(f"v_add_u32 v{VW1+k}, v{VW1+k}, v65")
    only_wave3(A, w3adj)
    tr_addr32(A, VW1 + 2, 64, 8)
    A(f"s_lshl_b32 s{T+14}, s{S_WAVE}, 15")
    A(f"v_add_u32 v{VW1+2}, s{T+14}, v{VW1+2}")
    A(f"v_xor_b32 v{VW1+3}, 64, v{VW1+2}")
    stamp(A, "issued")
    A("; ---- kv ----")
    VW, VP, VKS, VVU, CA, CB = 64, 68, 86, 102, 120, 136
    A(f"v_alignbit_b32 v{VW}, v{VSH+1}, v{VSH+1}, 16")
    A(f"v_alignbit_b32 v{VW+1}, v{VSH}, v{VSH}, 16")
    A(f"v_alignbit_b32 v{VW+2}, v{VSH+3}, v{VSH+3}, 16")
    A(f"v_alignbit_b32 v{VW+3}, v{VSH+2}, v{VSH+2}, 16")
    A(f"s_waitcnt vmcnt({nload-19})")
    for j in range(9):
        A(f"v_perm_b32 v{VP+2*j}, v{VK+2*j+1}, v{VK+2*j}, s{S_SELLO}")
        A(f"v_perm_b32 v{VP+2*j+1}, v{VK+2*j+1}, v{VK+2*j}, s{S_SELHI}")
    for j in range(8):
        for c in range(2):
            A(f"v_dot2_f32_bf16 v{VKS+2*j+c}, v{VP+2*j+c}, v{VW+2*c}, 0")
    for j in range(8):
        for c in range(2):
            A(f"v_dot2_f32_bf16 v{VKS+2*j+c}, v{VP+2*j+2+c}, v{VW+2*c+1}, v{VKS+2*j+c}")
    A(f"s_waitcnt vmcnt({nload-27})")
    for j in range(8):
        A(f"v_lshlrev_b32 v{VVU+2*j}, 16, v{VV+j}")
        A(f"v_and_b32 v{VVU+2*j+1}, 0xffff0000, v{VV+j}")
    for j in range(8):
        A(f"v_pk_mul_f32 {v(VKS+2*j,2)}, {v(VKS+2*j,2)}, {v(VVU+2*j,2)}")
    for c in range(2):
        for q in range(4):
            A(f"v_cvt_pk_bf16_f32 v{CA+4*c+q}, v{VKS+2*(7-2*q)+c}, v{VKS+2*(6-2*q)+c}")
    A(f"s_waitcnt vmcnt({nload-35})")
    stamp(A, "kvq landed")
    for c in range(2):
        for q in range(4):
            A(f"v_perm_b32 v{CA+8+4*c+q}, v{VQ+6-2*q}, v{VQ+7-2*q}, s{S_SELHI if c else S_SELLO}")
    def stage(src, dst, bit, perm, mlo, mhi):
        A(f"s_mov_b32 vcc_lo, {mlo}"); A(f"s_mov_b32 vcc_hi, {mlo}")
        for k in range(4):
            if k & bit: continue
            for q in range(4):
                A(f"v_cndmask_b32_dpp v{dst+4*k+q}, v{src+4*(k|bit)+q}, v{src+4*k+q}, vcc quad_perm:{perm} row_mask:0xf bank_mask:0xf")
        A(f"s_mov_b32 vcc_lo, {mhi}"); A(f"s_mov_b32 vcc_hi, {mhi}")
        for k in range(4):
            if not k & bit: continue
            for q in range(4):
                A(f"v_cndmask_b32_dpp v{dst+4*k+q}, v{src+4*(k^bit)+q}, v{src+4*k+q}, vcc quad_perm:{perm} row_mask:0xf bank_mask:0xf")
    A(f"v_and_b32 v57, 28, v3")
    A(f"v_add_u32 v57, s{T+1}, v57")
    A(f"v_lshlrev_b32 v57, 14, v57")
    A(f"v_lshl_add_u32 v57, v4, 6, v57")
    A(f"v_and_b32 v9, 3, v{V_LANE}")
    A(f"v_lshl_add_u32 v57, v9, 4, v57")
    A(f"s_lshl_b32 s{T+14}, s{T}, 7")
    for b in range(1, 4): A(f"s_add_u32 s{T+14+b}, s{T+14}, {16384*b}")
    stage(CA, CB, 1, "[1,0,3,2]", "0x55555555", "0xaaaaaaaa")
    stage(CB, CA, 2, "[2,3,0,1]", "0x33333333", "0xcccccccc")
    for b in range(4):
        A(f"buffer_store_dwordx4 {v(CA+4*b,4)}, v57, {s(SRD_WS,4)}, s{T+14+b} offen sc1")
    stamp(A, "rec stored")
    R = 152
    for r in range(2):
        A(f"v_dot2_f32_bf16 v{R+2*r}, v{VST+4*r}, s{S_ONES}, 0")
        A(f"v_dot2_f32_bf16 v{R+2*r+1}, v{VST+4*r}, v{VST+4*r}, 0")
    for q in range(1, 4):
        for r in range(2):
            A(f"v_dot2_f32_bf16 v{R+2*r}, v{VST+4*r+q}, s{S_ONES}, v{R+2*r}")
            A(f"v_dot2_f32_bf16 v{R+2*r+1}, v{VST+4*r+q}, v{VST+4*r+q}, v{R+2*r+1}")
    for m in ("row_shr:1", "row_shr:2", "row_shr:4", "row_shr:8"):
        for i in range(4):
            A(f"v_add_f32_dpp v{R+i}, v{R+i}, v{R+i} {m} row_mask:0xf bank_mask:0xf bound_ctrl:0")
    for m, rm in (("row_bcast:15", "0xa"), ("row_bcast:31", "0xc")):
        for i in range(4):
            A(f"v_add_f32_dpp v{R+i}, v{R+i}, v{R+i} {m} row_mask:{rm} bank_mask:0xf")
    ln_finish(A, [(R, R+1, R+4, R+6), (R+2, R+3, R+5, R+7)], R + 8)
    X = 164
    A(f"v_lshlrev_b32 v{X}, 16, v{VC}")
    A(f"v_mul_f32 v{X+1}, {hex(NLOG2E)}, v{X}")
    A(f"v_exp_f32 v{X+1}, v{X+1}")
    A(f"v_add_u32 v59, {LDS_SC}, v59")
    A(f"v_add_f32 v{X+1}, 1.0, v{X+1}")
    A(f"v_rcp_f32 v{X+1}, v{X+1}")
    A(f"s_mul_i32 s{T+11}, s{T+11}, 64")
    A(f"v_mul_f32 v{X+1}, v{X}, v{X+1}")
    A(f"v_cvt_pk_bf16_f32 v{X+1}, v{X+1}, v{X+1}")
    A(f"ds_write_b16 v59, v{X+1}")
    A(f"s_add_u32 s{T+11}, s{T+11}, 7")
    A(f"v_cmp_eq_u32 vcc, s{T+11}, v{V_LANE}")
    A(f"v_lshlrev_b32 v62, 2, v{V_LANE}")
    A(f"v_add_u32 v62, s{T+13}, v62")
    A(f"v_cndmask_b32 v63, 0, v63, vcc")
    A("s_mov_b64 exec, 0xff")
    A(f"ds_write_b32 v62, v63")
    A("s_mov_b64 exec, -1")
    def rdy_load():
        A(f"v_mov_b32 v251, 0")
        A(f"global_load_dword v251, v251, {s(S_DBG,2)} sc1")
        A("s_waitcnt vmcnt(0)")
    only_wave3(A, rdy_load)
    A("s_waitcnt vmcnt(0) lgkmcnt(0)")
    A("s_barrier")
    stamp(A, "rec acked")
    def sigA():
        u = uid()
        A(f"s_mov_b32 s{S_SPIN}, 0x80000")
        A(f"L_rdy{u}:")
        A(f"v_cmp_eq_u32 vcc, 16, v251")
        A(f"s_cbranch_vccnz L_rdyx{u}")
        A(f"v_mov_b32 v251, 0")
        A(f"global_load_dword v251, v251, {s(S_DBG,2)} sc1")
        A(f"s_sub_u32 s{S_SPIN}, s{S_SPIN}, 1")
        A("s_waitcnt vmcnt(0)")
        A(f"s_cbranch_scc0 L_rdy{u}")
        A(f"L_rdyx{u}:")
        signal(A, CNT_A, FLG_A)
    only_wave3(A, sigA)
    A(f"s_lshl_b32 s{T+15}, s{T+7}, 3")
    A(f"s_add_u32 s{T+15}, s{T+15}, {WS_STAT}")
    A(f"v_mov_b32 v{X+2}, 0")
    A(f"v_mov_b32 v{X+3}, 8192")
    A("s_lshl_b64 exec, 1, 63")
    A(f"buffer_store_dwordx2 {v(R+4,2)}, v{X+2}, {s(SRD_WS,4)}, s{T+15} offen sc1")
    A(f"buffer_store_dwordx2 {v(R+6,2)}, v{X+3}, {s(SRD_WS,4)}, s{T+15} offen sc1")
    A("s_mov_b64 exec, -1")
    A(f"s_cmp_ge_u32 s{S_WG}, 192")
    A(f"s_cbranch_scc1 L_nogemv")
    B = 64
    tr_addr16(A, B + 2, B)
    A(f"s_lshl_b32 s{T+16}, s{S_WAVE}, 5")
    A(f"v_xor_b32 v{B+2}, s{T+16}, v{B+2}")
    A(f"v_add_u32 v{B+2}, {LDS_GM}, v{B+2}")
    A(f"v_lshrrev_b32 v{B+5}, 4, v{V_LANE}")
    A(f"v_lshlrev_b32 v{B+5}, 4, v{B+5}")
    A(f"v_add_u32 v{B+5}, {LDS_SC}, v{B+5}")
    FA, FB, ACC = 72, 88, 104
    for e in range(4):
        A(f"ds_read_b128 {v(FA+4*e,4)}, v{B+5} offset:{64*e}")
        A(f"ds_read_b64_tr_b16 {v(FB+4*e,2)}, v{B+2} offset:{4096*e}")
        A(f"ds_read_b64_tr_b16 {v(FB+4*e+2,2)}, v{B+2} offset:{4096*e+512}")
    for e in range(4):
        A(f"v_mfma_f32_16x16x32_bf16 {v(ACC,4)}, {v(FA+4*e,4)}, {v(FB+4*e,4)}, {'0' if e == 0 else v(ACC,4)}")
    A(f"s_mul_i32 s{T+16}, s{T+9}, {3072*4}")
    A(f"s_lshl_b32 s{T+17}, s{T+10}, 8")
    A(f"s_add_u32 s{T+16}, s{T+16}, s{T+17}")
    A(f"s_lshl_b32 s{T+17}, s{S_WAVE}, 6")
    A(f"s_add_u32 s{T+16}, s{T+16}, s{T+17}")
    A(f"s_add_u32 s{T+16}, s{T+16}, {WS_MODP}")
    A(f"v_lshlrev_b32 v{B}, 2, v{V_LANE}")
    A("s_mov_b64 exec, 0xffff")
    A(f"buffer_store_dword v{ACC}, v{B}, {s(SRD_WS,4)}, s{T+16} offen sc1")
    A("s_mov_b64 exec, -1")
    A("L_nogemv:")
    A("s_waitcnt vmcnt(0)")
    A("s_barrier")

TSETS = ([7, 4, 3, 0], [6, 5, 2, 1])
def conv(A):
    VAB, VAA, VAE = 8, 16, 17
    VST = 24; VKX = 56; VGH, VX0 = 72, 88; ACC = 104
    L = V_LANE
    def others():
        w1_begin(A, 0)
        stream(A, w1_piece, 32, O.w1_depth)
    def w3():
        signal(A, CNT_B, FLG_B)
    split_wave3(A, others, w3)
    A(f"v_lshrrev_b32 v3, 3, v{L}")
    A(f"v_lshlrev_b32 v3, 7, v3")
    A(f"v_lshrrev_b32 v4, 4, v{L}")
    A(f"v_and_b32 v7, 7, v{L}")
    A(f"v_xor_b32 v7, v7, v4")
    A(f"v_lshl_add_u32 v3, v7, 4, v3")
    A(f"v_xor_b32 v7, 64, v3")
    A(f"s_lshl_b32 s{T+6}, s{S_WG}, 14")
    A(f"s_lshl_b32 s{T+7}, s{S_WAVE}, 12")
    A(f"s_add_u32 s{T+6}, s{T+6}, s{T+7}")
    A(f"v_and_b32 v21, 3, v{L}")
    A(f"v_mul_u32_u24 v21, 12288, v21")
    A(f"v_bfe_u32 v22, v{L}, 2, 2")
    A(f"v_lshl_add_u32 v21, v22, 11, v21")
    A(f"v_add_u32 v23, 2048, v21")
    A(f"v_cmp_eq_u32 vcc, 3, v22")
    A(f"s_lshl_b32 s{T+9}, s{S_CH}, 2")
    A(f"s_add_u32 s{T+9}, s{T+9}, {WS_MODP}")
    A(f"v_cndmask_b32 v21, v21, v23, vcc")
    A(f"s_lshl_b32 s{T+10}, s{S_CH}, 1")
    A(f"v_and_b32 v6, 15, v{L}")
    A(f"v_lshlrev_b32 v23, 6, v6")
    A(f"v_lshl_add_u32 v23, v4, 4, v23")
    A(f"v_lshlrev_b32 v18, 3, v0")
    A(f"v_add_u32 v18, {LDS_REC}, v18")
    A(f"v_mov_b32 v{VGH}, 0")
    A(f"v_mov_b32 v{VGH+1}, 0")
    A(f"ds_write_b64 v18, {v(VGH,2)}")
    A(f"v_mov_b32 v18, s{S_CARRY}")
    A(f"ds_write_b32 v18, v{VGH}")
    A(f"s_lshr_b32 s{T+12}, s{S_WAVE}, 1")
    for b in range(4):
        A(f"v_sub_u32 v18, v6, v4")
        A(f"v_add_u32 v18, {16-4*b}, v18")
        A(f"v_bfe_u32 v19, v18, 1, 3")
        A(f"v_xor_b32 v19, s{T+12}, v19")
        A(f"v_lshlrev_b32 v18, 7, v18")
        A(f"v_lshl_add_u32 v18, v19, 4, v18")
        A(f"v_add_u32 v{VAB+2*b}, {LDS_REC}, v18")
        A(f"v_xor_b32 v{VAB+2*b+1}, 64, v{VAB+2*b}")
    A(f"v_bfe_u32 v18, v{L}, 2, 2")
    A(f"v_and_b32 v19, 1, v18")
    A(f"v_add_u32 v18, 1, v18")
    A(f"v_lshrrev_b32 v18, 1, v18")
    A(f"v_and_b32 v20, 3, v{L}")
    A(f"v_add_u32 v18, v18, v20")
    A(f"v_lshlrev_b32 v18, 3, v18")
    A(f"v_lshl_add_u32 v18, v4, 5, v18")
    A(f"v_mul_u32_u24 v19, 4224, v19")
    A(f"s_mul_i32 s{T+13}, s{T+12}, 8448")
    A(f"s_add_u32 s{T+13}, s{T+13}, {LDS_KC}")
    A(f"v_add3_u32 v{VAA}, v18, v19, s{T+13}")
    A(f"v_bfe_u32 v19, v6, 1, 3")
    A(f"v_xor_b32 v19, s{T+12}, v19")
    A(f"v_lshlrev_b32 v18, 7, v6")
    A(f"v_lshl_add_u32 v18, v19, 4, v18")
    A(f"v_sub_u32 v19, 3, v4")
    A(f"v_lshl_add_u32 v18, v19, 2, v18")
    A(f"v_add_u32 v{VAE}, {LDS_REC+2048}, v18")
    A(f"v_xor_b32 v{VAE+1}, 64, v{VAE}")
    A(f"v_xor_b32 v{VAE+2}, 32, v{VAE}")
    A(f"v_xor_b32 v{VAE+3}, 96, v{VAE}")
    only_wave3(A, lambda: poll(A, 16, 128, WS_SYNC + 128 * FLG_A))
    A("s_barrier")
    stamp(A, "A released")
    A(f"s_add_u32 m0, s{T+7}, {LDS_REC+2048}")
    for i in range(4):
        A(f"buffer_load_dwordx4 v{7 if i&1 else 3}, {s(SRD_WS,4)}, s{T+6} offen offset:{1024*i} sc1 lds")
    def others2():
        A("s_waitcnt vmcnt(4)")
        w1_read(A, 0)
        w1_begin(A, 1)
    split_wave3(A, others2, lambda: poll(A, 16, 128, WS_SYNC + 128 * FLG_B))
    A("s_waitcnt vmcnt(0) lgkmcnt(0)")
    A("s_barrier")
    stamp(A, "rec landed")
    A(f"buffer_load_dword v21, v21, {s(SRD_WS,4)}, s{T+9} offen sc1")
    A(f"v_mov_b32 v22, 0")
    A(f"buffer_load_ushort v22, v22, {s(SRD_SSMD,4)}, s{T+10} offen")
    A(f"s_bitcmp1_b32 s{S_WAVE}, 0")
    A(f"s_cbranch_scc1 L_conv1")
    for var in range(3):
        par = min(var, 1)
        TS = TSETS[par]
        if var == 1:
            A(f"L_conv1:")
            A(f"s_cmp_eq_u32 s{S_WAVE}, 3")
            A(f"s_cbranch_scc1 L_conv3")
        if var == 2: A("L_conv3:")
        def afrag(buf, a_): return 136 + 32 * buf + 4 * a_
        def bfrag(buf, p, d): return 64 + 128 * buf + 32 * p + 4 * d
        def reads(b):
            buf = b & 1
            seq = []; sa_ = set(); sb_ = set()
            for a_ in range(8):
                for J in TS:
                    if J < a_: continue
                    if a_ not in sa_:
                        sa_.add(a_)
                        for h in range(2):
                            seq.append(f"ds_read_b64_tr_b16 {v(afrag(buf,a_)+2*h,2)}, v{VAA} offset:{512*a_+128*b+16*h}")
                    if J - a_ not in sb_:
                        sb_.add(J - a_)
                        for p in range(2):
                            seq.append(f"ds_read_b128 {a(bfrag(buf,p,J-a_),4)}, v{VAB+2*b+p} offset:{2048*(J-a_)}")
            return seq
        for x in reads(0): A(x)
        for ti, J in enumerate(TS):
            A(f"s_mov_b32 s{T+14}, {WS_STAT + 1024*J}")
            A(f"s_mov_b32 s{T+15}, {WS_STAT + 8192 + 1024*J}")
            A(f"buffer_load_dwordx4 {v(VST+4*ti,4)}, v23, {s(SRD_WS,4)}, s{T+14} offen sc1")
            A(f"buffer_load_dwordx4 {v(VST+16+4*ti,4)}, v23, {s(SRD_WS,4)}, s{T+15} offen sc1")
        for ti, J in enumerate(TS):
            for k in range(4):
                A(f"ds_read_b32 v{VKX+4*ti+k}, v{VAE+k} offset:{2048*J}")
        side = []
        if var < 2:
            for p in range(O.conv_pieces): side += w1_piece(p & 1)
        started = set()
        for b in range(4):
            nxt = reads(b + 1) if b < 3 else []
            for a_ in range(8):
                for J in TS:
                    if J < a_: continue
                    for p in range(2):
                        acc = ACC + 8 * TS.index(J) + 4 * p
                        c = v(acc, 4) if (J, p) in started else "0"
                        started.add((J, p))
                        A(f"v_mfma_f32_16x16x32_bf16 {v(acc,4)}, {v(afrag(b&1,a_),4)}, {a(bfrag(b&1,p,J-a_),4)}, {c}")
                        if nxt: A(nxt.pop(0))
                        if side: A(side.pop(0))
            assert not nxt
        for x in side: A(x)
        if var: del _stamps[-1:]
        stamp(A, "conv mfma")
        A(f"v_lshl_add_u32 v18, v6, 2, v4")
        A(f"v_lshl_add_u32 v18, v18, 2, s{S_CARRY}")
        for ti, J in enumerate(TS):
            A(f"ds_write_b32 v18, v{ACC+8*ti+7} offset:{256*J+4}")
        A(f"v_add_f32_dpp v21, v21, v21 quad_perm:[1,0,3,2] row_mask:0xf bank_mask:0xf")
        A(f"v_add_f32_dpp v21, v21, v21 quad_perm:[2,3,0,1] row_mask:0xf bank_mask:0xf")
        A(f"v_cvt_pk_bf16_f32 v21, v21, v21")
        A(f"v_lshlrev_b32 v21, 16, v21")
        A(f"v_add_f32 v19, 1.0, v21")
        A(f"v_cvt_pk_bf16_f32 v19, v19, v19")
        A(f"v_lshlrev_b32 v19, 16, v19")
        A(f"v_readlane_b32 s{T+16}, v21, 0")
        A(f"v_readlane_b32 s{T+17}, v19, 4")
        A(f"v_readlane_b32 s{T+18}, v21, 8")
        A(f"v_readlane_b32 s{T+19}, v19, 12")
        A(f"v_mov_b32 v20, s{T+18}")
        A(f"v_mul_f32 v8, s{T+17}, v20")
        A(f"v_mul_f32 v9, s{T+16}, v20")
        A(f"v_lshlrev_b32 v10, 16, v22")
        A(f"v_mov_b32 v11, s{T+19}")
        U = 136
        for ti in range(4):
            kd = VKX + 4 * ti
            kv, x = U + 8 * ti, U + 8 * ti + 4
            for base, d in ((kv, kd), (x, kd + 2)):
                A(f"v_and_b32 v{base}, 0xffff0000, v{d}")
                A(f"v_and_b32 v{base+1}, 0xffff0000, v{d+1}")
                A(f"v_lshlrev_b32 v{base+2}, 16, v{d}")
                A(f"v_lshlrev_b32 v{base+3}, 16, v{d+1}")
        for ti in range(4):
            kv, x = U + 8 * ti, U + 8 * ti + 4
            for h in range(2):
                g = VGH + 4 * ti + 2 * h
                A(f"v_pk_fma_f32 {v(g,2)}, {v(x+2*h,2)}, {v(VST+4*ti+2*h,2)}, {v(VST+16+4*ti+2*h,2)}")
                A(f"v_pk_mul_f32 {v(kv+2*h,2)}, {v(kv+2*h,2)}, v[10:11] op_sel:[0,0] op_sel_hi:[1,0]")
                A(f"v_pk_fma_f32 {v(g,2)}, {v(g,2)}, v[8:9], v[8:9] op_sel:[0,0,1] op_sel_hi:[1,0,1]")
                A(f"v_pk_fma_f32 {v(VX0+4*ti+2*h,2)}, {v(g,2)}, {v(kv+2*h,2)}, {v(x+2*h,2)}")
        A("s_waitcnt lgkmcnt(0)")
        A("s_barrier")
        for ti, J in enumerate(TS):
            A(f"ds_read_b32 v{VKX+ti}, v18 offset:{256*J}")
        A(f"s_lshl_b32 s{T+14}, s{S_WAVE}, 12")
        A(f"s_add_u32 s{T+14}, s{T+14}, {LDS_REC}")
        A(f"v_lshlrev_b32 v12, 5, v6")
        A(f"v_lshl_add_u32 v12, v4, 3, v12")
        A(f"v_add_u32 v12, s{T+14}, v12")
        A(f"v_lshlrev_b32 v14, 4, v{L}")
        A(f"v_add_u32 v13, s{T+14}, v14")
        for ti in range(4):
            z0, z1, g, x0 = ACC + 8 * ti, ACC + 8 * ti + 4, VGH + 4 * ti, VX0 + 4 * ti
            for h in range(2):
                A(f"v_pk_fma_f32 {v(x0+2*h,2)}, {v(g+2*h,2)}, {v(z0+2*h,2)}, {v(x0+2*h,2)}")
            for r in range(1, 4):
                A(f"v_fmac_f32 v{x0+r}, v{g+r}, v{z1+r-1}")
        for ti in range(4):
            A(f"v_fmac_f32 v{VX0+4*ti}, v{VGH+4*ti}, v{VKX+ti}")
        O1, O2 = 136, 144
        for ti in range(4):
            x0 = VX0 + 4 * ti
            for h in range(2):
                A(f"v_cvt_pk_bf16_f32 v{O1+2*ti+h}, v{x0+2*h}, v{x0+2*h+1}")
                A(f"v_pk_mul_f32 {v(x0+2*h,2)}, {v(x0+2*h,2)}, v[10:11] op_sel:[0,1] op_sel_hi:[1,1]")
            for h in range(2):
                A(f"v_cvt_pk_bf16_f32 v{O2+2*ti+h}, v{x0+2*h}, v{x0+2*h+1}")
            A(f"ds_write_b64 v12, {v(O2+2*ti,2)} offset:{512*ti}")
            A(f"ds_write_b64 v12, {v(O1+2*ti,2)} offset:{2048+512*ti}")
        A(f"v_lshrrev_b32 v19, 5, v{L}")
        A(f"v_and_b32 v14, 0x1ff, v14")
        A(f"s_lshl_b32 s{T+14}, s{S_CH}, 12")
        A(f"s_add_u32 s{T+15}, s{T+14}, {WS_X1C}")
        A(f"s_add_u32 s{T+14}, s{T+14}, {WS_X1}")
        for u in range(2):
            A(f"v_mul_i32_i24 v20, {512*(TS[2*u+1]-TS[2*u])}, v19")
            A(f"v_add_u32 v20, {512*TS[2*u]}, v20")
            A(f"v_add_u32 v{16+u}, v14, v20")
        A("s_waitcnt lgkmcnt(0)")
        for k in range(4):
            A(f"ds_read_b128 {v(152+4*k,4)}, v13 offset:{1024*k}")
        for k in range(4):
            A(f"buffer_store_dwordx4 {v(152+4*k,4)}, v{16+(k&1)}, {s(SRD_WS,4)}, s{T+15-(k>>1)} offen sc1")
        if var < 2: A(f"s_branch L_convdone")
    A(f"L_convdone:")
    stamp(A, "x1 stored")
    stamp_flush(A, 0)

VCS, VSBW = 64, 96
ACC1 = 128
def window3(A):
    L = V_LANE
    A("s_waitcnt vmcnt(0)")
    A("s_barrier")
    stamp(A, "x1 acked")
    rest = 32 - O.conv_pieces
    def others():
        if rest: stream(A, w1_piece, rest, O.w1_depth)
    def w3():
        signal(A, CNT_2, FLG_2)
        w1_begin(A, 0)
        stream(A, lambda par: w1_piece(par, True), 32, O.w1_depth)
    split_wave3(A, others, w3)
    A(f"v_lshlrev_b32 v3, 3, v0")
    for p in range(4):
        A(f"s_mov_b32 s{T+p}, {WS_MODP + 12288*p + 1536*4}")
    for p in range(4):
        A(f"buffer_load_dwordx2 {v(8+4*p,2)}, v3, {s(SRD_WS,4)}, s{T+p} offen sc1")
        A(f"buffer_load_dwordx2 {v(10+4*p,2)}, v3, {s(SRD_WS,4)}, s{T+p} offen offset:2048 sc1")
    A(f"v_lshlrev_b32 v5, 2, v{L}")
    A(f"s_lshl_b32 s{T+4}, s{S_J}, 8")
    for p in range(4):
        A(f"s_add_u32 s{T+p}, s{T+4}, {WS_MODP + 12288*p + 2560*4}")
    for p in range(4):
        A(f"buffer_load_dword v{24+p}, v5, {s(SRD_WS,4)}, s{T+p} offen sc1")
    A("s_waitcnt vmcnt(12)")
    split_wave3(A, lambda: w1_read(A, 1), lambda: w1_read(A, 0))
    for k in range(2):
        A(f"v_pk_add_f32 {v(8+2*k,2)}, {v(8+2*k,2)}, {v(12+2*k,2)}")
        A(f"v_pk_add_f32 {v(16+2*k,2)}, {v(16+2*k,2)}, {v(20+2*k,2)}")
    for k in range(2):
        A(f"v_pk_add_f32 {v(8+2*k,2)}, {v(8+2*k,2)}, {v(16+2*k,2)}")
    A(f"v_cvt_pk_bf16_f32 v8, v8, v9")
    A(f"v_cvt_pk_bf16_f32 v10, v10, v11")
    A(f"v_lshlrev_b32 v12, 16, v10")
    A(f"v_and_b32 v13, 0xffff0000, v10")
    A(f"v_add_f32 v12, 1.0, v12")
    A(f"v_add_f32 v13, 1.0, v13")
    A(f"v_cvt_pk_bf16_f32 v10, v12, v13")
    A(f"s_lshl_b32 s{T+4}, s{S_J}, 7")
    A(f"v_lshlrev_b32 v3, 2, v0")
    A(f"v_subrev_u32 v3, s{T+4}, v3")
    A(f"v_and_b32 v3, 0x3ff, v3")
    A(f"v_add_u32 v3, {LDS_MODV}, v3")
    A(f"ds_write_b32 v3, v10")
    A(f"ds_write_b32 v3, v8 offset:1024")
    A(f"v_add_f32 v24, v24, v25")
    A(f"v_add_f32 v26, v26, v27")
    A(f"v_add_f32 v24, v24, v26")
    A(f"v_cvt_pk_bf16_f32 v24, v24, v24")
    A(f"v_lshlrev_b32 v24, 16, v24")
    A(f"v_mul_f32 v24, 0xbf317218, v24")
    A(f"v_add_u32 v5, {LDS_GB}, v5")
    A(f"ds_write_b32 v5, v24")
    A(f"v_mov_b32 v24, 0")
    A(f"v_and_b32 v5, 15, v{L}")
    A(f"v_lshlrev_b32 v5, 2, v5")
    A(f"v_add_u32 v5, {LDS_MODV+2048}, v5")
    A(f"ds_write_b32 v5, v24")
    A(f"v_lshrrev_b32 v4, 4, v{L}")
    A(f"v_and_b32 v6, 15, v{L}")
    A(f"v_xor_b32 v7, v6, v4")
    A(f"v_and_b32 v7, 1, v7")
    A(f"v_lshrrev_b32 v3, 2, v6")
    A(f"v_or_b32 v7, v7, v3")
    A(f"v_lshrrev_b32 v3, 1, v6")
    A(f"v_lshlrev_b32 v3, 10, v3")
    A(f"v_lshrrev_b32 v5, 1, v4")
    A(f"v_lshl_add_u32 v3, v5, 4, v3")
    A(f"v_add_u32 v3, {LDS_MODV}, v3")
    A(f"v_cmp_eq_u32 vcc, 0, v7")
    A(f"v_mov_b32 v44, 32")
    A(f"v_cndmask_b32 v44, 0, v44, vcc")
    A(f"v_mov_b32 v5, {LDS_MODV+2048}")
    A(f"v_cndmask_b32 v3, v5, v3, vcc")
    A("s_waitcnt lgkmcnt(0)")
    A("s_barrier")
    stamp(A, "w1 ready")
    def cs(w3):
        NB = 8
        def rd(e):
            A(f"ds_read_b128 {v(8+4*(e%NB),4)}, v3")
            A(f"v_add_u32 v3, v3, v44")
        for e in range(NB): rd(e)
        for e in range(32):
            for t in range(1 if w3 else 2):
                c = "0" if e == 0 else v(48 + 4 * t, 4)
                A(f"v_mfma_f32_16x16x32_bf16 {v(48+4*t,4)}, {a(w1frag(w3,t,e),4)}, {v(8+4*(e%NB),4)}, {c}")
            if e + NB < 32: rd(e + NB)
    split_wave3(A, lambda: cs(False), lambda: cs(True))
    A(f"s_lshl_b32 s{T}, s{S_WAVE}, 9")
    A(f"s_add_u32 s{T}, s{T}, {LDS_CS}")
    A(f"v_and_b32 v5, 1, v6")
    A(f"v_lshlrev_b32 v5, 6, v5")
    A(f"v_lshl_add_u32 v5, v4, 4, v5")
    A(f"v_lshrrev_b32 v7, 1, v6")
    A(f"v_lshl_add_u32 v5, v7, 8, v5")
    A(f"v_add_u32 v5, s{T}, v5")
    A(f"s_mov_b32 exec_lo, 0x000f000f")
    A(f"s_mov_b32 exec_hi, 0x000f000f")
    for t in range(2):
        A(f"ds_write_b128 v5, {v(48+4*t,4)} offset:{128*t}")
    A("s_mov_b64 exec, -1")
    A(f"v_lshrrev_b32 v5, 5, v{L}")
    A(f"v_lshlrev_b32 v5, 4, v5")
    A(f"v_add_u32 v5, s{T}, v5")
    A("s_waitcnt lgkmcnt(0)")
    for t in range(2):
        for k in range(4):
            A(f"ds_read_b128 {v(VCS+16*t+4*k,4)}, v5 offset:{128*t+32*k}")
            A(f"ds_read_b128 {v(VSBW+16*t+4*k,4)}, v5 offset:{256+128*t+32*k}")
    A(f"v_mov_b32 v6, {hex(NLOG2E)}")
    for r in range(0, 32, 2):
        A(f"v_pk_mul_f32 {v(VSBW+r,2)}, {v(VSBW+r,2)}, v[6:7] op_sel_hi:[1,0]")
    stamp(A, "colsums")

def silu_ops(acc, t, rin, mr, tmp, out, packed):
    L = []
    for g0 in range(0, 16, 4):
        if packed:
            for h in range(2):
                r = g0 + 2 * h
                L.append(f"v_pk_fma_f32 {v(tmp+2*h,2)}, {v(VCS+16*t+r,2)}, {v(rin,2)}, {v(VSBW+16*t+r,2)} op_sel:[0,1,0] op_sel_hi:[1,1,1]")
            for h in range(2):
                r = g0 + 2 * h
                L.append(f"v_pk_fma_f32 {v(acc+r,2)}, {v(acc+r,2)}, {v(rin,2)}, {v(tmp+2*h,2)} op_sel:[0,0,0] op_sel_hi:[1,0,1]")
        else:
            for i in range(4): L.append(f"v_fma_f32 v{tmp+i}, v{mr}, v{VCS+16*t+g0+i}, v{VSBW+16*t+g0+i}")
            for i in range(4): L.append(f"v_fma_f32 v{acc+g0+i}, v{acc+g0+i}, v{rin}, v{tmp+i}")
        for i in range(4): L.append(f"v_exp_f32 v{tmp+i}, v{acc+g0+i}")
        if packed:
            for h in range(2): L.append(f"v_pk_add_f32 {v(tmp+2*h,2)}, {v(tmp+2*h,2)}, 1.0 op_sel_hi:[1,0]")
        else:
            for i in range(4): L.append(f"v_add_f32 v{tmp+i}, 1.0, v{tmp+i}")
        for i in range(4): L.append(f"v_rcp_f32 v{tmp+i}, v{tmp+i}")
        if packed:
            for h in range(2): L.append(f"v_pk_mul_f32 {v(tmp+2*h,2)}, {v(tmp+2*h,2)}, {v(acc+g0+2*h,2)}")
        else:
            for i in range(4): L.append(f"v_mul_f32 v{tmp+i}, v{tmp+i}, v{acc+g0+i}")
        for h in range(2): L.append(f"v_cvt_pk_bf16_f32 v{out+g0//2+h}, v{tmp+2*h}, v{tmp+2*h+1}")
    return L

def cost(ins):
    return 8 if ins.startswith(("v_exp", "v_rcp")) else 4

VXR = 224
def gemm1(A):
    L = V_LANE
    VXA = 8; XF = 192; VRS = 14; TMP, OUT = 20, 24
    A("; ---- GEMM 1 ----")
    dma_voff(A, 3, 4, 4096, 5)
    A(f"s_bitcmp1_b32 s{S_WAVE}, 0")
    A(f"s_cselect_b64 vcc, -1, 0")
    A(f"v_cndmask_b32 v3, v3, v4, vcc")
    A(f"s_lshl_b32 s{T}, s{S_WAVE}, 15")
    A(f"s_lshl_b32 s{T+1}, s{S_RB}, 7")
    A(f"s_add_u32 s{T}, s{T}, s{T+1}")
    A(f"s_add_u32 s{T+1}, s{T}, {WS_X1}")
    A(f"s_add_u32 s{T}, s{T}, {WS_X1C}")
    A(f"s_lshl_b32 s{T+2}, s{S_WAVE}, 10")
    A(f"s_lshl_b32 s{T+5}, s{S_J}, 18")
    tr_addr32(A, VXA, 5, 8)
    A(f"v_xor_b32 v{VXA+1}, 64, v{VXA}")
    A(f"v_lshlrev_b32 v18, 4, v{L}")
    A(f"s_mul_i32 s{T+3}, s{S_RB}, {2*112*1024}")
    A(f"s_mul_i32 s{T+4}, s{S_J}, {14*1024}")
    A(f"s_add_u32 s{T+3}, s{T+3}, s{T+4}")
    A(f"s_lshl_b32 s{T+4}, s{S_WAVE}, 12")
    A(f"s_add_u32 s{T+3}, s{T+3}, s{T+4}")
    A(f"s_add_u32 s{T+3}, s{T+3}, {WS_H}")
    A(f"s_add_u32 s{T+4}, s{T+3}, {112*1024}")
    A(f"v_and_b32 v19, 31, v{L}")
    A(f"v_lshlrev_b32 v19, 2, v19")
    A(f"v_add_u32 v19, {LDS_ST2+256}, v19")
    tr_addr16(A, 10, 5)
    A(f"v_add_u32 v10, {LDS_X1}, v10")
    for i in range(1, 4): A(f"v_xor_b32 v{10+i}, {32*i}, v10")
    tr_addr32(A, 44, 5, 4)
    A(f"s_and_b32 s{T+6}, s{S_WAVE}, 1")
    A(f"s_lshl_b32 s{T+6}, s{T+6}, 6")
    A(f"v_xor_b32 v44, s{T+6}, v44")
    A(f"s_lshr_b32 s{T+6}, s{S_WAVE}, 1")
    A(f"s_lshl_b32 s{T+6}, s{T+6}, 12")
    A(f"s_add_u32 s{T+6}, s{T+6}, {LDS_X1}")
    A(f"v_add_u32 v44, s{T+6}, v44")
    A(f"v_xor_b32 v45, 32, v44")
    only_wave3(A, lambda: poll(A, 16, 128, WS_SYNC + 128 * FLG_2))
    A("s_barrier")
    stamp(A, "2 released")
    for i in range(16):
        A(f"s_add_u32 m0, s{T+2}, {LDS_XC + 4096*i}")
        A(f"s_add_u32 s{T+6}, s{T}, s{T+5}")
        A(f"buffer_load_dwordx4 v3, {s(SRD_WS,4)}, s{T+6} offen sc1 lds")
        A(f"s_add_u32 m0, s{T+2}, {LDS_X1 + 4096*i}")
        A(f"s_add_u32 s{T+6}, s{T+1}, s{T+5}")
        A(f"buffer_load_dwordx4 v3, {s(SRD_WS,4)}, s{T+6} offen sc1 lds")
        if i < 15:
            A(f"s_add_u32 s{T+5}, s{T+5}, 131072")
            A(f"s_and_b32 s{T+5}, s{T+5}, 0x1fffff")
    def xread(slot, st, e):
        return [f"ds_read_b64_tr_b16 {v(XF+4*slot+2*h,2)}, v{VXA+st} offset:{LDS_XC+2048*e+512*h}" for h in range(2)]
    def hstore(st, t, out):
        return [f"buffer_store_dwordx4 {v(out+4*k,4)}, v18, {s(SRD_WS,4)}, s{T+3+st} offen offset:{2048*t+1024*k} sc1" for k in range(2)]
    def checkpoint(c):
        A(f"s_waitcnt vmcnt({24-8*c})")
        A("s_barrier")
        if c in (0, 3): stamp(A, f"ckpt{c}")
        if c == 1:
            for k in range(4):
                A(f"ds_read_b64_tr_b16 {v(VXR+2*k,2)}, v{44+(k&1)} offset:{1024*k}")
    def read_rs():
        return [f"ds_read_b32 v{VRS+2*st+k}, v19 offset:{256*k+128*st}" for st in range(2) for k in range(2)]
    NB = 4
    def main():
        for c in range(4):
            checkpoint(c)
            for e in range(8 * c, 8 * c + NB):
                for x in xread(e % 8, 0, e): A(x)
            for e in range(8 * c, 8 * c + 8):
                for t in range(2):
                    cc = "0" if e == 0 else v(ACC1 + 16 * t, 16)
                    A(f"v_mfma_f32_32x32x16_bf16 {v(ACC1+16*t,16)}, {a(w1frag(0,t,e),4)}, {v(XF+4*(e%8),4)}, {cc}")
                if e + NB < 8 * c + 8:
                    for x in xread((e + NB) % 8, 0, e + NB): A(x)
                elif c == 3:
                    for x in xread((e + NB) % 8, 1, e + NB - 32): A(x)
        fill = []
        for t in range(2):
            fill += silu_ops(ACC1 + 16 * t, t, VRS, VRS + 1, TMP, OUT + 8 * t, False) + hstore(0, t, OUT + 8 * t)
        for e in range(32):
            for t in range(2):
                cc = "0" if e == 0 else v(ACC1 + 32 + 16 * t, 16)
                A(f"v_mfma_f32_32x32x16_bf16 {v(ACC1+32+16*t,16)}, {a(w1frag(0,t,e),4)}, {v(XF+4*(e%8),4)}, {cc}")
                budget = 24
                if t == 0 and e + NB < 32:
                    for x in xread((e + NB) % 8, 1, e + NB): A(x)
                    budget -= 8
                if e == 2 and t == 1:
                    A("s_barrier")
                    for x in read_rs(): A(x)
                if e >= 4:
                    while fill and budget >= cost(fill[0]):
                        budget -= cost(fill[0]); A(fill.pop(0))
        for x in fill: A(x)
        stamp(A, "g1 mfma")
        for t in range(2):
            for x in silu_ops(ACC1 + 32 + 16 * t, t, VRS + 2, VRS + 3, TMP, OUT + 8 * t, True) + hstore(1, t, OUT + 8 * t): A(x)
    def w3():
        del _stamps[-3:]
        ONES, GR, SM = 40, ACC1 + 32, ACC1 + 48
        for i in range(4): A(f"v_mov_b32 v{ONES+i}, s{S_ONES}")
        def sread(e, i):
            return [f"ds_read_b64_tr_b16 {v(XF+4*((4*e+i)%8)+2*h,2)}, v{10+i} offset:{4096*e+512*h}" for h in range(2)]
        for c in range(4):
            checkpoint(c)
            seq = [(e, i) for e in range(4 * c, 4 * c + 4) for i in range(4)]
            for (e, i) in seq[:6]:
                for x in sread(e, i): A(x)
            for n, (e, i) in enumerate(seq):
                f = v(XF + 4 * ((4 * e + i) % 8), 4)
                A(f"v_mfma_f32_16x16x32_bf16 {v(GR+4*i,4)}, {f}, {f}, {'0' if e == 0 else v(GR+4*i,4)}")
                A(f"v_mfma_f32_16x16x32_bf16 {v(SM+4*i,4)}, {v(ONES,4)}, {f}, {'0' if e == 0 else v(SM+4*i,4)}")
                if n + 6 < len(seq):
                    for x in sread(*seq[n + 6]): A(x)
        for e in range(NB):
            for x in xread(e, 0, e): A(x)
        for r, m in ((1, "0x22222222"), (2, "0x44444444"), (3, "0x88888888")):
            A(f"s_mov_b32 s{T+4+2*r}, {m}")
            A(f"s_mov_b32 s{T+5+2*r}, {m}")
        A(f"v_and_b32 v6, 15, v{L}")
        A(f"v_lshlrev_b32 v6, 2, v6")
        A(f"v_add_u32 v6, {LDS_ST2}, v6")
        for r in range(1, 4):
            for i in range(4):
                A(f"v_cndmask_b32 v{GR+4*i}, v{GR+4*i}, v{GR+4*i+r}, {s(T+4+2*r,2)}")
        A(f"s_mov_b32 exec_lo, 0x00f0000f")
        A(f"s_mov_b32 exec_hi, 0xf0000f00")
        for i in range(4): A(f"ds_write_b32 v6, v{GR+4*i} offset:{64*i}")
        A("s_mov_b64 exec, -1")
        for i in range(1, 4):
            A(f"v_mov_b32_dpp v{SM}, v{SM+4*i} quad_perm:[0,1,2,3] row_mask:{hex(1<<i)} bank_mask:0xf")
        A(f"v_lshlrev_b32 v6, 2, v{L}")
        A(f"v_add_u32 v6, {LDS_ST2}, v6")
        A("s_waitcnt lgkmcnt(0)")
        A(f"ds_read_b32 v{GR}, v6")
        ln_finish(A, [(SM, GR, GR + 1, GR + 2)], GR + 3, hex(NLOG2E))
        A(f"ds_write_b32 v6, v{GR+1} offset:256")
        A(f"ds_write_b32 v6, v{GR+2} offset:512")
        A("s_waitcnt lgkmcnt(0)")
        A("s_barrier")
        for x in read_rs(): A(x)
        fill = []
        for st in range(2):
            for e in range(32):
                cc = "0" if e == 0 else v(ACC1 + 16 * st, 16)
                A(f"v_mfma_f32_32x32x16_bf16 {v(ACC1+16*st,16)}, {a(w1frag(1,0,e),4)}, {v(XF+4*(e%8),4)}, {cc}")
                budget = 24
                n = 32 * st + e + NB
                if n < 64:
                    for x in xread(n % 8, n // 32, n % 32): A(x)
                    budget -= 8
                if st == 1 and e >= 2:
                    while fill and budget >= cost(fill[0]):
                        budget -= cost(fill[0]); A(fill.pop(0))
            if st == 0: fill = silu_ops(ACC1, 0, VRS, VRS + 1, TMP, OUT, False) + hstore(0, 0, OUT)
        for x in fill: A(x)
        stamp(A, "g1 mfma")
        for x in silu_ops(ACC1 + 16, 0, VRS + 2, VRS + 3, TMP, OUT + 8, True) + hstore(1, 0, OUT + 8): A(x)
    split_wave3(A, main, w3)
    stamp(A, "H stored")
    stamp_flush(A, 1)

def w2_piece(par):
    return [f"s_lshl_b32 m0, s{S_PI}, 10",
            f"s_add_u32 s{S_TMP}, s{S_PI}, s{S_PE}",
            f"s_add_u32 m0, m0, s{S_PM}",
            f"s_cmp_ge_u32 s{S_TMP}, 56",
            f"s_cselect_b32 s{S_CARRY}, 56, 0",
            f"s_sub_u32 s{S_TMP}, s{S_TMP}, s{S_CARRY}",
            f"s_lshl_b32 s{S_TMP}, s{S_TMP}, 13",
            f"s_add_u32 s{S_PI}, s{S_PI}, 1",
            f"s_add_u32 s{S_TMP}, s{S_TMP}, s{S_PS}",
            f"buffer_load_dwordx4 v{VW2+par}, {s(SRD_W2,4)}, s{S_TMP} offen lds"]

def w2_read(A, rnd):
    for e in range(14):
        for u in range(2):
            for h in range(2):
                A(f"ds_read_b64_tr_b16 {a((28*u+14*rnd+e)*4+2*h,2)}, v{VW2+2+2*u+h} offset:{2048*e+1024*h}")

def gemm2(A):
    L = V_LANE
    ACC = 32; HF = 96; NB = 16
    dma_voff(A, VW2, VW2 + 1, 1024, 3)
    tr_addr32(A, VW2 + 2, 3, 4)
    A(f"s_lshr_b32 s{T+1}, s{S_WAVE}, 1")
    A(f"s_lshl_b32 s{T+1}, s{T+1}, 6")
    A(f"v_xor_b32 v{VW2+2}, s{T+1}, v{VW2+2}")
    A(f"s_mul_i32 s{S_PM}, s{S_WAVE}, 28672")
    A(f"v_add_u32 v{VW2+2}, s{S_PM}, v{VW2+2}")
    A(f"v_xor_b32 v{VW2+3}, 32, v{VW2+2}")
    A(f"v_xor_b32 v{VW2+4}, 64, v{VW2+2}")
    A(f"v_xor_b32 v{VW2+5}, 96, v{VW2+2}")
    A(f"s_mul_i32 s{T+8}, s{S_J}, 7")
    A(f"s_lshr_b32 s{T+8}, s{T+8}, 1")
    A(f"s_lshl_b32 s{S_PE}, s{T+8}, 1")
    A(f"s_mul_i32 s{S_PS}, s{S_WAVE}, {448*1024}")
    A(f"s_lshl_b32 s{S_TMP}, s{S_J}, 7")
    A(f"s_add_u32 s{S_PS}, s{S_PS}, s{S_TMP}")
    A(f"s_mov_b32 s{S_PI}, 0")
    A(f"v_lshrrev_b32 v5, 5, v{L}")
    A(f"v_lshlrev_b32 v5, 4, v5")
    A(f"s_lshl_b32 s{T+1}, s{T+1}, 1")
    A(f"s_add_u32 s{T+1}, s{T+1}, {LDS_GB}")
    A(f"v_add_u32 v5, s{T+1}, v5")
    for k in range(4):
        A(f"ds_read_b128 {v(16+4*k,4)}, v5 offset:{32*k}")
    A("s_waitcnt vmcnt(0) lgkmcnt(0)")
    A("s_barrier")
    stamp(A, "H acked")
    def flag3():
        A(f"s_lshl_b32 s{S_TMP}, s{S_WG}, 7")
        A(f"s_add_u32 s{S_TMP}, s{S_TMP}, {WS_SYNC + 128*FLG_3}")
        A("s_mov_b64 exec, 1")
        A(f"v_mov_b32 v252, 0")
        A(f"v_mov_b32 v253, 1")
        A(f"buffer_store_dword v253, v252, {s(SRD_WS,4)}, s{S_TMP} offen sc1")
        A("s_mov_b64 exec, -1")
    only_wave3(A, flag3)
    stream(A, w2_piece, 28, 0)
    A("s_waitcnt vmcnt(0)")
    w2_read(A, 0)
    A(f"s_mov_b32 s{S_PI}, 0")
    A(f"s_add_u32 s{S_PE}, s{S_PE}, 28")
    A(f"s_cmp_ge_u32 s{S_PE}, 56")
    A(f"s_cselect_b32 s{S_TMP}, 56, 0")
    A(f"s_sub_u32 s{S_PE}, s{S_PE}, s{S_TMP}")
    A("s_waitcnt lgkmcnt(0)")
    stream(A, w2_piece, 28, 0)
    A(f"s_lshl_b32 s{T}, s{S_RB}, 1")
    A(f"s_and_b32 s{T+1}, s{S_WAVE}, 1")
    A(f"s_add_u32 s{T+2}, s{T}, s{T+1}")
    A(f"s_xor_b32 s{T+3}, s{T+2}, 1")
    A(f"s_mul_i32 s{T+2}, s{T+2}, {112*1024}")
    A(f"s_mul_i32 s{T+3}, s{T+3}, {112*1024}")
    A(f"v_lshlrev_b32 v6, 4, v{L}")
    A(f"v_add_u32 v3, s{T+2}, v6")
    A(f"v_add_u32 v4, s{T+3}, v6")
    A(f"s_mul_i32 s{T+4}, s{S_WAVE}, {28*1024}")
    A(f"s_add_u32 s{T+4}, s{T+4}, {WS_H}")
    A(f"s_add_u32 s{T+5}, s{T+4}, {28*1024}")
    A(f"s_lshl_b32 s{T+2}, s{T+8}, 10")
    A(f"s_add_u32 s{T+2}, s{T+2}, s{T+4}")
    A("s_waitcnt vmcnt(0)")
    stamp(A, "w2 landed")
    w2_read(A, 1)
    def p3():
        A(f"s_and_b32 s{T+6}, s{S_WG}, 31")
        A(f"s_lshl_b32 s{T+6}, s{T+6}, 7")
        A(f"s_add_u32 s{T+6}, s{T+6}, {WS_SYNC + 128*FLG_3}")
        poll(A, 8, 32 * 128, f"s{T+6}")
    only_wave3(A, p3)
    A("s_waitcnt lgkmcnt(0)")
    A("s_barrier")
    stamp(A, "3 released")
    def hload(e):
        Ls = [f"buffer_load_dwordx4 {v(HF+8*(e%NB)+4*st,4)}, v{3+st}, {s(SRD_WS,4)}, s{T+2} offen sc1" for st in range(2)]
        if e < 27:
            Ls += [f"s_add_u32 s{T+2}, s{T+2}, 1024", f"s_cmp_eq_u32 s{T+2}, s{T+5}", f"s_cselect_b32 s{T+2}, s{T+4}, s{T+2}"]
        return Ls
    for e in range(NB):
        for x in hload(e): A(x)
    for e in range(28):
        for u in range(2):
            for st in range(2):
                acc = ACC + 32 * u + 16 * st
                A(f"v_mfma_f32_32x32x16_bf16 {v(acc,16)}, {a((28*u+e)*4,4)}, {v(HF+8*(e%NB)+4*st,4)}, {'0' if e == 0 else v(acc,16)}")
        if e + NB < 28:
            for x in hload(e + NB): A(x)
    stamp(A, "g2 mfma")
    for k in range(1, 4):
        A(f"s_xor_b32 s{T+5}, s{S_WAVE}, {k}")
        A(f"s_mul_i32 s{T+5}, s{T+5}, 12288")
        A(f"s_add_u32 s{T+5}, s{T+5}, {LDS_RED + 4096*(k-1)}")
        A(f"v_add_u32 v7, s{T+5}, v6")
        for q in range(4):
            A(f"ds_write_b128 v7, {v(ACC+16*k+4*q,4)} offset:{1024*q}")
    A(f"s_mul_i32 s{T+5}, s{S_WAVE}, 12288")
    A(f"v_add_u32 v7, s{T+5}, v6")
    XU = HF + 48
    for k in range(8):
        A(f"v_lshlrev_b32 v{XU+2*k}, 16, v{VXR+k}")
        A(f"v_and_b32 v{XU+2*k+1}, 0xffff0000, v{VXR+k}")
    A(f"v_and_b32 v3, 31, v{L}")
    A(f"v_lshlrev_b32 v3, 10, v3")
    A(f"v_lshrrev_b32 v4, 5, v{L}")
    A(f"v_lshl_add_u32 v3, v4, 4, v3")
    A(f"s_lshl_b32 s{T+5}, s{S_RB}, 1")
    A(f"s_add_u32 s{T+5}, s{T+5}, s{T+1}")
    A(f"s_lshl_b32 s{T+5}, s{T+5}, 15")
    A(f"s_lshl_b32 s{T+6}, s{S_J}, 7")
    A(f"s_add_u32 s{T+5}, s{T+5}, s{T+6}")
    A(f"s_lshr_b32 s{T+6}, s{S_WAVE}, 1")
    A(f"s_lshl_b32 s{T+6}, s{T+6}, 6")
    A(f"s_add_u32 s{T+5}, s{T+5}, s{T+6}")
    A("s_waitcnt lgkmcnt(0)")
    A("s_barrier")
    for k in range(3):
        for q in range(4):
            A(f"ds_read_b128 {v(HF+16*k+4*q,4)}, v7 offset:{LDS_RED+4096*k+1024*q}")
    for k in range(3):
        for r in range(0, 16, 2):
            A(f"v_pk_add_f32 {v(ACC+r,2)}, {v(ACC+r,2)}, {v(HF+16*k+r,2)}")
    for r in range(0, 16, 2):
        A(f"v_pk_fma_f32 {v(ACC+r,2)}, {v(ACC+r,2)}, {v(16+r,2)}, {v(XU+r,2)}")
    for r in range(0, 16, 2):
        A(f"v_cvt_pk_bf16_f32 v{HF+r//2}, v{ACC+r}, v{ACC+r+1}")
    for kk in range(2):
        A(f"v_permlane32_swap_b32 v{HF+4*kk}, v{HF+4*kk+2}")
        A(f"v_permlane32_swap_b32 v{HF+4*kk+1}, v{HF+4*kk+3}")
    for kk in range(2):
        A(f"buffer_store_dwordx4 {v(HF+4*kk,4)}, v3, {s(SRD_OUT,4)}, s{T+5} offen offset:{32*kk}")
    stamp(A, "end")
    stamp_flush(A, 2)

HEADER = open("cdna_kernels/" + NAME + ".s.ref").read().split("; Override launch")[0]

def build():
    A = Asm()
    name = NAME + "_kernel"
    A('.amdgcn_target "amdgcn-amd-amdhsa--gfx950"')
    A(".text"); A(f".globl {name}"); A(".p2align 8"); A(f".type {name},@function"); A(f"{name}:")
    prologue(A)
    phase0(A)
    conv(A)
    window3(A)
    gemm1(A)
    gemm2(A)
    A("L_end:")
    A("s_endpgm")
    A.autowait()
    A.pad()
    out = HEADER + f"; @launch grid=(256,1,1) block=(256,1,1) lds={LDS_TOTAL}\n" + A.text()
    out += f""".section .rodata,"a"
.p2align 6
.amdhsa_kernel {name}
  .amdhsa_next_free_vgpr 512
  .amdhsa_next_free_sgpr 102
  .amdhsa_accum_offset 256
  .amdhsa_group_segment_fixed_size 0
  .amdhsa_kernarg_size 112
  .amdhsa_user_sgpr_count 2
  .amdhsa_user_sgpr_kernarg_segment_ptr 1
  .amdhsa_system_sgpr_workgroup_id_x 1
  .amdhsa_float_denorm_mode_32 3
.end_amdhsa_kernel
"""
    return out

if __name__ == "__main__":
    path = sys.argv[1]
    O.prof = "--prof" in sys.argv
    O.cyc = "--cyc" in sys.argv
    for x in sys.argv[2:]:
        if "=" in x:
            k_, v_ = x.split("="); setattr(O, k_, int(v_))
    open(path, "w").write(build())
    if O.prof:
        import json; json.dump(STAMPS, open(path + ".stamps.json", "w"))
    print("wrote", path)
```

```python
import sys
sys.path.insert(0, "dev")
from asmlib import Asm, v, a, s

NAME = "adaLN_cond__ssm_conv_h3__dense_activation_silu__prompt"
STAGE = 4
REC_LAYOUT = 2
H_SCALE = -0.6931471805599453

WS_REC = 0
WS_X1 = 4 << 20
WS_X1C = 6 << 20
WS_H = 8 << 20
WS_STAT = 16 << 20
WS_MODP = (16 << 20) + 65536
WS_SYNC = 17 << 20
WS_PROF = (17 << 20) + (512 << 10)
WS_SIZE = 18 << 20
FLG_A, EPOCH, CNT_2, FLG_2, FLG_3 = 0, 2, 16, 32, 128
LF_A, LF_2 = 512, 768

S_WG = 2; S_WAVE = 3
SRD_Q, SRD_K, SRD_V, SRD_SSMK, SRD_W1, SRD_W2, SRD_WMOD, SRD_OUT, SRD_WS, SRD_SHK, SRD_C, SRD_SSMD = [4 + 4 * i for i in range(12)]
S_DBG = 52
T = 54
S_PI, S_PM, S_PS, S_PE = 88, 89, 90, 91
S_RB, S_J, S_ROT, S_CH, S_CARRY, S_SPIN = 92, 93, 94, 95, 96, 97
S_TMP = 98
S_SIG = 87
S_TAG = 84
S_PO = 86
S_SELLO, S_SELHI, S_ONES = 99, 100, 101

KARG = {SRD_Q: (0, 2097152), SRD_K: (8, 2097152), SRD_V: (16, 2097152), SRD_SHK: (24, 4096), SRD_SSMK: (32, 2097152),
        SRD_SSMD: (40, 1024), SRD_W1: (56, 512 * 1792 * 2), SRD_W2: (64, 512 * 1792 * 2), SRD_C: (72, 1024),
        SRD_WMOD: (80, 512 * 3072 * 2), SRD_OUT: (88, 2097152), SRD_WS: (104, WS_SIZE)}
NLOG2E = 0xbfb8aa3b

LDS_XC = 0
LDS_X1 = 65536
LDS_GM = 98304
LDS_SC = 114688
LDS_REC = 98304
LDS_KC = 131072
LDS_CARRY = 153216
LDS_MODV = 147968
LDS_CS = 150144
LDS_ST2 = 152192
LDS_GB = 152960
LDS_STA = 116736
LDS_STB = 157440
LDS_RED = 0
LDS_TOTAL = 163840

V_LANE = 2
VW1 = 238
VW3 = 236
VW2H = 232
VW2 = 244
VW2S = 238

class Opt:
    prof = False; cyc = False
    w1_depth = 12
    wpf = 1; xpre = 2; hpre = 6; recperm = 1; kc_late = 1; sleep = 1
    conv_groups = 2; w3_depth = 10; tailg = 2; cs_early = 1; n_w1 = 4; w5 = 1; lfa = 1; lf2 = 0; kc_early = 1; n_rd = 2; poller2 = 3; map84 = 0; touch = 0; tg = 1
O = Opt()

_stamps = []
STAMPS = {}
def stamp(A, name):
    if not O.prof: return
    n = len(_stamps); _stamps.append(name)
    A(f"s_memtime s[74:75]" if O.cyc else f"s_memrealtime s[74:75]")
    A("s_waitcnt lgkmcnt(0)")
    if n == 1: A(f"v_writelane_b32 v250, s76, 0")
    A(f"v_writelane_b32 v250, s74, {n}")
def stamp_flush(A, kidx):
    if not O.prof or kidx != 2: return
    A(f"s_lshl_b32 s74, s{S_WG}, 2")
    A(f"s_add_u32 s74, s74, s{S_WAVE}")
    A(f"s_lshl_b32 s74, s74, 8")
    A(f"s_add_u32 s74, s74, {WS_PROF}")
    A(f"v_lshlrev_b32 v254, 2, v{V_LANE}")
    A(f"buffer_store_dword v250, v254, {s(SRD_WS,4)}, s74 offen")
    STAMPS[0] = list(_stamps)

def dma_voff(A, d0, d1, rowstride, tmp):
    A(f"v_lshrrev_b32 v{tmp}, 3, v{V_LANE}")
    A(f"v_and_b32 v{d1}, 2, v{tmp}")
    A(f"v_lshlrev_b32 v{d1}, 5, v{d1}")
    A(f"v_and_b32 v{d0}, 7, v{V_LANE}")
    A(f"v_lshlrev_b32 v{d0}, 4, v{d0}")
    A(f"v_xor_b32 v{d0}, v{d0}, v{d1}")
    A(f"v_mul_u32_u24 v{tmp}, {rowstride}, v{tmp}")
    A(f"v_add_u32 v{d0}, v{d0}, v{tmp}")
    A(f"v_xor_b32 v{d1}, 32, v{d0}")

def tr_addr32(A, d, tmp, rowmul):
    L = V_LANE
    A(f"v_lshrrev_b32 v{tmp}, 5, v{L}")
    A(f"v_bfe_u32 v{tmp+1}, v{L}, 2, 2")
    A(f"v_lshl_add_u32 v{d}, v{tmp}, {3 if rowmul == 8 else 2}, v{tmp+1}")
    A(f"v_lshlrev_b32 v{d}, 7, v{d}")
    A(f"v_and_b32 v{tmp+1}, 2, v{tmp+1}")
    if rowmul == 8: A(f"v_or_b32 v{tmp+1}, v{tmp+1}, v{tmp}")
    A(f"v_bfe_u32 v{tmp}, v{L}, 4, 1")
    A(f"v_xor_b32 v{tmp+1}, v{tmp+1}, v{tmp}")
    A(f"v_lshl_add_u32 v{d}, v{tmp+1}, 5, v{d}")
    A(f"v_and_b32 v{tmp}, 3, v{L}")
    A(f"v_lshl_add_u32 v{d}, v{tmp}, 3, v{d}")

def tr_addr16(A, d, tmp):
    L = V_LANE
    A(f"v_lshrrev_b32 v{tmp}, 4, v{L}")
    A(f"v_bfe_u32 v{tmp+1}, v{L}, 2, 2")
    A(f"v_lshl_add_u32 v{d}, v{tmp}, 3, v{tmp+1}")
    A(f"v_lshlrev_b32 v{d}, 7, v{d}")
    A(f"v_and_b32 v{tmp+1}, 2, v{tmp+1}")
    A(f"v_and_b32 v{tmp}, 1, v{tmp}")
    A(f"v_or_b32 v{tmp+1}, v{tmp+1}, v{tmp}")
    A(f"v_lshl_add_u32 v{d}, v{tmp+1}, 5, v{d}")
    A(f"v_and_b32 v{tmp}, 3, v{L}")
    A(f"v_lshl_add_u32 v{d}, v{tmp}, 3, v{d}")

def ln_finish(A, rows, tmp, scale=None):
    steps = [
        lambda su, sq, o1, o2, t: [f"v_mul_f32 v{su}, 0x3b000000, v{su}", f"v_mul_f32 v{sq}, 0x3b000000, v{sq}"],
        lambda su, sq, o1, o2, t: [f"v_fma_f32 v{sq}, -v{su}, v{su}, v{sq}"],
        lambda su, sq, o1, o2, t: [f"v_max_f32 v{sq}, 0, v{sq}"],
        lambda su, sq, o1, o2, t: [f"v_cvt_pk_bf16_f32 v{t}, v{su}, v{sq}"],
        lambda su, sq, o1, o2, t: [f"v_lshlrev_b32 v{su}, 16, v{t}", f"v_and_b32 v{sq}, 0xffff0000, v{t}"],
        lambda su, sq, o1, o2, t: [f"v_add_f32 v{sq}, 0x3727c5ac, v{sq}"],
        lambda su, sq, o1, o2, t: [f"v_cvt_pk_bf16_f32 v{sq}, v{sq}, v{sq}"],
        lambda su, sq, o1, o2, t: [f"v_lshlrev_b32 v{sq}, 16, v{sq}"],
        lambda su, sq, o1, o2, t: [f"v_sqrt_f32 v{sq}, v{sq}"],
        lambda su, sq, o1, o2, t: [f"v_cvt_pk_bf16_f32 v{sq}, v{sq}, v{sq}"],
        lambda su, sq, o1, o2, t: [f"v_lshlrev_b32 v{sq}, 16, v{sq}"],
        lambda su, sq, o1, o2, t: [f"v_rcp_f32 v{o1}, v{sq}"],
        lambda su, sq, o1, o2, t: [f"v_mul_f32 v{o1}, {scale}, v{o1}"] if scale else [],
        lambda su, sq, o1, o2, t: [f"v_mul_f32 v{o2}, -v{su}, v{o1}"],
    ]
    for st in steps:
        for i, r in enumerate(rows):
            for x in st(*r, tmp + i): A(x)

_uid = [0]
def uid():
    _uid[0] += 1; return _uid[0]

def signal_issue(A, cnt):
    A(f"s_and_b32 s{S_SIG}, s{S_WG}, 15")
    A(f"s_lshl_b32 s{S_SIG}, s{S_SIG}, 7")
    A(f"s_add_u32 s{S_SIG}, s{S_SIG}, {WS_SYNC}")
    A("s_mov_b64 exec, 1")
    A(f"v_mov_b32 v252, {128*cnt}")
    A(f"v_mov_b32 v253, 1")
    A(f"buffer_atomic_add v253, v252, {s(SRD_WS,4)}, s{S_SIG} offen sc0 sc1")
    A("s_mov_b64 exec, -1")

def signal_finish(A, flag):
    u = uid()
    A("s_mov_b64 exec, 1")
    A(f"v_cmp_eq_u32 vcc, 15, v253")
    A(f"v_mov_b32 v252, {128*flag}")
    A(f"v_mov_b32 v253, 1")
    A(f"s_cbranch_vccz L_sig{u}")
    A(f"buffer_store_dword v253, v252, {s(SRD_WS,4)}, s{S_SIG} offen sc1")
    A(f"L_sig{u}:")
    A("s_mov_b64 exec, -1")

def poll(A, nlanes, stride, base_sgpr_or_imm, want=1):
    u = uid()
    A(f"s_mov_b64 exec, {hex((1 << nlanes) - 1)}")
    if stride: A(f"v_mul_u32_u24 v252, {stride}, v{V_LANE}")
    if isinstance(base_sgpr_or_imm, int): A(f"s_mov_b32 s{S_TMP}, {base_sgpr_or_imm}")
    else: A(f"s_mov_b32 s{S_TMP}, {base_sgpr_or_imm}")
    A(f"s_mov_b32 s{S_SPIN}, 0x80000")
    A(f"L_poll{u}:")
    A(f"buffer_load_dword v253, v252, {s(SRD_WS,4)}, s{S_TMP} offen sc1")
    A(f"s_sub_u32 s{S_SPIN}, s{S_SPIN}, 1")
    A(f"s_cbranch_scc1 L_pollx{u}")
    A("s_waitcnt vmcnt(0)")
    A(f"v_cmp_ne_u32 vcc, {want}, v253")
    A(f"s_cbranch_vccz L_pollx{u}")
    A(f"s_sleep {O.sleep}")
    A(f"s_branch L_poll{u}")
    A(f"L_pollx{u}:")
    A("s_waitcnt vmcnt(0)")
    A("s_mov_b64 exec, -1")

def lf_signal(A, base):
    A(f"s_lshl_b32 s{S_TMP}, s{S_WG}, 7")
    A(f"s_add_u32 s{S_TMP}, s{S_TMP}, {WS_SYNC + 128*base}")
    A("s_mov_b64 exec, 1")
    A(f"v_mov_b32 v252, 0")
    A(f"v_mov_b32 v254, s{S_TAG}")
    A(f"v_mov_b32 v255, s{S_TAG+1}")
    A(f"buffer_store_dwordx2 v[254:255], v252, {s(SRD_WS,4)}, s{S_TMP} offen sc1")
    A("s_mov_b64 exec, -1")

def lf_poll(A, base, tmpv):
    u = uid(); M = 76
    A(f"v_lshlrev_b32 v{tmpv+8}, 7, v{V_LANE}")
    for i in range(4):
        A(f"s_mov_b64 {s(M+2*i,2)}, -1")
        if i: A(f"v_add_u32 v{tmpv+8+i}, {8192*i}, v{tmpv+8}")
    A(f"s_mov_b32 s{S_TMP}, {WS_SYNC + 128*base}")
    A(f"s_mov_b32 s{S_SPIN}, 0x40000")
    A(f"L_lf{u}:")
    for i in range(4):
        A(f"s_mov_b64 exec, {s(M+2*i,2)}")
        A(f"s_cbranch_execz L_lf{u}_{i}")
        A(f"buffer_load_dwordx2 {v(tmpv+2*i,2)}, v{tmpv+8+i}, {s(SRD_WS,4)}, s{S_TMP} offen sc1")
        A(f"L_lf{u}_{i}:")
    A("s_waitcnt vmcnt(0)")
    for i in range(4):
        A(f"s_mov_b64 exec, {s(M+2*i,2)}")
        A(f"v_cmp_ne_u64 {s(M+2*i,2)}, {s(S_TAG,2)}, {v(tmpv+2*i,2)}")
    A("s_mov_b64 exec, -1")
    A(f"s_or_b64 vcc, {s(M,2)}, {s(M+2,2)}")
    A(f"s_or_b64 vcc, vcc, {s(M+4,2)}")
    A(f"s_or_b64 vcc, vcc, {s(M+6,2)}")
    A(f"s_cbranch_scc0 L_lfx{u}")
    A(f"s_sleep {O.sleep}")
    A(f"s_sub_u32 s{S_SPIN}, s{S_SPIN}, 1")
    A(f"s_cbranch_scc0 L_lf{u}")
    A(f"L_lfx{u}:")

def only_wave3(A, body):
    u = uid()
    A(f"s_cmp_eq_u32 s{S_WAVE}, 3")
    A(f"s_cbranch_scc0 L_w3_{u}")
    body()
    A(f"L_w3_{u}:")

def split_wave3(A, others, w3):
    u = uid()
    A(f"s_cmp_eq_u32 s{S_WAVE}, 3")
    A(f"s_cbranch_scc1 L_s3a_{u}")
    others()
    A(f"s_branch L_s3b_{u}")
    A(f"L_s3a_{u}:")
    w3()
    A(f"L_s3b_{u}:")

def w1_begin(A):
    A(f"s_lshl_b32 s{S_PM}, s{S_WAVE}, 15")
    A(f"s_mul_i32 s{S_PS}, s{S_J}, 448")
    A(f"s_lshl_b32 s{S_TMP}, s{S_WAVE}, 7")
    A(f"s_add_u32 s{S_PS}, s{S_PS}, s{S_TMP}")
    A(f"s_add_u32 s{S_PS}, s{S_PS}, 64")
    A(f"s_and_b32 s{S_PS}, s{S_PS}, 0xffffff80")

def pieces8(vbase, srd, step4, depth=0):
    L = []
    for p in range(8):
        if p == 4: L += [f"s_add_u32 m0, m0, 4096", f"s_add_u32 s{S_PO}, s{S_PO}, {step4}"]
        L.append(f"buffer_load_dwordx4 v{vbase+(p&3)}, {s(srd,4)}, s{S_PO} offen offset:{1024*(p&3)} lds")
        if depth: L.append(f"s_waitcnt vmcnt({depth-1})")
    return L

def w1_group(gi, depth=0):
    return [f"s_add_u32 s{S_TMP}, s{S_ROT}, {gi}",
            f"s_add_u32 m0, s{S_PM}, {8192*(gi&3)}",
            f"s_and_b32 s{S_TMP}, s{S_TMP}, 7",
            f"s_mul_i32 s{S_PO}, s{S_TMP}, {64*3584}",
            f"s_add_u32 s{S_PO}, s{S_PO}, s{S_PS}"] + pieces8(VW1, SRD_W1, 32 * 3584, depth)

def w1_tail_group(A):
    A(f"s_add_u32 s{S_TMP}, s{S_WAVE}, s{S_ROT}")
    A(f"s_lshl_b32 m0, s{S_WAVE}, 13")
    A(f"s_bitcmp1_b32 s{S_TMP}, 2")
    A(f"s_cselect_b64 vcc, -1, 0")
    A(f"s_add_u32 m0, m0, {3*32768}")
    A(f"s_and_b32 s{S_TMP}, s{S_TMP}, 3")
    A(f"v_cndmask_b32 v40, v{VW3}, v{VW3+1}, vcc")
    for k in range(4): A(f"v_add_u32 v{40+k if k else 44}, v40, v{VW1+k}")
    A(f"v_mov_b32 v40, v44")
    A(f"s_mul_i32 s{S_PO}, s{S_TMP}, {64*3584}")
    A(f"s_mul_i32 s{S_TMP}, s{S_J}, 448")
    A(f"s_add_u32 s{S_PO}, s{S_PO}, s{S_TMP}")
    A(f"s_bitcmp1_b32 s{S_J}, 0")
    A(f"s_cselect_b32 s{S_TMP}, 0, 384")
    A(f"s_add_u32 s{S_PO}, s{S_PO}, s{S_TMP}")
    for x in pieces8(40, SRD_W1, 32 * 3584): A(x)

def loop(A, body, n):
    u = uid()
    A(f"s_mov_b32 s{S_SPIN}, {n}")
    A(f"L_lp{u}:")
    for x in body: A(x)
    A(f"s_sub_u32 s{S_SPIN}, s{S_SPIN}, 1")
    A(f"s_cmp_lg_u32 s{S_SPIN}, 0")
    A(f"s_cbranch_scc1 L_lp{u}")

def w1_read(gi):
    return [f"ds_read_b64_tr_b16 {a((32*t+4*gi+e)*4+2*h,2)}, v{242+t} offset:{8192*(gi&3)+2048*e+512*h}" for e in range(4) for t in range(2) for h in range(2)]

def w1frag(w3, t, e):
    if w3: return (e if e < 16 else 32 + e - 16) * 4
    return (32 * t + e) * 4

LDS_ST1 = 114944
def prologue(A):
    VK, VV, VQ, VSH, VST, VC = 10, 28, 36, 44, 48, 56
    L = V_LANE
    A(f"s_cmp_ge_u32 s{S_WG}, 256")
    A(f"s_cbranch_scc1 L_end")
    if O.prof:
        A("s_memtime s[76:77]" if O.cyc else "s_memrealtime s[76:77]")
        _stamps.append("start")
    first = [SRD_Q, SRD_C, SRD_K, SRD_V, SRD_SHK, SRD_WS]
    rest = [SRD_WMOD, SRD_SSMK, SRD_SSMD, SRD_W1, SRD_W2, SRD_OUT]
    for r in first:
        A(f"s_load_dwordx2 {s(r,2)}, s[0:1], {KARG[r][0]}")
    A(f"v_lshrrev_b32 v1, 6, v0")
    A(f"v_and_b32 v{L}, 63, v0")
    A(f"v_readfirstlane_b32 s{S_WAVE}, v1")
    for r in first:
        A(f"s_mov_b32 s{r+2}, {KARG[r][1]}")
        A(f"s_mov_b32 s{r+3}, 0x20000")
    A(f"s_lshr_b32 s{T}, s{S_WG}, 1")
    A(f"s_and_b32 s{T+1}, s{S_WG}, 1")
    A(f"s_lshl_b32 s{T+1}, s{T+1}, 2")
    A(f"s_add_u32 s{T+1}, s{T+1}, s{S_WAVE}")
    A(f"s_lshl_b32 s{T+1}, s{T+1}, 5")
    A(f"v_and_b32 v3, 31, v0")
    A(f"v_add_u32 v5, s{T+1}, v3")
    A(f"v_bfe_u32 v4, v0, 5, 1")
    A(f"v_lshlrev_b32 v6, 2, v5")
    A(f"v_lshl_add_u32 v6, v4, 10, v6")
    A(f"s_lshl_b32 s{T+2}, s{T}, 14")
    for k in range(1, 4):
        A(f"s_add_u32 s{T+2+k}, s{T+2}, {4096*k}")
    A(f"s_sub_u32 s{T+6}, s{T+2}, 3072")
    A(f"v_add_u32 v8, s{T+6}, v6")
    A(f"v_add_u32 v9, 1024, v8")
    A(f"v_add_u32 v57, 2048, v8")
    A(f"v_lshlrev_b32 v7, 4, v5")
    A(f"s_lshl_b32 s{T+7}, s{S_WG}, 2")
    A(f"s_add_u32 s{T+7}, s{T+7}, s{S_WAVE}")
    A(f"s_lshl_b32 s{T+8}, s{T+7}, 11")
    A(f"v_lshlrev_b32 v58, 4, v{L}")
    A(f"s_mul_i32 s{T+9}, s{S_WG}, 1366")
    A(f"s_lshr_b32 s{T+9}, s{T+9}, 16")
    A(f"v_and_b32 v59, 127, v0")
    A(f"v_lshlrev_b32 v59, 1, v59")
    A(f"s_lshl_b32 s{T+12}, s{T+9}, 8")
    A(f"v_lshlrev_b32 v252, 11, v{L}")
    A(f"s_lshl_b32 s{T+11}, s{S_WG}, 7")
    A(f"v_mov_b32 v253, {128*FLG_3}")
    A(f"v_cmp_eq_u32 vcc, 4, v{L}")
    A(f"s_add_u32 s{T+11}, s{T+11}, {WS_SYNC}")
    A(f"v_cndmask_b32 v252, v252, v253, vcc")
    A(f"v_mov_b32 v253, 0")
    A("s_waitcnt lgkmcnt(0)")
    def clr():
        A(f"s_cmp_lt_u32 s{S_WG}, 16")
        A(f"s_cselect_b32 exec_lo, 0x16, 0x10")
        A(f"s_mov_b32 exec_hi, 0")
        A(f"buffer_store_dword v253, v252, {s(SRD_WS,4)}, s{T+11} offen sc1")
        A("s_mov_b64 exec, -1")
    only_wave3(A, clr)
    A(f"buffer_load_dwordx4 {v(VST,4)}, v58, {s(SRD_Q,4)}, s{T+8} offen")
    A(f"buffer_load_dwordx4 {v(VST+4,4)}, v58, {s(SRD_Q,4)}, s{T+8} offen offset:1024")
    A(f"buffer_load_ushort v{VC}, v59, {s(SRD_C,4)}, s{T+12} offen")
    A(f"buffer_load_dword v{VK}, v8, {s(SRD_K,4)}, 0 offen")
    A(f"buffer_load_dword v{VK+1}, v9, {s(SRD_K,4)}, 0 offen")
    A(f"buffer_load_dword v{VK+2}, v57, {s(SRD_K,4)}, 0 offen")
    for r in range(15):
        A(f"buffer_load_dword v{VK+3+r}, v6, {s(SRD_K,4)}, s{T+2+(r>>2)} offen offset:{1024*(r&3)}")
    A(f"buffer_load_dwordx4 {v(VSH,4)}, v7, {s(SRD_SHK,4)}, 0 offen")
    for k in range(8):
        A(f"buffer_load_dword v{VV+k}, v6, {s(SRD_V,4)}, s{T+2+(k>>1)} offen offset:{2048*(k&1)}")
    for k in range(8):
        A(f"buffer_load_dword v{VQ+k}, v6, {s(SRD_Q,4)}, s{T+2+(k>>1)} offen offset:{2048*(k&1)}")
    for r in rest:
        A(f"s_load_dwordx2 {s(r,2)}, s[0:1], {KARG[r][0]}")
    A(f"s_load_dwordx2 {s(S_DBG,2)}, s[0:1], 96")
    A(f"s_add_u32 s{T+16}, s{SRD_WS}, {WS_SYNC + 128*EPOCH}")
    A(f"s_addc_u32 s{T+17}, s{SRD_WS+1}, 0")
    A(f"s_load_dwordx2 {s(S_TAG,2)}, s[{T+16}:{T+17}], 0")
    A(f"s_getpc_b64 s[{T+16}:{T+17}]")
    A("L_pc:")
    A(f"s_cmp_eq_u32 s{S_WAVE}, 0")
    A(f"s_cbranch_scc0 L_nopf")
    A(f"s_bfe_u32 s{T+11}, s{S_WG}, 0x30003")
    A(f"s_lshl_b32 s{T+11}, s{T+11}, 13")
    A(f"v_lshlrev_b32 v254, 7, v0")
    A(f"v_add_u32 v254, s{T+11}, v254")
    A(f"v_min_u32 v254, L_end-L_pc, v254")
    A(f"global_load_dword v255, v254, s[{T+16}:{T+17}] ; nowait")
    A("L_nopf:")
    for r in rest:
        A(f"s_mov_b32 s{r+2}, {KARG[r][1]}")
        A(f"s_mov_b32 s{r+3}, 0x20000")
    A(f"s_mul_i32 s{T+10}, s{T+9}, 48")
    A(f"s_sub_u32 s{T+10}, s{S_WG}, s{T+10}")
    dma_voff(A, 60, 61, 6144, 62)
    A(f"s_lshl_b32 s{T+12}, s{T+9}, 7")
    A(f"s_lshl_b32 s{T+13}, s{S_WAVE}, 5")
    A(f"s_add_u32 s{T+12}, s{T+12}, s{T+13}")
    A(f"s_mul_i32 s{T+12}, s{T+12}, 6144")
    A(f"s_lshl_b32 s{T+11}, s{T+10}, 7")
    A(f"s_add_u32 s{T+12}, s{T+12}, s{T+11}")
    A(f"s_lshl_b32 s{T+14}, s{S_WAVE}, 12")
    A(f"s_add_u32 m0, s{T+14}, {LDS_GM}")
    A("s_waitcnt lgkmcnt(0)")
    stamp(A, "issued")
    for i in range(4):
        if i:
            A(f"s_add_u32 m0, m0, 1024")
            A(f"s_add_u32 s{T+12}, s{T+12}, {8*6144}")
        A(f"buffer_load_dwordx4 v{60+(i&1)}, {s(SRD_WMOD,4)}, s{T+12} offen lds")
    A(f"s_mov_b32 s{S_SELLO}, 0x05040100")
    A(f"s_mov_b32 s{S_SELHI}, 0x07060302")
    A(f"s_mov_b32 s{S_ONES}, 0x3f803f80")
    if O.map84:
        A(f"s_bfe_u32 s{S_RB}, s{S_WG}, 0x20001")
        A(f"s_lshl_b32 s{S_RB}, s{S_RB}, 3")
        A(f"s_lshr_b32 s{S_ROT}, s{S_WG}, 5")
        A(f"s_add_u32 s{S_RB}, s{S_RB}, s{S_ROT}")
        A(f"s_bfe_u32 s{S_PE}, s{S_WG}, 0x20003")
        A(f"s_and_b32 s{S_J}, s{S_WG}, 1")
        A(f"s_lshl_b32 s{S_J}, s{S_J}, 2")
        A(f"s_add_u32 s{S_J}, s{S_J}, s{S_PE}")
        A(f"s_lshl_b32 s{S_PE}, s{S_PE}, 1")
        A(f"s_add_u32 s{S_PE}, s{S_PE}, s{S_ROT}")
    else:
        A(f"s_and_b32 s{S_RB}, s{S_WG}, 7")
        A(f"s_lshl_b32 s{S_RB}, s{S_RB}, 2")
        A(f"s_bfe_u32 s{S_ROT}, s{S_WG}, 0x20003")
        A(f"s_add_u32 s{S_RB}, s{S_RB}, s{S_ROT}")
        A(f"s_lshr_b32 s{S_J}, s{S_WG}, 5")
        A(f"s_lshl_b32 s{S_ROT}, s{S_ROT}, 1")
        A(f"s_add_u32 s{S_PE}, s{S_ROT}, s{S_J}")
    A(f"s_and_b32 s{S_ROT}, s{S_PE}, 7")
    A(f"s_cmp_ge_u32 s{S_PE}, 7")
    A(f"s_cselect_b32 s{S_TMP}, 7, 0")
    A(f"s_sub_u32 s{S_PE}, s{S_PE}, s{S_TMP}")
    A(f"s_cmp_ge_u32 s{S_PE}, 7")
    A(f"s_cselect_b32 s{S_TMP}, 7, 0")
    A(f"s_sub_u32 s{S_PE}, s{S_PE}, s{S_TMP}")

def phase0(A):
    VK, VV, VQ, VSH, VST, VC = 10, 28, 36, 44, 48, 56
    L = V_LANE
    stamp(A, "issued2")
    dma_voff(A, VW1, VW1 + 1, 3584, 64)
    A(f"s_mov_b32 s{T+14}, {256*3584}")
    A(f"v_bfe_u32 v64, v{VW1}, 6, 1")
    A(f"v_mul_lo_u32 v65, v64, s{T+14}")
    A(f"v_lshlrev_b32 v64, 6, v64")
    A(f"v_sub_u32 v{VW3}, v65, v64")
    A(f"v_sub_u32 v65, s{T+14}, v65")
    A(f"v_sub_u32 v{VW3+1}, v65, v64")
    A(f"v_add_u32 v{VW1+1}, {8*3584-1024}, v{VW1+1}")
    A(f"v_add_u32 v{VW1+2}, {2*(8*3584-1024)}, v{VW1}")
    A(f"v_add_u32 v{VW1+3}, {2*(8*3584-1024)}, v{VW1+1}")
    tr_addr32(A, 242, 64, 8)
    A(f"s_lshl_b32 s{T+14}, s{S_WAVE}, 15")
    A(f"v_add_u32 v242, s{T+14}, v242")
    A(f"v_xor_b32 v243, 64, v242")
    w1_begin(A)
    A(f"s_lshr_b32 s{T+11}, s{S_WAVE}, 1")
    A(f"s_lshl_b32 s{S_CH}, s{S_WG}, 1")
    A(f"s_add_u32 s{S_CH}, s{S_CH}, s{T+11}")
    A(f"s_mul_i32 s{S_CARRY}, s{T+11}, 2080")
    A(f"s_add_u32 s{S_CARRY}, s{S_CARRY}, {LDS_CARRY}")
    A(f"s_mul_i32 s{T+13}, s{S_WAVE}, 4224")
    A(f"s_add_u32 s{T+13}, s{T+13}, {LDS_KC}")
    A(f"s_and_b32 s{T+11}, s{S_WAVE}, 1")
    A(f"s_lshl_b32 s{T+14}, s{T+11}, 2")
    A(f"s_sub_u32 s{T+14}, 4, s{T+14}")
    A(f"v_add_u32 v62, s{T+14}, v58")
    A(f"v_and_b32 v64, 7, v3")
    A(f"v_lshlrev_b32 v65, 2, v4")
    A(f"v_xor_b32 v64, v64, v65")
    A(f"v_lshlrev_b32 v57, 7, v3")
    A(f"v_lshl_add_u32 v57, v64, 4, v57")
    A(f"s_lshl_b32 s{T+14}, s{S_WAVE}, 15")
    A(f"s_add_u32 s{T+14}, s{T+14}, 24576")
    A(f"v_add_u32 v57, s{T+14}, v57")
    A(f"v_lshrrev_b32 v64, 3, v{L}")
    A(f"v_and_b32 v65, 7, v{L}")
    A(f"v_xor_b32 v66, v65, v64")
    A(f"v_lshlrev_b32 v9, 7, v64")
    A(f"v_lshl_add_u32 v9, v66, 4, v9")
    A(f"v_add_u32 v9, s{T+14}, v9")
    A(f"v_lshlrev_b32 v65, 4, v65")
    for b in range(4):
        A(f"v_add_u32 v66, s{T+1}, v64")
        if b: A(f"v_add_u32 v66, {8*b}, v66")
        if O.recperm:
            A(f"v_xor_b32 v67, s{T}, v66")
            A(f"v_and_b32 v67, 127, v67")
        else:
            A(f"v_mov_b32 v67, s{T}")
        A(f"v_lshl_add_u32 v66, v66, 7, v67")
        A(f"v_lshl_add_u32 v{168+b}, v66, 7, v65")
    for k in range(1, 4): A(f"v_xor_b32 v{173+k}, {16*k}, v57")
    B = 172
    tr_addr16(A, B, 64)
    A(f"s_lshl_b32 s{T+16}, s{S_WAVE}, 5")
    A(f"v_xor_b32 v{B}, s{T+16}, v{B}")
    A(f"v_add_u32 v{B}, {LDS_GM}, v{B}")
    A(f"v_lshrrev_b32 v{B+1}, 4, v{L}")
    A(f"v_lshlrev_b32 v{B+1}, 4, v{B+1}")
    A(f"v_add_u32 v{B+1}, {LDS_SC}, v{B+1}")
    A(f"s_mul_i32 s{T+16}, s{T+9}, {3072*4}")
    A(f"s_lshl_b32 s{T+17}, s{T+10}, 8")
    A(f"s_add_u32 s{T+16}, s{T+16}, s{T+17}")
    A(f"s_lshl_b32 s{T+17}, s{S_WAVE}, 6")
    A(f"s_add_u32 s{T+16}, s{T+16}, s{T+17}")
    A(f"s_add_u32 s{T+16}, s{T+16}, {WS_MODP}")
    A(f"s_lshl_b32 s{T+15}, s{S_WG}, 6")
    A(f"s_add_u32 s{T+15}, s{T+15}, {WS_STAT}")
    A(f"s_lshl_b32 s{T+17}, s{S_WAVE}, 3")
    A(f"s_add_u32 s{T+17}, s{T+17}, {LDS_ST1}")
    A(f"v_mov_b32 v177, s{T+17}")
    A(f"v_add_u32 v59, {LDS_SC}, v59")
    def kcopy():
        A(f"s_lshl_b32 s{T+18}, s{S_CH}, 12")
        A(f"s_add_u32 m0, s{T+13}, 32")
        A(f"v_mov_b32 v63, 0")
        A(f"buffer_load_dword v63, v63, {s(SRD_SSMK,4)}, s{T+18} offen")
        for i in range(4):
            A(f"buffer_load_dwordx4 v62, {s(SRD_SSMK,4)}, s{T+18} offen offset:{1024*i} lds")
    if O.kc_early: kcopy()
    R = 152
    for r in range(2):
        A(f"v_dot2_f32_bf16 v{R+2*r}, v{VST+4*r}, s{S_ONES}, 0")
        A(f"v_dot2_f32_bf16 v{R+2*r+1}, v{VST+4*r}, v{VST+4*r}, 0")
    for q in range(1, 4):
        for r in range(2):
            A(f"v_dot2_f32_bf16 v{R+2*r}, v{VST+4*r+q}, s{S_ONES}, v{R+2*r}")
            A(f"v_dot2_f32_bf16 v{R+2*r+1}, v{VST+4*r+q}, v{VST+4*r+q}, v{R+2*r+1}")
    X = 164
    A(f"v_lshlrev_b32 v{X}, 16, v{VC}")
    A(f"v_mul_f32 v{X+1}, {hex(NLOG2E)}, v{X}")
    A(f"v_exp_f32 v{X+1}, v{X+1}")
    for n, m in enumerate(("row_shr:1", "row_shr:2", "row_shr:4", "row_shr:8")):
        for i in range(4):
            A(f"v_add_f32_dpp v{R+i}, v{R+i}, v{R+i} {m} row_mask:0xf bank_mask:0xf bound_ctrl:0")
        A([f"v_add_f32 v{X+1}, 1.0, v{X+1}", f"v_rcp_f32 v{X+1}, v{X+1}", f"v_mul_f32 v{X+1}, v{X}, v{X+1}", f"v_cvt_pk_bf16_f32 v{X+1}, v{X+1}, v{X+1}"][n])
    A(f"ds_write_b16 v59, v{X+1}")
    for m, rm in (("row_bcast:15", "0xa"), ("row_bcast:31", "0xc")):
        for i in range(4):
            A(f"v_add_f32_dpp v{R+i}, v{R+i}, v{R+i} {m} row_mask:{rm} bank_mask:0xf")
    ln_finish(A, [(R, R+1, R+4, R+6), (R+2, R+3, R+5, R+7)], R + 8)
    A("s_lshl_b64 exec, 1, 63")
    A(f"ds_write_b64 v177, {v(R+4,2)}")
    A(f"ds_write_b64 v177, {v(R+6,2)} offset:32")
    A("s_mov_b64 exec, -1")
    stamp(A, "stats")
    A("; ---- kv ----")
    VW, VP, VKS, VVU, CA, CB = 64, 68, 86, 102, 120, 136
    for k in range(9):
        A(f"v_perm_b32 v{VP+2*k}, v{VK+2*k+1}, v{VK+2*k}, s{S_SELLO}")
        A(f"v_perm_b32 v{VP+2*k+1}, v{VK+2*k+1}, v{VK+2*k}, s{S_SELHI}")
    A(f"v_alignbit_b32 v{VW}, v{VSH+1}, v{VSH+1}, 16")
    A(f"v_alignbit_b32 v{VW+1}, v{VSH}, v{VSH}, 16")
    A(f"v_alignbit_b32 v{VW+2}, v{VSH+3}, v{VSH+3}, 16")
    A(f"v_alignbit_b32 v{VW+3}, v{VSH+2}, v{VSH+2}, 16")
    for k in range(8):
        for c in range(2):
            A(f"v_dot2_f32_bf16 v{VKS+2*k+c}, v{VP+2*k+c}, v{VW+2*c}, 0")
    for k in range(8):
        for c in range(2):
            A(f"v_dot2_f32_bf16 v{VKS+2*k+c}, v{VP+2*k+2+c}, v{VW+2*c+1}, v{VKS+2*k+c}")
    for k in range(8):
        A(f"v_lshlrev_b32 v{VVU+2*k}, 16, v{VV+k}")
        A(f"v_and_b32 v{VVU+2*k+1}, 0xffff0000, v{VV+k}")
    for k in range(8):
        A(f"v_pk_mul_f32 {v(VKS+2*k,2)}, {v(VKS+2*k,2)}, {v(VVU+2*k,2)}")
    for c in range(2):
        for q in range(4):
            A(f"v_cvt_pk_bf16_f32 v{CA+4*c+q}, v{VKS+2*(7-2*q)+c}, v{VKS+2*(6-2*q)+c}")
        A(f"ds_write_b128 v{173+c if c else 57}, {v(CA+4*c,4)}")
    for c in range(2):
        for q in range(4):
            A(f"v_perm_b32 v{CA+8+4*c+q}, v{VQ+6-2*q}, v{VQ+7-2*q}, s{S_SELHI if c else S_SELLO}")
        A(f"ds_write_b128 v{175+c}, {v(CA+8+4*c,4)}")
    stamp(A, "kvq landed")
    A("s_waitcnt lgkmcnt(0)")
    for b in range(4):
        A(f"ds_read_b128 {v(CB+4*b,4)}, v9 offset:{1024*b}")
    for b in range(4):
        A(f"buffer_store_dwordx4 {v(CB+4*b,4)}, v{168+b}, {s(SRD_WS,4)}, 0 offen sc1")
    stamp(A, "rec stored")
    A(f"s_waitcnt vmcnt({9 if O.kc_early else 4}) lgkmcnt(0)")
    A("s_barrier")
    A(f"v_add_u32 v177, {LDS_ST1}, v58")
    A(f"ds_read_b128 {v(R,4)}, v177")
    FA, FB, ACC = 72, 88, 104
    for e in range(4):
        A(f"ds_read_b128 {v(FA+4*e,4)}, v{B+1} offset:{64*e}")
        A(f"ds_read_b64_tr_b16 {v(FB+4*e,2)}, v{B} offset:{4096*e}")
        A(f"ds_read_b64_tr_b16 {v(FB+4*e+2,2)}, v{B} offset:{4096*e+512}")
    A(f"s_cmp_eq_u32 s{S_WAVE}, 0")
    A(f"s_cbranch_scc0 L_nost1")
    A("s_mov_b64 exec, 0xf")
    A(f"buffer_store_dwordx4 {v(R,4)}, v58, {s(SRD_WS,4)}, s{T+15} offen sc1")
    A("s_mov_b64 exec, -1")
    A("L_nost1:")
    for e in range(4):
        A(f"v_mfma_f32_16x16x32_bf16 {v(ACC,4)}, {v(FA+4*e,4)}, {v(FB+4*e,4)}, {'0' if e == 0 else v(ACC,4)}")
    A(f"v_lshlrev_b32 v64, 2, v{L}")
    A(f"s_cmp_ge_u32 s{S_WG}, 192")
    A(f"s_cbranch_scc1 L_nogemv")
    A("s_mov_b64 exec, 0xffff")
    A(f"buffer_store_dword v{ACC}, v64, {s(SRD_WS,4)}, s{T+16} offen sc1")
    A("s_mov_b64 exec, -1")
    A("L_nogemv:")
    stamp(A, "mod stored")
    A("s_waitcnt vmcnt(0)")
    stamp(A, "own ack")
    A("s_barrier")
    stamp(A, "rec acked")
    def others2():
        if not O.kc_early:
            kcopy()
            A(f"s_cmp_eq_u32 s{S_WAVE}, 2")
            A(f"s_cbranch_scc0 L_nokc3")
            A(f"s_mov_b32 m0, {LDS_KC + 3*4224 + 32}")
            for i in range(4):
                A(f"buffer_load_dwordx4 v58, {s(SRD_SSMK,4)}, s{T+18} offen offset:{1024*i} lds")
            A("L_nokc3:")
        for gi in range(O.n_w1):
            for x in w1_group(gi, O.w1_depth): A(x)
        stamp(A, "w1r0/sig")
    def sigA():
        if O.lfa:
            A(f"s_add_u32 s{S_TAG}, s{S_TAG}, 1")
            lf_signal(A, LF_A)
            del _stamps[-1:]
            stamp(A, "w1r0/sig")
            return
        u = uid()
        A(f"s_and_b32 s{S_SIG}, s{S_WG}, 1")
        A(f"s_lshl_b32 s{S_SIG}, s{S_SIG}, 7")
        A(f"s_add_u32 s{S_TAG}, s{S_TAG}, 1")
        A("s_mov_b64 exec, 1")
        A(f"v_mov_b32 v252, s{S_SIG}")
        A(f"v_mov_b32 v253, 1")
        A(f"global_atomic_add v253, v252, v253, {s(S_DBG,2)} sc0 sc1")
        A(f"v_mov_b32 v254, s{S_TAG}")
        A(f"v_mov_b32 v255, s{S_TAG+1}")
        A(f"s_mov_b32 s{S_TMP}, {WS_SYNC + 128*FLG_A}")
        A(f"v_cmp_eq_u32 vcc, 127, v253")
        A(f"s_cbranch_vccz L_sig{u}")
        A(f"buffer_store_dwordx2 v[254:255], v252, {s(SRD_WS,4)}, s{S_TMP} offen sc1")
        A(f"L_sig{u}:")
        A("s_mov_b64 exec, -1")
        del _stamps[-1:]
        stamp(A, "w1r0/sig")
    split_wave3(A, others2, sigA)
    A(f"s_mul_i32 s{T+11}, s{T+11}, 64")
    A(f"s_add_u32 s{T+11}, s{T+11}, 7")
    A(f"v_lshlrev_b32 v62, 2, v{L}")
    A(f"v_add_u32 v62, s{T+13}, v62")

TSETS = ([7, 4, 3, 0], [6, 5, 2, 1])
def conv(A):
    VAB, VAA, VAE = 8, 16, 17
    VST = 24; VKX = 200; VGH, VX0 = 72, 88; ACC = 104; U = 56
    L = V_LANE
    A(f"v_lshrrev_b32 v3, 3, v{L}")
    if O.recperm:
        A(f"s_and_b32 s{T+6}, s{S_WG}, 7")
        A(f"v_xor_b32 v3, s{T+6}, v3")
    A(f"v_lshlrev_b32 v3, 7, v3")
    A(f"v_lshrrev_b32 v4, 4, v{L}")
    A(f"v_and_b32 v7, 7, v{L}")
    A(f"v_xor_b32 v7, v7, v4")
    A(f"v_lshl_add_u32 v3, v7, 4, v3")
    A(f"v_xor_b32 v7, 64, v3")
    A(f"s_lshl_b32 s{T+6}, s{S_WG}, 14")
    A(f"s_bfe_u32 s{T+8}, s{S_WG}, 0x40003")
    A(f"s_lshl_b32 s{T+8}, s{T+8}, 10")
    A(f"s_lshl_b32 s{T+7}, s{S_WAVE}, 12")
    A(f"v_and_b32 v21, 3, v{L}")
    A(f"v_mul_u32_u24 v21, 12288, v21")
    A(f"v_bfe_u32 v22, v{L}, 2, 2")
    A(f"v_lshl_add_u32 v21, v22, 11, v21")
    A(f"v_add_u32 v23, 2048, v21")
    A(f"v_cmp_eq_u32 vcc, 3, v22")
    A(f"s_lshl_b32 s{T+9}, s{S_CH}, 2")
    A(f"s_add_u32 s{T+9}, s{T+9}, {WS_MODP}")
    A(f"v_cndmask_b32 v21, v21, v23, vcc")
    A(f"s_lshl_b32 s{T+10}, s{S_CH}, 1")
    A(f"v_and_b32 v6, 15, v{L}")
    A(f"v_lshlrev_b32 v23, 7, v6")
    A(f"v_lshrrev_b32 v18, 1, v4")
    A(f"v_lshl_add_u32 v23, v18, 6, v23")
    A(f"v_and_b32 v18, 1, v4")
    A(f"v_lshl_add_u32 v23, v18, 4, v23")
    A(f"v_add_u32 v23, {LDS_STA}, v23")
    A(f"v_lshlrev_b32 v5, 4, v{L}")
    A(f"v_lshlrev_b32 v18, 3, v0")
    A(f"v_add_u32 v18, {LDS_REC}, v18")
    A(f"v_mov_b32 v{VGH}, 0")
    A(f"v_mov_b32 v{VGH+1}, 0")
    A(f"ds_write_b64 v18, {v(VGH,2)}")
    A(f"v_mov_b32 v18, s{S_CARRY}")
    A(f"ds_write_b32 v18, v{VGH}")
    A(f"s_lshr_b32 s{T+12}, s{S_WAVE}, 1")
    for b in range(4):
        A(f"v_sub_u32 v18, v6, v4")
        A(f"v_add_u32 v18, {16-4*b}, v18")
        A(f"v_bfe_u32 v19, v18, 1, 3")
        A(f"v_xor_b32 v19, s{T+12}, v19")
        A(f"v_lshlrev_b32 v18, 7, v18")
        A(f"v_lshl_add_u32 v18, v19, 4, v18")
        A(f"v_add_u32 v{VAB+2*b}, {LDS_REC}, v18")
        A(f"v_xor_b32 v{VAB+2*b+1}, 64, v{VAB+2*b}")
    A(f"v_bfe_u32 v18, v{L}, 2, 2")
    A(f"v_and_b32 v19, 1, v18")
    A(f"v_add_u32 v18, 1, v18")
    A(f"v_lshrrev_b32 v18, 1, v18")
    A(f"v_and_b32 v20, 3, v{L}")
    A(f"v_add_u32 v18, v18, v20")
    A(f"v_lshlrev_b32 v18, 3, v18")
    A(f"v_lshl_add_u32 v18, v4, 5, v18")
    A(f"v_mul_u32_u24 v19, 4224, v19")
    A(f"s_mul_i32 s{T+13}, s{T+12}, 8448")
    A(f"s_add_u32 s{T+13}, s{T+13}, {LDS_KC}")
    A(f"v_add3_u32 v{VAA}, v18, v19, s{T+13}")
    A(f"v_bfe_u32 v19, v6, 1, 3")
    A(f"v_xor_b32 v19, s{T+12}, v19")
    A(f"v_lshlrev_b32 v18, 7, v6")
    A(f"v_lshl_add_u32 v18, v19, 4, v18")
    A(f"v_sub_u32 v19, 3, v4")
    A(f"v_lshl_add_u32 v18, v19, 2, v18")
    A(f"v_add_u32 v{VAE}, {LDS_REC+2048}, v18")
    A(f"v_xor_b32 v{VAE+1}, 64, v{VAE}")
    A(f"v_xor_b32 v{VAE+2}, 32, v{VAE}")
    A(f"v_xor_b32 v{VAE+3}, 96, v{VAE}")
    A(f"v_lshl_add_u32 v218, v6, 2, v4")
    A(f"v_lshl_add_u32 v218, v218, 2, s{S_CARRY}")
    A(f"s_add_u32 s{T+14}, s{T+7}, {LDS_KC}")
    A(f"v_lshlrev_b32 v219, 5, v6")
    A(f"v_lshl_add_u32 v219, v4, 3, v219")
    A(f"v_add_u32 v219, s{T+14}, v219")
    A(f"v_add_u32 v220, s{T+14}, v5")
    A(f"s_bitcmp1_b32 s{S_WAVE}, 0")
    for u in range(2):
        A(f"s_cselect_b32 s{T+14}, {TSETS[1][2*u]}, {TSETS[0][2*u]}")
        A(f"s_cselect_b32 s{T+15}, {TSETS[1][2*u+1]}, {TSETS[0][2*u+1]}")
        A(f"v_mov_b32 v24, s{T+14}")
        A(f"v_mov_b32 v25, s{T+15}")
        A(f"s_mov_b32 vcc_lo, 0")
        A(f"s_mov_b32 vcc_hi, -1")
        A(f"v_cndmask_b32 v24, v24, v25, vcc")
        A(f"v_and_b32 v25, 0x1ff, v5")
        A(f"v_lshl_add_u32 v{221+u}, v24, 9, v25")
    A(f"s_lshl_b32 s{S_CARRY}, s{S_CH}, 12")
    A(f"v_mov_b32 v22, 0")
    A(f"buffer_load_ushort v22, v22, {s(SRD_SSMD,4)}, s{T+10} offen")
    def pollA():
        u = uid()
        if O.lfa:
            lf_poll(A, LF_A, 24)
            A(f"s_cmp_eq_u32 s{S_WG}, 0")
            A(f"s_cbranch_scc0 L_noep{u}")
            lf_signal(A, EPOCH)
            A(f"L_noep{u}:")
            return
        A(f"s_mov_b64 exec, 3")
        A(f"v_lshlrev_b32 v252, 7, v{L}")
        A(f"s_mov_b32 s{S_TMP}, {WS_SYNC + 128*FLG_A}")
        A(f"s_mov_b32 s{S_SPIN}, 0x80000")
        A(f"L_poll{u}:")
        A(f"buffer_load_dwordx2 v[254:255], v252, {s(SRD_WS,4)}, s{S_TMP} offen sc1")
        A(f"s_sub_u32 s{S_SPIN}, s{S_SPIN}, 1")
        A(f"s_cbranch_scc1 L_pollx{u}")
        A("s_waitcnt vmcnt(0)")
        A(f"v_cmp_ne_u64 vcc, {s(S_TAG,2)}, v[254:255]")
        A(f"s_cbranch_vccz L_pollx{u}")
        A(f"s_sleep {O.sleep}")
        A(f"s_branch L_poll{u}")
        A(f"L_pollx{u}:")
        A("s_waitcnt vmcnt(0)")
        A(f"s_cmp_eq_u32 s{S_WG}, 0")
        A(f"s_cbranch_scc0 L_noep{u}")
        A("s_mov_b64 exec, 1")
        A(f"buffer_store_dwordx2 v[254:255], v252, {s(SRD_WS,4)}, s{S_TMP} offen offset:{128*(EPOCH-FLG_A)} sc1")
        A(f"L_noep{u}:")
        A("s_mov_b64 exec, -1")
    def w3A():
        pollA()
        stamp(A, "A released")
        A(f"s_mov_b32 m0, {LDS_REC+2048}")
        for i in range(16):
            if i: A(f"s_add_u32 m0, m0, 1024")
            A(f"s_xor_b32 s{T}, s{T+8}, {1024*i}")
            A(f"s_add_u32 s{T}, s{T}, s{T+6}")
            A(f"buffer_load_dwordx4 v{7 if i&1 else 3}, {s(SRD_WS,4)}, s{T} offen sc1 lds")
        for i in range(16):
            if i % 4 == 0 or i == 14:
                A(f"s_mov_b32 m0, {LDS_STA + 4096*(i>>2) if i < 14 else LDS_STB - 2048}")
                A(f"s_mov_b32 s{T}, {WS_STAT + 4096*(i>>2)}")
            A(f"buffer_load_dwordx4 v5, {s(SRD_WS,4)}, s{T} offen offset:{1024*(i&3)} sc1 lds")
        A(f"s_mul_i32 s{T+18}, s{S_WG}, 7168")
        A(f"v_lshlrev_b32 v254, 7, v{L}")
        A(f"s_mov_b32 exec_hi, 0xffffff")
        A(f"buffer_load_dword v255, v254, {s(SRD_W2,4)}, s{T+18} offen ; nowait")
        A(f"s_mov_b64 exec, -1")
        A("s_waitcnt vmcnt(17)")
    def oA():
        A(f"s_waitcnt vmcnt({8 * (O.n_w1 - O.n_rd)})")
        for gi in range(O.n_rd):
            for x in w1_read(gi): A(x)
        stamp(A, "A released")
        del _stamps[-1:]
    split_wave3(A, oA, w3A)
    A(f"v_cmp_eq_u32 vcc, s{T+11}, v{L}")
    A(f"v_cndmask_b32 v63, 0, v63, vcc")
    A("s_mov_b64 exec, 0xff")
    A(f"ds_write_b32 v62, v63")
    A("s_mov_b64 exec, -1")
    A("s_waitcnt lgkmcnt(0)")
    A("s_barrier")
    stamp(A, "rec landed")
    A(f"s_bitcmp1_b32 s{S_WAVE}, 0")
    A(f"s_cbranch_scc1 L_conv1")
    for var in range(3):
        par = min(var, 1)
        TS = TSETS[par]
        if var == 1:
            A(f"L_conv1:")
            A(f"s_cmp_eq_u32 s{S_WAVE}, 3")
            A(f"s_cbranch_scc1 L_conv3")
        if var == 2: A("L_conv3:")
        def afrag(buf, a_): return 136 + 32 * buf + 4 * a_
        def bfrag(buf, p, d): return 64 + 128 * buf + 32 * p + 4 * d
        def reads(b):
            buf = b & 1
            seq = []; sa_ = set(); sb_ = set()
            for a_ in range(8):
                for J in TS:
                    if J < a_: continue
                    if a_ not in sa_:
                        sa_.add(a_)
                        for h in range(2):
                            seq.append(f"ds_read_b64_tr_b16 {v(afrag(buf,a_)+2*h,2)}, v{VAA} offset:{512*a_+128*b+16*h}")
                    if J - a_ not in sb_:
                        sb_.add(J - a_)
                        for p in range(2):
                            seq.append(f"ds_read_b128 {a(bfrag(buf,p,J-a_),4)}, v{VAB+2*b+p} offset:{2048*(J-a_)}")
            return seq
        mark = len(A.items)
        A(f"buffer_load_dword v21, v21, {s(SRD_WS,4)}, s{T+9} offen sc1")
        for x in reads(0): A(x)
        scal = [f"v_add_f32_dpp v21, v21, v21 quad_perm:[1,0,3,2] row_mask:0xf bank_mask:0xf",
                  f"v_lshlrev_b32 v22, 16, v22",
                  f"v_add_f32_dpp v21, v21, v21 quad_perm:[2,3,0,1] row_mask:0xf bank_mask:0xf",
                  f"v_cvt_pk_bf16_f32 v21, v21, v21",
                  f"v_lshlrev_b32 v21, 16, v21",
                  f"v_add_f32 v5, 1.0, v21",
                  f"v_cvt_pk_bf16_f32 v5, v5, v5",
                  f"v_lshlrev_b32 v5, 16, v5",
                  f"v_readlane_b32 s{T+16}, v21, 0",
                  f"v_readlane_b32 s{T+18}, v21, 8",
                  f"v_readlane_b32 s{T+17}, v5, 4",
                  f"v_readlane_b32 s{T+19}, v5, 12",
                  f"v_mov_b32 v5, s{T+18}",
                  f"v_mul_f32 v7, s{T+17}, v5",
                  f"v_mul_f32 v21, s{T+16}, v5",
                  f"v_mov_b32 v217, s{T+19}"]
        kx = []
        for ti, J in enumerate(TS):
            so = 2048 * J if J < 7 else LDS_STB - LDS_STA
            kx += [f"ds_read_b32 v{VKX+4*ti+k}, v{VAE+k} offset:{2048*J}" for k in range(4)]
            kx += [f"ds_read_b128 {v(VST+4*ti,4)}, v23 offset:{so}", f"ds_read_b128 {v(VST+16+4*ti,4)}, v23 offset:{so+32}"]
        side = []
        ntouch = 0
        if O.touch:
            side += [f"s_lshr_b32 s{T}, s{S_WG}, 3",
                     f"s_mul_i32 s{T+1}, s{T}, {448*128}",
                     f"s_lshl_b32 s{T+2}, s{S_WAVE}, 14",
                     f"s_add_u32 s{T+1}, s{T+1}, s{T+2}",
                     f"v_lshlrev_b32 v224, 7, v{L}",
                     f"buffer_load_dword v255, v224, {s(SRD_W2,4)}, s{T+1} offen ; nowait"]
            if var < 2:
                side += [f"s_add_u32 s{T+1}, s{T+1}, 8192",
                         f"buffer_load_dword v255, v224, {s(SRD_W2,4)}, s{T+1} offen ; nowait"]
                ntouch = 2
            else:
                side += [f"s_and_b32 s{T}, s{T}, 3",
                         f"s_mul_i32 s{T+1}, s{T}, {128*3584}",
                         f"s_mul_i32 s{T+2}, s{S_J}, 448",
                         f"s_add_u32 s{T+1}, s{T+1}, s{T+2}",
                         f"s_bitcmp1_b32 s{S_J}, 0",
                         f"s_cselect_b32 s{T+2}, 0, 384",
                         f"s_add_u32 s{T+1}, s{T+1}, s{T+2}",
                         f"v_mul_u32_u24 v225, 3584, v{L}",
                         f"buffer_load_dword v255, v225, {s(SRD_W1,4)}, s{T+1} offen ; nowait",
                         f"s_add_u32 s{T+1}, s{T+1}, {64*3584}",
                         f"buffer_load_dword v255, v225, {s(SRD_W1,4)}, s{T+1} offen ; nowait",
                         f"s_mul_i32 s{T+1}, s{T}, 12288",
                         f"s_add_u32 s{T+1}, s{T+1}, {WS_MODP + 1536*4}",
                         f"v_min_u32 v224, {47*128}, v224",
                         f"buffer_load_dword v255, v224, {s(SRD_WS,4)}, s{T+1} offen sc1 ; nowait"]
                ntouch = 4
        if var < 2:
            for gi in range(O.n_w1, 4 + O.conv_groups): side += w1_group(gi)
        pre = []
        for ti in range(4):
            kd = VKX + 4 * ti
            kv, x = U + 8 * (ti & 1), U + 8 * (ti & 1) + 4
            for base, d in ((kv, kd), (x, kd + 2)):
                pre += [f"v_and_b32 v{base}, 0xffff0000, v{d}", f"v_and_b32 v{base+1}, 0xffff0000, v{d+1}",
                        f"v_lshlrev_b32 v{base+2}, 16, v{d}", f"v_lshlrev_b32 v{base+3}, 16, v{d+1}"]
            for r in range(4): pre.append(f"v_fma_f32 v{VGH+4*ti+r}, v{x+r}, v{VST+4*ti+r}, v{VST+16+4*ti+r}")
            for r in range(4): pre.append(f"v_mul_f32 v{kv+r}, v{kv+r}, v22")
            for r in range(4): pre.append(f"v_fma_f32 v{VGH+4*ti+r}, v{VGH+4*ti+r}, v7, v21")
            for r in range(4): pre.append(f"v_fma_f32 v{VX0+4*ti+r}, v{VGH+4*ti+r}, v{kv+r}, v{x+r}")
        started = set()
        kq = list(kx)
        for b in range(4):
            nxt = reads(b + 1) if b < 3 else []
            if b == 2:
                if var == 2: A(f"s_waitcnt vmcnt({2 + ntouch})")
                A("s_barrier")
            n = 0
            for a_ in range(8):
                for J in TS:
                    if J < a_: continue
                    for p in range(2):
                        acc = ACC + 8 * TS.index(J) + 4 * p
                        c = v(acc, 4) if (J, p) in started else "0"
                        started.add((J, p))
                        A(f"v_mfma_f32_16x16x32_bf16 {v(acc,4)}, {v(afrag(b&1,a_),4)}, {a(bfrag(b&1,p,J-a_),4)}, {c}")
                        if nxt: A(nxt.pop(0))
                        if b < 2:
                            if side and (n % 2 == 0 or len(side) > 36 - n // 2 - 18 * b): A(side.pop(0))
                            elif b == 1 and scal and n >= 2: A(scal.pop(0))
                        elif b == 2:
                            if kq: A(kq.pop(0))
                            elif pre: A(pre.pop(0))
                        else:
                            for _ in range(2):
                                if pre: A(pre.pop(0))
                        n += 1
            for x in nxt: A(x)
            if b == 1:
                for x in side + scal: A(x)
        if var: del _stamps[-1:]
        stamp(A, "conv mfma")
        for x in pre[:8]: A(x)
        for ti, J in enumerate(TS):
            A(f"ds_write_b32 v218, v{ACC+8*ti+7} offset:{256*J+4}")
        for x in pre[8:]: A(x)
        for ti in range(4):
            z0, z1, g_, x0 = ACC + 8 * ti, ACC + 8 * ti + 4, VGH + 4 * ti, VX0 + 4 * ti
            if ti == 1:
                A("s_waitcnt lgkmcnt(0)")
                A("s_barrier")
                for tj, J in enumerate(TS):
                    A(f"ds_read_b32 v{VKX+tj}, v218 offset:{256*J}")
            for h in range(2):
                A(f"v_pk_fma_f32 {v(x0+2*h,2)}, {v(g_+2*h,2)}, {v(z0+2*h,2)}, {v(x0+2*h,2)}")
            for r in range(1, 4):
                A(f"v_fmac_f32 v{x0+r}, v{g_+r}, v{z1+r-1}")
        A(f"s_add_u32 s{T+15}, s{S_CARRY}, {WS_X1C}")
        A(f"s_add_u32 s{T+14}, s{S_CARRY}, {WS_X1}")
        O1, O2 = 136, 144
        A("s_waitcnt lgkmcnt(0)")
        for ti in range(4):
            A(f"v_fmac_f32 v{VX0+4*ti}, v{VGH+4*ti}, v{VKX+ti}")
        for ti in range(4):
            x0 = VX0 + 4 * ti
            for h in range(2):
                A(f"v_pk_mul_f32 {v(U+4*ti+2*h,2)}, {v(x0+2*h,2)}, v[216:217] op_sel:[0,1] op_sel_hi:[1,1]")
            for h in range(2):
                A(f"v_cvt_pk_bf16_f32 v{O2+2*ti+h}, v{U+4*ti+2*h}, v{U+4*ti+2*h+1}")
            A(f"ds_write_b64 v219, {v(O2+2*ti,2)} offset:{512*ti}")
        for ti in range(4):
            x0 = VX0 + 4 * ti
            for h in range(2):
                A(f"v_cvt_pk_bf16_f32 v{O1+2*ti+h}, v{x0+2*h}, v{x0+2*h+1}")
            A(f"ds_write_b64 v219, {v(O1+2*ti,2)} offset:{2048+512*ti}")
            if ti == 1:
                A("s_waitcnt lgkmcnt(2)")
                for k in range(2): A(f"ds_read_b128 {v(152+4*k,4)}, v220 offset:{1024*k}")
        A("s_waitcnt lgkmcnt(2)")
        for k in range(2):
            A(f"buffer_store_dwordx4 {v(152+4*k,4)}, v{221+k}, {s(SRD_WS,4)}, s{T+15} offen sc1")
        A("s_waitcnt lgkmcnt(0)")
        for k in range(2, 4): A(f"ds_read_b128 {v(152+4*k,4)}, v220 offset:{1024*k}")
        for k in range(2, 4):
            A(f"buffer_store_dwordx4 {v(152+4*k,4)}, v{221+(k&1)}, {s(SRD_WS,4)}, s{T+14} offen sc1")
        if var < 2: A(f"s_branch L_convdone")
    A(f"L_convdone:")
    stamp(A, "x1 stored")
    stamp_flush(A, 0)

VCS, VSBW = 64, 96
ACC1 = 128
def window3(A):
    L = V_LANE
    M = 168
    nrest = 4 - O.conv_groups
    A(f"v_lshlrev_b32 v188, 4, v0")
    for p in range(4):
        A(f"s_mov_b32 s{T+p}, {WS_MODP + 12288*p + 1536*4}")
    for p in range(4):
        A(f"buffer_load_dwordx4 {v(M+4*p,4)}, v188, {s(SRD_WS,4)}, s{T+p} offen sc1")
    A(f"v_lshlrev_b32 v189, 2, v{L}")
    A(f"s_lshl_b32 s{T+4}, s{S_J}, 8")
    for p in range(4):
        A(f"s_add_u32 s{T+p}, s{T+4}, {WS_MODP + 12288*p + 2560*4}")
    for p in range(4):
        A(f"buffer_load_dword v{M+16+p}, v189, {s(SRD_WS,4)}, s{T+p} offen sc1")
    def rd23():
        A(f"s_waitcnt vmcnt({12 + 8 * O.conv_groups})")
        for gi in range(O.n_rd, 4):
            for x in w1_read(gi): A(x)
    split_wave3(A, rd23, lambda: None)
    w1_tail_group(A)
    A(f"v_xor_b32 v7, v6, v4")
    A(f"v_and_b32 v7, 1, v7")
    A(f"v_lshrrev_b32 v45, 2, v6")
    A(f"v_or_b32 v7, v7, v45")
    A(f"v_lshrrev_b32 v45, 1, v6")
    A(f"v_lshlrev_b32 v45, 10, v45")
    A(f"v_lshrrev_b32 v46, 1, v4")
    A(f"v_lshl_add_u32 v45, v46, 4, v45")
    A(f"v_add_u32 v45, {LDS_MODV}, v45")
    A(f"v_cmp_eq_u32 vcc, 0, v7")
    A(f"v_mov_b32 v47, {LDS_MODV+2048}")
    A(f"v_cndmask_b32 v47, v47, v45, vcc")
    A(f"v_mov_b32 v46, 32")
    A(f"v_cndmask_b32 v46, 0, v46, vcc")
    A("s_waitcnt vmcnt(16) lgkmcnt(0)")
    A("s_barrier")
    stamp(A, "x1 acked")
    def modv():
        for k in range(2):
            A(f"v_pk_add_f32 {v(M+2*k,2)}, {v(M+2*k,2)}, {v(M+4+2*k,2)}")
            A(f"v_pk_add_f32 {v(M+8+2*k,2)}, {v(M+8+2*k,2)}, {v(M+12+2*k,2)}")
        for k in range(2):
            A(f"v_pk_add_f32 {v(M+2*k,2)}, {v(M+2*k,2)}, {v(M+8+2*k,2)}")
        A(f"v_cvt_pk_bf16_f32 v8, v{M}, v{M+1}")
        A(f"v_cvt_pk_bf16_f32 v9, v{M+2}, v{M+3}")
        A(f"s_cmp_lt_u32 s{S_WAVE}, 2")
        u = uid()
        A(f"s_cbranch_scc1 L_mv{u}")
        for k in range(2):
            A(f"v_lshlrev_b32 v12, 16, v{8+k}")
            A(f"v_and_b32 v13, 0xffff0000, v{8+k}")
            A(f"v_add_f32 v12, 1.0, v12")
            A(f"v_add_f32 v13, 1.0, v13")
            A(f"v_cvt_pk_bf16_f32 v{8+k}, v12, v13")
        A(f"L_mv{u}:")
        A(f"s_cselect_b32 s{T+5}, {LDS_MODV+1024}, {LDS_MODV}" if False else f"s_lshr_b32 s{T+5}, s{S_WAVE}, 1")
        A(f"s_xor_b32 s{T+5}, s{T+5}, 1")
        A(f"s_lshl_b32 s{T+5}, s{T+5}, 10")
        A(f"s_add_u32 s{T+5}, s{T+5}, {LDS_MODV}")
        A(f"s_lshl_b32 s{T+4}, s{S_ROT}, 7")
        A(f"v_lshlrev_b32 v3, 3, v0")
        A(f"v_subrev_u32 v3, s{T+4}, v3")
        A(f"v_and_b32 v3, 0x3ff, v3")
        A(f"v_add_u32 v3, s{T+5}, v3")
        A(f"ds_write_b64 v3, v[8:9]")
        A(f"v_add_f32 v24, v{M+16}, v{M+17}")
        A(f"v_add_f32 v26, v{M+18}, v{M+19}")
        A(f"v_add_f32 v24, v24, v26")
        A(f"v_cvt_pk_bf16_f32 v24, v24, v24")
        A(f"v_lshlrev_b32 v24, 16, v24")
        A(f"v_mul_f32 v24, 0xbf317218, v24")
        A(f"v_add_u32 v5, {LDS_GB}, v189")
        A(f"ds_write_b32 v5, v24")
        A(f"v_mov_b32 v24, 0")
        A(f"v_lshlrev_b32 v5, 2, v6")
        A(f"v_add_u32 v5, {LDS_MODV+2048}, v5")
        A(f"ds_write_b32 v5, v24")
    def others():
        for gi in range(4 + O.conv_groups, 8):
            for x in w1_group(gi): A(x)
        for gi in range(4, 4 + O.conv_groups):
            for x in w1_read(gi): A(x)
        modv()
        A(f"s_waitcnt vmcnt({8 * nrest}) lgkmcnt(0)")
        A("s_barrier")
        stamp(A, "modv")
        cs_part(A, False, 0, 16 + 4 * O.conv_groups)
        A("s_waitcnt vmcnt(0)")
        for gi in range(4 + O.conv_groups, 8):
            for x in w1_read(gi): A(x)
    def w3():
        if O.lf2: lf_signal(A, LF_2)
        else:
            signal_issue(A, CNT_2)
            signal_finish(A, FLG_2)
        modv()
        A(f"s_waitcnt vmcnt({1 if O.lf2 else 2}) lgkmcnt(0)")
        A("s_barrier")
        del _stamps[-1:]
        stamp(A, "modv")
        for gi in range(4):
            for x in w1_read(gi): A(x)
        cs_part(A, True, 0, 32)
    split_wave3(A, others, w3)
    stamp(A, "w1 landed")

def cs_part(A, w3, e0, e1):
    NB = 8
    def rd(e):
        A(f"ds_read_b128 {v(192+4*(e%NB),4)}, v47")
        A(f"v_add_u32 v47, v47, v46")
    for e in range(e0, min(e0 + NB, e1)): rd(e)
    for e in range(e0, e1):
        for t in range(1 if w3 else 2):
            c = "0" if e == 0 else v(48 + 4 * t, 4)
            A(f"v_mfma_f32_16x16x32_bf16 {v(48+4*t,4)}, {a(w1frag(w3,t,e),4)}, {v(192+4*(e%NB),4)}, {c}")
        if e + NB < e1: rd(e + NB)

def colsums(A):
    L = V_LANE
    A(f"v_lshrrev_b32 v4, 4, v{L}")
    A(f"v_and_b32 v6, 15, v{L}")
    split_wave3(A, lambda: cs_part(A, False, 16 + 4 * O.conv_groups, 32), lambda: None)
    A(f"s_lshl_b32 s{T+13}, s{S_WAVE}, 9")
    A(f"s_add_u32 s{T+13}, s{T+13}, {LDS_CS}")
    A(f"v_and_b32 v5, 1, v6")
    A(f"v_lshlrev_b32 v5, 6, v5")
    A(f"v_lshl_add_u32 v5, v4, 4, v5")
    A(f"v_lshrrev_b32 v7, 1, v6")
    A(f"v_lshl_add_u32 v5, v7, 8, v5")
    A(f"v_add_u32 v5, s{T+13}, v5")
    A(f"s_mov_b32 exec_lo, 0x000f000f")
    A(f"s_mov_b32 exec_hi, 0x000f000f")
    for t in range(2):
        A(f"ds_write_b128 v5, {v(48+4*t,4)} offset:{128*t}")
    A("s_mov_b64 exec, -1")
    A(f"v_lshrrev_b32 v5, 5, v{L}")
    A(f"v_lshlrev_b32 v5, 4, v5")
    A(f"v_add_u32 v5, s{T+13}, v5")
    A("s_waitcnt lgkmcnt(0)")
    for t in range(2):
        for k in range(4):
            A(f"ds_read_b128 {v(VCS+16*t+4*k,4)}, v5 offset:{128*t+32*k}")
            A(f"ds_read_b128 {v(VSBW+16*t+4*k,4)}, v5 offset:{256+128*t+32*k}")
    A(f"v_mov_b32 v6, {hex(NLOG2E)}")
    for r in range(0, 32, 2):
        A(f"v_pk_mul_f32 {v(VSBW+r,2)}, {v(VSBW+r,2)}, v[6:7] op_sel_hi:[1,0]")
    stamp(A, "colsums")

def silu_ops(acc, t, rin, mr, tmp, out, packed):
    L = []
    for g0 in range(0, 16, 4):
        if packed:
            for h in range(2):
                r = g0 + 2 * h
                L.append(f"v_pk_fma_f32 {v(tmp+2*h,2)}, {v(VCS+16*t+r,2)}, {v(rin,2)}, {v(VSBW+16*t+r,2)} op_sel:[0,1,0] op_sel_hi:[1,1,1]")
            for h in range(2):
                r = g0 + 2 * h
                L.append(f"v_pk_fma_f32 {v(acc+r,2)}, {v(acc+r,2)}, {v(rin,2)}, {v(tmp+2*h,2)} op_sel:[0,0,0] op_sel_hi:[1,0,1]")
        else:
            for i in range(4): L.append(f"v_fma_f32 v{tmp+i}, v{mr}, v{VCS+16*t+g0+i}, v{VSBW+16*t+g0+i}")
            for i in range(4): L.append(f"v_fma_f32 v{acc+g0+i}, v{acc+g0+i}, v{rin}, v{tmp+i}")
        for i in range(4): L.append(f"v_exp_f32 v{tmp+i}, v{acc+g0+i}")
        if packed:
            for h in range(2): L.append(f"v_pk_add_f32 {v(tmp+2*h,2)}, {v(tmp+2*h,2)}, 1.0 op_sel_hi:[1,0]")
        else:
            for i in range(4): L.append(f"v_add_f32 v{tmp+i}, 1.0, v{tmp+i}")
        for i in range(4): L.append(f"v_rcp_f32 v{tmp+i}, v{tmp+i}")
        if packed:
            for h in range(2): L.append(f"v_pk_mul_f32 {v(tmp+2*h,2)}, {v(tmp+2*h,2)}, {v(acc+g0+2*h,2)}")
        else:
            for i in range(4): L.append(f"v_mul_f32 v{tmp+i}, v{tmp+i}, v{acc+g0+i}")
        for h in range(2): L.append(f"v_cvt_pk_bf16_f32 v{out+g0//2+h}, v{tmp+2*h}, v{tmp+2*h+1}")
    return L

def mix(x, y):
    out = []; k = 0
    for i, a_ in enumerate(x):
        out.append(a_)
        while k < len(y) and k * len(x) < (i + 1) * len(y):
            out.append(y[k]); k += 1
    return out + y[k:]

def cost(ins):
    return 8 if ins.startswith(("v_exp", "v_rcp")) else 4

VXR = 224
def gemm1(A):
    L = V_LANE
    VXA = 8; XF = 192; VRS = 14; TMP, OUT = 20, 24
    A("; ---- GEMM 1 ----")
    dma_voff(A, 56, 57, 4096, 5)
    A(f"v_add_u32 v57, {8*4096-1024}, v57")
    A(f"s_lshl_b32 s{T}, s{S_WAVE}, 16")
    A(f"s_lshl_b32 s{T+1}, s{S_RB}, 7")
    A(f"s_add_u32 s{T}, s{T}, s{T+1}")
    A(f"s_add_u32 s{T+1}, s{T}, {WS_X1}")
    A(f"s_add_u32 s{T}, s{T}, {WS_X1C}")
    A(f"s_lshl_b32 s{T+2}, s{S_WAVE}, 11")
    A(f"s_lshl_b32 s{T+5}, s{S_ROT}, 18")
    tr_addr32(A, VXA, 5, 8)
    A(f"v_xor_b32 v{VXA+1}, 64, v{VXA}")
    A(f"v_lshlrev_b32 v18, 4, v{L}")
    A(f"s_mul_i32 s{T+3}, s{S_RB}, {2*112*1024}")
    A(f"s_mul_i32 s{T+4}, s{S_J}, {14*1024}")
    A(f"s_add_u32 s{T+3}, s{T+3}, s{T+4}")
    A(f"s_lshl_b32 s{T+4}, s{S_WAVE}, 12")
    A(f"s_add_u32 s{T+6}, s{T+4}, 2048")
    A(f"s_cmp_eq_u32 s{S_WAVE}, 3")
    A(f"s_cselect_b32 s{T+6}, 0, s{T+6}")
    A(f"s_bitcmp1_b32 s{S_J}, 0")
    A(f"s_cselect_b32 s{T+4}, s{T+6}, s{T+4}")
    A(f"s_add_u32 s{T+3}, s{T+3}, s{T+4}")
    A(f"s_add_u32 s{T+3}, s{T+3}, {WS_H}")
    A(f"s_add_u32 s{T+4}, s{T+3}, {112*1024}")
    A(f"v_and_b32 v19, 31, v{L}")
    A(f"v_lshlrev_b32 v19, 2, v19")
    A(f"v_add_u32 v19, {LDS_ST2+256}, v19")
    tr_addr16(A, 10, 5)
    A(f"v_add_u32 v10, {LDS_X1}, v10")
    for i in range(1, 4): A(f"v_xor_b32 v{10+i}, {32*i}, v10")
    tr_addr32(A, 44, 5, 4)
    A(f"s_and_b32 s{T+6}, s{S_WAVE}, 1")
    A(f"s_lshl_b32 s{T+6}, s{T+6}, 6")
    A(f"v_xor_b32 v44, s{T+6}, v44")
    A(f"s_lshr_b32 s{T+6}, s{S_WAVE}, 1")
    A(f"s_lshl_b32 s{T+6}, s{T+6}, 12")
    A(f"s_add_u32 s{T+6}, s{T+6}, {LDS_X1}")
    A(f"s_sub_u32 s{T+7}, s{S_J}, s{S_ROT}")
    A(f"s_and_b32 s{T+7}, s{T+7}, 7")
    A(f"s_lshl_b32 s{T+7}, s{T+7}, 13")
    A(f"s_add_u32 s{T+6}, s{T+6}, s{T+7}")
    A(f"v_add_u32 v44, s{T+6}, v44")
    A(f"v_xor_b32 v45, 32, v44")
    w2_setup(A)
    A(f"s_cmp_eq_u32 s{S_WAVE}, {O.poller2}")
    A(f"s_cbranch_scc0 L_np2")
    if O.lf2: lf_poll(A, LF_2, 24)
    else: poll(A, 16, 128, WS_SYNC + 128 * FLG_2)
    A("L_np2:")
    A("s_waitcnt lgkmcnt(0)")
    A("s_barrier")
    stamp(A, "2 released")
    def xchunk(n):
        Ls = []
        for base, sb in ((LDS_XC, T), (LDS_X1, T + 1)):
            Ls += [f"s_add_u32 m0, s{T+2}, {base + 8192*n}",
                   f"s_add_u32 s{T+12}, s{sb}, s{T+5}",
                   f"buffer_load_dwordx4 v56, {s(SRD_WS,4)}, s{T+12} offen sc1 lds",
                   f"buffer_load_dwordx4 v57, {s(SRD_WS,4)}, s{T+12} offen offset:1024 sc1 lds"]
        if n < 7:
            Ls += [f"s_add_u32 s{T+5}, s{T+5}, 262144", f"s_and_b32 s{T+5}, s{T+5}, 0x1fffff"]
        return Ls
    NC = 8
    for n in range(O.xpre):
        for x in xchunk(n): A(x)
    colsums(A)
    def xread(slot, st, e):
        return [f"ds_read_b64_tr_b16 {v(XF+4*slot+2*h,2)}, v{VXA+st} offset:{LDS_XC+2048*e+512*h}" for h in range(2)]
    def hstore(st, t, out):
        return [f"buffer_store_dwordx4 {v(out+4*k,4)}, v18, {s(SRD_WS,4)}, s{T+3+st} offen offset:{2048*t+1024*k} sc1" for k in range(2)]
    def checkpoint(c):
        A(f"s_waitcnt vmcnt({4 * (min(c + O.xpre, NC) - c - 1)})")
        A("s_barrier")
        if c in (0, NC - 1): stamp(A, f"ckpt{c}")
        if c == NC - 1:
            for k in range(4):
                A(f"ds_read_b64_tr_b16 {v(VXR+2*k,2)}, v{44+(k&1)} offset:{1024*k}")
        n = c + O.xpre
        return xchunk(n) if n < NC else []
    def read_rs():
        return [f"ds_read_b32 v{VRS+2*st+k}, v19 offset:{256*k+128*st}" for st in range(2) for k in range(2)]
    NB = 4
    def main():
        pend = []
        for c in range(NC):
            side = checkpoint(c)
            for e in range(4 * c, 4 * c + 4):
                for x in xread(e % 8, 0, e): A(x)
            for m in pend:
                A(m)
                for x in side[:2]: A(x)
                side = side[2:]
            pend = []
            for e in range(4 * c, 4 * c + 4):
                for t in range(2):
                    cc = "0" if e == 0 else v(ACC1 + 16 * t, 16)
                    m = f"v_mfma_f32_32x32x16_bf16 {v(ACC1+16*t,16)}, {a(w1frag(0,t,e),4)}, {v(XF+4*(e%8),4)}, {cc}"
                    if e >= 4 * c + 2 and c < NC - 1: pend.append(m)
                    else:
                        A(m)
                        for x in side[:4]: A(x)
                        side = side[4:]
                if c == NC - 1:
                    for x in xread((e + NB) % 8, 1, e + NB - 32): A(x)
            for x in side: A(x)
        fill = []
        for t in range(2):
            fill += mix(silu_ops(ACC1 + 16 * t, t, VRS, VRS + 1, TMP, OUT + 8 * t, False), w2_group(0) + w2_group(1) if t == 0 else []) + hstore(0, t, OUT + 8 * t)
        for e in range(32):
            for t in range(2):
                cc = "0" if e == 0 else v(ACC1 + 32 + 16 * t, 16)
                A(f"v_mfma_f32_32x32x16_bf16 {v(ACC1+32+16*t,16)}, {a(w1frag(0,t,e),4)}, {v(XF+4*(e%8),4)}, {cc}")
                budget = 24
                if t == 0 and e + NB < 32:
                    for x in xread((e + NB) % 8, 1, e + NB): A(x)
                    budget -= 8
                if e == 2 and t == 1:
                    A("s_barrier")
                    for x in read_rs(): A(x)
                if e >= 4:
                    while fill and budget >= cost(fill[0]):
                        budget -= cost(fill[0]); A(fill.pop(0))
        for x in fill: A(x)
        stamp(A, "g1 mfma")
        A("s_waitcnt vmcnt(4)")
        stamp(A, "w2g01")
        for x in mix(silu_ops(ACC1 + 32, 0, VRS + 2, VRS + 3, TMP, OUT, True), w2_read(0) + w2_read(1)) + hstore(1, 0, OUT): A(x)
        A("s_waitcnt lgkmcnt(0)")
        stamp(A, "tailq1")
        for x in mix(silu_ops(ACC1 + 48, 1, VRS + 2, VRS + 3, TMP, OUT + 8, True), w2_group(2) if O.tg else []) + hstore(1, 1, OUT + 8): A(x)
        stamp(A, "H stored")
    def w3():
        del _stamps[-6:]
        ONES, GR, SM = 40, ACC1 + 32, ACC1 + 48
        for i in range(4): A(f"v_mov_b32 v{ONES+i}, s{S_ONES}")
        def sread(e, i):
            return [f"ds_read_b64_tr_b16 {v(XF+4*((4*e+i)%8)+2*h,2)}, v{10+i} offset:{4096*e+512*h}" for h in range(2)]
        pend = []
        for c in range(NC):
            side = checkpoint(c)
            seq = [(e, i) for e in range(2 * c, 2 * c + 2) for i in range(4)]
            def pair(e, i):
                f = v(XF + 4 * ((4 * e + i) % 8), 4)
                return [f"v_mfma_f32_16x16x32_bf16 {v(GR+4*i,4)}, {f}, {f}, {'0' if e == 0 else v(GR+4*i,4)}",
                        f"v_mfma_f32_16x16x32_bf16 {v(SM+4*i,4)}, {v(ONES,4)}, {f}, {'0' if e == 0 else v(SM+4*i,4)}"]
            for (e, i) in seq[:4]:
                for x in sread(e, i): A(x)
            for k, (e, i) in enumerate(pend):
                for m in pair(e, i):
                    A(m)
                    for x in side[:1]: A(x)
                    side = side[1:]
                for x in sread(*seq[4 + k]): A(x)
            if not pend:
                for (e, i) in seq[4:]:
                    for x in sread(e, i): A(x)
            for (e, i) in seq[:4]:
                for m in pair(e, i):
                    A(m)
                    for x in side[:1]: A(x)
                    side = side[1:]
            for x in side: A(x)
            pend = seq[4:]
        for (e, i) in pend:
            for m in pair(e, i): A(m)
        for e in range(NB):
            for x in xread(e, 0, e): A(x)
        for r, m in ((1, "0x22222222"), (2, "0x44444444"), (3, "0x88888888")):
            A(f"s_mov_b32 s{T+4+2*r}, {m}")
            A(f"s_mov_b32 s{T+5+2*r}, {m}")
        A(f"v_and_b32 v6, 15, v{L}")
        A(f"v_lshlrev_b32 v6, 2, v6")
        A(f"v_add_u32 v6, {LDS_ST2}, v6")
        for r in range(1, 4):
            for i in range(4):
                A(f"v_cndmask_b32 v{GR+4*i}, v{GR+4*i}, v{GR+4*i+r}, {s(T+4+2*r,2)}")
        A(f"s_mov_b32 exec_lo, 0x00f0000f")
        A(f"s_mov_b32 exec_hi, 0xf0000f00")
        for i in range(4): A(f"ds_write_b32 v6, v{GR+4*i} offset:{64*i}")
        A("s_mov_b64 exec, -1")
        for i in range(1, 4):
            A(f"v_mov_b32_dpp v{SM}, v{SM+4*i} quad_perm:[0,1,2,3] row_mask:{hex(1<<i)} bank_mask:0xf")
        A(f"v_lshlrev_b32 v6, 2, v{L}")
        A(f"v_add_u32 v6, {LDS_ST2}, v6")
        A("s_waitcnt lgkmcnt(0)")
        A(f"ds_read_b32 v{GR}, v6")
        ln_finish(A, [(SM, GR, GR + 1, GR + 2)], GR + 3, hex(NLOG2E))
        A(f"ds_write_b32 v6, v{GR+1} offset:256")
        A(f"ds_write_b32 v6, v{GR+2} offset:512")
        A("s_waitcnt lgkmcnt(0)")
        A("s_barrier")
        for x in read_rs(): A(x)
        fill = w2_group(0) + w2_group(1)
        for st in range(2):
            for e in range(32):
                cc = "0" if e == 0 else v(ACC1 + 16 * st, 16)
                A(f"v_mfma_f32_32x32x16_bf16 {v(ACC1+16*st,16)}, {a(w1frag(1,0,e),4)}, {v(XF+4*(e%8),4)}, {cc}")
                budget = 24
                n = 32 * st + e + NB
                if n < 64:
                    for x in xread(n % 8, n // 32, n % 32): A(x)
                    budget -= 8
                if st == 0:
                    for _ in range(2):
                        if fill: A(fill.pop(0))
                if st == 1 and e >= 2:
                    while fill and budget >= cost(fill[0]):
                        budget -= cost(fill[0]); A(fill.pop(0))
            if st == 0: fill += silu_ops(ACC1, 0, VRS, VRS + 1, TMP, OUT, False) + hstore(0, 0, OUT)
        for x in fill: A(x)
        stamp(A, "g1 mfma")
        A("s_waitcnt vmcnt(2)")
        stamp(A, "w2g01")
        for x in mix(silu_ops(ACC1 + 16, 0, VRS + 2, VRS + 3, TMP, OUT + 8, True), w2_read(0) + w2_read(1)) + hstore(1, 0, OUT + 8): A(x)
        A("s_waitcnt lgkmcnt(0)")
        stamp(A, "tailq1")
        if O.tg:
            for x in w2_group(2): A(x)
        stamp(A, "H stored")
    split_wave3(A, main, w3)
    stamp_flush(A, 1)

def w2_setup(A):
    dma_voff(A, VW2S, VW2S + 1, 1024, 5)
    A(f"v_add_u32 v{VW2S+1}, {8*1024-1024}, v{VW2S+1}")
    A(f"v_add_u32 v{VW2S+2}, {2*(8*1024-1024)}, v{VW2S}")
    A(f"v_add_u32 v{VW2S+3}, {2*(8*1024-1024)}, v{VW2S+1}")
    tr_addr32(A, VW2 + 2, 5, 4)
    A(f"s_lshr_b32 s{S_TMP}, s{S_WAVE}, 1")
    A(f"s_lshl_b32 s{S_TMP}, s{S_TMP}, 6")
    A(f"v_xor_b32 v{VW2+2}, s{S_TMP}, v{VW2+2}")
    A(f"s_lshl_b32 s{S_PM}, s{S_WAVE}, 14")
    A(f"v_add_u32 v{VW2+2}, s{S_PM}, v{VW2+2}")
    A(f"v_xor_b32 v{VW2+3}, 32, v{VW2+2}")
    A(f"v_xor_b32 v{VW2+4}, 64, v{VW2+2}")
    A(f"v_xor_b32 v{VW2+5}, 96, v{VW2+2}")
    for k in range(4): A(f"v_add_u32 v{VW2H+k}, 0x10000, v{VW2+2+k}")
    A(f"s_mov_b32 s{S_PI}, s{S_PE}")
    A(f"s_mul_i32 s{S_PS}, s{S_WAVE}, {448*1024}")
    A(f"s_lshl_b32 s{S_TMP}, s{S_J}, 7")
    A(f"s_add_u32 s{S_PS}, s{S_PS}, s{S_TMP}")

def w2_buf(gidx):
    return (LDS_XC if gidx in (4, 5) else LDS_X1) + 8192 * (gidx & 1)

def w2_group(gidx):
    L = [f"s_add_u32 m0, s{S_PM}, {w2_buf(gidx)}",
         f"s_lshl_b32 s{S_PO}, s{S_PI}, 16",
         f"s_add_u32 s{S_PI}, s{S_PI}, 1",
         f"s_add_u32 s{S_PO}, s{S_PO}, s{S_PS}",
         f"s_cmp_eq_u32 s{S_PI}, 7",
         f"s_cselect_b32 s{S_PI}, 0, s{S_PI}"]
    return L + pieces8(VW2S, SRD_W2, 32768)

def w2_read(gidx):
    base = w2_buf(gidx)
    L = []
    for e in range(4):
        for u in range(2):
            for h in range(2):
                off = base + 2048 * e + 1024 * h
                r = VW2 + 2 + 2 * u + h
                if off >= 65536: off -= 65536; r = VW2H + 2 * u + h
                L.append(f"ds_read_b64_tr_b16 {a((28*u+4*gidx+e)*4+2*h,2)}, v{r} offset:{off}")
    return L

def gemm2(A):
    L = V_LANE
    ACC = 32; HF = 96; NB = 16
    A(f"v_lshrrev_b32 v5, 5, v{L}")
    A(f"v_lshlrev_b32 v5, 4, v5")
    A(f"s_lshr_b32 s{T+1}, s{S_WAVE}, 1")
    A(f"s_lshl_b32 s{T+1}, s{T+1}, 7")
    A(f"s_add_u32 s{T+1}, s{T+1}, {LDS_GB}")
    A(f"v_add_u32 v5, s{T+1}, v5")
    for t in range(O.w5):
        for x in w2_group(2 + O.tg + t): A(x)
    A(f"s_waitcnt vmcnt({8 * O.w5})")
    A("s_barrier")
    stamp(A, "H acked")
    def flag3():
        A(f"s_lshl_b32 s{S_TMP}, s{S_WG}, 7")
        A(f"s_add_u32 s{S_TMP}, s{S_TMP}, {WS_SYNC + 128*FLG_3}")
        A("s_mov_b64 exec, 1")
        A(f"v_mov_b32 v252, 0")
        A(f"v_mov_b32 v253, 1")
        A(f"buffer_store_dword v253, v252, {s(SRD_WS,4)}, s{S_TMP} offen sc1")
        A("s_mov_b64 exec, -1")
    only_wave3(A, flag3)
    A("s_waitcnt lgkmcnt(0)")
    for t in range(O.w5 + O.tg, 4):
        for x in w2_group(2 + t): A(x)
    A("s_waitcnt vmcnt(24)")
    for x in w2_read(2): A(x)
    A("s_waitcnt vmcnt(16) lgkmcnt(0)")
    for x in mix(w2_group(6), w2_read(3)): A(x)
    for k in range(4):
        A(f"ds_read_b128 {v(16+4*k,4)}, v5 offset:{32*k}")
    A(f"s_lshl_b32 s{T}, s{S_RB}, 1")
    A(f"s_and_b32 s{T+1}, s{S_WAVE}, 1")
    A(f"s_add_u32 s{T+2}, s{T}, s{T+1}")
    A(f"s_xor_b32 s{T+3}, s{T+2}, 1")
    A(f"s_mul_i32 s{T+2}, s{T+2}, {112*1024}")
    A(f"s_mul_i32 s{T+3}, s{T+3}, {112*1024}")
    A(f"v_lshlrev_b32 v6, 4, v{L}")
    A(f"v_add_u32 v3, s{T+2}, v6")
    A(f"v_add_u32 v4, s{T+3}, v6")
    A(f"s_mul_i32 s{T+4}, s{S_WAVE}, {28*1024}")
    A(f"s_add_u32 s{T+4}, s{T+4}, {WS_H}")
    A(f"s_add_u32 s{T+5}, s{T+4}, {28*1024}")
    A(f"s_lshl_b32 s{T+2}, s{S_PE}, 12")
    A(f"s_add_u32 s{T+2}, s{T+2}, s{T+4}")
    def p3():
        if O.map84:
            A(f"s_and_b32 s{T+6}, s{S_WG}, 0xe6")
            A(f"v_and_b32 v251, 3, v{L}")
            A(f"v_lshlrev_b32 v251, 10, v251")
            A(f"v_bfe_u32 v252, v{L}, 2, 1")
            A(f"v_lshl_add_u32 v252, v252, 7, v251")
        else:
            A(f"s_and_b32 s{T+6}, s{S_WG}, 31")
            A(f"v_lshlrev_b32 v252, 12, v{L}")
        A(f"s_lshl_b32 s{T+6}, s{T+6}, 7")
        A(f"s_add_u32 s{T+6}, s{T+6}, {WS_SYNC + 128*FLG_3}")
        poll(A, 8, None, f"s{T+6}")
    only_wave3(A, p3)
    A("s_barrier")
    stamp(A, "3 released")
    def hload(e):
        Ls = [f"buffer_load_dwordx4 {v(HF+8*(e%NB)+4*st,4)}, v{3+st}, {s(SRD_WS,4)}, s{T+2} offen offset:{1024*(e&3)} sc1" for st in range(2)]
        if e % 4 == 3 and e < 27:
            Ls += [f"s_add_u32 s{T+2}, s{T+2}, 4096", f"s_cmp_eq_u32 s{T+2}, s{T+5}", f"s_cselect_b32 s{T+2}, s{T+4}, s{T+2}"]
        return Ls
    for e in range(O.hpre):
        for x in hload(e): A(x)
    A(f"s_waitcnt vmcnt({2 * O.hpre})")
    for gi in range(4, 7):
        for x in w2_read(gi): A(x)
    nxt = O.hpre
    for e in range(28):
        for u in range(2):
            for st in range(2):
                acc = ACC + 32 * u + 16 * st
                A(f"v_mfma_f32_32x32x16_bf16 {v(acc,16)}, {a((28*u+e)*4,4)}, {v(HF+8*(e%NB)+4*st,4)}, {'0' if e == 0 else v(acc,16)}")
                if (u, st) in ((0, 0), (1, 0)) and nxt < 28 and nxt < e + NB and (u == 0 or e % 2 == 0):
                    for x in hload(nxt): A(x)
                    nxt += 1
    stamp(A, "g2 mfma")
    A("s_barrier")
    for k in range(1, 4):
        A(f"s_xor_b32 s{T+5}, s{S_WAVE}, {k}")
        A(f"s_mul_i32 s{T+5}, s{T+5}, 12288")
        A(f"s_add_u32 s{T+5}, s{T+5}, {LDS_RED + 4096*(k-1)}")
        A(f"v_add_u32 v7, s{T+5}, v6")
        for q in range(4):
            A(f"ds_write_b128 v7, {v(ACC+16*k+4*q,4)} offset:{1024*q}")
    A(f"s_mul_i32 s{T+5}, s{S_WAVE}, 12288")
    A(f"v_add_u32 v7, s{T+5}, v6")
    XU = HF + 48
    for k in range(8):
        A(f"v_lshlrev_b32 v{XU+2*k}, 16, v{VXR+k}")
        A(f"v_and_b32 v{XU+2*k+1}, 0xffff0000, v{VXR+k}")
    A(f"v_and_b32 v3, 31, v{L}")
    A(f"v_lshlrev_b32 v3, 10, v3")
    A(f"v_lshrrev_b32 v4, 5, v{L}")
    A(f"v_lshl_add_u32 v3, v4, 4, v3")
    A(f"s_lshl_b32 s{T+5}, s{S_RB}, 1")
    A(f"s_add_u32 s{T+5}, s{T+5}, s{T+1}")
    A(f"s_lshl_b32 s{T+5}, s{T+5}, 15")
    A(f"s_lshl_b32 s{T+6}, s{S_J}, 7")
    A(f"s_add_u32 s{T+5}, s{T+5}, s{T+6}")
    A(f"s_lshr_b32 s{T+6}, s{S_WAVE}, 1")
    A(f"s_lshl_b32 s{T+6}, s{T+6}, 6")
    A(f"s_add_u32 s{T+5}, s{T+5}, s{T+6}")
    A("s_waitcnt lgkmcnt(0)")
    A("s_barrier")
    for k in range(3):
        for q in range(4):
            A(f"ds_read_b128 {v(HF+16*k+4*q,4)}, v7 offset:{LDS_RED+4096*k+1024*q}")
    for k in range(3):
        for r in range(0, 16, 2):
            A(f"v_pk_add_f32 {v(ACC+r,2)}, {v(ACC+r,2)}, {v(HF+16*k+r,2)}")
    for r in range(0, 16, 2):
        A(f"v_pk_fma_f32 {v(ACC+r,2)}, {v(ACC+r,2)}, {v(16+r,2)}, {v(XU+r,2)}")
    for r in range(0, 16, 2):
        A(f"v_cvt_pk_bf16_f32 v{HF+r//2}, v{ACC+r}, v{ACC+r+1}")
    for kk in range(2):
        A(f"v_permlane32_swap_b32 v{HF+4*kk}, v{HF+4*kk+2}")
        A(f"v_permlane32_swap_b32 v{HF+4*kk+1}, v{HF+4*kk+3}")
    for kk in range(2):
        A(f"buffer_store_dwordx4 {v(HF+4*kk,4)}, v3, {s(SRD_OUT,4)}, s{T+5} offen offset:{32*kk}")
    stamp(A, "end")
    stamp_flush(A, 2)

HEADER = open("cdna_kernels/" + NAME + ".s.ref").read().split("; Override launch")[0]

def build():
    A = Asm()
    name = NAME + "_kernel"
    A('.amdgcn_target "amdgcn-amd-amdhsa--gfx950"')
    A(".text"); A(f".globl {name}"); A(".p2align 8"); A(f".type {name},@function"); A(f"{name}:")
    prologue(A)
    phase0(A)
    conv(A)
    window3(A)
    gemm1(A)
    gemm2(A)
    A("L_end:")
    A("s_endpgm")
    A.autowait()
    A.pad()
    out = HEADER + f"; @launch grid=(256,1,1) block=(256,1,1) lds={LDS_TOTAL}\n" + A.text()
    out += f""".section .rodata,"a"
.p2align 6
.amdhsa_kernel {name}
  .amdhsa_next_free_vgpr 512
  .amdhsa_next_free_sgpr 102
  .amdhsa_accum_offset 256
  .amdhsa_group_segment_fixed_size 0
  .amdhsa_kernarg_size 112
  .amdhsa_user_sgpr_count 2
  .amdhsa_user_sgpr_kernarg_segment_ptr 1
  .amdhsa_system_sgpr_workgroup_id_x 1
  .amdhsa_float_denorm_mode_32 3
.end_amdhsa_kernel
"""
    return out

if __name__ == "__main__":
    path = sys.argv[1]
    O.prof = "--prof" in sys.argv
    O.cyc = "--cyc" in sys.argv
    for x in sys.argv[2:]:
        if "=" in x:
            k_, v_ = x.split("="); setattr(O, k_, int(v_))
    open(path, "w").write(build())
    if O.prof:
        import json; json.dump(STAMPS, open(path + ".stamps.json", "w"))
    print("wrote", path)
```

```python
import sys
sys.path.insert(0, "dev")
from asmlib import Asm, v, a, s

NAME = "adaLN_cond__ssm_conv_h3__dense_activation_silu__prompt"
STAGE = 4
REC_LAYOUT = 2
H_SCALE = -0.6931471805599453

WS_REC = 0
WS_X1 = 4 << 20
WS_X1C = 6 << 20
WS_H = 8 << 20
WS_STAT = 16 << 20
WS_MODP = (16 << 20) + 65536
WS_SYNC = 17 << 20
WS_PROF = (17 << 20) + (512 << 10)
WS_SIZE = 18 << 20
FLG_A, EPOCH, CNT_2, FLG_2, FLG_3 = 0, 2, 16, 32, 128
FLG_4 = 1280
FLG_5 = 1536
WS_ST2 = (16 << 20) + (128 << 10)
LF_A, LF_2, LF_B = 512, 768, 1024

S_WG = 2; S_WAVE = 3
SRD_Q, SRD_K, SRD_V, SRD_SSMK, SRD_W1, SRD_W2, SRD_WMOD, SRD_OUT, SRD_WS, SRD_SHK, SRD_C, SRD_SSMD = [4 + 4 * i for i in range(12)]
S_DBG = 52
T = 54
S_PI, S_PM, S_PS, S_PE = 88, 89, 90, 91
S_RB, S_J, S_ROT, S_CH, S_CARRY, S_SPIN = 92, 93, 94, 95, 96, 97
S_TMP = 98
S_SIG = 87
S_C = 88
S_RT = 0
S_TAG = 84
S_PO = 86
S_SELLO, S_SELHI, S_ONES = 99, 100, 101

KARG = {SRD_Q: (0, 2097152), SRD_K: (8, 2097152), SRD_V: (16, 2097152), SRD_SHK: (24, 4096), SRD_SSMK: (32, 2097152),
        SRD_SSMD: (40, 1024), SRD_W1: (56, 512 * 1792 * 2), SRD_W2: (64, 512 * 1792 * 2), SRD_C: (72, 1024),
        SRD_WMOD: (80, 512 * 3072 * 2), SRD_OUT: (88, 2097152), SRD_WS: (104, WS_SIZE)}
NLOG2E = 0xbfb8aa3b

LDS_XC = 0
LDS_X1 = 65536
LDS_GM = 98304
LDS_SC = 114688
LDS_REC = 98304
LDS_KC = 131072
LDS_CARRY = 153216
LDS_MODV = 147968
LDS_CS = 150144
LDS_ST2 = 152192
LDS_GB = 152960
LDS_STA = 116736
LDS_STB = 157440
LDS_XR = 131072
LDS_RED = 0
LDS_TOTAL = 163840

V_LANE = 2
VW1 = 238
VW3 = 236
VW2H = 232
VW2 = 244
VW2S = 228

class Opt:
    prof = False; cyc = False
    w1_depth = 8
    wpf = 1; xpre = 2; hpre = 12; f1pos = 18; sck = 8; f0at = 20; r2same = 1; post = 1; mvearly = 1; poll2 = 0; hp0 = 10; fine = 0; om = 2; g6late = 0; f1n = 10; f1c = 16; seq = 1; sq_b0 = 6; sq_f0 = 26; sq_fa = 14; el = 12; elk = 112; f1pp = 1; tlb = 0; bthr = 48; ovl = 0; red0 = 33; bsleep = 16; isleep = 20; sigfirst = 0; eplate = 1; stsw = 1; w2e = 4; w2w1 = 0; rd01 = 24; dbgB = 0; look = 3; wmerge = 1; prog = 1; early0 = 1; w2te = 1; g6at = 12; hmax = 24; recperm = 1; kc_late = 1; sleep = 1
    conv_groups = 4; w3_depth = 10; tailg = 2; cs_early = 1; n_w1 = 3; w5 = 1; lfa = 1; lf2 = 1; kc_early = 0; n_rd = 2; poller2 = 3; map84 = 0; touch = 0; cpf = 1; w2t = 1; outsc = 0; w2l2 = 1; g01late = 0; pp = 0; bsplit = 0; t3 = 0; xpre2 = 3; fb = 28; w2side = 4; tg = 1
O = Opt()

_stamps = []
STAMPS = {}
def stamp(A, name):
    if not O.prof: return
    n = len(_stamps); _stamps.append(name)
    A(f"s_memtime s[74:75]" if O.cyc else f"s_memrealtime s[74:75]")
    A("s_waitcnt lgkmcnt(0)")
    if n == 1: A(f"v_writelane_b32 v250, s76, 0")
    A(f"v_writelane_b32 v250, s74, {n}")
def stamp_flush(A, kidx):
    if not O.prof or kidx != 2: return
    A(f"s_lshl_b32 s74, s{S_WG}, 2")
    A(f"s_add_u32 s74, s74, s{S_WAVE}")
    A(f"s_lshl_b32 s74, s74, 8")
    A(f"s_add_u32 s74, s74, {WS_PROF}")
    A(f"v_lshlrev_b32 v254, 2, v{V_LANE}")
    A(f"buffer_store_dword v250, v254, {s(SRD_WS,4)}, s74 offen")
    STAMPS[0] = list(_stamps)

def dma_voff(A, d0, d1, rowstride, tmp):
    A(f"v_lshrrev_b32 v{tmp}, 3, v{V_LANE}")
    A(f"v_and_b32 v{d1}, 2, v{tmp}")
    A(f"v_lshlrev_b32 v{d1}, 5, v{d1}")
    A(f"v_and_b32 v{d0}, 7, v{V_LANE}")
    A(f"v_lshlrev_b32 v{d0}, 4, v{d0}")
    A(f"v_xor_b32 v{d0}, v{d0}, v{d1}")
    A(f"v_mul_u32_u24 v{tmp}, {rowstride}, v{tmp}")
    A(f"v_add_u32 v{d0}, v{d0}, v{tmp}")
    A(f"v_xor_b32 v{d1}, 32, v{d0}")

def tr_addr32(A, d, tmp, rowmul):
    L = V_LANE
    A(f"v_lshrrev_b32 v{tmp}, 5, v{L}")
    A(f"v_bfe_u32 v{tmp+1}, v{L}, 2, 2")
    A(f"v_lshl_add_u32 v{d}, v{tmp}, {3 if rowmul == 8 else 2}, v{tmp+1}")
    A(f"v_lshlrev_b32 v{d}, 7, v{d}")
    A(f"v_and_b32 v{tmp+1}, 2, v{tmp+1}")
    if rowmul == 8: A(f"v_or_b32 v{tmp+1}, v{tmp+1}, v{tmp}")
    A(f"v_bfe_u32 v{tmp}, v{L}, 4, 1")
    A(f"v_xor_b32 v{tmp+1}, v{tmp+1}, v{tmp}")
    A(f"v_lshl_add_u32 v{d}, v{tmp+1}, 5, v{d}")
    A(f"v_and_b32 v{tmp}, 3, v{L}")
    A(f"v_lshl_add_u32 v{d}, v{tmp}, 3, v{d}")

def tr_addr16(A, d, tmp):
    L = V_LANE
    A(f"v_lshrrev_b32 v{tmp}, 4, v{L}")
    A(f"v_bfe_u32 v{tmp+1}, v{L}, 2, 2")
    A(f"v_lshl_add_u32 v{d}, v{tmp}, 3, v{tmp+1}")
    A(f"v_lshlrev_b32 v{d}, 7, v{d}")
    A(f"v_and_b32 v{tmp+1}, 2, v{tmp+1}")
    A(f"v_and_b32 v{tmp}, 1, v{tmp}")
    A(f"v_or_b32 v{tmp+1}, v{tmp+1}, v{tmp}")
    A(f"v_lshl_add_u32 v{d}, v{tmp+1}, 5, v{d}")
    A(f"v_and_b32 v{tmp}, 3, v{L}")
    A(f"v_lshl_add_u32 v{d}, v{tmp}, 3, v{d}")

def ln_finish(A, rows, tmp, scale=None):
    steps = [
        lambda su, sq, o1, o2, t: [f"v_mul_f32 v{su}, 0x3b000000, v{su}", f"v_mul_f32 v{sq}, 0x3b000000, v{sq}"],
        lambda su, sq, o1, o2, t: [f"v_fma_f32 v{sq}, -v{su}, v{su}, v{sq}"],
        lambda su, sq, o1, o2, t: [f"v_max_f32 v{sq}, 0, v{sq}"],
        lambda su, sq, o1, o2, t: [f"v_cvt_pk_bf16_f32 v{t}, v{su}, v{sq}"],
        lambda su, sq, o1, o2, t: [f"v_lshlrev_b32 v{su}, 16, v{t}", f"v_and_b32 v{sq}, 0xffff0000, v{t}"],
        lambda su, sq, o1, o2, t: [f"v_add_f32 v{sq}, 0x3727c5ac, v{sq}"],
        lambda su, sq, o1, o2, t: [f"v_cvt_pk_bf16_f32 v{sq}, v{sq}, v{sq}"],
        lambda su, sq, o1, o2, t: [f"v_lshlrev_b32 v{sq}, 16, v{sq}"],
        lambda su, sq, o1, o2, t: [f"v_sqrt_f32 v{sq}, v{sq}"],
        lambda su, sq, o1, o2, t: [f"v_cvt_pk_bf16_f32 v{sq}, v{sq}, v{sq}"],
        lambda su, sq, o1, o2, t: [f"v_lshlrev_b32 v{sq}, 16, v{sq}"],
        lambda su, sq, o1, o2, t: [f"v_rcp_f32 v{o1}, v{sq}"],
        lambda su, sq, o1, o2, t: [f"v_mul_f32 v{o1}, {scale}, v{o1}"] if scale else [],
        lambda su, sq, o1, o2, t: [f"v_mul_f32 v{o2}, -v{su}, v{o1}"],
    ]
    for st in steps:
        for i, r in enumerate(rows):
            for x in st(*r, tmp + i): A(x)

_uid = [0]
def uid():
    _uid[0] += 1; return _uid[0]

def signal_issue(A, cnt):
    A(f"s_and_b32 s{S_SIG}, s{S_WG}, 15")
    A(f"s_lshl_b32 s{S_SIG}, s{S_SIG}, 7")
    A(f"s_add_u32 s{S_SIG}, s{S_SIG}, {WS_SYNC}")
    A("s_mov_b64 exec, 1")
    A(f"v_mov_b32 v252, {128*cnt}")
    A(f"v_mov_b32 v253, 1")
    A(f"buffer_atomic_add v253, v252, {s(SRD_WS,4)}, s{S_SIG} offen sc0 sc1")
    A("s_mov_b64 exec, -1")

def signal_finish(A, flag):
    u = uid()
    A("s_mov_b64 exec, 1")
    A(f"v_cmp_eq_u32 vcc, 15, v253")
    A(f"v_mov_b32 v252, {128*flag}")
    A(f"v_mov_b32 v253, 1")
    A(f"s_cbranch_vccz L_sig{u}")
    A(f"buffer_store_dword v253, v252, {s(SRD_WS,4)}, s{S_SIG} offen sc1")
    A(f"L_sig{u}:")
    A("s_mov_b64 exec, -1")

def poll(A, nlanes, stride, base, want=1):
    u = uid()
    A(f"s_mov_b64 exec, {hex((1 << nlanes) - 1)}")
    if stride: A(f"v_mul_u32_u24 v252, {stride}, v{V_LANE}")
    A(f"s_mov_b32 s{S_TMP}, {base}")
    A(f"s_mov_b32 s{S_SPIN}, 0x80000")
    ld = lambda r: A(f"buffer_load_dword v{r}, v252, {s(SRD_WS,4)}, s{S_TMP} offen sc1 ; nowait")
    if O.pp: ld(253)
    A(f"L_poll{u}:")
    if O.pp:
        for k in range(2):
            A(f"s_sleep {O.sleep+1}")
            ld(254 - k)
            A("s_waitcnt vmcnt(1)")
            A(f"v_cmp_ne_u32 vcc, {want}, v{253+k}")
            A(f"s_cbranch_vccz L_pollx{u}")
    else:
        ld(253)
        A("s_waitcnt vmcnt(0)")
        A(f"v_cmp_ne_u32 vcc, {want}, v253")
        A(f"s_cbranch_vccz L_pollx{u}")
        A(f"s_sleep {O.sleep}")
    A(f"s_sub_u32 s{S_SPIN}, s{S_SPIN}, 1")
    A(f"s_cbranch_scc0 L_poll{u}")
    A(f"L_pollx{u}:")
    A("s_mov_b64 exec, -1")

def lf_signal(A, base):
    A(f"s_lshl_b32 s{S_TMP}, s{S_WG}, 7")
    A(f"s_add_u32 s{S_TMP}, s{S_TMP}, {WS_SYNC + 128*base}")
    A("s_mov_b64 exec, 1")
    A(f"v_mov_b32 v252, 0")
    A(f"v_mov_b32 v254, s{S_TAG}")
    A(f"v_mov_b32 v255, s{S_TAG+1}")
    A(f"buffer_store_dwordx2 v[254:255], v252, {s(SRD_WS,4)}, s{S_TMP} offen sc1")
    A("s_mov_b64 exec, -1")

def lf_poll(A, base, tmpv, first=0):
    u = uid(); M = 76
    A(f"v_lshlrev_b32 v{tmpv+16}, 7, v{V_LANE}")
    for i in range(4):
        A(f"s_mov_b64 {s(M+2*i,2)}, -1")
        if i: A(f"v_add_u32 v{tmpv+16+i}, {8192*i}, v{tmpv+16}")
    A(f"s_mov_b32 s{S_TMP}, {WS_SYNC + 128*base}")
    A(f"s_mov_b32 s{S_SPIN}, 0x40000")
    if first: A(f"s_sleep {first}")
    def issue(k):
        for i in range(4):
            A(f"s_or_b64 exec, {s(M+2*i,2)}, 1")
            A(f"buffer_load_dwordx2 {v(tmpv+8*k+2*i,2)}, v{tmpv+16+i}, {s(SRD_WS,4)}, s{S_TMP} offen sc1 ; nowait")
    def check(k):
        for i in range(4):
            A(f"s_mov_b64 exec, {s(M+2*i,2)}")
            A(f"v_cmp_ne_u64 {s(M+2*i,2)}, {s(S_TAG,2)}, {v(tmpv+8*k+2*i,2)}")
        A(f"s_or_b64 vcc, {s(M,2)}, {s(M+2,2)}")
        A(f"s_or_b64 vcc, vcc, {s(M+4,2)}")
        A(f"s_or_b64 vcc, vcc, {s(M+6,2)}")
        A(f"s_cbranch_scc0 L_lfx{u}")
    if O.pp:
        issue(0)
        A(f"L_lf{u}:")
        for k in range(2):
            A(f"s_sleep {O.sleep}")
            issue(1 - k)
            A("s_waitcnt vmcnt(4)")
            check(k)
    else:
        A(f"L_lf{u}:")
        issue(0)
        A("s_waitcnt vmcnt(0)")
        check(0)
        A(f"s_bcnt1_i32_b64 s{S_PO}, vcc")
        A(f"s_cmp_gt_u32 s{S_PO}, {O.bthr}")
        A(f"s_cbranch_scc0 L_lfs{u}")
        A(f"s_sleep {O.bsleep}")
        A(f"L_lfs{u}:")
        A(f"s_sleep {O.sleep}")
    A(f"s_sub_u32 s{S_SPIN}, s{S_SPIN}, 1")
    A(f"s_cbranch_scc0 L_lf{u}")
    A(f"L_lfx{u}:")
    A("s_mov_b64 exec, -1")

def only_wave3(A, body):
    u = uid()
    A(f"s_cmp_eq_u32 s{S_WAVE}, 3")
    A(f"s_cbranch_scc0 L_w3_{u}")
    body()
    A(f"L_w3_{u}:")

def split_wave3(A, others, w3):
    u = uid()
    A(f"s_cmp_eq_u32 s{S_WAVE}, 3")
    A(f"s_cbranch_scc1 L_s3a_{u}")
    others()
    A(f"s_branch L_s3b_{u}")
    A(f"L_s3a_{u}:")
    w3()
    A(f"L_s3b_{u}:")

def pieces8(vbase, srd, step4, depth=0):
    L = []
    for p in range(8):
        if p == 4: L += [f"s_add_u32 m0, m0, 4096", f"s_add_u32 s{S_PO}, s{S_PO}, {step4}"]
        L.append(f"buffer_load_dwordx4 v{vbase+(p&3)}, {s(srd,4)}, s{S_PO} offen offset:{1024*(p&3)} lds")
        if depth: L.append(f"s_waitcnt vmcnt({depth-1})")
    return L

def w1_group(gi, tile, ldsbase, tmp, depth=0):
    L = [f"s_add_u32 s{S_TMP}, s{S_ROT}, {gi}",
         f"s_lshl_b32 m0, {gi}, 13",
         f"s_bitcmp1_b32 s{S_TMP}, 2",
         f"s_cselect_b64 vcc, -1, 0",
         f"s_add_u32 m0, m0, {ldsbase}",
         f"s_and_b32 s{S_TMP}, s{S_TMP}, 3",
         f"v_cndmask_b32 v245, v{VW3}, v{VW3+1}, vcc"]
    L += [f"v_add_u32 v{tmp+k}, v245, v{VW1+k}" for k in range(4)]
    L += [f"s_mul_i32 s{S_PO}, s{S_TMP}, {64*3584}",
          f"s_lshl_b32 s{S_TMP}, s{S_C}, 8",
          f"s_add_u32 s{S_PO}, s{S_PO}, s{S_TMP}",
          f"s_lshl_b32 s{S_TMP}, {tile}, 6",
          f"s_add_u32 s{S_PO}, s{S_PO}, s{S_TMP}"]
    return L + pieces8(tmp, SRD_W1, 32 * 3584, depth)

def loop(A, body, n):
    u = uid()
    A(f"s_mov_b32 s{S_SPIN}, {n}")
    A(f"L_lp{u}:")
    for x in body: A(x)
    A(f"s_sub_u32 s{S_SPIN}, s{S_SPIN}, 1")
    A(f"s_cmp_lg_u32 s{S_SPIN}, 0")
    A(f"s_cbranch_scc1 L_lp{u}")

def w1_read(gi):
    return [f"ds_read_b64_tr_b16 {a((16*t+4*gi+e)*4+2*h,2)}, v{242+t} offset:{8192*gi+2048*e+512*h}" for e in range(4) for t in range(2) for h in range(2)]

LDS_ST1 = 114944
def prologue(A):
    VK, VV, VQ, VSH, VST, VC = 10, 28, 36, 44, 48, 56
    L = V_LANE
    A(f"s_cmp_ge_u32 s{S_WG}, 256")
    A(f"s_cbranch_scc1 L_end")
    if O.prof:
        A("s_memtime s[76:77]" if O.cyc else "s_memrealtime s[76:77]")
        _stamps.append("start")
    first = [SRD_Q, SRD_C, SRD_K, SRD_V, SRD_SHK, SRD_WS]
    rest = [SRD_WMOD, SRD_SSMK, SRD_SSMD, SRD_W1, SRD_W2, SRD_OUT]
    for r in first:
        A(f"s_load_dwordx2 {s(r,2)}, s[0:1], {KARG[r][0]}")
    A(f"v_lshrrev_b32 v1, 6, v0")
    A(f"v_and_b32 v{L}, 63, v0")
    A(f"v_readfirstlane_b32 s{S_WAVE}, v1")
    for r in first:
        A(f"s_mov_b32 s{r+2}, {KARG[r][1]}")
        A(f"s_mov_b32 s{r+3}, 0x20000")
    A(f"s_lshr_b32 s{T}, s{S_WG}, 1")
    A(f"s_and_b32 s{T+1}, s{S_WG}, 1")
    A(f"s_lshl_b32 s{T+1}, s{T+1}, 2")
    A(f"s_add_u32 s{T+1}, s{T+1}, s{S_WAVE}")
    A(f"s_lshl_b32 s{T+1}, s{T+1}, 5")
    A(f"v_and_b32 v3, 31, v0")
    A(f"v_add_u32 v5, s{T+1}, v3")
    A(f"v_bfe_u32 v4, v0, 5, 1")
    A(f"v_lshlrev_b32 v6, 2, v5")
    A(f"v_lshl_add_u32 v6, v4, 10, v6")
    A(f"s_lshl_b32 s{T+2}, s{T}, 14")
    for k in range(1, 4):
        A(f"s_add_u32 s{T+2+k}, s{T+2}, {4096*k}")
    A(f"s_sub_u32 s{T+6}, s{T+2}, 3072")
    A(f"v_add_u32 v8, s{T+6}, v6")
    A(f"v_add_u32 v9, 1024, v8")
    A(f"v_add_u32 v57, 2048, v8")
    A(f"v_lshlrev_b32 v7, 4, v5")
    A(f"s_lshl_b32 s{T+7}, s{S_WG}, 2")
    A(f"s_add_u32 s{T+7}, s{T+7}, s{S_WAVE}")
    A(f"s_lshl_b32 s{T+8}, s{T+7}, 11")
    A(f"v_lshlrev_b32 v58, 4, v{L}")
    A(f"s_mul_i32 s{T+9}, s{S_WG}, 1366")
    A(f"s_lshr_b32 s{T+9}, s{T+9}, 16")
    A(f"v_and_b32 v59, 127, v0")
    A(f"v_lshlrev_b32 v59, 1, v59")
    A(f"s_lshl_b32 s{T+12}, s{T+9}, 8")
    A(f"v_lshlrev_b32 v252, 11, v{L}")
    A(f"s_lshl_b32 s{T+11}, s{S_WG}, 7")
    A(f"v_mov_b32 v253, {128*FLG_3}")
    A(f"v_cmp_eq_u32 vcc, 4, v{L}")
    A(f"s_add_u32 s{T+11}, s{T+11}, {WS_SYNC}")
    A(f"v_cndmask_b32 v252, v252, v253, vcc")
    A(f"v_mov_b32 v253, {128*FLG_4}")
    A(f"v_cmp_eq_u32 vcc, 3, v{L}")
    A(f"v_cndmask_b32 v252, v252, v253, vcc")
    A(f"v_mov_b32 v253, {128*FLG_5}")
    A(f"v_cmp_eq_u32 vcc, 5, v{L}")
    A(f"v_cndmask_b32 v252, v252, v253, vcc")
    A(f"v_mov_b32 v253, 0")
    A("s_waitcnt lgkmcnt(0)")
    def clr():
        A(f"s_cmp_lt_u32 s{S_WG}, 16")
        A(f"s_cselect_b32 exec_lo, 0x3e, 56")
        A(f"s_mov_b32 exec_hi, 0")
        A(f"buffer_store_dword v253, v252, {s(SRD_WS,4)}, s{T+11} offen sc1")
        A("s_mov_b64 exec, -1")
    only_wave3(A, clr)
    A(f"buffer_load_dwordx4 {v(VST,4)}, v58, {s(SRD_Q,4)}, s{T+8} offen")
    A(f"buffer_load_dwordx4 {v(VST+4,4)}, v58, {s(SRD_Q,4)}, s{T+8} offen offset:1024")
    A(f"buffer_load_ushort v{VC}, v59, {s(SRD_C,4)}, s{T+12} offen")
    A(f"buffer_load_dword v{VK}, v8, {s(SRD_K,4)}, 0 offen")
    A(f"buffer_load_dword v{VK+1}, v9, {s(SRD_K,4)}, 0 offen")
    A(f"buffer_load_dword v{VK+2}, v57, {s(SRD_K,4)}, 0 offen")
    for r in range(15):
        A(f"buffer_load_dword v{VK+3+r}, v6, {s(SRD_K,4)}, s{T+2+(r>>2)} offen offset:{1024*(r&3)}")
    A(f"buffer_load_dwordx4 {v(VSH,4)}, v7, {s(SRD_SHK,4)}, 0 offen")
    for k in range(8):
        A(f"buffer_load_dword v{VV+k}, v6, {s(SRD_V,4)}, s{T+2+(k>>1)} offen offset:{2048*(k&1)}")
    for k in range(8):
        A(f"buffer_load_dword v{VQ+k}, v6, {s(SRD_Q,4)}, s{T+2+(k>>1)} offen offset:{2048*(k&1)}")
    for r in rest:
        A(f"s_load_dwordx2 {s(r,2)}, s[0:1], {KARG[r][0]}")
    A(f"s_load_dwordx2 {s(S_DBG,2)}, s[0:1], 96")
    if not O.eplate:
        A(f"s_add_u32 s{T+16}, s{SRD_WS}, {WS_SYNC + 128*EPOCH}")
        A(f"s_addc_u32 s{T+17}, s{SRD_WS+1}, 0")
        A(f"s_load_dwordx2 {s(S_TAG,2)}, s[{T+16}:{T+17}], 0")
    A(f"s_getpc_b64 s[{T+16}:{T+17}]")
    A("L_pc:")
    A(f"s_cmp_eq_u32 s{S_WAVE}, {0 if O.cpf == 1 else 7}" if O.cpf < 2 else f"s_cmp_lt_u32 s{S_WG}, 64")
    A(f"s_cbranch_scc0 L_nopf")
    A(f"s_bfe_u32 s{T+11}, s{S_WG}, {'0x30003' if O.cpf < 2 else '0x10003'}")
    A(f"s_lshl_b32 s{T+11}, s{T+11}, {13 if O.cpf < 2 else 15}")
    A(f"v_lshlrev_b32 v254, 7, v0")
    A(f"v_add_u32 v254, s{T+11}, v254")
    A(f"v_min_u32 v254, L_end-L_pc, v254")
    A(f"global_load_dword v255, v254, s[{T+16}:{T+17}] ; nowait")
    A("L_nopf:")
    for r in rest:
        A(f"s_mov_b32 s{r+2}, {KARG[r][1]}")
        A(f"s_mov_b32 s{r+3}, 0x20000")
    A(f"s_mul_i32 s{T+10}, s{T+9}, 48")
    A(f"s_sub_u32 s{T+10}, s{S_WG}, s{T+10}")
    dma_voff(A, 60, 61, 6144, 62)
    A(f"s_lshl_b32 s{T+12}, s{T+9}, 7")
    A(f"s_lshl_b32 s{T+13}, s{S_WAVE}, 5")
    A(f"s_add_u32 s{T+12}, s{T+12}, s{T+13}")
    A(f"s_mul_i32 s{T+12}, s{T+12}, 6144")
    A(f"s_lshl_b32 s{T+11}, s{T+10}, 7")
    A(f"s_add_u32 s{T+12}, s{T+12}, s{T+11}")
    A(f"s_lshl_b32 s{T+14}, s{S_WAVE}, 12")
    A(f"s_add_u32 m0, s{T+14}, {LDS_GM}")
    A("s_waitcnt lgkmcnt(0)")
    stamp(A, "issued")
    for i in range(4):
        if i:
            A(f"s_add_u32 m0, m0, 1024")
            A(f"s_add_u32 s{T+12}, s{T+12}, {8*6144}")
        A(f"buffer_load_dwordx4 v{60+(i&1)}, {s(SRD_WMOD,4)}, s{T+12} offen lds")
    if O.eplate:
        A(f"s_add_u32 s{T+16}, s{SRD_WS}, {WS_SYNC + 128*EPOCH}")
        A(f"s_addc_u32 s{T+17}, s{SRD_WS+1}, 0")
        A(f"s_load_dwordx2 {s(S_TAG,2)}, s[{T+16}:{T+17}], 0")
    A(f"s_mov_b32 s{S_SELLO}, 0x05040100")
    A(f"s_mov_b32 s{S_SELHI}, 0x07060302")
    A(f"s_mov_b32 s{S_ONES}, 0x3f803f80")
    A(f"s_bfe_u32 s{S_RB}, s{S_WG}, 0x20001")
    A(f"s_lshl_b32 s{S_RB}, s{S_RB}, 2")
    A(f"s_lshr_b32 s{S_TMP}, s{S_WG}, 6")
    A(f"s_add_u32 s{S_RB}, s{S_RB}, s{S_TMP}")
    A(f"s_bfe_u32 s{S_J}, s{S_WG}, 0x30003")
    A(f"s_add_u32 s{S_ROT}, s{S_J}, s{S_TMP}")
    A(f"s_and_b32 s{S_ROT}, s{S_ROT}, 7")
    A(f"s_and_b32 s{S_PE}, s{S_WG}, 1")
    A(f"s_mul_i32 s{S_C}, s{S_PE}, 7")
    A(f"s_add_u32 s{S_C}, s{S_C}, s{S_J}")
    A(f"s_add_u32 s{S_PE}, s{S_PE}, 14")
    A(f"s_cmp_eq_u32 s{S_J}, 7")
    A(f"s_cselect_b32 s{S_C}, s{S_PE}, s{S_C}")
    A(f"s_and_b32 s{S_RT}, s{S_WG}, 7")
    A(f"s_lshl_b32 s{S_RT}, s{S_RT}, 3")
    A(f"s_lshr_b32 s{S_PE}, s{S_WG}, 7")
    A(f"s_lshl_b32 s{S_PE}, s{S_PE}, 2")
    A(f"s_add_u32 s{S_RT}, s{S_RT}, s{S_PE}")
    A(f"s_bfe_u32 s{S_PE}, s{S_WG}, 0x10006")
    A(f"s_add_u32 s{S_RT}, s{S_RT}, s{S_PE}")
    A(f"s_lshl_b32 s{S_PE}, s{S_TMP}, 1")
    A(f"s_add_u32 s{S_PE}, s{S_PE}, s{S_J}")
    if O.r2same: A(f"s_mov_b32 s{S_PE}, s{S_J}")
    A(f"s_cmp_ge_u32 s{S_C}, 14")
    A(f"s_cselect_b32 s{SRD_W1+2}, 0, s{SRD_W1+2}")
    A(f"s_cmp_ge_u32 s{S_PE}, 7")
    A(f"s_cselect_b32 s{S_TMP}, 7, 0")
    A(f"s_sub_u32 s{S_PE}, s{S_PE}, s{S_TMP}")
    A(f"s_cmp_ge_u32 s{S_PE}, 7")
    A(f"s_cselect_b32 s{S_TMP}, 7, 0")
    A(f"s_sub_u32 s{S_PE}, s{S_PE}, s{S_TMP}")

def phase0(A):
    VK, VV, VQ, VSH, VST, VC = 10, 28, 36, 44, 48, 56
    L = V_LANE
    stamp(A, "issued2")
    if O.tlb:
        A("; wave 1 touches the pages that later phases use")
        A(f"s_cmp_eq_u32 s{S_WAVE}, 1")
        A(f"s_cbranch_scc0 L_notlb")
        A(f"v_lshlrev_b32 v254, {O.tlb}, v{L}")
        A(f"s_lshl_b32 s{T+14}, s{S_WG}, 7")
        A(f"buffer_load_dword v255, v254, {s(SRD_WS,4)}, s{T+14} offen ; nowait")
        for r in (SRD_OUT, SRD_W1, SRD_W2, SRD_SSMK):
            A(f"buffer_load_dword v255, v254, {s(r,4)}, s{T+14} offen ; nowait")
        A("L_notlb:")
    A(f"s_cmp_eq_u32 s{S_WAVE}, 2")
    A(f"s_cbranch_scc0 L_noclr2")
    A(f"s_lshl_b32 s{T+14}, s{S_WG}, 7")
    A(f"s_add_u32 s{T+14}, s{T+14}, {WS_ST2}")
    A(f"v_lshlrev_b32 v64, 2, v{L}")
    A(f"s_mov_b32 exec_hi, 0")
    A(f"buffer_store_dword v253, v64, {s(SRD_WS,4)}, s{T+14} offen sc1")
    A("s_mov_b64 exec, -1")
    A("L_noclr2:")
    dma_voff(A, VW1, VW1 + 1, 3584, 64)
    A(f"s_mov_b32 s{T+14}, {256*3584}")
    A(f"v_bfe_u32 v64, v{VW1}, 6, 1")
    A(f"v_mul_lo_u32 v65, v64, s{T+14}")
    A(f"v_lshlrev_b32 v64, 6, v64")
    A(f"v_sub_u32 v{VW3}, v65, v64")
    A(f"v_sub_u32 v65, s{T+14}, v65")
    A(f"v_sub_u32 v{VW3+1}, v65, v64")
    A(f"v_add_u32 v{VW1+1}, {8*3584-1024}, v{VW1+1}")
    A(f"v_add_u32 v{VW1+2}, {2*(8*3584-1024)}, v{VW1}")
    A(f"v_add_u32 v{VW1+3}, {2*(8*3584-1024)}, v{VW1+1}")
    tr_addr32(A, 242, 64, 8)
    A(f"s_lshl_b32 s{T+14}, s{S_WAVE}, 15")
    A(f"v_add_u32 v242, s{T+14}, v242")
    A(f"v_xor_b32 v243, 64, v242")
    A(f"s_lshl_b32 s{S_PM}, s{S_WAVE}, 15")
    w2_setup(A)
    A(f"s_lshr_b32 s{T+11}, s{S_WAVE}, 1")
    A(f"s_lshl_b32 s{S_CH}, s{S_WG}, 1")
    A(f"s_add_u32 s{S_CH}, s{S_CH}, s{T+11}")
    A(f"s_mul_i32 s{S_CARRY}, s{T+11}, 2080")
    A(f"s_add_u32 s{S_CARRY}, s{S_CARRY}, {LDS_CARRY}")
    A(f"s_mul_i32 s{T+13}, s{S_WAVE}, 4224")
    A(f"s_add_u32 s{T+13}, s{T+13}, {LDS_KC}")
    A(f"s_and_b32 s{T+11}, s{S_WAVE}, 1")
    A(f"s_lshl_b32 s{T+14}, s{T+11}, 2")
    A(f"s_sub_u32 s{T+14}, 4, s{T+14}")
    A(f"v_add_u32 v62, s{T+14}, v58")
    A(f"v_and_b32 v64, 7, v3")
    A(f"v_lshlrev_b32 v65, 2, v4")
    A(f"v_xor_b32 v64, v64, v65")
    A(f"v_lshlrev_b32 v57, 7, v3")
    A(f"v_lshl_add_u32 v57, v64, 4, v57")
    A(f"s_lshl_b32 s{T+14}, s{S_WAVE}, 15")
    A(f"s_add_u32 s{T+14}, s{T+14}, 24576")
    A(f"v_add_u32 v57, s{T+14}, v57")
    A(f"v_lshrrev_b32 v64, 3, v{L}")
    A(f"v_and_b32 v65, 7, v{L}")
    A(f"v_xor_b32 v66, v65, v64")
    A(f"v_lshlrev_b32 v9, 7, v64")
    A(f"v_lshl_add_u32 v9, v66, 4, v9")
    A(f"v_add_u32 v9, s{T+14}, v9")
    A(f"v_lshlrev_b32 v65, 4, v65")
    for b in range(4):
        A(f"v_add_u32 v66, s{T+1}, v64")
        if b: A(f"v_add_u32 v66, {8*b}, v66")
        if O.recperm:
            A(f"v_xor_b32 v67, s{T}, v66")
            A(f"v_and_b32 v67, 127, v67")
        else:
            A(f"v_mov_b32 v67, s{T}")
        A(f"v_lshl_add_u32 v66, v66, 7, v67")
        A(f"v_lshl_add_u32 v{168+b}, v66, 7, v65")
    for k in range(1, 4): A(f"v_xor_b32 v{173+k}, {16*k}, v57")
    B = 172
    tr_addr16(A, B, 64)
    A(f"s_lshl_b32 s{T+16}, s{S_WAVE}, 5")
    A(f"v_xor_b32 v{B}, s{T+16}, v{B}")
    A(f"v_add_u32 v{B}, {LDS_GM}, v{B}")
    A(f"v_lshrrev_b32 v{B+1}, 4, v{L}")
    A(f"v_lshlrev_b32 v{B+1}, 4, v{B+1}")
    A(f"v_add_u32 v{B+1}, {LDS_SC}, v{B+1}")
    A(f"s_mul_i32 s{T+16}, s{T+9}, {3072*4}")
    A(f"s_lshl_b32 s{T+17}, s{T+10}, 8")
    A(f"s_add_u32 s{T+16}, s{T+16}, s{T+17}")
    A(f"s_lshl_b32 s{T+17}, s{S_WAVE}, 6")
    A(f"s_add_u32 s{T+16}, s{T+16}, s{T+17}")
    A(f"s_add_u32 s{T+16}, s{T+16}, {WS_MODP}")
    A(f"s_lshl_b32 s{T+15}, s{S_WG}, 6")
    A(f"s_add_u32 s{T+15}, s{T+15}, {WS_STAT}")
    A(f"s_lshl_b32 s{T+17}, s{S_WAVE}, 3")
    A(f"s_add_u32 s{T+17}, s{T+17}, {LDS_ST1}")
    A(f"v_mov_b32 v177, s{T+17}")
    A(f"v_add_u32 v59, {LDS_SC}, v59")
    def kcopy():
        A(f"s_lshl_b32 s{T+18}, s{S_CH}, 12")
        A(f"s_add_u32 m0, s{T+13}, 32")
        A(f"v_mov_b32 v63, 0")
        A(f"buffer_load_dword v63, v63, {s(SRD_SSMK,4)}, s{T+18} offen")
        for i in range(4):
            A(f"buffer_load_dwordx4 v62, {s(SRD_SSMK,4)}, s{T+18} offen offset:{1024*i} lds")
    if O.kc_early: kcopy()
    R = 152
    for r in range(2):
        A(f"v_dot2_f32_bf16 v{R+2*r}, v{VST+4*r}, s{S_ONES}, 0")
        A(f"v_dot2_f32_bf16 v{R+2*r+1}, v{VST+4*r}, v{VST+4*r}, 0")
    for q in range(1, 4):
        for r in range(2):
            A(f"v_dot2_f32_bf16 v{R+2*r}, v{VST+4*r+q}, s{S_ONES}, v{R+2*r}")
            A(f"v_dot2_f32_bf16 v{R+2*r+1}, v{VST+4*r+q}, v{VST+4*r+q}, v{R+2*r+1}")
    X = 164
    A(f"v_lshlrev_b32 v{X}, 16, v{VC}")
    A(f"v_mul_f32 v{X+1}, {hex(NLOG2E)}, v{X}")
    A(f"v_exp_f32 v{X+1}, v{X+1}")
    for n, m in enumerate(("row_shr:1", "row_shr:2", "row_shr:4", "row_shr:8")):
        for i in range(4):
            A(f"v_add_f32_dpp v{R+i}, v{R+i}, v{R+i} {m} row_mask:0xf bank_mask:0xf bound_ctrl:0")
        A([f"v_add_f32 v{X+1}, 1.0, v{X+1}", f"v_rcp_f32 v{X+1}, v{X+1}", f"v_mul_f32 v{X+1}, v{X}, v{X+1}", f"v_cvt_pk_bf16_f32 v{X+1}, v{X+1}, v{X+1}"][n])
    A(f"ds_write_b16 v59, v{X+1}")
    for m, rm in (("row_bcast:15", "0xa"), ("row_bcast:31", "0xc")):
        for i in range(4):
            A(f"v_add_f32_dpp v{R+i}, v{R+i}, v{R+i} {m} row_mask:{rm} bank_mask:0xf")
    ln_finish(A, [(R, R+1, R+4, R+6), (R+2, R+3, R+5, R+7)], R + 8)
    A("s_lshl_b64 exec, 1, 63")
    A(f"ds_write_b64 v177, {v(R+4,2)}")
    A(f"ds_write_b64 v177, {v(R+6,2)} offset:32")
    A("s_mov_b64 exec, -1")
    stamp(A, "stats")
    A("; ---- kv ----")
    VW, VP, VKS, VVU, CA, CB = 64, 68, 86, 102, 120, 136
    for k in range(9):
        A(f"v_perm_b32 v{VP+2*k}, v{VK+2*k+1}, v{VK+2*k}, s{S_SELLO}")
        A(f"v_perm_b32 v{VP+2*k+1}, v{VK+2*k+1}, v{VK+2*k}, s{S_SELHI}")
    A(f"v_alignbit_b32 v{VW}, v{VSH+1}, v{VSH+1}, 16")
    A(f"v_alignbit_b32 v{VW+1}, v{VSH}, v{VSH}, 16")
    A(f"v_alignbit_b32 v{VW+2}, v{VSH+3}, v{VSH+3}, 16")
    A(f"v_alignbit_b32 v{VW+3}, v{VSH+2}, v{VSH+2}, 16")
    for k in range(8):
        for c in range(2):
            A(f"v_dot2_f32_bf16 v{VKS+2*k+c}, v{VP+2*k+c}, v{VW+2*c}, 0")
    for k in range(8):
        for c in range(2):
            A(f"v_dot2_f32_bf16 v{VKS+2*k+c}, v{VP+2*k+2+c}, v{VW+2*c+1}, v{VKS+2*k+c}")
    for k in range(8):
        A(f"v_lshlrev_b32 v{VVU+2*k}, 16, v{VV+k}")
        A(f"v_and_b32 v{VVU+2*k+1}, 0xffff0000, v{VV+k}")
    for k in range(8):
        A(f"v_pk_mul_f32 {v(VKS+2*k,2)}, {v(VKS+2*k,2)}, {v(VVU+2*k,2)}")
    for c in range(2):
        for q in range(4):
            A(f"v_cvt_pk_bf16_f32 v{CA+4*c+q}, v{VKS+2*(7-2*q)+c}, v{VKS+2*(6-2*q)+c}")
        A(f"ds_write_b128 v{173+c if c else 57}, {v(CA+4*c,4)}")
    for c in range(2):
        for q in range(4):
            A(f"v_perm_b32 v{CA+8+4*c+q}, v{VQ+6-2*q}, v{VQ+7-2*q}, s{S_SELHI if c else S_SELLO}")
        A(f"ds_write_b128 v{175+c}, {v(CA+8+4*c,4)}")
    stamp(A, "kvq landed")
    A("s_waitcnt lgkmcnt(0)")
    for b in range(4):
        A(f"ds_read_b128 {v(CB+4*b,4)}, v9 offset:{1024*b}")
    for b in range(4):
        A(f"buffer_store_dwordx4 {v(CB+4*b,4)}, v{168+b}, {s(SRD_WS,4)}, 0 offen sc1")
    stamp(A, "rec stored")
    if O.bsplit:
        A(f"s_waitcnt vmcnt(0) lgkmcnt(0)")
        A("s_barrier")
        stamp(A, "rec acked")
        A(f"s_add_u32 s{S_TAG}, s{S_TAG}, 1")
        only_wave3(A, lambda: lf_signal(A, LF_A))
    else:
        A(f"s_waitcnt vmcnt({9 if O.kc_early else 4}) lgkmcnt(0)")
        A("s_barrier")
    A(f"v_add_u32 v177, {LDS_ST1}, v58")
    A(f"ds_read_b128 {v(R,4)}, v177")
    FA, FB, ACC = 72, 88, 104
    for e in range(4):
        A(f"ds_read_b128 {v(FA+4*e,4)}, v{B+1} offset:{64*e}")
        A(f"ds_read_b64_tr_b16 {v(FB+4*e,2)}, v{B} offset:{4096*e}")
        A(f"ds_read_b64_tr_b16 {v(FB+4*e+2,2)}, v{B} offset:{4096*e+512}")
    A(f"s_cmp_eq_u32 s{S_WAVE}, 0")
    A(f"s_cbranch_scc0 L_nost1")
    A("s_mov_b64 exec, 0xf")
    A(f"buffer_store_dwordx4 {v(R,4)}, v58, {s(SRD_WS,4)}, s{T+15} offen sc1")
    A("s_mov_b64 exec, -1")
    A("L_nost1:")
    for e in range(4):
        A(f"v_mfma_f32_16x16x32_bf16 {v(ACC,4)}, {v(FA+4*e,4)}, {v(FB+4*e,4)}, {'0' if e == 0 else v(ACC,4)}")
    A(f"v_lshlrev_b32 v64, 2, v{L}")
    A(f"s_cmp_ge_u32 s{S_WG}, 192")
    A(f"s_cbranch_scc1 L_nogemv")
    A("s_mov_b64 exec, 0xffff")
    A(f"buffer_store_dword v{ACC}, v64, {s(SRD_WS,4)}, s{T+16} offen sc1")
    A("s_mov_b64 exec, -1")
    A("L_nogemv:")
    if not O.bsplit: A(f"s_add_u32 s{S_TAG}, s{S_TAG}, 1")
    stamp(A, "mod stored")
    if O.bsplit:
        def kc0():
            kcopy()
            A("s_waitcnt vmcnt(5)")
        split_wave3(A, kc0, lambda: A("s_waitcnt vmcnt(0)"))
        A("s_barrier")
        stamp(A, "B acked")
    else:
        A("s_waitcnt vmcnt(0)")
        stamp(A, "own ack")
        A("s_barrier")
        stamp(A, "rec acked")
    def others2():
        if not O.kc_early:
            if not O.bsplit: kcopy()
            A(f"s_cmp_eq_u32 s{S_WAVE}, 2")
            A(f"s_cbranch_scc0 L_nokc3")
            A(f"s_mov_b32 m0, {LDS_KC + 3*4224 + 32}")
            for i in range(4):
                A(f"buffer_load_dwordx4 v58, {s(SRD_SSMK,4)}, s{T+18} offen offset:{1024*i} lds")
            A("L_nokc3:")
        for gi in range(O.n_w1):
            for x in w1_group(gi, f"s{S_WAVE}", f"s{S_PM}", 64, O.w1_depth): A(x)
        if O.w2te:
            A(f"s_mul_i32 s{T+18}, s{S_WG}, 7168")
            A(f"s_mul_i32 s{T+17}, s{S_WAVE}, {19*128}")
            A(f"s_add_u32 s{T+18}, s{T+18}, s{T+17}")
            A(f"v_lshlrev_b32 v254, 7, v{L}")
            A(f"s_mov_b64 exec, 0x7ffff")
            A(f"buffer_load_dword v255, v254, {s(SRD_W2,4)}, s{T+18} offen ; nowait")
            A(f"s_mov_b64 exec, -1")
        stamp(A, "w1r0/sig")
    def sigA():
        if O.lfa:
            if O.bsplit: lf_signal(A, LF_B)
            else:
                lf_signal(A, LF_A)
            del _stamps[-1:]
            stamp(A, "w1r0/sig")
            return
        u = uid()
        A(f"s_and_b32 s{S_SIG}, s{S_WG}, 1")
        A(f"s_lshl_b32 s{S_SIG}, s{S_SIG}, 7")
        A("s_mov_b64 exec, 1")
        A(f"v_mov_b32 v252, s{S_SIG}")
        A(f"v_mov_b32 v253, 1")
        A(f"global_atomic_add v253, v252, v253, {s(S_DBG,2)} sc0 sc1")
        A(f"v_mov_b32 v254, s{S_TAG}")
        A(f"v_mov_b32 v255, s{S_TAG+1}")
        A(f"s_mov_b32 s{S_TMP}, {WS_SYNC + 128*FLG_A}")
        A(f"v_cmp_eq_u32 vcc, 127, v253")
        A(f"s_cbranch_vccz L_sig{u}")
        A(f"buffer_store_dwordx2 v[254:255], v252, {s(SRD_WS,4)}, s{S_TMP} offen sc1")
        A(f"L_sig{u}:")
        A("s_mov_b64 exec, -1")
        del _stamps[-1:]
        stamp(A, "w1r0/sig")
    split_wave3(A, others2, sigA)
    A(f"s_mul_i32 s{T+11}, s{T+11}, 64")
    A(f"s_add_u32 s{T+11}, s{T+11}, 7")
    A(f"v_lshlrev_b32 v62, 2, v{L}")
    A(f"v_add_u32 v62, s{T+13}, v62")

TSETS = ([7, 4, 3, 0], [6, 5, 2, 1])
def conv(A):
    VAB, VAA, VAE = 8, 16, 17
    VST = 24; VKX = 200; VGH, VX0 = 72, 88; ACC = 104; U = 56
    L = V_LANE
    A(f"v_lshrrev_b32 v3, 3, v{L}")
    if O.recperm:
        A(f"s_and_b32 s{T+6}, s{S_WG}, 7")
        A(f"v_xor_b32 v3, s{T+6}, v3")
    A(f"v_lshlrev_b32 v3, 7, v3")
    A(f"v_lshrrev_b32 v4, 4, v{L}")
    A(f"v_and_b32 v7, 7, v{L}")
    A(f"v_xor_b32 v7, v7, v4")
    A(f"v_lshl_add_u32 v3, v7, 4, v3")
    A(f"v_xor_b32 v7, 64, v3")
    A(f"s_lshl_b32 s{T+6}, s{S_WG}, 14")
    A(f"s_bfe_u32 s{T+8}, s{S_WG}, 0x40003")
    A(f"s_lshl_b32 s{T+8}, s{T+8}, 10")
    A(f"s_lshl_b32 s{T+7}, s{S_WAVE}, 12")
    A(f"v_and_b32 v21, 3, v{L}")
    A(f"v_mul_u32_u24 v21, 12288, v21")
    A(f"v_bfe_u32 v22, v{L}, 2, 2")
    A(f"v_lshl_add_u32 v21, v22, 11, v21")
    A(f"v_add_u32 v23, 2048, v21")
    A(f"v_cmp_eq_u32 vcc, 3, v22")
    A(f"s_lshl_b32 s{T+9}, s{S_CH}, 2")
    A(f"s_add_u32 s{T+9}, s{T+9}, {WS_MODP}")
    A(f"v_cndmask_b32 v21, v21, v23, vcc")
    A(f"s_lshl_b32 s{T+10}, s{S_CH}, 1")
    A(f"v_and_b32 v6, 15, v{L}")
    A(f"v_lshrrev_b32 v18, 1, v4")
    A(f"v_lshlrev_b32 v18, 2, v18")
    A(f"v_and_b32 v23, 1, v4")
    A(f"v_or_b32 v18, v18, v23")
    A(f"v_lshrrev_b32 v23, 1, v6")
    A(f"v_xor_b32 v18, v18, v23")
    A(f"v_lshlrev_b32 v23, 7, v6")
    A(f"v_lshl_add_u32 v23, v18, 4, v23")
    A(f"v_add_u32 v23, {LDS_STA}, v23")
    A(f"v_xor_b32 v216, 32, v23")
    A(f"v_lshlrev_b32 v5, 4, v{L}")
    A(f"v_lshlrev_b32 v18, 4, v4")
    A(f"v_xor_b32 v226, v5, v18")
    A(f"v_xor_b32 v227, 64, v226")
    A(f"v_lshlrev_b32 v18, 3, v0")
    A(f"v_add_u32 v18, {LDS_REC}, v18")
    A(f"v_mov_b32 v{VGH}, 0")
    A(f"v_mov_b32 v{VGH+1}, 0")
    A(f"ds_write_b64 v18, {v(VGH,2)}")
    A(f"v_mov_b32 v18, s{S_CARRY}")
    A(f"ds_write_b32 v18, v{VGH}")
    A(f"s_lshr_b32 s{T+12}, s{S_WAVE}, 1")
    for b in range(4):
        A(f"v_sub_u32 v18, v6, v4")
        A(f"v_add_u32 v18, {16-4*b}, v18")
        A(f"v_bfe_u32 v19, v18, 1, 3")
        A(f"v_xor_b32 v19, s{T+12}, v19")
        A(f"v_lshlrev_b32 v18, 7, v18")
        A(f"v_lshl_add_u32 v18, v19, 4, v18")
        A(f"v_add_u32 v{VAB+2*b}, {LDS_REC}, v18")
        A(f"v_xor_b32 v{VAB+2*b+1}, 64, v{VAB+2*b}")
    A(f"v_bfe_u32 v18, v{L}, 2, 2")
    A(f"v_and_b32 v19, 1, v18")
    A(f"v_add_u32 v18, 1, v18")
    A(f"v_lshrrev_b32 v18, 1, v18")
    A(f"v_and_b32 v20, 3, v{L}")
    A(f"v_add_u32 v18, v18, v20")
    A(f"v_lshlrev_b32 v18, 3, v18")
    A(f"v_lshl_add_u32 v18, v4, 5, v18")
    A(f"v_mul_u32_u24 v19, 4224, v19")
    A(f"s_mul_i32 s{T+13}, s{T+12}, 8448")
    A(f"s_add_u32 s{T+13}, s{T+13}, {LDS_KC}")
    A(f"v_add3_u32 v{VAA}, v18, v19, s{T+13}")
    A(f"v_bfe_u32 v19, v6, 1, 3")
    A(f"v_xor_b32 v19, s{T+12}, v19")
    A(f"v_lshlrev_b32 v18, 7, v6")
    A(f"v_lshl_add_u32 v18, v19, 4, v18")
    A(f"v_sub_u32 v19, 3, v4")
    A(f"v_lshl_add_u32 v18, v19, 2, v18")
    A(f"v_add_u32 v{VAE}, {LDS_REC+2048}, v18")
    A(f"v_xor_b32 v{VAE+1}, 64, v{VAE}")
    A(f"v_xor_b32 v{VAE+2}, 32, v{VAE}")
    A(f"v_xor_b32 v{VAE+3}, 96, v{VAE}")
    A(f"v_lshl_add_u32 v218, v6, 2, v4")
    A(f"v_lshl_add_u32 v218, v218, 2, s{S_CARRY}")
    A(f"s_add_u32 s{T+14}, s{T+7}, {LDS_KC}")
    A(f"v_bfe_u32 v24, v6, 2, 1")
    A(f"v_lshlrev_b32 v24, 1, v24")
    A(f"v_xor_b32 v24, v24, v4")
    A(f"v_lshlrev_b32 v219, 5, v6")
    A(f"v_lshl_add_u32 v219, v24, 3, v219")
    A(f"v_add_u32 v219, s{T+14}, v219")
    A(f"v_bfe_u32 v24, v{L}, 3, 1")
    A(f"v_lshlrev_b32 v24, 4, v24")
    A(f"v_xor_b32 v220, v24, v5")
    A(f"v_add_u32 v220, s{T+14}, v220")
    A(f"s_bitcmp1_b32 s{S_WAVE}, 0")
    for u in range(2):
        A(f"s_cselect_b32 s{T+14}, {TSETS[1][2*u]}, {TSETS[0][2*u]}")
        A(f"s_cselect_b32 s{T+15}, {TSETS[1][2*u+1]}, {TSETS[0][2*u+1]}")
        A(f"v_mov_b32 v24, s{T+14}")
        A(f"v_mov_b32 v25, s{T+15}")
        A(f"s_mov_b32 vcc_lo, 0")
        A(f"s_mov_b32 vcc_hi, -1")
        A(f"v_cndmask_b32 v24, v24, v25, vcc")
        A(f"v_and_b32 v25, 0x1ff, v5")
        A(f"v_lshl_add_u32 v{221+u}, v24, 9, v25")
    A(f"s_lshl_b32 s{S_CARRY}, s{S_CH}, 12")
    A(f"v_mov_b32 v22, 0")
    A(f"buffer_load_ushort v22, v22, {s(SRD_SSMD,4)}, s{T+10} offen")
    def pollA():
        u = uid()
        if O.lfa:
            lf_poll(A, LF_A, 24, 0 if O.bsplit else O.isleep)
            return
        A(f"s_mov_b64 exec, 3")
        A(f"v_lshlrev_b32 v252, 7, v{L}")
        A(f"s_mov_b32 s{S_TMP}, {WS_SYNC + 128*FLG_A}")
        A(f"s_mov_b32 s{S_SPIN}, 0x80000")
        A(f"L_poll{u}:")
        A(f"buffer_load_dwordx2 v[254:255], v252, {s(SRD_WS,4)}, s{S_TMP} offen sc1")
        A(f"s_sub_u32 s{S_SPIN}, s{S_SPIN}, 1")
        A(f"s_cbranch_scc1 L_pollx{u}")
        A("s_waitcnt vmcnt(0)")
        A(f"v_cmp_ne_u64 vcc, {s(S_TAG,2)}, v[254:255]")
        A(f"s_cbranch_vccz L_pollx{u}")
        A(f"s_sleep {O.sleep}")
        A(f"s_branch L_poll{u}")
        A(f"L_pollx{u}:")
        A("s_waitcnt vmcnt(0)")
        A(f"s_cmp_eq_u32 s{S_WG}, 0")
        A(f"s_cbranch_scc0 L_noep{u}")
        A("s_mov_b64 exec, 1")
        A(f"buffer_store_dwordx2 v[254:255], v252, {s(SRD_WS,4)}, s{S_TMP} offen offset:{128*(EPOCH-FLG_A)} sc1")
        A(f"L_noep{u}:")
        A("s_mov_b64 exec, -1")
    def w3A():
        pollA()
        stamp(A, "A released")
        A(f"s_mov_b32 m0, {LDS_REC+2048}")
        for i in range(16):
            if i: A(f"s_add_u32 m0, m0, 1024")
            A(f"s_xor_b32 s{T}, s{T+8}, {1024*i}")
            A(f"s_add_u32 s{T}, s{T}, s{T+6}")
            A(f"buffer_load_dwordx4 v{7 if i&1 else 3}, {s(SRD_WS,4)}, s{T} offen sc1 lds")
        if O.bsplit: lf_poll(A, LF_B, 24)
        A(f"s_cmp_eq_u32 s{S_WG}, 0")
        A(f"s_cbranch_scc0 L_noep")
        lf_signal(A, EPOCH)
        A(f"L_noep:")
        for i in range(16):
            if i % 4 == 0 or i == 14:
                A(f"s_mov_b32 m0, {LDS_STA + 4096*(i>>2) if i < 14 else LDS_STB - 2048}")
                A(f"s_mov_b32 s{T}, {WS_STAT + 4096*(i>>2)}")
            A(f"buffer_load_dwordx4 v{226+(i&1)}, {s(SRD_WS,4)}, s{T} offen offset:{1024*(i&3)} sc1 lds")
        A(f"s_mul_i32 s{T+18}, s{S_WG}, 7168")
        A(f"v_lshlrev_b32 v254, 7, v{L}")
        A(f"s_mov_b32 exec_hi, 0xffffff")
        if O.w2te: A(f"s_mov_b64 exec, 1")
        A(f"buffer_load_dword v255, v254, {s(SRD_W2,4)}, s{T+18} offen ; nowait")
        A(f"s_mov_b64 exec, -1")
        A("s_waitcnt vmcnt(17)")
    def oA():
        for gi in range(O.n_w1):
            A(f"s_waitcnt vmcnt({8 * (O.n_w1 - 1 - gi) + 1 + O.w2te})")
            for x in w1_read(gi): A(x)
        if O.w2w1:
            A("s_waitcnt lgkmcnt(0)")
            for gi in range(O.w2w1):
                for x in w2_group(gi, f"s{S_PM}", 8192 * gi):
                    A(x)
                    if x.startswith("buffer"): A(f"s_waitcnt vmcnt({O.w1_depth-1})")
        stamp(A, "A released")
        del _stamps[-1:]
    split_wave3(A, oA, w3A)
    A(f"v_cmp_eq_u32 vcc, s{T+11}, v{L}")
    A(f"v_cndmask_b32 v63, 0, v63, vcc")
    A("s_mov_b64 exec, 0xff")
    A(f"ds_write_b32 v62, v63")
    A("s_mov_b64 exec, -1")
    A("s_waitcnt lgkmcnt(0)")
    A("s_barrier")
    stamp(A, "rec landed")
    A(f"s_bitcmp1_b32 s{S_WAVE}, 0")
    A(f"s_cbranch_scc1 L_conv1")
    for var in range(3):
        par = min(var, 1)
        TS = TSETS[par]
        if var == 1:
            A(f"L_conv1:")
            A(f"s_cmp_eq_u32 s{S_WAVE}, 3")
            A(f"s_cbranch_scc1 L_conv3")
        if var == 2: A("L_conv3:")
        def afrag(buf, a_): return 136 + 32 * buf + 4 * a_
        def bfrag(buf, p, d): return 128 + 64 * buf + 32 * p + 4 * d
        def order(b):
            pairs = [(a_, J) for a_ in range(8) for J in TS if J >= a_]
            if b == 3: return [(a_, J, p) for p in (1, 0) for a_, J in pairs]
            return [(a_, J, p) for a_, J in pairs for p in range(2)]
        def reads(b):
            buf = b & 1
            seq = []; seen = set()
            for a_, J, p in order(b):
                if a_ not in seen:
                    seen.add(a_)
                    for h in range(2):
                        seq.append(f"ds_read_b64_tr_b16 {v(afrag(buf,a_)+2*h,2)}, v{VAA} offset:{512*a_+128*b+16*h}")
                if (J - a_, p) not in seen:
                    seen.add((J - a_, p))
                    seq.append(f"ds_read_b128 {a(bfrag(buf,p,J-a_),4)}, v{VAB+2*b+p} offset:{2048*(J-a_)}")
            return seq
        mark = len(A.items)
        A(f"buffer_load_dword v21, v21, {s(SRD_WS,4)}, s{T+9} offen sc1")
        for x in reads(0): A(x)
        if O.mvearly:
            for x in modv_loads(24): A(x)
        scal = [f"v_add_f32_dpp v21, v21, v21 quad_perm:[1,0,3,2] row_mask:0xf bank_mask:0xf",
                  f"v_lshlrev_b32 v1, 16, v22",
                  f"v_add_f32_dpp v21, v21, v21 quad_perm:[2,3,0,1] row_mask:0xf bank_mask:0xf",
                  f"v_cvt_pk_bf16_f32 v21, v21, v21",
                  f"v_lshlrev_b32 v21, 16, v21",
                  f"v_add_f32 v5, 1.0, v21",
                  f"v_cvt_pk_bf16_f32 v5, v5, v5",
                  f"v_lshlrev_b32 v5, 16, v5",
                  f"v_readlane_b32 s{T+16}, v21, 0",
                  f"v_readlane_b32 s{T+18}, v21, 8",
                  f"v_readlane_b32 s{T+17}, v5, 4",
                  f"v_readlane_b32 s{T+19}, v5, 12",
                  f"v_mov_b32 v5, s{T+18}",
                  f"v_mul_f32 v7, s{T+17}, v5",
                  f"v_mul_f32 v21, s{T+16}, v5",
                  f"v_mov_b32 v217, s{T+19}"]
        kx = []
        for ti, J in enumerate(TS):
            so = 2048 * J if J < 7 else LDS_STB - LDS_STA
            kx += [f"ds_read_b32 v{VKX+4*ti+k}, v{VAE+k} offset:{2048*J}" for k in range(4)]
            kx += [f"ds_read_b128 {v(VST+4*ti,4)}, v23 offset:{so}", f"ds_read_b128 {v(VST+16+4*ti,4)}, v216 offset:{so}"]
        side = []; side2 = []; side3 = []; ntouch = 0; postg = []
        if var < 2:
            allg = [w1_group(gi, f"s{S_WAVE}", f"s{S_PM}", 224) for gi in range(O.n_w1, 4)] + [w2_group(gi, f"s{S_PM}", 8192 * gi) for gi in range(O.w2w1, min(O.w2e, O.w2side))]
            for x in allg[:len(allg) - O.post]: side.extend(x)
            postg = sum(allg[len(allg) - O.post:], [])
            if O.n_w1 < 4 and O.w2side == 4:
                postg = sum([w1_read(gi) for gi in range(O.n_w1, 4)], []) + ["s_waitcnt lgkmcnt(0)"] + postg
        pre = []
        for ti in range(4):
            d = VKX + 4 * ti + 2
            x = VX0 + 4 * ti
            pre += [f"v_and_b32 v{x}, 0xffff0000, v{d}", f"v_and_b32 v{x+1}, 0xffff0000, v{d+1}",
                    f"v_lshlrev_b32 v{x+2}, 16, v{d}", f"v_lshlrev_b32 v{x+3}, 16, v{d+1}"]
            for r in range(4): pre.append(f"v_fma_f32 v{VGH+4*ti+r}, v{x+r}, v{VST+4*ti+r}, v{VST+16+4*ti+r}")
            for r in range(4): pre.append(f"v_fma_f32 v{VGH+4*ti+r}, v{VGH+4*ti+r}, v7, v21")
        pre.insert(0, "s_waitcnt lgkmcnt(15)")
        started = set()
        nside = len(side)
        tailg = w1_group(f"s{S_WAVE}", 3, 3 * 32768, 60)
        mv = modv_ops(24) if O.mvearly else []
        pre = kx + pre
        for b in range(4):
            nxt = reads(b + 1) if b < 3 else []
            if b == 2:
                if var == 2: A(f"s_waitcnt vmcnt({2 + 8 * O.mvearly})")
                A("s_barrier")
            for n, (a_, J, p) in enumerate(order(b)):
                acc = ACC + 8 * TS.index(J) + 4 * p
                c = v(acc, 4) if (J, p) in started else "0"
                started.add((J, p))
                A(f"v_mfma_f32_16x16x32_bf16 {v(acc,4)}, {v(afrag(b&1,a_),4)}, {a(bfrag(b&1,p,J-a_),4)}, {c}")
                if nxt: A(nxt.pop(0))
                slot = 36 * b + n
                if side and slot * nside >= (nside - len(side)) * 124: A(side.pop(0))
                elif b == 1 and (scal or mv): A((scal or mv).pop(0))
                elif b >= 2 and pre: A(pre.pop(0))
                if b == 3:
                    if n == 21:
                        for ti, JJ in enumerate(TS):
                            A(f"ds_write_b32 v218, v{ACC+8*ti+7} offset:{256*JJ+4}")
                    elif n == 24:
                        assert not side and not any(x.startswith("ds_read") for x in pre)
                        A("s_waitcnt lgkmcnt(0)")
                        A("s_barrier")
                        for tj, JJ in enumerate(TS):
                            A(f"ds_read_b32 v{U+tj}, v218 offset:{256*JJ}")
                    elif n > 24:
                        for _ in range(2):
                            if tailg: A(tailg.pop(0))
                    elif pre: A(pre.pop(0))
            for x in nxt: A(x)
            if b == 1:
                for x in scal + mv: A(x)
        if var: del _stamps[-(5 if O.fine else 1):]
        stamp(A, "conv mfma")
        for x in side: A(x)
        for x in pre + tailg: A(x)
        for ti in range(4):
            z1, g_, x0 = ACC + 8 * ti + 4, VGH + 4 * ti, VX0 + 4 * ti
            A(f"v_fmac_f32 v{x0}, v{g_}, v{U+ti}")
            for r in range(1, 4):
                A(f"v_fmac_f32 v{x0+r}, v{g_+r}, v{z1+r-1}")
        for ti in range(4):
            for r in range(4):
                A(f"v_dot2_f32_bf16 v{ACC+8*ti+r}, v{VKX+4*ti+(r&1)}, v{1 if r < 2 else 22}, v{ACC+8*ti+r}")
        if O.fine:
            stamp(A, "e:prebar"); stamp(A, "e:bar")
        A(f"s_add_u32 s{T+15}, s{S_CARRY}, {WS_X1C}")
        A(f"s_add_u32 s{T+14}, s{S_CARRY}, {WS_X1}")
        O1, O2 = 136, 144
        for ti in range(4):
            z0, g_, x0 = ACC + 8 * ti, VGH + 4 * ti, VX0 + 4 * ti
            for h in range(2):
                A(f"v_pk_fma_f32 {v(x0+2*h,2)}, {v(g_+2*h,2)}, {v(z0+2*h,2)}, {v(x0+2*h,2)}")
            for h in range(2):
                A(f"v_pk_mul_f32 {v(VST+4*ti+2*h,2)}, {v(x0+2*h,2)}, v[216:217] op_sel:[0,1] op_sel_hi:[1,1]")
            for h in range(2):
                A(f"v_cvt_pk_bf16_f32 v{O2+2*ti+h}, v{VST+4*ti+2*h}, v{VST+4*ti+2*h+1}")
            A(f"ds_write_b64 v219, {v(O2+2*ti,2)} offset:{512*ti}")
        for ti in range(4):
            x0 = VX0 + 4 * ti
            for h in range(2):
                A(f"v_cvt_pk_bf16_f32 v{O1+2*ti+h}, v{x0+2*h}, v{x0+2*h+1}")
            A(f"ds_write_b64 v219, {v(O1+2*ti,2)} offset:{2048+512*ti}")
        A("s_waitcnt lgkmcnt(4)")
        for k in range(2): A(f"ds_read_b128 {v(152+4*k,4)}, v220 offset:{1024*k}")
        A("s_waitcnt lgkmcnt(2)")
        for k in range(2, 4): A(f"ds_read_b128 {v(152+4*k,4)}, v220 offset:{1024*k}")
        for k in range(4):
            A(f"buffer_store_dwordx4 {v(152+4*k,4)}, v{221+(k&1)}, {s(SRD_WS,4)}, s{T+15-(k>>1)} offen sc1")
        if O.fine: stamp(A, "e:stored")
        if postg and O.n_w1 < 4: A(f"s_waitcnt vmcnt({12 + 8 * (4 - O.post)})")
        for x in postg: A(x)
        if O.fine: stamp(A, "e:post")
        if var == 2 and O.post: A("s_waitcnt vmcnt(0)")
        if var < 2: A(f"s_branch L_convdone")
    A(f"L_convdone:")
    stamp(A, "x1 stored")
    stamp_flush(A, 0)

VCS, VSBW = 64, 80
ACC1 = 128
VXR = 236

def w2frag(u, e):
    return (128 + 8 * e if e < 16 else 8 * (e - 16)) + 4 * u

def w2_setup(A):
    dma_voff(A, VW2S, VW2S + 1, 1024, 64)
    A(f"v_add_u32 v{VW2S+1}, {8*1024-1024}, v{VW2S+1}")
    A(f"v_add_u32 v{VW2S+2}, {2*(8*1024-1024)}, v{VW2S}")
    A(f"v_add_u32 v{VW2S+3}, {2*(8*1024-1024)}, v{VW2S+1}")
    tr_addr32(A, VW2 + 2, 64, 4)
    A(f"s_lshl_b32 s{S_TMP}, s{S_WAVE}, 5")
    A(f"v_xor_b32 v{VW2+2}, s{S_TMP}, v{VW2+2}")
    A(f"v_xor_b32 v{VW2+3}, 32, v{VW2+2}")
    A(f"v_xor_b32 v{VW2+4}, 64, v{VW2+2}")
    A(f"v_xor_b32 v{VW2+5}, 96, v{VW2+2}")
    A(f"s_mul_i32 s{S_PS}, s{S_WAVE}, {448*1024}")
    A(f"s_lshl_b32 s{S_TMP}, s{S_J}, 7")
    A(f"s_add_u32 s{S_PS}, s{S_PS}, s{S_TMP}")

def w2_group(gi, ldsreg, ldsoff, src=None):
    src = src or f"s{S_PS}"
    return [f"s_add_u32 s{S_TMP}, s{S_PE}, {gi}",
            f"s_add_u32 m0, {ldsreg}, {ldsoff}",
            f"s_cmp_ge_u32 s{S_TMP}, 7",
            f"s_cselect_b32 s{S_PO}, 7, 0",
            f"s_sub_u32 s{S_TMP}, s{S_TMP}, s{S_PO}",
            f"s_lshl_b32 s{S_PO}, s{S_TMP}, 16",
            f"s_add_u32 s{S_PO}, s{S_PO}, {src}"] + pieces8(VW2S, SRD_W2, 32768)

def w2_addr(A, base):
    for k in range(4): A(f"v_add_u32 v{VW2H+k}, {base}, v{VW2+2+k}")

def w2_read(gi, off):
    return [f"ds_read_b64_tr_b16 {a(w2frag(u, 4*gi+e)+2*h,2)}, v{VW2H+2*u+h} offset:{off+2048*e+1024*h}" for e in range(4) for u in range(2) for h in range(2)]

def gemm1_setup(A):
    L = V_LANE
    dma_voff(A, 56, 57, 4096, 5)
    A(f"v_bfe_u32 v5, v56, 6, 1")
    A(f"v_lshl_add_u32 v58, v5, 6, v56")
    A(f"v_lshl_add_u32 v59, v5, 6, v57")
    A(f"v_add_u32 v57, {8*4096-1024}, v57")
    A(f"v_add_u32 v59, {8*4096-1024}, v59")
    A(f"s_lshl_b32 s{T}, s{S_WAVE}, 16")
    A(f"s_lshl_b32 s{T+1}, s{S_RB}, 8")
    A(f"s_add_u32 s{T}, s{T}, s{T+1}")
    A(f"s_lshl_b32 s{T+2}, s{S_WAVE}, 11")
    A(f"s_lshl_b32 s{T+5}, s{S_ROT}, 18")
    tr_addr32(A, 8, 5, 8)
    A(f"v_xor_b32 v9, 64, v8")
    A(f"v_add_u32 v10, 0x10000, v8")
    A(f"v_add_u32 v11, 0x10000, v9")
    A(f"v_lshlrev_b32 v18, 4, v{L}")
    A(f"s_mul_i32 s{T+3}, s{S_RB}, {4*112*1024}")
    A(f"s_lshl_b32 s{T+4}, s{S_C}, 13")
    A(f"s_add_u32 s{T+3}, s{T+3}, s{T+4}")
    A(f"s_add_u32 s{T+3}, s{T+3}, s{T+2}")
    A(f"s_add_u32 s{T+3}, s{T+3}, {WS_H}")
    tr_addr32(A, 44, 5, 4)
    A(f"s_add_u32 s{T+6}, s{T+2}, {LDS_XR}")
    A(f"v_add_u32 v44, s{T+6}, v44")
    A(f"v_xor_b32 v45, 32, v44")
    A(f"v_xor_b32 v42, 64, v44")
    A(f"v_xor_b32 v43, 96, v44")
    A(f"s_lshl_b32 s{T+7}, s{S_RB}, 11")
    A(f"s_add_u32 s{T+7}, s{T+7}, {WS_ST2}")
    A(f"s_lshr_b32 s{T+8}, s{S_RT}, 4")
    A(f"s_lshl_b32 s{T+8}, s{T+8}, 1")
    A(f"s_bfe_u32 s{T+9}, s{S_RT}, 0x20002")
    A(f"s_lshl_b32 s{T+9}, s{T+9}, 6")
    A(f"s_add_u32 s{T+8}, s{T+8}, s{T+9}")
    A(f"s_lshl_b32 s{T+8}, s{T+8}, 7")
    A(f"s_add_u32 s{T+9}, s{T+8}, {WS_SYNC + 128*FLG_3}")
    if O.seq:
        A(f"s_bitcmp1_b32 s{S_RT}, 0")
        A(f"s_cselect_b32 s{T+10}, 0, {128*(FLG_5-FLG_3)}")
        A(f"s_add_u32 s{T+9}, s{T+9}, s{T+10}")
    A(f"s_add_u32 s{T+8}, s{T+8}, {WS_SYNC + 128*FLG_4}")
    A(f"v_min_u32 v14, 13, v{L}")
    A(f"v_and_b32 v5, 1, v14")
    A(f"v_lshrrev_b32 v14, 1, v14")
    A(f"v_lshlrev_b32 v14, 10, v14")
    A(f"v_lshl_add_u32 v14, v5, 7, v14")

def modv_loads(M):
    L = [f"v_lshlrev_b32 v{M+20}, 4, v0"]
    L += [f"s_mov_b32 s{T+p}, {WS_MODP + 12288*p + 1536*4}" for p in range(4)]
    L += [f"buffer_load_dwordx4 {v(M+4*p,4)}, v{M+20}, {s(SRD_WS,4)}, s{T+p} offen sc1" for p in range(4)]
    L += [f"v_lshlrev_b32 v{M+21}, 2, v{V_LANE}", f"s_lshl_b32 s{T+4}, s{S_J}, 8"]
    L += [f"s_add_u32 s{T+p}, s{T+4}, {WS_MODP + 12288*p + 2560*4}" for p in range(4)]
    L += [f"buffer_load_dword v{M+16+p}, v{M+21}, {s(SRD_WS,4)}, s{T+p} offen sc1" for p in range(4)]
    return L

def modv_ops(M):
    L = [f"s_lshr_b32 s{T+5}, s{S_WAVE}, 1",
         f"v_cvt_f32_u32 v{M+22}, s{T+5}",
         f"s_xor_b32 s{T+5}, s{T+5}, 1",
         f"s_lshl_b32 s{T+5}, s{T+5}, 10",
         f"s_add_u32 s{T+5}, s{T+5}, {LDS_MODV}",
         f"s_lshl_b32 s{T+4}, s{S_ROT}, 7",
         f"v_lshrrev_b32 v{M+20}, 1, v{M+20}",
         f"v_subrev_u32 v{M+20}, s{T+4}, v{M+20}",
         f"v_and_b32 v{M+20}, 0x3ff, v{M+20}",
         f"v_add_u32 v{M+20}, s{T+5}, v{M+20}"]
    for k in range(4): L += [f"v_add_f32 v{M+k}, v{M+k}, v{M+4+k}", f"v_add_f32 v{M+8+k}, v{M+8+k}, v{M+12+k}"]
    for k in range(4): L += [f"v_add_f32 v{M+k}, v{M+k}, v{M+8+k}"]
    L += [f"v_add_f32 v{M+16}, v{M+16}, v{M+17}", f"v_add_f32 v{M+18}, v{M+18}, v{M+19}"]
    for k in range(2): L += [f"v_cvt_pk_bf16_f32 v{M+4+k}, v{M+2*k}, v{M+2*k+1}"]
    L += [f"v_add_f32 v{M+16}, v{M+16}, v{M+18}"]
    for k in range(2): L += [f"v_lshlrev_b32 v{M+2*k}, 16, v{M+4+k}", f"v_and_b32 v{M+2*k+1}, 0xffff0000, v{M+4+k}"]
    L += [f"v_cvt_pk_bf16_f32 v{M+16}, v{M+16}, v{M+16}"]
    for k in range(4): L += [f"v_add_f32 v{M+k}, v{M+22}, v{M+k}"]
    L += [f"v_lshlrev_b32 v{M+16}, 16, v{M+16}"]
    for k in range(2): L += [f"v_cvt_pk_bf16_f32 v{M+4+k}, v{M+2*k}, v{M+2*k+1}"]
    L += [f"v_mul_f32 v{M+16}, 0xbf317218, v{M+16}",
          f"ds_write_b64 v{M+20}, {v(M+4,2)}",
          f"v_add_u32 v{M+21}, {LDS_GB}, v{M+21}",
          f"ds_write_b32 v{M+21}, v{M+16}",
          f"v_mov_b32 v{M+17}, 0",
          f"v_and_b32 v{M+18}, 60, v{M+21}",
          f"v_add_u32 v{M+18}, {LDS_MODV+2048}, v{M+18}",
          f"ds_write_b32 v{M+18}, v{M+17}"]
    return L

def window3(A):
    L = V_LANE
    M = 168
    A(f"v_xor_b32 v7, v6, v4")
    A(f"v_and_b32 v7, 1, v7")
    A(f"v_lshrrev_b32 v45, 2, v6")
    A(f"v_or_b32 v7, v7, v45")
    A(f"v_lshrrev_b32 v45, 1, v6")
    A(f"v_lshlrev_b32 v45, 10, v45")
    A(f"v_lshrrev_b32 v46, 1, v4")
    A(f"v_lshl_add_u32 v45, v46, 4, v45")
    A(f"v_add_u32 v45, {LDS_MODV}, v45")
    A(f"v_cmp_eq_u32 vcc, 0, v7")
    A(f"v_mov_b32 v47, {LDS_MODV+2048}")
    A(f"v_cndmask_b32 v47, v47, v45, vcc")
    A(f"v_mov_b32 v46, 32")
    A(f"v_cndmask_b32 v46, 0, v46, vcc")
    w2_addr(A, f"s{S_PM}")
    gemm1_setup(A)
    A(f"s_waitcnt vmcnt({8 * O.post})")
    A("s_barrier")
    stamp(A, "x1 acked")
    def rd():
        for gi in range(4):
            if gi == 4 - O.post: A("s_waitcnt vmcnt(0)")
            for x in w2_read(gi, 8192 * gi): A(x)
        A(f"s_cmp_eq_u32 s{S_WAVE}, 2")
        A(f"s_cbranch_scc0 L_now3w2")
        A(f"s_lshl_b32 s{T+11}, s{S_J}, 7")
        A(f"s_add_u32 s{T+11}, s{T+11}, {3*448*1024}")
        A("s_waitcnt lgkmcnt(0)")
        for gi in range(4):
            for x in w2_group(gi, f"s{S_PM}", 8192 * gi, f"s{T+11}"): A(x)
        A("L_now3w2:")
    def fin():
        if O.lf2: lf_signal(A, LF_2)
        else:
            signal_issue(A, CNT_2)
        for gi in range(4):
            for x in w1_read(gi): A(x)
        w2_addr(A, 65536)
        if not O.lf2: signal_finish(A, FLG_2)
    split_wave3(A, rd, fin)
    stamp(A, "modv")
    NB = 8
    def rdv(e):
        A(f"ds_read_b128 {v(192+4*(e%NB),4)}, v47")
        A(f"v_add_u32 v47, v47, v46")
    for e in range(NB): rdv(e)
    for e in range(32):
        A(f"v_mfma_f32_16x16x32_bf16 v[48:51], {a(4*e,4)}, {v(192+4*(e%NB),4)}, {'0' if e == 0 else 'v[48:51]'}")
        if e + NB < 32: rdv(e + NB)
    A(f"v_lshrrev_b32 v4, 4, v{L}")
    A(f"v_and_b32 v6, 15, v{L}")
    A(f"s_lshl_b32 s{T+13}, s{S_WAVE}, 9")
    A(f"s_add_u32 s{T+13}, s{T+13}, {LDS_CS}")
    A(f"v_and_b32 v5, 1, v6")
    A(f"v_lshlrev_b32 v5, 6, v5")
    A(f"v_lshl_add_u32 v5, v4, 4, v5")
    A(f"v_lshrrev_b32 v7, 1, v6")
    A(f"v_lshl_add_u32 v5, v7, 8, v5")
    A(f"v_add_u32 v5, s{T+13}, v5")
    A(f"s_mov_b32 exec_lo, 0x000f000f")
    A(f"s_mov_b32 exec_hi, 0x000f000f")
    A(f"ds_write_b128 v5, v[48:51]")
    A("s_mov_b64 exec, -1")
    A(f"v_lshrrev_b32 v5, 5, v{L}")
    A(f"v_lshlrev_b32 v5, 4, v5")
    A(f"v_add_u32 v5, s{T+13}, v5")
    A("s_waitcnt lgkmcnt(0)")
    for k in range(4):
        A(f"ds_read_b128 {v(VCS+4*k,4)}, v5 offset:{32*k}")
        A(f"ds_read_b128 {v(VSBW+4*k,4)}, v5 offset:{256+32*k}")
    A(f"v_mov_b32 v6, {hex(NLOG2E)}")
    for r in range(0, 16, 2):
        A(f"v_pk_mul_f32 {v(VSBW+r,2)}, {v(VSBW+r,2)}, v[6:7] op_sel_hi:[1,0]")
    stamp(A, "colsums")
    A(f"s_cmp_eq_u32 s{S_WAVE}, {O.poll2}")
    A(f"s_cbranch_scc0 L_np2")
    if O.lf2: lf_poll(A, LF_2, 100)
    else: poll(A, 16, 128, WS_SYNC + 128 * FLG_2)
    A("L_np2:")
    A("s_waitcnt vmcnt(0)")
    A("s_barrier")
    stamp(A, "2 released")

def silu_ops(acc, rin, mr, tmp, out, packed):
    L = []
    for g0 in range(0, 16, 4):
        if packed:
            for h in range(2):
                r = g0 + 2 * h
                L.append(f"v_pk_fma_f32 {v(tmp+2*h,2)}, {v(VCS+r,2)}, {v(rin,2)}, {v(VSBW+r,2)} op_sel:[0,1,0] op_sel_hi:[1,1,1]")
            for h in range(2):
                r = g0 + 2 * h
                L.append(f"v_pk_fma_f32 {v(acc+r,2)}, {v(acc+r,2)}, {v(rin,2)}, {v(tmp+2*h,2)} op_sel:[0,0,0] op_sel_hi:[1,0,1]")
        else:
            for i in range(4): L.append(f"v_fma_f32 v{tmp+i}, v{mr}, v{VCS+g0+i}, v{VSBW+g0+i}")
            for i in range(4): L.append(f"v_fma_f32 v{acc+g0+i}, v{acc+g0+i}, v{rin}, v{tmp+i}")
        for i in range(4): L.append(f"v_exp_f32 v{tmp+i}, v{acc+g0+i}")
        if packed:
            for h in range(2): L.append(f"v_pk_add_f32 {v(tmp+2*h,2)}, {v(tmp+2*h,2)}, 1.0 op_sel_hi:[1,0]")
        else:
            for i in range(4): L.append(f"v_add_f32 v{tmp+i}, 1.0, v{tmp+i}")
        for i in range(4): L.append(f"v_rcp_f32 v{tmp+i}, v{tmp+i}")
        if packed:
            for h in range(2): L.append(f"v_pk_mul_f32 {v(tmp+2*h,2)}, {v(tmp+2*h,2)}, {v(acc+g0+2*h,2)}")
        else:
            for i in range(4): L.append(f"v_mul_f32 v{tmp+i}, v{tmp+i}, v{acc+g0+i}")
        for h in range(2): L.append(f"v_cvt_pk_bf16_f32 v{out+g0//2+h}, v{tmp+2*h}, v{tmp+2*h+1}")
    return L

def mix(x, y):
    out = []; k = 0
    for i, a_ in enumerate(x):
        out.append(a_)
        while k < len(y) and k * len(x) < (i + 1) * len(y):
            out.append(y[k]); k += 1
    return out + y[k:]

def cost(ins):
    return 8 if ins.startswith(("v_exp", "v_rcp")) else 4

def own_flag(A, base):
    A(f"s_lshl_b32 s{S_TMP}, s{S_WG}, 7")
    A(f"s_add_u32 s{S_TMP}, s{S_TMP}, {WS_SYNC + 128*base}")
    A("s_mov_b64 exec, 1")
    A(f"v_mov_b32 v252, 0")
    A(f"v_mov_b32 v253, 1")
    A(f"buffer_store_dword v253, v252, {s(SRD_WS,4)}, s{S_TMP} offen sc1")
    A("s_mov_b64 exec, -1")

def recheck(A, cmp, reload_):
    u = uid()
    A(f"s_mov_b32 s{S_SPIN}, 0x80000")
    A(f"L_rc{u}:")
    for x in cmp: A(x)
    A(f"s_cbranch_vccz L_rcx{u}")
    A(f"s_sleep 1")
    for x in reload_: A(x)
    A(f"s_sub_u32 s{S_SPIN}, s{S_SPIN}, 1")
    A("s_waitcnt vmcnt(0)")
    A(f"s_cbranch_scc0 L_rc{u}")
    A(f"L_rcx{u}:")

def gemm1(A):
    L = V_LANE
    XF = 192; VRS = 96; SG = 104; TMP, OUT = 20, 24
    A("; ---- GEMM 1 ----")
    def chunk(n, src):
        Ls = [f"s_add_u32 m0, s{T+2}, {8192*n}",
              f"s_add_u32 s{T+12}, s{T}, s{T+5}",
              f"s_add_u32 s{T+12}, s{T+12}, {src}",
              f"buffer_load_dwordx4 v56, {s(SRD_WS,4)}, s{T+12} offen sc1 lds",
              f"buffer_load_dwordx4 v57, {s(SRD_WS,4)}, s{T+12} offen offset:1024 sc1 lds",
              f"s_add_u32 s{T+5}, s{T+5}, 262144", f"s_and_b32 s{T+5}, s{T+5}, 0x1fffff"]
        return Ls
    xres = [f"s_lshl_b32 s{T+12}, s{S_J}, 18",
            f"s_lshl_b32 s{T+13}, s{S_WAVE}, 16",
            f"s_add_u32 s{T+12}, s{T+12}, s{T+13}",
            f"s_lshl_b32 s{T+13}, s{S_RT}, 6",
            f"s_add_u32 s{T+12}, s{T+12}, s{T+13}",
            f"s_add_u32 m0, s{T+2}, {LDS_XR}",
            f"s_add_u32 s{T+12}, s{T+12}, {WS_X1}",
            f"buffer_load_dwordx4 v58, {s(SRD_WS,4)}, s{T+12} offen sc1 lds",
            f"buffer_load_dwordx4 v59, {s(SRD_WS,4)}, s{T+12} offen offset:1024 sc1 lds"]
    def w3w2():
        for gi in range(O.w2e):
            for x in w2_read(gi, 8192 * gi): A(x)
        A("s_waitcnt lgkmcnt(0)")
    w2b = lambda gi: w2_group(4 + gi, f"s{S_PM}", 8192 * gi if gi < 2 else 65536)
    A(f"s_lshl_b32 s{S_PM}, s{S_WAVE}, 14")
    A(f"s_cmp_ge_u32 s{S_C}, 14")
    A(f"s_cbranch_scc1 L_stat")
    for n in range(4):
        for x in chunk(n, WS_X1C): A(x)
    only_wave3(A, w3w2)
    def hstore(st, out):
        return [f"s_add_u32 s{T+4}, s{T+3}, {112*1024*st}"] + [f"buffer_store_dwordx4 {v(out+4*k,4)}, v18, {s(SRD_WS,4)}, s{T+4} offen offset:{1024*k} sc1" for k in range(2)]
    sld = [f"buffer_load_dwordx4 {v(SG+4*h,4)}, v18, {s(SRD_WS,4)}, s{T+7} offen offset:{1024*h} sc1" for h in range(2)]
    side = sum([chunk(n, WS_X1C + 128 * (n >> 3)) for n in range(4, 16)], []) + xres
    ops = [1] * 8
    def emit(x, tile=0):
        A(x)
        if x.startswith("buffer"): ops.append(tile)
    def put(k):
        for _ in range(k):
            if side: emit(side.pop(0), 1)
    def ckpt(need, name=None):
        while sum(ops) < need: put(1)
        pos = [k for k, t in enumerate(ops) if t][need - 1]
        A(f"s_waitcnt vmcnt({len(ops) - 1 - pos})")
        A("s_barrier")
        if name: stamp(A, name)
    LOOK = O.look
    stream = [(st, e) for e in range(32) for st in range(2)] + [(st, e) for st in (2, 3) for e in range(32)]
    slot = {x: k % 8 for k, x in enumerate(stream)}
    def xread(st, e):
        return [f"ds_read_b64_tr_b16 {v(XF+4*slot[(st,e)]+2*h,2)}, v{8+st} offset:{2048*e+512*h}" for h in range(2)]
    def mf(st, e):
        acc = ACC1 + 16 * st
        return f"v_mfma_f32_32x32x16_bf16 {v(acc,16)}, {a(4*e,4)}, {v(XF+4*slot[(st,e)],4)}, {'0' if e == 0 else v(acc,16)}"
    gates = {(0, 8): 8, (0, 16): 16, (2, 0): 20, (2, 8): 24, (2, 16): 34}
    AH = 2 * LOOK
    def step(k):
        if k + AH < len(stream) and stream[k + AH] in gates:
            ckpt(gates[stream[k + AH]], "half1" if stream[k + AH] == (2, 0) else None)
            if stream[k + AH] == (2, 0):
                for x in sld: emit(x)
        if k % 2 == 0: A(f"s_waitcnt lgkmcnt({2 * min(AH - 2, len(stream) - 2 - k)})")
        A(mf(*stream[k]))
        if k + AH < len(stream):
            for x in xread(*stream[k + AH]): A(x)
    ckpt(4, "ckpt0")
    for k in range(AH):
        for x in xread(*stream[k]): A(x)
    for k in range(64):
        step(k)
        put(3 if k < 16 else 1)
    def spread(h):
        Ls = []
        for k in range(2):
            Ls += [f"v_mov_b32 v{VRS+4*h+k}, v{SG+4*h+2*k}", f"v_mov_b32 v{VRS+4*h+2+k}, v{SG+4*h+2*k}"]
        for k in range(2):
            Ls += [f"v_permlane32_swap_b32 v{VRS+4*h+k}, v{VRS+4*h+2+k}"]
        return Ls
    def scheck(h):
        recheck(A, [f"v_and_b32 v{TMP}, v{SG+4*h+1}, v{SG+4*h+3}", f"v_cmp_ne_u32 vcc, 1, v{TMP}"], [sld[h]])
    xr = [f"ds_read_b64_tr_b16 {v(VXR+2*k,2)}, v{44-(k&2)+(k&1)} offset:{1024*(k&1)}" for k in range(4)]
    grp = lambda gi: w2_group(gi, f"s{S_PM}", 8192 * (gi & 1))
    E = O.w2e
    late = grp(E) + grp(E + 1) + g2setup() + xr
    rds = []
    w2_addr(A, f"s{S_PM}")
    def burst(st):
        for x in silu_ops(ACC1 + 16 * st, VRS + 2 * st, VRS + 2 * st + 1, TMP, OUT + 8 * (st & 1), True) + hstore(st, OUT + 8 * (st & 1)): emit(x, 0)
        return len(ops)
    def raise_flag(mark, flag):
        A(f"s_waitcnt vmcnt({len(ops) - mark})")
        A("s_barrier")
        only_wave3(A, lambda: own_flag(A, flag))
    f0ld = f"buffer_load_dword v12, v14, {s(SRD_WS,4)}, s{T+8} offen sc1"
    for k in range(64, 128):
        step(k)
        if side: put(2)
        elif k > 64 + 16 and late and k < 120:
            if not late[0].startswith("ds_read"): emit(late.pop(0))
            if k >= 96 and late and not late[0].startswith("ds_read"): emit(late.pop(0))
        if k == 64 + O.sq_b0:
            scheck(0)
            stamp(A, "stats0")
            for x in spread(0): A(x)
            burst(0); m0 = burst(1)
            stamp(A, "burst0")
        if k == 64 + O.sq_f0: raise_flag(m0, FLG_4)
        if k == 99:
            stamp(A, "B16")
            scheck(1)
            for x in spread(1): A(x)
            m2 = burst(2)
        if k == 99 + O.sq_fa: raise_flag(m2, FLG_5)
    for x in late: emit(x)
    stamp(A, "g1 mfma")
    for x in silu_ops(ACC1 + 48, VRS + 6, VRS + 7, TMP, OUT + 8, True): A(x)
    A(f0ld)
    for x in hstore(3, OUT + 8): A(x)
    stamp(A, "H stored")
    A("s_branch L_g1done")
    A("L_stat:")
    del _stamps[-7:]
    A(f"s_and_b32 s{T+13}, s{S_C}, 1")
    A(f"s_lshl_b32 s{T+14}, s{T+13}, 7")
    A(f"s_add_u32 s{T}, s{T}, s{T+14}")
    for n in range(5):
        for x in chunk(n, WS_X1): A(x)
    tr_addr16(A, 12, 5)
    A(f"s_lshl_b32 s{T+14}, s{S_WAVE}, 5")
    A(f"v_xor_b32 v12, s{T+14}, v12")
    ONES, GR, SM = 36, ACC1, ACC1 + 4
    for i in range(4): A(f"v_mov_b32 v{ONES+i}, s{S_ONES}")
    for c in range(4):
        A(f"s_waitcnt vmcnt({6 if c == 0 else 4 * (3 - c)})")
        A("s_barrier")
        if c == 0:
            stamp(A, "ckpt0")
            for n in range(5, 8):
                for x in chunk(n, WS_X1): A(x)
        for e in range(4 * c, 4 * c + 4):
            for h in range(2):
                A(f"ds_read_b64_tr_b16 {v(XF+4*(e%4)+2*h,2)}, v12 offset:{4096*e+512*h}")
        for e in range(4 * c, 4 * c + 4):
            f = v(XF + 4 * (e % 4), 4)
            A(f"v_mfma_f32_16x16x32_bf16 {v(GR,4)}, {f}, {f}, {'0' if e == 0 else v(GR,4)}")
            A(f"v_mfma_f32_16x16x32_bf16 {v(SM,4)}, {v(ONES,4)}, {f}, {'0' if e == 0 else v(SM,4)}")
    stamp(A, "half1")
    for e in ("stats0", "burst0", "B16"): stamp(A, e)
    for r, m in ((1, "0x22222222"), (2, "0x44444444"), (3, "0x88888888")):
        A(f"s_mov_b32 vcc_lo, {m}")
        A(f"s_mov_b32 vcc_hi, {m}")
        A(f"v_cndmask_b32 v{GR}, v{GR}, v{GR+r}, vcc")
    ln_finish(A, [(SM, GR, GR + 8, GR + 10)], GR + 1, hex(NLOG2E))
    A(f"v_mov_b32 v{GR+9}, 1")
    A(f"v_mov_b32 v{GR+11}, 1")
    A(f"v_and_b32 v5, 15, v{L}")
    A(f"v_lshlrev_b32 v5, 4, v5")
    A(f"s_and_b32 s{T+13}, s{S_C}, 1")
    A(f"s_lshl_b32 s{T+13}, s{T+13}, 10")
    A(f"s_lshl_b32 s{T+14}, s{S_WAVE}, 8")
    A(f"s_add_u32 s{T+13}, s{T+13}, s{T+14}")
    A(f"s_add_u32 s{T+13}, s{T+13}, s{T+7}")
    A(f"s_mov_b32 exec_lo, 0x00f0000f")
    A(f"s_mov_b32 exec_hi, 0xf0000f00")
    A(f"buffer_store_dwordx4 {v(GR+8,4)}, v5, {s(SRD_WS,4)}, s{T+13} offen sc1")
    A("s_mov_b64 exec, -1")
    stamp(A, "g1 mfma")
    for x in xres: A(x)
    only_wave3(A, w3w2)
    A("s_waitcnt vmcnt(0)")
    A("s_barrier")
    w2_addr(A, f"s{S_PM}")
    for x in grp(E) + grp(E + 1) + g2setup() + xr: A(x)
    if E < 4:
        A("s_waitcnt vmcnt(0)")
        for x in w2_read(E, 0) + w2_read(E + 1, 8192): A(x)
        A("s_waitcnt lgkmcnt(0)")
        for x in grp(E + 2) + grp(E + 3): A(x)
    A(f0ld)
    A("s_waitcnt vmcnt(0)")
    stamp(A, "H stored")
    A("L_g1done:")

HF = 96; NB = 32
S_HO, S_HB, S_HE, S_O0, S_O1 = T + 15, T + 16, T + 17, T + 18, T + 19
def g2setup():
    L = V_LANE
    Ls = [f"s_mul_i32 s{S_HO}, s{S_RT}, {112*1024}",
          f"v_add_u32 v3, s{S_HO}, v18",
          f"v_add_u32 v4, {2*112*1024}, v3",
          f"s_mul_i32 s{S_HB}, s{S_WAVE}, {28*1024}",
          f"s_add_u32 s{S_HB}, s{S_HB}, {WS_H}",
          f"s_add_u32 s{S_HE}, s{S_HB}, {28*1024}",
          f"s_lshl_b32 s{S_HO}, s{S_PE}, 12",
          f"s_add_u32 s{S_HO}, s{S_HO}, s{S_HB}",
          f"v_lshrrev_b32 v5, 5, v{L}",
          f"v_and_b32 v6, 31, v{L}",
          f"v_lshlrev_b32 v6, 10, v6",
          f"v_lshl_add_u32 v6, v5, 4, v6",
          f"s_lshl_b32 s{S_O0}, s{S_WAVE}, 6",
          f"s_add_u32 s{S_O0}, s{S_O0}, {LDS_GB}",
          f"v_lshl_add_u32 v5, v5, 4, s{S_O0}",
          f"v_add_u32 v7, s{S_PM}, v18"]
    for k in range(1, 4):
        Ls += [f"s_xor_b32 s{S_O0}, s{S_WAVE}, {k}", f"s_lshl_b32 s{S_O0}, s{S_O0}, 14", f"v_add_u32 v{14+k}, s{S_O0}, v18"]
    Ls += [f"s_lshl_b32 s{S_O0}, s{S_RT}, 15", f"s_lshl_b32 s{S_O1}, s{S_J}, 7", f"s_add_u32 s{S_O0}, s{S_O0}, s{S_O1}",
           f"s_lshl_b32 s{S_O1}, s{S_WAVE}, 5", f"s_add_u32 s{S_O0}, s{S_O0}, s{S_O1}", f"s_add_u32 s{S_O1}, s{S_O0}, {2*32768}"]
    return Ls

HS = list(range(8, 20)) + list(range(24, 32)) + list(range(20, 24)) + list(range(0, 4))
NR = len(HS)
def hreg(n): return HF + 4 * HS[n % NR]
def hload(n):
    st, e = divmod(n, 28)
    Ls = [f"buffer_load_dwordx4 {v(hreg(n),4)}, v{3+st}, {s(SRD_WS,4)}, s{S_HO} offen offset:{1024*(e&3)} sc1"]
    if e % 4 == 3:
        Ls += [f"s_add_u32 s{S_HO}, s{S_HO}, 4096", f"s_cmp_eq_u32 s{S_HO}, s{S_HE}", f"s_cselect_b32 s{S_HO}, s{S_HB}, s{S_HO}"]
    return Ls

def gemm2(A):
    L = V_LANE
    ACC = 32; GB = 112; XU = 120
    fl = lambda r, sr: f"buffer_load_dword v{r}, v14, {s(SRD_WS,4)}, s{sr} offen sc1"
    recheck(A, [f"v_cmp_ne_u32 vcc, 1, v12"], [fl(12, T + 8)])
    stamp(A, "F0 seen")
    for n in range(O.hp0):
        for x in hload(n): A(x)
    for gi in range(2):
        for x in w2_read(4 + gi, 8192 * gi): A(x)
    for k in range(2):
        A(f"ds_read_b128 {v(GB+4*k,4)}, v5 offset:{32*k}")
    A(f"s_waitcnt vmcnt({O.hp0})")
    A("s_barrier")
    stamp(A, "H acked")
    def f1():
        A(f"s_cmp_ge_u32 s{S_C}, 14")
        A(f"s_cbranch_scc1 L_nof1")
        own_flag(A, FLG_3)
        A("L_nof1:")
    only_wave3(A, f1)
    def red_write(st):
        return [f"ds_write_b128 v7, {v(ACC+32*(k>>1)+16*st+8*(k&1)+4*q,4)} offset:{6144*st+2048*(k-1)+1024*q}" for k in range(1, 4) for q in range(2)]
    def red_finish(st, PP, packed):
        P = PP[0]
        own = ACC + 16 * st
        Ls = [f"ds_read_b128 {v(PP[k]+4*q,4)}, v{15+k} offset:{6144*st+2048*k+1024*q}" for k in range(3) for q in range(2)]
        for k in range(4):
            Ls += [f"v_lshlrev_b32 v{XU+2*k}, 16, v{VXR+4*st+k}", f"v_and_b32 v{XU+1+2*k}, 0xffff0000, v{VXR+4*st+k}"]
        if packed:
            Ls += [f"v_pk_add_f32 {v(own+r,2)}, {v(own+r,2)}, {v(PP[k]+r,2)}" for k in range(3) for r in range(0, 8, 2)]
            Ls += [f"v_pk_fma_f32 {v(own+r,2)}, {v(own+r,2)}, {v(GB+r,2)}, {v(XU+r,2)}" for r in range(0, 8, 2)]
        else:
            Ls += [f"v_add_f32 v{own+r}, v{own+r}, v{PP[k]+r}" for k in range(3) for r in range(8)]
            Ls += [f"v_fma_f32 v{own+r}, v{own+r}, v{GB+r}, v{XU+r}" for r in range(8)]
        Ls += [f"v_cvt_pk_bf16_f32 v{P+r//2}, v{own+r}, v{own+r+1}" for r in range(0, 8, 2)]
        Ls += [f"v_permlane32_swap_b32 v{P}, v{P+2}", f"v_permlane32_swap_b32 v{P+1}, v{P+3}"]
        Ls += [f"buffer_store_dwordx4 {v(P,4)}, v6, {s(SRD_OUT,4)}, s{S_O0+st} offen{['', ' sc1', ' nt', ' sc0 sc1', ' sc1 nt'][(O.om >> (4 * st)) & 15]}"]
        return Ls
    shadow = w2_group(6, f"s{S_PM}", 65536)
    nxt = O.hp0
    ops = []
    def emit(x):
        A(x)
        if x.startswith("buffer"): ops.append(x)
    for n in range(56):
        st, e = divmod(n, 28)
        for u in range(2):
            acc = ACC + 32 * u + 16 * st
            A(f"v_mfma_f32_32x32x16_bf16 {v(acc,16)}, {a(w2frag(u,e),4)}, {v(hreg(n),4)}, {'0' if e == 0 else v(acc,16)}")
            if (n, u) == (O.f1n, 0): emit(fl(13, T + 9))
            if (n, u) == (O.f1c, 1):
                if O.f1pp:
                    uu = uid()
                    A(fl(12, T + 9) + " ; nowait")
                    A(f"s_mov_b32 s{S_SPIN}, 0x80000")
                    A(f"L_fp{uu}:")
                    for r in (13, 12):
                        A("s_waitcnt vmcnt(1)")
                        A(f"v_cmp_ne_u32 vcc, 1, v{r}")
                        A(f"s_cbranch_vccz L_fpx{uu}")
                        A("s_sleep 1")
                        A(fl(r, T + 9) + " ; nowait")
                    A(f"s_sub_u32 s{S_SPIN}, s{S_SPIN}, 1")
                    A(f"s_cbranch_scc0 L_fp{uu}")
                    A(f"L_fpx{uu}:")
                else:
                    recheck(A, [f"v_cmp_ne_u32 vcc, 1, v13"], [fl(13, T + 9)])
                stamp(A, "F1 seen")
            open_ = (n, u) >= (O.f1c, 1)
            for _ in range(2):
                if nxt < (56 if open_ else 28) and nxt < n + NR and nxt - n < O.hmax:
                    for x in hload(nxt): emit(x)
                    nxt += 1
            for _ in range(2):
                if shadow: emit(shadow.pop(0))
        if n in (0, 12): stamp(A, f"n{n}")
        if n == 29: shadow = red_write(0)
        if n == O.red0:
            A("s_waitcnt lgkmcnt(0)")
            A("s_barrier")
            shadow = red_finish(0, [ACC + 8, ACC + 32, ACC + 40], False)
        if n == O.g6at:
            assert not shadow
            last = max(k for k, x in enumerate(ops) if x.endswith("lds"))
            A(f"s_waitcnt vmcnt({len(ops) - 1 - last})")
            shadow = [f"v_add_u32 v{VW2H+k}, 0x10000, v{VW2H+k}" for k in range(4)] + w2_read(6, 0)
    stamp(A, "g2 mfma")
    for x in shadow + red_write(1): A(x)
    A("s_waitcnt lgkmcnt(0)")
    A("s_barrier")
    for x in red_finish(1, [32, 40, 64], True): A(x)
    stamp(A, "end")
    stamp_flush(A, 2)

HEADER = open("cdna_kernels/" + NAME + ".s.ref").read().split("; Override launch")[0]

def build():
    A = Asm()
    name = NAME + "_kernel"
    A('.amdgcn_target "amdgcn-amd-amdhsa--gfx950"')
    A(".text"); A(f".globl {name}"); A(".p2align 8"); A(f".type {name},@function"); A(f"{name}:")
    prologue(A)
    phase0(A)
    conv(A)
    window3(A)
    gemm1(A)
    gemm2(A)
    A("L_end:")
    A("s_endpgm")
    A.autowait()
    A.pad()
    out = HEADER + f"; @launch grid=(256,1,1) block=(256,1,1) lds={LDS_TOTAL}\n" + A.text()
    out += f""".section .rodata,"a"
.p2align 6
.amdhsa_kernel {name}
  .amdhsa_next_free_vgpr 512
  .amdhsa_next_free_sgpr 102
  .amdhsa_accum_offset 256
  .amdhsa_group_segment_fixed_size 0
  .amdhsa_kernarg_size 112
  .amdhsa_user_sgpr_count 2
  .amdhsa_user_sgpr_kernarg_segment_ptr 1
  .amdhsa_system_sgpr_workgroup_id_x 1
  .amdhsa_float_denorm_mode_32 3
.end_amdhsa_kernel
"""
    return out

if __name__ == "__main__":
    path = sys.argv[1]
    O.prof = "--prof" in sys.argv
    O.cyc = "--cyc" in sys.argv
    for x in sys.argv[2:]:
        if "=" in x:
            k_, v_ = x.split("="); setattr(O, k_, int(v_))
    open(path, "w").write(build())
    if O.prof:
        import json; json.dump(STAMPS, open(path + ".stamps.json", "w"))
    print("wrote", path)
```

```python
import sys
sys.path.insert(0, "dev")
from asmlib import Asm, v, a, s

NAME = "adaLN_cond__ssm_conv_h3__dense_activation_silu__prompt"
STAGE = 4
REC_LAYOUT = 2
H_SCALE = -0.6931471805599453

WS_REC = 0
WS_X1 = 4 << 20
WS_X1C = 6 << 20
WS_H = 8 << 20
WS_STAT = 16 << 20
WS_MODP = (16 << 20) + 65536
WS_SYNC = 17 << 20
WS_PROF = (17 << 20) + (512 << 10)
WS_SIZE = 18 << 20
FLG_A, EPOCH, CNT_2, FLG_2, FLG_3 = 0, 2, 16, 32, 128
FLG_4 = 1280
WS_ST2 = (16 << 20) + (128 << 10)
LF_A, LF_2, LF_B = 512, 768, 1024

S_WG = 2; S_WAVE = 3
SRD_Q, SRD_K, SRD_V, SRD_SSMK, SRD_W1, SRD_W2, SRD_WMOD, SRD_OUT, SRD_WS, SRD_SHK, SRD_C, SRD_SSMD = [4 + 4 * i for i in range(12)]
S_DBG = 52
T = 54
S_PI, S_PM, S_PS, S_PE = 88, 89, 90, 91
S_RB, S_J, S_ROT, S_CH, S_CARRY, S_SPIN = 92, 93, 94, 95, 96, 97
S_TMP = 98
S_SIG = 87
S_C = 88
S_RT = 0
S_TAG = 84
S_PO = 86
S_SELLO, S_SELHI, S_ONES = 99, 100, 101

KARG = {SRD_Q: (0, 2097152), SRD_K: (8, 2097152), SRD_V: (16, 2097152), SRD_SHK: (24, 4096), SRD_SSMK: (32, 2097152),
        SRD_SSMD: (40, 1024), SRD_W1: (56, 512 * 1792 * 2), SRD_W2: (64, 512 * 1792 * 2), SRD_C: (72, 1024),
        SRD_WMOD: (80, 512 * 3072 * 2), SRD_OUT: (88, 2097152), SRD_WS: (104, WS_SIZE)}
NLOG2E = 0xbfb8aa3b

LDS_XC = 0
LDS_X1 = 65536
LDS_GM = 98304
LDS_SC = 114688
LDS_REC = 98304
LDS_KC = 131072
LDS_CARRY = 153216
LDS_MODV = 147968
LDS_CS = 150144
LDS_ST2 = 152192
LDS_GB = 152960
LDS_STA = 116736
LDS_STB = 157440
LDS_XR = 131072
LDS_RED = 0
LDS_TOTAL = 163840

V_LANE = 2
VW1 = 238
VW3 = 236
VW2H = 232
VW2 = 244
VW2S = 228

class Opt:
    prof = False; cyc = False
    w1_depth = 8
    wpf = 1; xpre = 2; hpre = 12; f1pos = 18; sck = 8; f0at = 20; r2same = 1; post = 1; mvearly = 1; poll2 = 0; hp0 = 4; fine = 0; om = 0; g6late = 0; jit = 0; err = 0; dbgC = 0; fs = 18; pa = 1; pa0 = 1; sw = 4; pb = 1; hs = 0; hl = 0; epv = 1; tlb = 0; bthr = 48; ovl = 0; red0 = 33; bsleep = 16; isleep = 20; sigfirst = 0; eplate = 1; stsw = 1; w2e = 4; w2w1 = 0; rd01 = 24; dbgB = 0; look = 3; wmerge = 1; prog = 1; early0 = 1; w2te = 1; g6at = 7; hmax = 24; recperm = 1; kc_late = 1; sleep = 1
    conv_groups = 4; w3_depth = 10; tailg = 2; cs_early = 1; n_w1 = 3; w5 = 1; lfa = 1; lf2 = 1; kc_early = 0; n_rd = 2; poller2 = 3; map84 = 0; touch = 0; cpf = 1; w2t = 1; outsc = 0; w2l2 = 1; g01late = 0; pp = 0; bsplit = 0; t3 = 0; xpre2 = 3; fb = 28; w2side = 4; tg = 1
O = Opt()

_uid = [0]
def uid():
    _uid[0] += 1; return _uid[0]
_stamps = []
STAMPS = {}
def stamp(A, name):
    jitter(A)
    if not O.prof: return
    n = len(_stamps); _stamps.append(name)
    A(f"s_memtime s[74:75]" if O.cyc else f"s_memrealtime s[74:75]")
    A("s_waitcnt lgkmcnt(0)")
    if n == 1: A(f"v_writelane_b32 v250, s76, 0")
    A(f"v_writelane_b32 v250, s74, {n}")
def stamp_flush(A, kidx):
    if not O.prof or kidx != 2: return
    A(f"s_lshl_b32 s74, s{S_WG}, 2")
    A(f"s_add_u32 s74, s74, s{S_WAVE}")
    A(f"s_lshl_b32 s74, s74, 8")
    A(f"s_add_u32 s74, s74, {WS_PROF}")
    A(f"v_lshlrev_b32 v254, 2, v{V_LANE}")
    A(f"buffer_store_dword v250, v254, {s(SRD_WS,4)}, s74 offen")
    STAMPS[0] = list(_stamps)

_jn = [0]
def jitter(A):
    if not O.jit: return
    _jn[0] += 1
    u = uid()
    A(f"s_lshl_b32 s74, s{S_WG}, 2")
    A(f"s_add_u32 s74, s74, s{S_WAVE}")
    A(f"s_mul_i32 s74, s74, {(2654435761 * (O.jit + 7 * _jn[0])) & 0x7fffffff | 1}")
    A(f"s_lshr_b32 s74, s74, 27")
    A(f"s_cmp_gt_u32 s74, 7")
    A(f"s_cselect_b32 s74, 0, s74")
    A(f"L_j{u}:")
    A(f"s_cmp_eq_u32 s74, 0")
    A(f"s_cbranch_scc1 L_jx{u}")
    A(f"s_sleep 40")
    A(f"s_sub_u32 s74, s74, 1")
    A(f"s_branch L_j{u}")
    A(f"L_jx{u}:")

def dma_voff(A, d0, d1, rowstride, tmp):
    A(f"v_lshrrev_b32 v{tmp}, 3, v{V_LANE}")
    A(f"v_and_b32 v{d1}, 2, v{tmp}")
    A(f"v_lshlrev_b32 v{d1}, 5, v{d1}")
    A(f"v_and_b32 v{d0}, 7, v{V_LANE}")
    A(f"v_lshlrev_b32 v{d0}, 4, v{d0}")
    A(f"v_xor_b32 v{d0}, v{d0}, v{d1}")
    A(f"v_mul_u32_u24 v{tmp}, {rowstride}, v{tmp}")
    A(f"v_add_u32 v{d0}, v{d0}, v{tmp}")
    A(f"v_xor_b32 v{d1}, 32, v{d0}")

def tr_addr32(A, d, tmp, rowmul):
    L = V_LANE
    A(f"v_lshrrev_b32 v{tmp}, 5, v{L}")
    A(f"v_bfe_u32 v{tmp+1}, v{L}, 2, 2")
    A(f"v_lshl_add_u32 v{d}, v{tmp}, {3 if rowmul == 8 else 2}, v{tmp+1}")
    A(f"v_lshlrev_b32 v{d}, 7, v{d}")
    A(f"v_and_b32 v{tmp+1}, 2, v{tmp+1}")
    if rowmul == 8: A(f"v_or_b32 v{tmp+1}, v{tmp+1}, v{tmp}")
    A(f"v_bfe_u32 v{tmp}, v{L}, 4, 1")
    A(f"v_xor_b32 v{tmp+1}, v{tmp+1}, v{tmp}")
    A(f"v_lshl_add_u32 v{d}, v{tmp+1}, 5, v{d}")
    A(f"v_and_b32 v{tmp}, 3, v{L}")
    A(f"v_lshl_add_u32 v{d}, v{tmp}, 3, v{d}")

def tr_addr16(A, d, tmp):
    L = V_LANE
    A(f"v_lshrrev_b32 v{tmp}, 4, v{L}")
    A(f"v_bfe_u32 v{tmp+1}, v{L}, 2, 2")
    A(f"v_lshl_add_u32 v{d}, v{tmp}, 3, v{tmp+1}")
    A(f"v_lshlrev_b32 v{d}, 7, v{d}")
    A(f"v_and_b32 v{tmp+1}, 2, v{tmp+1}")
    A(f"v_and_b32 v{tmp}, 1, v{tmp}")
    A(f"v_or_b32 v{tmp+1}, v{tmp+1}, v{tmp}")
    A(f"v_lshl_add_u32 v{d}, v{tmp+1}, 5, v{d}")
    A(f"v_and_b32 v{tmp}, 3, v{L}")
    A(f"v_lshl_add_u32 v{d}, v{tmp}, 3, v{d}")

def ln_finish(A, rows, tmp, scale=None):
    steps = [
        lambda su, sq, o1, o2, t: [f"v_mul_f32 v{su}, 0x3b000000, v{su}", f"v_mul_f32 v{sq}, 0x3b000000, v{sq}"],
        lambda su, sq, o1, o2, t: [f"v_fma_f32 v{sq}, -v{su}, v{su}, v{sq}"],
        lambda su, sq, o1, o2, t: [f"v_max_f32 v{sq}, 0, v{sq}"],
        lambda su, sq, o1, o2, t: [f"v_cvt_pk_bf16_f32 v{t}, v{su}, v{sq}"],
        lambda su, sq, o1, o2, t: [f"v_lshlrev_b32 v{su}, 16, v{t}", f"v_and_b32 v{sq}, 0xffff0000, v{t}"],
        lambda su, sq, o1, o2, t: [f"v_add_f32 v{sq}, 0x3727c5ac, v{sq}"],
        lambda su, sq, o1, o2, t: [f"v_cvt_pk_bf16_f32 v{sq}, v{sq}, v{sq}"],
        lambda su, sq, o1, o2, t: [f"v_lshlrev_b32 v{sq}, 16, v{sq}"],
        lambda su, sq, o1, o2, t: [f"v_sqrt_f32 v{sq}, v{sq}"],
        lambda su, sq, o1, o2, t: [f"v_cvt_pk_bf16_f32 v{sq}, v{sq}, v{sq}"],
        lambda su, sq, o1, o2, t: [f"v_lshlrev_b32 v{sq}, 16, v{sq}"],
        lambda su, sq, o1, o2, t: [f"v_rcp_f32 v{o1}, v{sq}"],
        lambda su, sq, o1, o2, t: [f"v_mul_f32 v{o1}, {scale}, v{o1}"] if scale else [],
        lambda su, sq, o1, o2, t: [f"v_mul_f32 v{o2}, -v{su}, v{o1}"],
    ]
    for st in steps:
        for i, r in enumerate(rows):
            for x in st(*r, tmp + i): A(x)


def signal_issue(A, cnt):
    A(f"s_and_b32 s{S_SIG}, s{S_WG}, 15")
    A(f"s_lshl_b32 s{S_SIG}, s{S_SIG}, 7")
    A(f"s_add_u32 s{S_SIG}, s{S_SIG}, {WS_SYNC}")
    A("s_mov_b64 exec, 1")
    A(f"v_mov_b32 v252, {128*cnt}")
    A(f"v_mov_b32 v253, 1")
    A(f"buffer_atomic_add v253, v252, {s(SRD_WS,4)}, s{S_SIG} offen sc0 sc1")
    A("s_mov_b64 exec, -1")

def signal_finish(A, flag):
    u = uid()
    A("s_mov_b64 exec, 1")
    A(f"v_cmp_eq_u32 vcc, 15, v253")
    A(f"v_mov_b32 v252, {128*flag}")
    A(f"v_mov_b32 v253, 1")
    A(f"s_cbranch_vccz L_sig{u}")
    A(f"buffer_store_dword v253, v252, {s(SRD_WS,4)}, s{S_SIG} offen sc1")
    A(f"L_sig{u}:")
    A("s_mov_b64 exec, -1")

def poll(A, nlanes, stride, base, want=1):
    u = uid()
    A(f"s_mov_b64 exec, {hex((1 << nlanes) - 1)}")
    if stride: A(f"v_mul_u32_u24 v252, {stride}, v{V_LANE}")
    A(f"s_mov_b32 s{S_TMP}, {base}")
    A(f"s_mov_b32 s{S_SPIN}, 0x80000")
    ld = lambda r: A(f"buffer_load_dword v{r}, v252, {s(SRD_WS,4)}, s{S_TMP} offen sc1 ; nowait")
    if O.pp: ld(253)
    A(f"L_poll{u}:")
    if O.pp:
        for k in range(2):
            A(f"s_sleep {O.sleep+1}")
            ld(254 - k)
            A("s_waitcnt vmcnt(1)")
            A(f"v_cmp_ne_u32 vcc, {want}, v{253+k}")
            A(f"s_cbranch_vccz L_pollx{u}")
    else:
        ld(253)
        A("s_waitcnt vmcnt(0)")
        A(f"v_cmp_ne_u32 vcc, {want}, v253")
        A(f"s_cbranch_vccz L_pollx{u}")
        A(f"s_sleep {O.sleep}")
    A(f"s_sub_u32 s{S_SPIN}, s{S_SPIN}, 1")
    A(f"s_cbranch_scc0 L_poll{u}")
    A(f"L_pollx{u}:")
    A("s_mov_b64 exec, -1")

def lf_signal(A, base):
    A(f"s_lshl_b32 s{S_TMP}, s{S_WG}, 7")
    A(f"s_add_u32 s{S_TMP}, s{S_TMP}, {WS_SYNC + 128*base}")
    A("s_mov_b64 exec, 1")
    A(f"v_mov_b32 v252, 0")
    A(f"v_mov_b32 v254, s{S_TAG}")
    A(f"v_mov_b32 v255, s{S_TAG+1}")
    A(f"buffer_store_dwordx2 v[254:255], v252, {s(SRD_WS,4)}, s{S_TMP} offen sc1")
    A("s_mov_b64 exec, -1")

def lf_poll(A, base, tmpv, first=0):
    u = uid(); M = 76
    A(f"v_lshlrev_b32 v{tmpv+16}, 7, v{V_LANE}")
    for i in range(4):
        A(f"s_mov_b64 {s(M+2*i,2)}, -1")
        if i: A(f"v_add_u32 v{tmpv+16+i}, {8192*i}, v{tmpv+16}")
    A(f"s_mov_b32 s{S_TMP}, {WS_SYNC + 128*base}")
    A(f"s_mov_b32 s{S_SPIN}, 0x40000")
    if first: A(f"s_sleep {first}")
    def issue(k):
        for i in range(4):
            A(f"s_or_b64 exec, {s(M+2*i,2)}, 1")
            A(f"buffer_load_dwordx2 {v(tmpv+8*k+2*i,2)}, v{tmpv+16+i}, {s(SRD_WS,4)}, s{S_TMP} offen sc1 ; nowait")
    def check(k):
        for i in range(4):
            A(f"s_mov_b64 exec, {s(M+2*i,2)}")
            A(f"v_cmp_ne_u64 {s(M+2*i,2)}, {s(S_TAG,2)}, {v(tmpv+8*k+2*i,2)}")
        A(f"s_or_b64 vcc, {s(M,2)}, {s(M+2,2)}")
        A(f"s_or_b64 vcc, vcc, {s(M+4,2)}")
        A(f"s_or_b64 vcc, vcc, {s(M+6,2)}")
        A(f"s_cbranch_scc0 L_lfx{u}")
    if O.pp:
        issue(0)
        A(f"L_lf{u}:")
        for k in range(2):
            A(f"s_sleep {O.sleep}")
            issue(1 - k)
            A("s_waitcnt vmcnt(4)")
            check(k)
    else:
        A(f"L_lf{u}:")
        issue(0)
        A("s_waitcnt vmcnt(0)")
        check(0)
        A(f"s_bcnt1_i32_b64 s{S_PO}, vcc")
        A(f"s_cmp_gt_u32 s{S_PO}, {O.bthr}")
        A(f"s_cbranch_scc0 L_lfs{u}")
        A(f"s_sleep {O.bsleep}")
        A(f"L_lfs{u}:")
        A(f"s_sleep {O.sleep}")
    A(f"s_sub_u32 s{S_SPIN}, s{S_SPIN}, 1")
    A(f"s_cbranch_scc0 L_lf{u}")
    A(f"L_lfx{u}:")
    A("s_mov_b64 exec, -1")

def only_wave3(A, body):
    u = uid()
    A(f"s_cmp_eq_u32 s{S_WAVE}, 3")
    A(f"s_cbranch_scc0 L_w3_{u}")
    body()
    A(f"L_w3_{u}:")

def split_wave3(A, others, w3):
    u = uid()
    A(f"s_cmp_eq_u32 s{S_WAVE}, 3")
    A(f"s_cbranch_scc1 L_s3a_{u}")
    others()
    A(f"s_branch L_s3b_{u}")
    A(f"L_s3a_{u}:")
    w3()
    A(f"L_s3b_{u}:")

def pieces8(vbase, srd, step4, depth=0):
    L = []
    for p in range(8):
        if p == 4: L += [f"s_add_u32 m0, m0, 4096", f"s_add_u32 s{S_PO}, s{S_PO}, {step4}"]
        L.append(f"buffer_load_dwordx4 v{vbase+(p&3)}, {s(srd,4)}, s{S_PO} offen offset:{1024*(p&3)} lds")
        if depth: L.append(f"s_waitcnt vmcnt({depth-1})")
    return L

def w1_group(gi, tile, ldsbase, tmp, depth=0):
    L = [f"s_add_u32 s{S_TMP}, s{S_ROT}, {gi}",
         f"s_lshl_b32 m0, {gi}, 13",
         f"s_bitcmp1_b32 s{S_TMP}, 2",
         f"s_cselect_b64 vcc, -1, 0",
         f"s_add_u32 m0, m0, {ldsbase}",
         f"s_and_b32 s{S_TMP}, s{S_TMP}, 3",
         f"v_cndmask_b32 v245, v{VW3}, v{VW3+1}, vcc"]
    L += [f"v_add_u32 v{tmp+k}, v245, v{VW1+k}" for k in range(4)]
    L += [f"s_mul_i32 s{S_PO}, s{S_TMP}, {64*3584}",
          f"s_lshl_b32 s{S_TMP}, s{S_C}, 8",
          f"s_add_u32 s{S_PO}, s{S_PO}, s{S_TMP}",
          f"s_lshl_b32 s{S_TMP}, {tile}, 6",
          f"s_add_u32 s{S_PO}, s{S_PO}, s{S_TMP}"]
    return L + pieces8(tmp, SRD_W1, 32 * 3584, depth)

def loop(A, body, n):
    u = uid()
    A(f"s_mov_b32 s{S_SPIN}, {n}")
    A(f"L_lp{u}:")
    for x in body: A(x)
    A(f"s_sub_u32 s{S_SPIN}, s{S_SPIN}, 1")
    A(f"s_cmp_lg_u32 s{S_SPIN}, 0")
    A(f"s_cbranch_scc1 L_lp{u}")

def w1_read(gi):
    return [f"ds_read_b64_tr_b16 {a((16*t+4*gi+e)*4+2*h,2)}, v{242+t} offset:{8192*gi+2048*e+512*h}" for e in range(4) for t in range(2) for h in range(2)]

LDS_ST1 = 114944
def prologue(A):
    VK, VV, VQ, VSH, VST, VC = 10, 28, 36, 44, 48, 56
    L = V_LANE
    A(f"s_cmp_ge_u32 s{S_WG}, 256")
    A(f"s_cbranch_scc1 L_end")
    if O.prof:
        A("s_memtime s[76:77]" if O.cyc else "s_memrealtime s[76:77]")
        _stamps.append("start")
    first = [SRD_Q, SRD_C, SRD_K, SRD_V, SRD_SHK, SRD_WS]
    rest = [SRD_WMOD, SRD_SSMK, SRD_SSMD, SRD_W1, SRD_W2, SRD_OUT]
    for r in first:
        A(f"s_load_dwordx2 {s(r,2)}, s[0:1], {KARG[r][0]}")
    A(f"v_lshrrev_b32 v1, 6, v0")
    A(f"v_and_b32 v{L}, 63, v0")
    A(f"v_readfirstlane_b32 s{S_WAVE}, v1")
    for r in first:
        A(f"s_mov_b32 s{r+2}, {KARG[r][1]}")
        A(f"s_mov_b32 s{r+3}, 0x20000")
    A(f"s_lshr_b32 s{T}, s{S_WG}, 1")
    A(f"s_and_b32 s{T+1}, s{S_WG}, 1")
    A(f"s_lshl_b32 s{T+1}, s{T+1}, 2")
    A(f"s_add_u32 s{T+1}, s{T+1}, s{S_WAVE}")
    A(f"s_lshl_b32 s{T+1}, s{T+1}, 5")
    A(f"v_and_b32 v3, 31, v0")
    A(f"v_add_u32 v5, s{T+1}, v3")
    A(f"v_bfe_u32 v4, v0, 5, 1")
    A(f"v_lshlrev_b32 v6, 2, v5")
    A(f"v_lshl_add_u32 v6, v4, 10, v6")
    A(f"s_lshl_b32 s{T+2}, s{T}, 14")
    for k in range(1, 4):
        A(f"s_add_u32 s{T+2+k}, s{T+2}, {4096*k}")
    A(f"s_sub_u32 s{T+6}, s{T+2}, 3072")
    A(f"v_add_u32 v8, s{T+6}, v6")
    A(f"v_add_u32 v9, 1024, v8")
    A(f"v_add_u32 v57, 2048, v8")
    A(f"v_lshlrev_b32 v7, 4, v5")
    A(f"s_lshl_b32 s{T+7}, s{S_WG}, 2")
    A(f"s_add_u32 s{T+7}, s{T+7}, s{S_WAVE}")
    A(f"s_lshl_b32 s{T+8}, s{T+7}, 11")
    A(f"v_lshlrev_b32 v58, 4, v{L}")
    A(f"s_mul_i32 s{T+9}, s{S_WG}, 1366")
    A(f"s_lshr_b32 s{T+9}, s{T+9}, 16")
    A(f"v_and_b32 v59, 127, v0")
    A(f"v_lshlrev_b32 v59, 1, v59")
    A(f"s_lshl_b32 s{T+12}, s{T+9}, 8")
    A(f"v_lshlrev_b32 v252, 11, v{L}")
    A(f"s_lshl_b32 s{T+11}, s{S_WG}, 7")
    A(f"v_mov_b32 v253, {128*FLG_3}")
    A(f"v_cmp_eq_u32 vcc, 4, v{L}")
    A(f"s_add_u32 s{T+11}, s{T+11}, {WS_SYNC}")
    A(f"v_cndmask_b32 v252, v252, v253, vcc")
    A(f"v_mov_b32 v253, {128*FLG_4}")
    A(f"v_cmp_eq_u32 vcc, 3, v{L}")
    A(f"v_cndmask_b32 v252, v252, v253, vcc")
    A(f"v_mov_b32 v253, 0")
    A("s_waitcnt lgkmcnt(0)")
    def clr():
        A(f"s_cmp_lt_u32 s{S_WG}, 16")
        A(f"s_cselect_b32 exec_lo, 0x1e, 0x18")
        A(f"s_mov_b32 exec_hi, 0")
        A(f"buffer_store_dword v253, v252, {s(SRD_WS,4)}, s{T+11} offen sc1")
        A("s_mov_b64 exec, -1")
    only_wave3(A, clr)
    A(f"buffer_load_dwordx4 {v(VST,4)}, v58, {s(SRD_Q,4)}, s{T+8} offen")
    A(f"buffer_load_dwordx4 {v(VST+4,4)}, v58, {s(SRD_Q,4)}, s{T+8} offen offset:1024")
    A(f"buffer_load_ushort v{VC}, v59, {s(SRD_C,4)}, s{T+12} offen")
    A(f"buffer_load_dword v{VK}, v8, {s(SRD_K,4)}, 0 offen")
    A(f"buffer_load_dword v{VK+1}, v9, {s(SRD_K,4)}, 0 offen")
    A(f"buffer_load_dword v{VK+2}, v57, {s(SRD_K,4)}, 0 offen")
    for r in range(15):
        A(f"buffer_load_dword v{VK+3+r}, v6, {s(SRD_K,4)}, s{T+2+(r>>2)} offen offset:{1024*(r&3)}")
    A(f"buffer_load_dwordx4 {v(VSH,4)}, v7, {s(SRD_SHK,4)}, 0 offen")
    for k in range(8):
        A(f"buffer_load_dword v{VV+k}, v6, {s(SRD_V,4)}, s{T+2+(k>>1)} offen offset:{2048*(k&1)}")
    for k in range(8):
        A(f"buffer_load_dword v{VQ+k}, v6, {s(SRD_Q,4)}, s{T+2+(k>>1)} offen offset:{2048*(k&1)}")
    for r in rest:
        A(f"s_load_dwordx2 {s(r,2)}, s[0:1], {KARG[r][0]}")
    A(f"s_load_dwordx2 {s(S_DBG,2)}, s[0:1], 96")
    A(f"s_getpc_b64 s[{T+16}:{T+17}]")
    A("L_pc:")
    A(f"s_cmp_eq_u32 s{S_WAVE}, {0 if O.cpf == 1 else 7}" if O.cpf < 2 else f"s_cmp_lt_u32 s{S_WG}, 64")
    A(f"s_cbranch_scc0 L_nopf")
    A(f"s_bfe_u32 s{T+11}, s{S_WG}, {'0x30003' if O.cpf < 2 else '0x10003'}")
    A(f"s_lshl_b32 s{T+11}, s{T+11}, {13 if O.cpf < 2 else 15}")
    A(f"v_lshlrev_b32 v254, 7, v0")
    A(f"v_add_u32 v254, s{T+11}, v254")
    A(f"v_min_u32 v254, L_end-L_pc, v254")
    A(f"global_load_dword v255, v254, s[{T+16}:{T+17}] ; nowait")
    A("L_nopf:")
    for r in rest:
        A(f"s_mov_b32 s{r+2}, {KARG[r][1]}")
        A(f"s_mov_b32 s{r+3}, 0x20000")
    A(f"s_mul_i32 s{T+10}, s{T+9}, 48")
    A(f"s_sub_u32 s{T+10}, s{S_WG}, s{T+10}")
    dma_voff(A, 60, 61, 6144, 62)
    A(f"s_lshl_b32 s{T+12}, s{T+9}, 7")
    A(f"s_lshl_b32 s{T+13}, s{S_WAVE}, 5")
    A(f"s_add_u32 s{T+12}, s{T+12}, s{T+13}")
    A(f"s_mul_i32 s{T+12}, s{T+12}, 6144")
    A(f"s_lshl_b32 s{T+11}, s{T+10}, 7")
    A(f"s_add_u32 s{T+12}, s{T+12}, s{T+11}")
    A(f"s_lshl_b32 s{T+14}, s{S_WAVE}, 12")
    A(f"s_add_u32 m0, s{T+14}, {LDS_GM}")
    A("s_waitcnt lgkmcnt(0)")
    stamp(A, "issued")
    for i in range(4):
        if i:
            A(f"s_add_u32 m0, m0, 1024")
            A(f"s_add_u32 s{T+12}, s{T+12}, {8*6144}")
        A(f"buffer_load_dwordx4 v{60+(i&1)}, {s(SRD_WMOD,4)}, s{T+12} offen lds")
    A(f"v_mov_b32 v178, {WS_SYNC + 128*EPOCH}")
    A(f"buffer_load_dwordx2 v[178:179], v178, {s(SRD_WS,4)}, 0 offen sc1")
    A(f"s_mov_b32 s{S_SELLO}, 0x05040100")
    A(f"s_mov_b32 s{S_SELHI}, 0x07060302")
    A(f"s_mov_b32 s{S_ONES}, 0x3f803f80")
    A(f"s_bfe_u32 s{S_RB}, s{S_WG}, 0x20001")
    A(f"s_lshl_b32 s{S_RB}, s{S_RB}, 2")
    A(f"s_lshr_b32 s{S_TMP}, s{S_WG}, 6")
    A(f"s_add_u32 s{S_RB}, s{S_RB}, s{S_TMP}")
    A(f"s_bfe_u32 s{S_J}, s{S_WG}, 0x30003")
    A(f"s_add_u32 s{S_ROT}, s{S_J}, s{S_TMP}")
    A(f"s_and_b32 s{S_ROT}, s{S_ROT}, 7")
    A(f"s_and_b32 s{S_PE}, s{S_WG}, 1")
    A(f"s_mul_i32 s{S_C}, s{S_PE}, 7")
    A(f"s_add_u32 s{S_C}, s{S_C}, s{S_J}")
    A(f"s_add_u32 s{S_PE}, s{S_PE}, 14")
    A(f"s_cmp_eq_u32 s{S_J}, 7")
    A(f"s_cselect_b32 s{S_C}, s{S_PE}, s{S_C}")
    A(f"s_and_b32 s{S_RT}, s{S_WG}, 7")
    A(f"s_lshl_b32 s{S_RT}, s{S_RT}, 3")
    A(f"s_lshr_b32 s{S_PE}, s{S_WG}, 7")
    A(f"s_lshl_b32 s{S_PE}, s{S_PE}, 2")
    A(f"s_add_u32 s{S_RT}, s{S_RT}, s{S_PE}")
    A(f"s_bfe_u32 s{S_PE}, s{S_WG}, 0x10006")
    A(f"s_add_u32 s{S_RT}, s{S_RT}, s{S_PE}")
    A(f"s_lshl_b32 s{S_PE}, s{S_TMP}, 1")
    A(f"s_add_u32 s{S_PE}, s{S_PE}, s{S_J}")
    if O.r2same: A(f"s_mov_b32 s{S_PE}, s{S_J}")
    A(f"s_cmp_ge_u32 s{S_C}, 14")
    A(f"s_cselect_b32 s{SRD_W1+2}, 0, s{SRD_W1+2}")
    A(f"s_cmp_ge_u32 s{S_PE}, 7")
    A(f"s_cselect_b32 s{S_TMP}, 7, 0")
    A(f"s_sub_u32 s{S_PE}, s{S_PE}, s{S_TMP}")
    A(f"s_cmp_ge_u32 s{S_PE}, 7")
    A(f"s_cselect_b32 s{S_TMP}, 7, 0")
    A(f"s_sub_u32 s{S_PE}, s{S_PE}, s{S_TMP}")

def phase0(A):
    VK, VV, VQ, VSH, VST, VC = 10, 28, 36, 44, 48, 56
    L = V_LANE
    stamp(A, "issued2")
    if O.tlb:
        A("; wave 1 touches the pages that later phases use")
        A(f"s_cmp_eq_u32 s{S_WAVE}, 1")
        A(f"s_cbranch_scc0 L_notlb")
        A(f"v_lshlrev_b32 v254, {O.tlb}, v{L}")
        A(f"s_lshl_b32 s{T+14}, s{S_WG}, 7")
        A(f"buffer_load_dword v255, v254, {s(SRD_WS,4)}, s{T+14} offen ; nowait")
        for r in (SRD_OUT, SRD_W1, SRD_W2, SRD_SSMK):
            A(f"buffer_load_dword v255, v254, {s(r,4)}, s{T+14} offen ; nowait")
        A("L_notlb:")
    A(f"s_cmp_eq_u32 s{S_WAVE}, 2")
    A(f"s_cbranch_scc0 L_noclr2")
    A(f"s_lshl_b32 s{T+14}, s{S_WG}, 7")
    A(f"s_add_u32 s{T+14}, s{T+14}, {WS_ST2}")
    A(f"v_lshlrev_b32 v64, 2, v{L}")
    A(f"s_mov_b32 exec_hi, 0")
    A(f"buffer_store_dword v253, v64, {s(SRD_WS,4)}, s{T+14} offen sc1")
    A("s_mov_b64 exec, -1")
    A("L_noclr2:")
    dma_voff(A, VW1, VW1 + 1, 3584, 64)
    A(f"s_mov_b32 s{T+14}, {256*3584}")
    A(f"v_bfe_u32 v64, v{VW1}, 6, 1")
    A(f"v_mul_lo_u32 v65, v64, s{T+14}")
    A(f"v_lshlrev_b32 v64, 6, v64")
    A(f"v_sub_u32 v{VW3}, v65, v64")
    A(f"v_sub_u32 v65, s{T+14}, v65")
    A(f"v_sub_u32 v{VW3+1}, v65, v64")
    A(f"v_add_u32 v{VW1+1}, {8*3584-1024}, v{VW1+1}")
    A(f"v_add_u32 v{VW1+2}, {2*(8*3584-1024)}, v{VW1}")
    A(f"v_add_u32 v{VW1+3}, {2*(8*3584-1024)}, v{VW1+1}")
    tr_addr32(A, 242, 64, 8)
    A(f"s_lshl_b32 s{T+14}, s{S_WAVE}, 15")
    A(f"v_add_u32 v242, s{T+14}, v242")
    A(f"v_xor_b32 v243, 64, v242")
    A(f"s_lshl_b32 s{S_PM}, s{S_WAVE}, 15")
    w2_setup(A)
    A(f"s_lshr_b32 s{T+11}, s{S_WAVE}, 1")
    A(f"s_lshl_b32 s{S_CH}, s{S_WG}, 1")
    A(f"s_add_u32 s{S_CH}, s{S_CH}, s{T+11}")
    A(f"s_mul_i32 s{S_CARRY}, s{T+11}, 2080")
    A(f"s_add_u32 s{S_CARRY}, s{S_CARRY}, {LDS_CARRY}")
    A(f"s_mul_i32 s{T+13}, s{S_WAVE}, 4224")
    A(f"s_add_u32 s{T+13}, s{T+13}, {LDS_KC}")
    A(f"s_and_b32 s{T+11}, s{S_WAVE}, 1")
    A(f"s_lshl_b32 s{T+14}, s{T+11}, 2")
    A(f"s_sub_u32 s{T+14}, 4, s{T+14}")
    A(f"v_add_u32 v62, s{T+14}, v58")
    A(f"v_and_b32 v64, 7, v3")
    A(f"v_lshlrev_b32 v65, 2, v4")
    A(f"v_xor_b32 v64, v64, v65")
    A(f"v_lshlrev_b32 v57, 7, v3")
    A(f"v_lshl_add_u32 v57, v64, 4, v57")
    A(f"s_lshl_b32 s{T+14}, s{S_WAVE}, 15")
    A(f"s_add_u32 s{T+14}, s{T+14}, 24576")
    A(f"v_add_u32 v57, s{T+14}, v57")
    A(f"v_lshrrev_b32 v64, 3, v{L}")
    A(f"v_and_b32 v65, 7, v{L}")
    A(f"v_xor_b32 v66, v65, v64")
    A(f"v_lshlrev_b32 v9, 7, v64")
    A(f"v_lshl_add_u32 v9, v66, 4, v9")
    A(f"v_add_u32 v9, s{T+14}, v9")
    A(f"v_lshlrev_b32 v65, 4, v65")
    for b in range(4):
        A(f"v_add_u32 v66, s{T+1}, v64")
        if b: A(f"v_add_u32 v66, {8*b}, v66")
        if O.recperm:
            A(f"v_xor_b32 v67, s{T}, v66")
            A(f"v_and_b32 v67, 127, v67")
        else:
            A(f"v_mov_b32 v67, s{T}")
        A(f"v_lshl_add_u32 v66, v66, 7, v67")
        A(f"v_lshl_add_u32 v{168+b}, v66, 7, v65")
    for k in range(1, 4): A(f"v_xor_b32 v{173+k}, {16*k}, v57")
    B = 172
    tr_addr16(A, B, 64)
    A(f"s_lshl_b32 s{T+16}, s{S_WAVE}, 5")
    A(f"v_xor_b32 v{B}, s{T+16}, v{B}")
    A(f"v_add_u32 v{B}, {LDS_GM}, v{B}")
    A(f"v_lshrrev_b32 v{B+1}, 4, v{L}")
    A(f"v_lshlrev_b32 v{B+1}, 4, v{B+1}")
    A(f"v_add_u32 v{B+1}, {LDS_SC}, v{B+1}")
    A(f"s_mul_i32 s{T+16}, s{T+9}, {3072*4}")
    A(f"s_lshl_b32 s{T+17}, s{T+10}, 8")
    A(f"s_add_u32 s{T+16}, s{T+16}, s{T+17}")
    A(f"s_lshl_b32 s{T+17}, s{S_WAVE}, 6")
    A(f"s_add_u32 s{T+16}, s{T+16}, s{T+17}")
    A(f"s_add_u32 s{T+16}, s{T+16}, {WS_MODP}")
    A(f"s_lshl_b32 s{T+15}, s{S_WG}, 6")
    A(f"s_add_u32 s{T+15}, s{T+15}, {WS_STAT}")
    A(f"s_lshl_b32 s{T+17}, s{S_WAVE}, 3")
    A(f"s_add_u32 s{T+17}, s{T+17}, {LDS_ST1}")
    A(f"v_mov_b32 v177, s{T+17}")
    A(f"v_add_u32 v59, {LDS_SC}, v59")
    def kcopy():
        A(f"s_lshl_b32 s{T+18}, s{S_CH}, 12")
        A(f"s_add_u32 m0, s{T+13}, 32")
        A(f"v_mov_b32 v63, 0")
        A(f"buffer_load_dword v63, v63, {s(SRD_SSMK,4)}, s{T+18} offen")
        for i in range(4):
            A(f"buffer_load_dwordx4 v62, {s(SRD_SSMK,4)}, s{T+18} offen offset:{1024*i} lds")
    if O.kc_early: kcopy()
    R = 152
    for r in range(2):
        A(f"v_dot2_f32_bf16 v{R+2*r}, v{VST+4*r}, s{S_ONES}, 0")
        A(f"v_dot2_f32_bf16 v{R+2*r+1}, v{VST+4*r}, v{VST+4*r}, 0")
    for q in range(1, 4):
        for r in range(2):
            A(f"v_dot2_f32_bf16 v{R+2*r}, v{VST+4*r+q}, s{S_ONES}, v{R+2*r}")
            A(f"v_dot2_f32_bf16 v{R+2*r+1}, v{VST+4*r+q}, v{VST+4*r+q}, v{R+2*r+1}")
    X = 164
    A(f"v_lshlrev_b32 v{X}, 16, v{VC}")
    A(f"v_mul_f32 v{X+1}, {hex(NLOG2E)}, v{X}")
    A(f"v_exp_f32 v{X+1}, v{X+1}")
    for n, m in enumerate(("row_shr:1", "row_shr:2", "row_shr:4", "row_shr:8")):
        for i in range(4):
            A(f"v_add_f32_dpp v{R+i}, v{R+i}, v{R+i} {m} row_mask:0xf bank_mask:0xf bound_ctrl:0")
        A([f"v_add_f32 v{X+1}, 1.0, v{X+1}", f"v_rcp_f32 v{X+1}, v{X+1}", f"v_mul_f32 v{X+1}, v{X}, v{X+1}", f"v_cvt_pk_bf16_f32 v{X+1}, v{X+1}, v{X+1}"][n])
    A(f"ds_write_b16 v59, v{X+1}")
    for m, rm in (("row_bcast:15", "0xa"), ("row_bcast:31", "0xc")):
        for i in range(4):
            A(f"v_add_f32_dpp v{R+i}, v{R+i}, v{R+i} {m} row_mask:{rm} bank_mask:0xf")
    ln_finish(A, [(R, R+1, R+4, R+6), (R+2, R+3, R+5, R+7)], R + 8)
    A("s_lshl_b64 exec, 1, 63")
    A(f"ds_write_b64 v177, {v(R+4,2)}")
    A(f"ds_write_b64 v177, {v(R+6,2)} offset:32")
    A("s_mov_b64 exec, -1")
    stamp(A, "stats")
    A("; ---- kv ----")
    VW, VP, VKS, VVU, CA, CB = 64, 68, 86, 102, 120, 136
    for k in range(9):
        A(f"v_perm_b32 v{VP+2*k}, v{VK+2*k+1}, v{VK+2*k}, s{S_SELLO}")
        A(f"v_perm_b32 v{VP+2*k+1}, v{VK+2*k+1}, v{VK+2*k}, s{S_SELHI}")
    A(f"v_alignbit_b32 v{VW}, v{VSH+1}, v{VSH+1}, 16")
    A(f"v_alignbit_b32 v{VW+1}, v{VSH}, v{VSH}, 16")
    A(f"v_alignbit_b32 v{VW+2}, v{VSH+3}, v{VSH+3}, 16")
    A(f"v_alignbit_b32 v{VW+3}, v{VSH+2}, v{VSH+2}, 16")
    for k in range(8):
        for c in range(2):
            A(f"v_dot2_f32_bf16 v{VKS+2*k+c}, v{VP+2*k+c}, v{VW+2*c}, 0")
    for k in range(8):
        for c in range(2):
            A(f"v_dot2_f32_bf16 v{VKS+2*k+c}, v{VP+2*k+2+c}, v{VW+2*c+1}, v{VKS+2*k+c}")
    for k in range(8):
        A(f"v_lshlrev_b32 v{VVU+2*k}, 16, v{VV+k}")
        A(f"v_and_b32 v{VVU+2*k+1}, 0xffff0000, v{VV+k}")
    for k in range(8):
        A(f"v_pk_mul_f32 {v(VKS+2*k,2)}, {v(VKS+2*k,2)}, {v(VVU+2*k,2)}")
    for c in range(2):
        for q in range(4):
            A(f"v_cvt_pk_bf16_f32 v{CA+4*c+q}, v{VKS+2*(7-2*q)+c}, v{VKS+2*(6-2*q)+c}")
        A(f"ds_write_b128 v{173+c if c else 57}, {v(CA+4*c,4)}")
    for c in range(2):
        for q in range(4):
            A(f"v_perm_b32 v{CA+8+4*c+q}, v{VQ+6-2*q}, v{VQ+7-2*q}, s{S_SELHI if c else S_SELLO}")
        A(f"ds_write_b128 v{175+c}, {v(CA+8+4*c,4)}")
    stamp(A, "kvq landed")
    A("s_waitcnt lgkmcnt(0)")
    for b in range(4):
        A(f"ds_read_b128 {v(CB+4*b,4)}, v9 offset:{1024*b}")
    for b in range(4):
        A(f"buffer_store_dwordx4 {v(CB+4*b,4)}, v{168+b}, {s(SRD_WS,4)}, 0 offen sc1")
    stamp(A, "rec stored")
    if O.bsplit:
        A(f"s_waitcnt vmcnt(0) lgkmcnt(0)")
        A("s_barrier")
        stamp(A, "rec acked")
        A(f"s_add_u32 s{S_TAG}, s{S_TAG}, 1")
        only_wave3(A, lambda: lf_signal(A, LF_A))
    else:
        A(f"s_waitcnt vmcnt({9 if O.kc_early else 4}) lgkmcnt(0)")
        A("s_barrier")
    A(f"v_add_u32 v177, {LDS_ST1}, v58")
    A(f"ds_read_b128 {v(R,4)}, v177")
    FA, FB, ACC = 72, 88, 104
    for e in range(4):
        A(f"ds_read_b128 {v(FA+4*e,4)}, v{B+1} offset:{64*e}")
        A(f"ds_read_b64_tr_b16 {v(FB+4*e,2)}, v{B} offset:{4096*e}")
        A(f"ds_read_b64_tr_b16 {v(FB+4*e+2,2)}, v{B} offset:{4096*e+512}")
    A(f"s_cmp_eq_u32 s{S_WAVE}, 0")
    A(f"s_cbranch_scc0 L_nost1")
    A("s_mov_b64 exec, 0xf")
    A(f"buffer_store_dwordx4 {v(R,4)}, v58, {s(SRD_WS,4)}, s{T+15} offen sc1")
    A("s_mov_b64 exec, -1")
    A("L_nost1:")
    for e in range(4):
        A(f"v_mfma_f32_16x16x32_bf16 {v(ACC,4)}, {v(FA+4*e,4)}, {v(FB+4*e,4)}, {'0' if e == 0 else v(ACC,4)}")
    A(f"v_lshlrev_b32 v64, 2, v{L}")
    A(f"s_cmp_ge_u32 s{S_WG}, 192")
    A(f"s_cbranch_scc1 L_nogemv")
    A("s_mov_b64 exec, 0xffff")
    A(f"buffer_store_dword v{ACC}, v64, {s(SRD_WS,4)}, s{T+16} offen sc1")
    A("s_mov_b64 exec, -1")
    A("L_nogemv:")
    A(f"v_readfirstlane_b32 s{S_TAG}, v178")
    A(f"v_readfirstlane_b32 s{S_TAG+1}, v179")
    A(f"s_add_u32 s{S_TAG}, s{S_TAG}, 1")
    stamp(A, "mod stored")
    if O.bsplit:
        def kc0():
            kcopy()
            A("s_waitcnt vmcnt(5)")
        split_wave3(A, kc0, lambda: A("s_waitcnt vmcnt(0)"))
        A("s_barrier")
        stamp(A, "B acked")
    else:
        A("s_waitcnt vmcnt(0)")
        stamp(A, "own ack")
        A("s_barrier")
        stamp(A, "rec acked")
    def others2():
        if not O.kc_early:
            if not O.bsplit: kcopy()
            A(f"s_cmp_eq_u32 s{S_WAVE}, 2")
            A(f"s_cbranch_scc0 L_nokc3")
            A(f"s_mov_b32 m0, {LDS_KC + 3*4224 + 32}")
            for i in range(4):
                A(f"buffer_load_dwordx4 v58, {s(SRD_SSMK,4)}, s{T+18} offen offset:{1024*i} lds")
            A("L_nokc3:")
        for gi in range(O.n_w1):
            for x in w1_group(gi, f"s{S_WAVE}", f"s{S_PM}", 64, O.w1_depth): A(x)
        if O.w2te:
            A(f"s_mul_i32 s{T+18}, s{S_WG}, 7168")
            A(f"s_mul_i32 s{T+17}, s{S_WAVE}, {19*128}")
            A(f"s_add_u32 s{T+18}, s{T+18}, s{T+17}")
            A(f"v_lshlrev_b32 v254, 7, v{L}")
            A(f"s_mov_b64 exec, 0x7ffff")
            A(f"buffer_load_dword v255, v254, {s(SRD_W2,4)}, s{T+18} offen ; nowait")
            A(f"s_mov_b64 exec, -1")
        stamp(A, "w1r0/sig")
    def sigA():
        if O.lfa:
            if O.bsplit: lf_signal(A, LF_B)
            else:
                lf_signal(A, LF_A)
            del _stamps[-1:]
            stamp(A, "w1r0/sig")
            return
        u = uid()
        A(f"s_and_b32 s{S_SIG}, s{S_WG}, 1")
        A(f"s_lshl_b32 s{S_SIG}, s{S_SIG}, 7")
        A("s_mov_b64 exec, 1")
        A(f"v_mov_b32 v252, s{S_SIG}")
        A(f"v_mov_b32 v253, 1")
        A(f"global_atomic_add v253, v252, v253, {s(S_DBG,2)} sc0 sc1")
        A(f"v_mov_b32 v254, s{S_TAG}")
        A(f"v_mov_b32 v255, s{S_TAG+1}")
        A(f"s_mov_b32 s{S_TMP}, {WS_SYNC + 128*FLG_A}")
        A(f"v_cmp_eq_u32 vcc, 127, v253")
        A(f"s_cbranch_vccz L_sig{u}")
        A(f"buffer_store_dwordx2 v[254:255], v252, {s(SRD_WS,4)}, s{S_TMP} offen sc1")
        A(f"L_sig{u}:")
        A("s_mov_b64 exec, -1")
        del _stamps[-1:]
        stamp(A, "w1r0/sig")
    split_wave3(A, others2, sigA)
    A(f"s_mul_i32 s{T+11}, s{T+11}, 64")
    A(f"s_add_u32 s{T+11}, s{T+11}, 7")
    A(f"v_lshlrev_b32 v62, 2, v{L}")
    A(f"v_add_u32 v62, s{T+13}, v62")

TSETS = ([7, 4, 3, 0], [6, 5, 2, 1])
def conv(A):
    VAB, VAA, VAE = 8, 16, 17
    VST = 24; VKX = 200; VGH, VX0 = 72, 88; ACC = 104; U = 56
    L = V_LANE
    A(f"v_lshrrev_b32 v3, 3, v{L}")
    if O.recperm:
        A(f"s_and_b32 s{T+6}, s{S_WG}, 7")
        A(f"v_xor_b32 v3, s{T+6}, v3")
    A(f"v_lshlrev_b32 v3, 7, v3")
    A(f"v_lshrrev_b32 v4, 4, v{L}")
    A(f"v_and_b32 v7, 7, v{L}")
    A(f"v_xor_b32 v7, v7, v4")
    A(f"v_lshl_add_u32 v3, v7, 4, v3")
    A(f"v_xor_b32 v7, 64, v3")
    A(f"s_lshl_b32 s{T+6}, s{S_WG}, 14")
    A(f"s_bfe_u32 s{T+8}, s{S_WG}, 0x40003")
    A(f"s_lshl_b32 s{T+8}, s{T+8}, 10")
    A(f"s_lshl_b32 s{T+7}, s{S_WAVE}, 12")
    A(f"v_and_b32 v21, 3, v{L}")
    A(f"v_mul_u32_u24 v21, 12288, v21")
    A(f"v_bfe_u32 v22, v{L}, 2, 2")
    A(f"v_lshl_add_u32 v21, v22, 11, v21")
    A(f"v_add_u32 v23, 2048, v21")
    A(f"v_cmp_eq_u32 vcc, 3, v22")
    A(f"s_lshl_b32 s{T+9}, s{S_CH}, 2")
    A(f"s_add_u32 s{T+9}, s{T+9}, {WS_MODP}")
    A(f"v_cndmask_b32 v21, v21, v23, vcc")
    A(f"s_lshl_b32 s{T+10}, s{S_CH}, 1")
    A(f"v_and_b32 v6, 15, v{L}")
    A(f"v_lshrrev_b32 v18, 1, v4")
    A(f"v_lshlrev_b32 v18, 2, v18")
    A(f"v_and_b32 v23, 1, v4")
    A(f"v_or_b32 v18, v18, v23")
    A(f"v_lshrrev_b32 v23, 1, v6")
    A(f"v_xor_b32 v18, v18, v23")
    A(f"v_lshlrev_b32 v23, 7, v6")
    A(f"v_lshl_add_u32 v23, v18, 4, v23")
    A(f"v_add_u32 v23, {LDS_STA}, v23")
    A(f"v_xor_b32 v216, 32, v23")
    A(f"v_lshlrev_b32 v5, 4, v{L}")
    A(f"v_lshlrev_b32 v18, 4, v4")
    A(f"v_xor_b32 v226, v5, v18")
    A(f"v_xor_b32 v227, 64, v226")
    A(f"v_lshlrev_b32 v18, 3, v0")
    A(f"v_add_u32 v18, {LDS_REC}, v18")
    A(f"v_mov_b32 v{VGH}, 0")
    A(f"v_mov_b32 v{VGH+1}, 0")
    A(f"ds_write_b64 v18, {v(VGH,2)}")
    A(f"v_mov_b32 v18, s{S_CARRY}")
    A(f"ds_write_b32 v18, v{VGH}")
    A(f"s_lshr_b32 s{T+12}, s{S_WAVE}, 1")
    for b in range(4):
        A(f"v_sub_u32 v18, v6, v4")
        A(f"v_add_u32 v18, {16-4*b}, v18")
        A(f"v_bfe_u32 v19, v18, 1, 3")
        A(f"v_xor_b32 v19, s{T+12}, v19")
        A(f"v_lshlrev_b32 v18, 7, v18")
        A(f"v_lshl_add_u32 v18, v19, 4, v18")
        A(f"v_add_u32 v{VAB+2*b}, {LDS_REC}, v18")
        A(f"v_xor_b32 v{VAB+2*b+1}, 64, v{VAB+2*b}")
    A(f"v_bfe_u32 v18, v{L}, 2, 2")
    A(f"v_and_b32 v19, 1, v18")
    A(f"v_add_u32 v18, 1, v18")
    A(f"v_lshrrev_b32 v18, 1, v18")
    A(f"v_and_b32 v20, 3, v{L}")
    A(f"v_add_u32 v18, v18, v20")
    A(f"v_lshlrev_b32 v18, 3, v18")
    A(f"v_lshl_add_u32 v18, v4, 5, v18")
    A(f"v_mul_u32_u24 v19, 4224, v19")
    A(f"s_mul_i32 s{T+13}, s{T+12}, 8448")
    A(f"s_add_u32 s{T+13}, s{T+13}, {LDS_KC}")
    A(f"v_add3_u32 v{VAA}, v18, v19, s{T+13}")
    A(f"v_bfe_u32 v19, v6, 1, 3")
    A(f"v_xor_b32 v19, s{T+12}, v19")
    A(f"v_lshlrev_b32 v18, 7, v6")
    A(f"v_lshl_add_u32 v18, v19, 4, v18")
    A(f"v_sub_u32 v19, 3, v4")
    A(f"v_lshl_add_u32 v18, v19, 2, v18")
    A(f"v_add_u32 v{VAE}, {LDS_REC+2048}, v18")
    A(f"v_xor_b32 v{VAE+1}, 64, v{VAE}")
    A(f"v_xor_b32 v{VAE+2}, 32, v{VAE}")
    A(f"v_xor_b32 v{VAE+3}, 96, v{VAE}")
    A(f"v_lshl_add_u32 v218, v6, 2, v4")
    A(f"v_lshl_add_u32 v218, v218, 2, s{S_CARRY}")
    A(f"s_add_u32 s{T+14}, s{T+7}, {LDS_KC}")
    A(f"v_bfe_u32 v24, v6, 2, 1")
    A(f"v_lshlrev_b32 v24, 1, v24")
    A(f"v_xor_b32 v24, v24, v4")
    A(f"v_lshlrev_b32 v219, 5, v6")
    A(f"v_lshl_add_u32 v219, v24, 3, v219")
    A(f"v_add_u32 v219, s{T+14}, v219")
    A(f"v_bfe_u32 v24, v{L}, 3, 1")
    A(f"v_lshlrev_b32 v24, 4, v24")
    A(f"v_xor_b32 v220, v24, v5")
    A(f"v_add_u32 v220, s{T+14}, v220")
    A(f"s_bitcmp1_b32 s{S_WAVE}, 0")
    for u in range(2):
        A(f"s_cselect_b32 s{T+14}, {TSETS[1][2*u]}, {TSETS[0][2*u]}")
        A(f"s_cselect_b32 s{T+15}, {TSETS[1][2*u+1]}, {TSETS[0][2*u+1]}")
        A(f"v_mov_b32 v24, s{T+14}")
        A(f"v_mov_b32 v25, s{T+15}")
        A(f"s_mov_b32 vcc_lo, 0")
        A(f"s_mov_b32 vcc_hi, -1")
        A(f"v_cndmask_b32 v24, v24, v25, vcc")
        A(f"v_and_b32 v25, 0x1ff, v5")
        A(f"v_lshl_add_u32 v{221+u}, v24, 9, v25")
    A(f"s_lshl_b32 s{S_CARRY}, s{S_CH}, 12")
    A(f"v_mov_b32 v22, 0")
    A(f"buffer_load_ushort v22, v22, {s(SRD_SSMD,4)}, s{T+10} offen")
    def pollA():
        u = uid()
        if O.lfa:
            lf_poll(A, LF_A, 24, 0 if O.bsplit else O.isleep)
            return
        A(f"s_mov_b64 exec, 3")
        A(f"v_lshlrev_b32 v252, 7, v{L}")
        A(f"s_mov_b32 s{S_TMP}, {WS_SYNC + 128*FLG_A}")
        A(f"s_mov_b32 s{S_SPIN}, 0x80000")
        A(f"L_poll{u}:")
        A(f"buffer_load_dwordx2 v[254:255], v252, {s(SRD_WS,4)}, s{S_TMP} offen sc1")
        A(f"s_sub_u32 s{S_SPIN}, s{S_SPIN}, 1")
        A(f"s_cbranch_scc1 L_pollx{u}")
        A("s_waitcnt vmcnt(0)")
        A(f"v_cmp_ne_u64 vcc, {s(S_TAG,2)}, v[254:255]")
        A(f"s_cbranch_vccz L_pollx{u}")
        A(f"s_sleep {O.sleep}")
        A(f"s_branch L_poll{u}")
        A(f"L_pollx{u}:")
        A("s_waitcnt vmcnt(0)")
        A(f"s_cmp_eq_u32 s{S_WG}, 0")
        A(f"s_cbranch_scc0 L_noep{u}")
        A("s_mov_b64 exec, 1")
        A(f"buffer_store_dwordx2 v[254:255], v252, {s(SRD_WS,4)}, s{S_TMP} offen offset:{128*(EPOCH-FLG_A)} sc1")
        A(f"L_noep{u}:")
        A("s_mov_b64 exec, -1")
    def w3A():
        pollA()
        stamp(A, "A released")
        A(f"s_mov_b32 m0, {LDS_REC+2048}")
        for i in range(16):
            if i: A(f"s_add_u32 m0, m0, 1024")
            A(f"s_xor_b32 s{T}, s{T+8}, {1024*i}")
            A(f"s_add_u32 s{T}, s{T}, s{T+6}")
            A(f"buffer_load_dwordx4 v{7 if i&1 else 3}, {s(SRD_WS,4)}, s{T} offen sc1 lds")
        if O.bsplit: lf_poll(A, LF_B, 24)
        A(f"s_cmp_eq_u32 s{S_WG}, 0")
        A(f"s_cbranch_scc0 L_noep")
        lf_signal(A, EPOCH)
        A(f"L_noep:")
        for i in range(16):
            if i % 4 == 0 or i == 14:
                A(f"s_mov_b32 m0, {LDS_STA + 4096*(i>>2) if i < 14 else LDS_STB - 2048}")
                A(f"s_mov_b32 s{T}, {WS_STAT + 4096*(i>>2)}")
            A(f"buffer_load_dwordx4 v{226+(i&1)}, {s(SRD_WS,4)}, s{T} offen offset:{1024*(i&3)} sc1 lds")
        A(f"s_mul_i32 s{T+18}, s{S_WG}, 7168")
        A(f"v_lshlrev_b32 v254, 7, v{L}")
        A(f"s_mov_b32 exec_hi, 0xffffff")
        if O.w2te: A(f"s_mov_b64 exec, 1")
        A(f"buffer_load_dword v255, v254, {s(SRD_W2,4)}, s{T+18} offen ; nowait")
        A(f"s_mov_b64 exec, -1")
        A("s_waitcnt vmcnt(17)")
    def oA():
        for gi in range(O.n_w1):
            A(f"s_waitcnt vmcnt({8 * (O.n_w1 - 1 - gi) + 1 + O.w2te})")
            for x in w1_read(gi): A(x)
        if O.w2w1:
            A("s_waitcnt lgkmcnt(0)")
            for gi in range(O.w2w1):
                for x in w2_group(gi, f"s{S_PM}", 8192 * gi):
                    A(x)
                    if x.startswith("buffer"): A(f"s_waitcnt vmcnt({O.w1_depth-1})")
        stamp(A, "A released")
        del _stamps[-1:]
    split_wave3(A, oA, w3A)
    A(f"v_cmp_eq_u32 vcc, s{T+11}, v{L}")
    A(f"v_cndmask_b32 v63, 0, v63, vcc")
    A("s_mov_b64 exec, 0xff")
    A(f"ds_write_b32 v62, v63")
    A("s_mov_b64 exec, -1")
    A("s_waitcnt lgkmcnt(0)")
    A("s_barrier")
    stamp(A, "rec landed")
    A(f"s_bitcmp1_b32 s{S_WAVE}, 0")
    A(f"s_cbranch_scc1 L_conv1")
    for var in range(3):
        par = min(var, 1)
        TS = TSETS[par]
        if var == 1:
            A(f"L_conv1:")
            A(f"s_cmp_eq_u32 s{S_WAVE}, 3")
            A(f"s_cbranch_scc1 L_conv3")
        if var == 2: A("L_conv3:")
        def afrag(buf, a_): return 136 + 32 * buf + 4 * a_
        def bfrag(buf, p, d): return 128 + 64 * buf + 32 * p + 4 * d
        def order(b):
            pairs = [(a_, J) for a_ in range(8) for J in TS if J >= a_]
            if b == 3: return [(a_, J, p) for p in (1, 0) for a_, J in pairs]
            return [(a_, J, p) for a_, J in pairs for p in range(2)]
        def reads(b):
            buf = b & 1
            seq = []; seen = set()
            for a_, J, p in order(b):
                if a_ not in seen:
                    seen.add(a_)
                    for h in range(2):
                        seq.append(f"ds_read_b64_tr_b16 {v(afrag(buf,a_)+2*h,2)}, v{VAA} offset:{512*a_+128*b+16*h}")
                if (J - a_, p) not in seen:
                    seen.add((J - a_, p))
                    seq.append(f"ds_read_b128 {a(bfrag(buf,p,J-a_),4)}, v{VAB+2*b+p} offset:{2048*(J-a_)}")
            return seq
        mark = len(A.items)
        r0 = reads(0)
        for x in r0[:O.fs]: A(x)
        ml = [f"buffer_load_dword v21, v21, {s(SRD_WS,4)}, s{T+9} offen sc1"] + modv_loads(24)
        scal = [f"v_add_f32_dpp v21, v21, v21 quad_perm:[1,0,3,2] row_mask:0xf bank_mask:0xf",
                  f"v_lshlrev_b32 v1, 16, v22",
                  f"v_add_f32_dpp v21, v21, v21 quad_perm:[2,3,0,1] row_mask:0xf bank_mask:0xf",
                  f"v_cvt_pk_bf16_f32 v21, v21, v21",
                  f"v_lshlrev_b32 v21, 16, v21",
                  f"v_add_f32 v5, 1.0, v21",
                  f"v_cvt_pk_bf16_f32 v5, v5, v5",
                  f"v_lshlrev_b32 v5, 16, v5",
                  f"v_readlane_b32 s{T+16}, v21, 0",
                  f"v_readlane_b32 s{T+18}, v21, 8",
                  f"v_readlane_b32 s{T+17}, v5, 4",
                  f"v_readlane_b32 s{T+19}, v5, 12",
                  f"v_mov_b32 v5, s{T+18}",
                  f"v_mul_f32 v7, s{T+17}, v5",
                  f"v_mul_f32 v21, s{T+16}, v5",
                  f"v_mov_b32 v217, s{T+19}"]
        kx = []
        for ti, J in enumerate(TS):
            so = 2048 * J if J < 7 else LDS_STB - LDS_STA
            kx += [f"ds_read_b32 v{VKX+4*ti+k}, v{VAE+k} offset:{2048*J}" for k in range(4)]
            kx += [f"ds_read_b128 {v(VST+4*ti,4)}, v23 offset:{so}", f"ds_read_b128 {v(VST+16+4*ti,4)}, v216 offset:{so}"]
        side = []; side2 = []; side3 = []; ntouch = 0; postg = []
        if var < 2:
            allg = [w1_group(gi, f"s{S_WAVE}", f"s{S_PM}", 224) for gi in range(O.n_w1, 4)] + [w2_group(gi, f"s{S_PM}", 8192 * gi) for gi in range(O.w2w1, min(O.w2e, O.w2side))]
            for x in allg[:len(allg) - O.post]: side.extend(x)
            postg = sum(allg[len(allg) - O.post:], [])
            if O.n_w1 < 4 and O.w2side == 4:
                postg = sum([w1_read(gi) for gi in range(O.n_w1, 4)], []) + ["s_waitcnt lgkmcnt(0)"] + postg
        pre = []
        for ti in range(4):
            d = VKX + 4 * ti + 2
            x = VX0 + 4 * ti
            pre += [f"v_and_b32 v{x}, 0xffff0000, v{d}", f"v_and_b32 v{x+1}, 0xffff0000, v{d+1}",
                    f"v_lshlrev_b32 v{x+2}, 16, v{d}", f"v_lshlrev_b32 v{x+3}, 16, v{d+1}"]
            for r in range(4): pre.append(f"v_fma_f32 v{VGH+4*ti+r}, v{x+r}, v{VST+4*ti+r}, v{VST+16+4*ti+r}")
            for r in range(4): pre.append(f"v_fma_f32 v{VGH+4*ti+r}, v{VGH+4*ti+r}, v7, v21")
        pre.insert(0, "s_waitcnt lgkmcnt(15)")
        started = set()
        if O.dbgC & 1: side = []
        if O.dbgC & 4: pre = []; kx = []
        nside = len(side)
        tailg = w1_group(f"s{S_WAVE}", 3, 3 * 32768, 60)
        mv = modv_ops(24) if O.mvearly else []
        if O.dbgC & 2: mv = []; scal = []
        if O.dbgC & 8: tailg = []
        pre = kx + pre
        for b in range(4):
            nxt = reads(b + 1) if b < 3 else []
            if b == 0: nxt = r0[O.fs:] + nxt
            if b == 2:
                if var == 2: A(f"s_waitcnt vmcnt({2 + 8 * O.mvearly})")
                A("s_barrier")
            for n, (a_, J, p) in enumerate(order(b)):
                acc = ACC + 8 * TS.index(J) + 4 * p
                c = v(acc, 4) if (J, p) in started else "0"
                started.add((J, p))
                if b == 0:
                    need = (v(afrag(0,a_)+2,2) + ",", a(bfrag(0,p,J-a_),4) + ",")
                    while any(x.split()[1] in need for x in nxt): A(nxt.pop(0))
                A(f"v_mfma_f32_16x16x32_bf16 {v(acc,4)}, {v(afrag(b&1,a_),4)}, {a(bfrag(b&1,p,J-a_),4)}, {c}")
                if nxt: A(nxt.pop(0))
                slot = 36 * b + n
                if b == 0 and nxt and len(nxt) > 34 - n: A(nxt.pop(0))
                elif ml: A(ml.pop(0))
                elif side and slot * nside >= (nside - len(side)) * 124: A(side.pop(0))
                elif b == 1 and (scal or mv): A((scal or mv).pop(0))
                elif b >= 2 and pre: A(pre.pop(0))
                if b == 3:
                    if n == 21:
                        for ti, JJ in enumerate(TS):
                            A(f"ds_write_b32 v218, v{ACC+8*ti+7} offset:{256*JJ+4}")
                    elif n == 24:
                        assert not side and not any(x.startswith("ds_read") for x in pre)
                        A("s_waitcnt lgkmcnt(0)")
                        A("s_barrier")
                        for tj, JJ in enumerate(TS):
                            A(f"ds_read_b32 v{U+tj}, v218 offset:{256*JJ}")
                    elif n > 24:
                        for _ in range(2):
                            if tailg: A(tailg.pop(0))
                    elif pre: A(pre.pop(0))
            for x in nxt: A(x)
            if b == 1:
                for x in scal + mv: A(x)
        if var: del _stamps[-(5 if O.fine else 1):]
        stamp(A, "conv mfma")
        for x in side: A(x)
        for x in pre + tailg: A(x)
        for ti in range(4):
            z1, g_, x0 = ACC + 8 * ti + 4, VGH + 4 * ti, VX0 + 4 * ti
            A(f"v_fmac_f32 v{x0}, v{g_}, v{U+ti}")
            for r in range(1, 4):
                A(f"v_fmac_f32 v{x0+r}, v{g_+r}, v{z1+r-1}")
        for ti in range(4):
            for r in range(4):
                A(f"v_dot2_f32_bf16 v{ACC+8*ti+r}, v{VKX+4*ti+(r&1)}, v{1 if r < 2 else 22}, v{ACC+8*ti+r}")
        if O.fine:
            stamp(A, "e:prebar"); stamp(A, "e:bar")
        A(f"s_add_u32 s{T+15}, s{S_CARRY}, {WS_X1C}")
        A(f"s_add_u32 s{T+14}, s{S_CARRY}, {WS_X1}")
        O1, O2 = 136, 144
        for ti in range(4):
            z0, g_, x0 = ACC + 8 * ti, VGH + 4 * ti, VX0 + 4 * ti
            for h in range(2):
                A(f"v_pk_fma_f32 {v(x0+2*h,2)}, {v(g_+2*h,2)}, {v(z0+2*h,2)}, {v(x0+2*h,2)}")
            for h in range(2):
                A(f"v_pk_mul_f32 {v(VST+4*ti+2*h,2)}, {v(x0+2*h,2)}, v[216:217] op_sel:[0,1] op_sel_hi:[1,1]")
            for h in range(2):
                A(f"v_cvt_pk_bf16_f32 v{O2+2*ti+h}, v{VST+4*ti+2*h}, v{VST+4*ti+2*h+1}")
            A(f"ds_write_b64 v219, {v(O2+2*ti,2)} offset:{512*ti}")
        for ti in range(4):
            x0 = VX0 + 4 * ti
            for h in range(2):
                A(f"v_cvt_pk_bf16_f32 v{O1+2*ti+h}, v{x0+2*h}, v{x0+2*h+1}")
            A(f"ds_write_b64 v219, {v(O1+2*ti,2)} offset:{2048+512*ti}")
        A("s_waitcnt lgkmcnt(4)")
        for k in range(2): A(f"ds_read_b128 {v(152+4*k,4)}, v220 offset:{1024*k}")
        A("s_waitcnt lgkmcnt(2)")
        for k in range(2, 4): A(f"ds_read_b128 {v(152+4*k,4)}, v220 offset:{1024*k}")
        for k in range(4):
            A(f"buffer_store_dwordx4 {v(152+4*k,4)}, v{221+(k&1)}, {s(SRD_WS,4)}, s{T+15-(k>>1)} offen sc1")
        if O.fine: stamp(A, "e:stored")
        if postg and O.n_w1 < 4: A(f"s_waitcnt vmcnt({12 + 8 * (4 - O.post)})")
        for x in postg: A(x)
        if O.fine: stamp(A, "e:post")
        if var == 2 and O.post: A("s_waitcnt vmcnt(0)")
        if var < 2: A(f"s_branch L_convdone")
    A(f"L_convdone:")
    stamp(A, "x1 stored")
    stamp_flush(A, 0)

VCS, VSBW = 64, 80
ACC1 = 128
VXR = 236

def w2frag(u, e):
    return (128 + 8 * e if e < 16 else 8 * (e - 16)) + 4 * u

def w2_setup(A):
    dma_voff(A, VW2S, VW2S + 1, 1024, 64)
    A(f"v_add_u32 v{VW2S+1}, {8*1024-1024}, v{VW2S+1}")
    A(f"v_add_u32 v{VW2S+2}, {2*(8*1024-1024)}, v{VW2S}")
    A(f"v_add_u32 v{VW2S+3}, {2*(8*1024-1024)}, v{VW2S+1}")
    tr_addr32(A, VW2 + 2, 64, 4)
    A(f"s_lshl_b32 s{S_TMP}, s{S_WAVE}, 5")
    A(f"v_xor_b32 v{VW2+2}, s{S_TMP}, v{VW2+2}")
    A(f"v_xor_b32 v{VW2+3}, 32, v{VW2+2}")
    A(f"v_xor_b32 v{VW2+4}, 64, v{VW2+2}")
    A(f"v_xor_b32 v{VW2+5}, 96, v{VW2+2}")
    A(f"s_mul_i32 s{S_PS}, s{S_WAVE}, {448*1024}")
    A(f"s_lshl_b32 s{S_TMP}, s{S_J}, 7")
    A(f"s_add_u32 s{S_PS}, s{S_PS}, s{S_TMP}")

def w2_group(gi, ldsreg, ldsoff, src=None):
    src = src or f"s{S_PS}"
    return [f"s_add_u32 s{S_TMP}, s{S_PE}, {gi}",
            f"s_add_u32 m0, {ldsreg}, {ldsoff}",
            f"s_cmp_ge_u32 s{S_TMP}, 7",
            f"s_cselect_b32 s{S_PO}, 7, 0",
            f"s_sub_u32 s{S_TMP}, s{S_TMP}, s{S_PO}",
            f"s_lshl_b32 s{S_PO}, s{S_TMP}, 16",
            f"s_add_u32 s{S_PO}, s{S_PO}, {src}"] + pieces8(VW2S, SRD_W2, 32768)

def w2_addr(A, base):
    for k in range(4): A(f"v_add_u32 v{VW2H+k}, {base}, v{VW2+2+k}")

def w2_read(gi, off):
    return [f"ds_read_b64_tr_b16 {a(w2frag(u, 4*gi+e)+2*h,2)}, v{VW2H+2*u+h} offset:{off+2048*e+1024*h}" for e in range(4) for u in range(2) for h in range(2)]

def gemm1_setup(A):
    L = V_LANE
    dma_voff(A, 56, 57, 4096, 5)
    A(f"v_bfe_u32 v5, v56, 6, 1")
    A(f"v_lshl_add_u32 v58, v5, 6, v56")
    A(f"v_lshl_add_u32 v59, v5, 6, v57")
    A(f"v_add_u32 v57, {8*4096-1024}, v57")
    A(f"v_add_u32 v59, {8*4096-1024}, v59")
    A(f"s_lshl_b32 s{T}, s{S_WAVE}, 16")
    A(f"s_lshl_b32 s{T+1}, s{S_RB}, 8")
    A(f"s_add_u32 s{T}, s{T}, s{T+1}")
    A(f"s_and_b32 s{T+2}, s{S_C}, 1")
    A(f"s_lshl_b32 s{T+2}, s{T+2}, 7")
    A(f"s_add_u32 s{T+2}, s{T+2}, {WS_X1}")
    A(f"s_cmp_ge_u32 s{S_C}, 14")
    A(f"s_cselect_b32 s{T+2}, s{T+2}, {WS_X1C}")
    A(f"s_add_u32 s{T}, s{T}, s{T+2}")
    A(f"s_add_u32 s{SRD_K}, s{SRD_WS}, s{T}")
    A(f"s_addc_u32 s{SRD_K+1}, s{SRD_WS+1}, 0")
    A(f"v_add_u32 v60, 128, v56")
    A(f"v_add_u32 v61, 128, v57")
    A(f"s_lshl_b32 s{T+2}, s{S_WAVE}, 11")
    A(f"s_lshl_b32 s{T+5}, s{S_ROT}, 18")
    tr_addr32(A, 8, 5, 8)
    A(f"v_xor_b32 v9, 64, v8")
    A(f"v_add_u32 v10, 0x10000, v8")
    A(f"v_add_u32 v11, 0x10000, v9")
    A(f"v_lshlrev_b32 v18, 4, v{L}")
    A(f"s_mul_i32 s{T+3}, s{S_RB}, {4*112*1024}")
    A(f"s_lshl_b32 s{T+4}, s{S_C}, 13")
    A(f"s_add_u32 s{T+3}, s{T+3}, s{T+4}")
    A(f"s_add_u32 s{T+3}, s{T+3}, s{T+2}")
    A(f"s_add_u32 s{T+3}, s{T+3}, {WS_H}")
    tr_addr32(A, 44, 5, 4)
    A(f"s_add_u32 s{T+6}, s{T+2}, {LDS_XR}")
    A(f"v_add_u32 v44, s{T+6}, v44")
    A(f"v_xor_b32 v45, 32, v44")
    A(f"v_xor_b32 v42, 64, v44")
    A(f"v_xor_b32 v43, 96, v44")
    A(f"s_lshl_b32 s{T+7}, s{S_RB}, 11")
    A(f"s_add_u32 s{T+7}, s{T+7}, {WS_ST2}")
    A(f"s_lshr_b32 s{T+8}, s{S_RT}, 4")
    A(f"s_lshl_b32 s{T+8}, s{T+8}, 1")
    A(f"s_bfe_u32 s{T+9}, s{S_RT}, 0x20002")
    A(f"s_lshl_b32 s{T+9}, s{T+9}, 6")
    A(f"s_add_u32 s{T+8}, s{T+8}, s{T+9}")
    A(f"s_lshl_b32 s{T+8}, s{T+8}, 7")
    A(f"s_add_u32 s{T+9}, s{T+8}, {WS_SYNC + 128*FLG_3}")
    A(f"s_add_u32 s{T+8}, s{T+8}, {WS_SYNC + 128*FLG_4}")
    A(f"v_min_u32 v14, 13, v{L}")
    A(f"v_and_b32 v5, 1, v14")
    A(f"v_lshrrev_b32 v14, 1, v14")
    A(f"v_lshlrev_b32 v14, 10, v14")
    A(f"v_lshl_add_u32 v14, v5, 7, v14")

def modv_loads(M):
    L = [f"v_lshlrev_b32 v{M+20}, 4, v0"]
    L += [f"s_mov_b32 s{T+p}, {WS_MODP + 12288*p + 1536*4}" for p in range(4)]
    L += [f"buffer_load_dwordx4 {v(M+4*p,4)}, v{M+20}, {s(SRD_WS,4)}, s{T+p} offen sc1" for p in range(4)]
    L += [f"v_lshlrev_b32 v{M+21}, 2, v{V_LANE}", f"s_lshl_b32 s{T+4}, s{S_J}, 8"]
    L += [f"s_add_u32 s{T+p}, s{T+4}, {WS_MODP + 12288*p + 2560*4}" for p in range(4)]
    L += [f"buffer_load_dword v{M+16+p}, v{M+21}, {s(SRD_WS,4)}, s{T+p} offen sc1" for p in range(4)]
    return L

def modv_ops(M):
    L = [f"s_lshr_b32 s{T+5}, s{S_WAVE}, 1",
         f"v_cvt_f32_u32 v{M+22}, s{T+5}",
         f"s_xor_b32 s{T+5}, s{T+5}, 1",
         f"s_lshl_b32 s{T+5}, s{T+5}, 10",
         f"s_add_u32 s{T+5}, s{T+5}, {LDS_MODV}",
         f"s_lshl_b32 s{T+4}, s{S_ROT}, 7",
         f"v_lshrrev_b32 v{M+20}, 1, v{M+20}",
         f"v_subrev_u32 v{M+20}, s{T+4}, v{M+20}",
         f"v_and_b32 v{M+20}, 0x3ff, v{M+20}",
         f"v_add_u32 v{M+20}, s{T+5}, v{M+20}"]
    for k in range(4): L += [f"v_add_f32 v{M+k}, v{M+k}, v{M+4+k}", f"v_add_f32 v{M+8+k}, v{M+8+k}, v{M+12+k}"]
    for k in range(4): L += [f"v_add_f32 v{M+k}, v{M+k}, v{M+8+k}"]
    L += [f"v_add_f32 v{M+16}, v{M+16}, v{M+17}", f"v_add_f32 v{M+18}, v{M+18}, v{M+19}"]
    for k in range(2): L += [f"v_cvt_pk_bf16_f32 v{M+4+k}, v{M+2*k}, v{M+2*k+1}"]
    L += [f"v_add_f32 v{M+16}, v{M+16}, v{M+18}"]
    for k in range(2): L += [f"v_lshlrev_b32 v{M+2*k}, 16, v{M+4+k}", f"v_and_b32 v{M+2*k+1}, 0xffff0000, v{M+4+k}"]
    L += [f"v_cvt_pk_bf16_f32 v{M+16}, v{M+16}, v{M+16}"]
    for k in range(4): L += [f"v_add_f32 v{M+k}, v{M+22}, v{M+k}"]
    L += [f"v_lshlrev_b32 v{M+16}, 16, v{M+16}"]
    for k in range(2): L += [f"v_cvt_pk_bf16_f32 v{M+4+k}, v{M+2*k}, v{M+2*k+1}"]
    L += [f"v_mul_f32 v{M+16}, 0xbf317218, v{M+16}",
          f"ds_write_b64 v{M+20}, {v(M+4,2)}",
          f"v_add_u32 v{M+21}, {LDS_GB}, v{M+21}",
          f"ds_write_b32 v{M+21}, v{M+16}",
          f"v_mov_b32 v{M+17}, 0",
          f"v_and_b32 v{M+18}, 60, v{M+21}",
          f"v_add_u32 v{M+18}, {LDS_MODV+2048}, v{M+18}",
          f"ds_write_b32 v{M+18}, v{M+17}"]
    return L

def window3(A):
    L = V_LANE
    M = 168
    A(f"v_xor_b32 v7, v6, v4")
    A(f"v_and_b32 v7, 1, v7")
    A(f"v_lshrrev_b32 v45, 2, v6")
    A(f"v_or_b32 v7, v7, v45")
    A(f"v_lshrrev_b32 v45, 1, v6")
    A(f"v_lshlrev_b32 v45, 10, v45")
    A(f"v_lshrrev_b32 v46, 1, v4")
    A(f"v_lshl_add_u32 v45, v46, 4, v45")
    A(f"v_add_u32 v45, {LDS_MODV}, v45")
    A(f"v_cmp_eq_u32 vcc, 0, v7")
    A(f"v_mov_b32 v47, {LDS_MODV+2048}")
    A(f"v_cndmask_b32 v47, v47, v45, vcc")
    A(f"v_mov_b32 v46, 32")
    A(f"v_cndmask_b32 v46, 0, v46, vcc")
    w2_addr(A, f"s{S_PM}")
    gemm1_setup(A)
    A(f"s_waitcnt vmcnt({8 * O.post})")
    A("s_barrier")
    stamp(A, "x1 acked")
    def rd():
        for gi in range(4):
            if gi == 4 - O.post: A("s_waitcnt vmcnt(0)")
            for x in w2_read(gi, 8192 * gi): A(x)
        A(f"s_cmp_eq_u32 s{S_WAVE}, 2")
        A(f"s_cbranch_scc0 L_now3w2")
        A(f"s_lshl_b32 s{T+11}, s{S_J}, 7")
        A(f"s_add_u32 s{T+11}, s{T+11}, {3*448*1024}")
        A("s_waitcnt lgkmcnt(0)")
        for gi in range(4):
            for x in w2_group(gi, f"s{S_PM}", 8192 * gi, f"s{T+11}"): A(x)
        A("L_now3w2:")
    def fin():
        if O.lf2: lf_signal(A, LF_2)
        else:
            signal_issue(A, CNT_2)
        for gi in range(4):
            for x in w1_read(gi): A(x)
        w2_addr(A, 65536)
        if not O.lf2: signal_finish(A, FLG_2)
    split_wave3(A, rd, fin)
    stamp(A, "modv")
    NB = 8
    def rdv(e):
        A(f"ds_read_b128 {v(192+4*(e%NB),4)}, v47")
        A(f"v_add_u32 v47, v47, v46")
    for e in range(NB): rdv(e)
    for e in range(32):
        A(f"v_mfma_f32_16x16x32_bf16 v[48:51], {a(4*e,4)}, {v(192+4*(e%NB),4)}, {'0' if e == 0 else 'v[48:51]'}")
        if e + NB < 32: rdv(e + NB)
    A(f"v_lshrrev_b32 v4, 4, v{L}")
    A(f"v_and_b32 v6, 15, v{L}")
    A(f"s_lshl_b32 s{T+13}, s{S_WAVE}, 9")
    A(f"s_add_u32 s{T+13}, s{T+13}, {LDS_CS}")
    A(f"v_and_b32 v5, 1, v6")
    A(f"v_lshlrev_b32 v5, 6, v5")
    A(f"v_lshl_add_u32 v5, v4, 4, v5")
    A(f"v_lshrrev_b32 v7, 1, v6")
    A(f"v_lshl_add_u32 v5, v7, 8, v5")
    A(f"v_add_u32 v5, s{T+13}, v5")
    A(f"s_mov_b32 exec_lo, 0x000f000f")
    A(f"s_mov_b32 exec_hi, 0x000f000f")
    A(f"ds_write_b128 v5, v[48:51]")
    A("s_mov_b64 exec, -1")
    A(f"v_lshrrev_b32 v5, 5, v{L}")
    A(f"v_lshlrev_b32 v5, 4, v5")
    A(f"v_add_u32 v5, s{T+13}, v5")
    A("s_waitcnt lgkmcnt(0)")
    for k in range(4):
        A(f"ds_read_b128 {v(VCS+4*k,4)}, v5 offset:{32*k}")
        A(f"ds_read_b128 {v(VSBW+4*k,4)}, v5 offset:{256+32*k}")
    A(f"v_mov_b32 v6, {hex(NLOG2E)}")
    for r in range(0, 16, 2):
        A(f"v_pk_mul_f32 {v(VSBW+r,2)}, {v(VSBW+r,2)}, v[6:7] op_sel_hi:[1,0]")
    stamp(A, "colsums")
    A(f"s_cmp_eq_u32 s{S_WAVE}, {O.poll2}")
    A(f"s_cbranch_scc0 L_np2")
    if O.lf2: lf_poll(A, LF_2, 100)
    else: poll(A, 16, 128, WS_SYNC + 128 * FLG_2)
    A("L_np2:")
    A("s_waitcnt vmcnt(0)")
    A("s_barrier")
    stamp(A, "2 released")

def silu_ops(acc, rin, mr, tmp, out, packed=True):
    L = []
    W = O.sw; tmp = 48 if W <= 8 else 112
    for g0 in range(0, 16, W):
        for r in range(0, W, 2):
            L.append(f"v_pk_fma_f32 {v(tmp+r,2)}, {v(VCS+g0+r,2)}, {v(rin,2)}, {v(VSBW+g0+r,2)} op_sel:[0,1,0] op_sel_hi:[1,1,1]")
        for r in range(0, W, 2):
            L.append(f"v_pk_fma_f32 {v(acc+g0+r,2)}, {v(acc+g0+r,2)}, {v(rin,2)}, {v(tmp+r,2)} op_sel:[0,0,0] op_sel_hi:[1,0,1]")
        for i in range(W): L.append(f"v_exp_f32 v{tmp+i}, v{acc+g0+i}")
        for r in range(0, W, 2): L.append(f"v_pk_add_f32 {v(tmp+r,2)}, {v(tmp+r,2)}, 1.0 op_sel_hi:[1,0]")
        for i in range(W): L.append(f"v_rcp_f32 v{tmp+i}, v{tmp+i}")
        for r in range(0, W, 2): L.append(f"v_pk_mul_f32 {v(tmp+r,2)}, {v(tmp+r,2)}, {v(acc+g0+r,2)}")
        for r in range(0, W, 2): L.append(f"v_cvt_pk_bf16_f32 v{out+(g0+r)//2}, v{tmp+r}, v{tmp+r+1}")
    return L

def mix(x, y):
    out = []; k = 0
    for i, a_ in enumerate(x):
        out.append(a_)
        while k < len(y) and k * len(x) < (i + 1) * len(y):
            out.append(y[k]); k += 1
    return out + y[k:]

def cost(ins):
    return 8 if ins.startswith(("v_exp", "v_rcp")) else 4

def own_flag(A, base):
    A(f"s_lshl_b32 s{S_TMP}, s{S_WG}, 7")
    A(f"s_add_u32 s{S_TMP}, s{S_TMP}, {WS_SYNC + 128*base}")
    A("s_mov_b64 exec, 1")
    A(f"v_mov_b32 v252, 0")
    A(f"v_mov_b32 v253, 1")
    A(f"buffer_store_dword v253, v252, {s(SRD_WS,4)}, s{S_TMP} offen sc1")
    A("s_mov_b64 exec, -1")

def recheck(A, cmp, reload_):
    u = uid()
    A(f"s_mov_b32 s{S_SPIN}, 0x80000")
    A(f"L_rc{u}:")
    for x in cmp: A(x)
    A(f"s_cbranch_vccz L_rcx{u}")
    A(f"s_sleep 1")
    for x in reload_: A(x)
    A(f"s_sub_u32 s{S_SPIN}, s{S_SPIN}, 1")
    A("s_waitcnt vmcnt(0)")
    A(f"s_cbranch_scc0 L_rc{u}")
    A(f"L_rcx{u}:")

def gemm1(A):
    L = V_LANE
    XF = 192; VRS = 96; SG = 104; TMP, OUT = 20, 24
    A("; ---- GEMM 1 ----")
    def chunk(n, src=None):
        h = 4 * (n >> 3)
        return [f"s_add_u32 m0, s{T+2}, {8192*n}",
                f"s_and_b32 s{T+5}, s{T+5}, 0x1fffff",
                f"buffer_load_dwordx4 v{56+h}, {s(SRD_K,4)}, s{T+5} offen sc1 lds",
                f"buffer_load_dwordx4 v{57+h}, {s(SRD_K,4)}, s{T+5} offen offset:1024 sc1 lds",
                f"s_add_u32 s{T+5}, s{T+5}, 262144"]
    xres = [f"s_lshl_b32 s{T+12}, s{S_J}, 18",
            f"s_lshl_b32 s{T+13}, s{S_WAVE}, 16",
            f"s_add_u32 s{T+12}, s{T+12}, s{T+13}",
            f"s_lshl_b32 s{T+13}, s{S_RT}, 6",
            f"s_add_u32 s{T+12}, s{T+12}, s{T+13}",
            f"s_add_u32 m0, s{T+2}, {LDS_XR}",
            f"s_add_u32 s{T+12}, s{T+12}, {WS_X1}",
            f"buffer_load_dwordx4 v58, {s(SRD_WS,4)}, s{T+12} offen sc1 lds",
            f"buffer_load_dwordx4 v59, {s(SRD_WS,4)}, s{T+12} offen offset:1024 sc1 lds"]
    def w3w2():
        for gi in range(O.w2e):
            for x in w2_read(gi, 8192 * gi): A(x)
        A("s_waitcnt lgkmcnt(0)")
    w2b = lambda gi: w2_group(4 + gi, f"s{S_PM}", 8192 * gi if gi < 2 else 65536)
    A(f"s_lshl_b32 s{S_PM}, s{S_WAVE}, 14")
    A(f"s_cmp_ge_u32 s{S_C}, 14")
    A(f"s_cbranch_scc1 L_stat")
    for n in range(4):
        for x in chunk(n, WS_X1C): A(x)
    only_wave3(A, w3w2)
    def xread(st, e):
        return [f"ds_read_b64_tr_b16 {v(XF+4*((2*e+(st&1))%8)+2*h,2)}, v{8+st} offset:{2048*e+512*h}" for h in range(2)]
    def hstore(st, out):
        return [f"s_add_u32 s{T+4}, s{T+3}, {112*1024*st}"] + [f"buffer_store_dwordx4 {v(out+4*k,4)}, v18, {s(SRD_WS,4)}, s{T+4} offen offset:{1024*k} {['sc1', 'sc0 sc1', 'sc1 nt'][O.hs]}" for k in range(2)]
    def mf(st, e):
        acc = ACC1 + 16 * st
        return f"v_mfma_f32_32x32x16_bf16 {v(acc,16)}, {a(4*e,4)}, {v(XF+4*((2*e+(st&1))%8),4)}, {'0' if e == 0 else v(acc,16)}"
    sld = [f"buffer_load_dwordx4 {v(SG+4*h,4)}, v18, {s(SRD_WS,4)}, s{T+7} offen offset:{1024*h} sc1" for h in range(2)]
    side = sum([chunk(n, WS_X1C + 128 * (n >> 3)) for n in range(4, 16)], []) + xres
    ops = [1] * 8
    def emit(x, tile=0):
        A(x)
        if x.startswith("buffer"): ops.append(tile)
    def put(k):
        for _ in range(k):
            if side: emit(side.pop(0), 1)
    def ckpt(need, name=None):
        while sum(ops) < need: put(1)
        pos = [k for k, t in enumerate(ops) if t][need - 1]
        A(f"s_waitcnt vmcnt({len(ops) - 1 - pos})")
        A("s_barrier")
        if name: stamp(A, name)
    LOOK = O.look
    gates = {0: 4, 8: 8, 16: 16, 32: 20, 40: 24, 48: 34} if O.prog else {0: 4, 8: 8, 16: 16, 32: 34}
    ckpt(4, "ckpt0")
    for n in range(LOOK):
        for st in range(2):
            for x in xread(st, n): A(x)
    for e in range(32):
        n = e + LOOK
        if n in gates:
            ckpt(gates[n], "half1" if n == 32 else None)
            if n == 32:
                for x in sld: emit(x)
        if O.wmerge: A(f"s_waitcnt lgkmcnt({4 * (LOOK - 1)})")
        for st in range(2):
            A(mf(st, e))
            for x in xread(st + 2 * (n >> 5), n & 31): A(x)
            put(O.pa0 if e < 8 else O.pa)
    def spread(h):
        Ls = []
        for k in range(2):
            Ls += [f"v_mov_b32 v{VRS+4*h+k}, v{SG+4*h+2*k}", f"v_mov_b32 v{VRS+4*h+2+k}, v{SG+4*h+2*k}"]
        for k in range(2):
            Ls += [f"v_permlane32_swap_b32 v{VRS+4*h+k}, v{VRS+4*h+2+k}"]
        return Ls
    def scheck(h):
        recheck(A, [f"v_and_b32 v{TMP}, v{SG+4*h+1}, v{SG+4*h+3}", f"v_cmp_ne_u32 vcc, 1, v{TMP}"], [sld[h]])
    xr = [f"ds_read_b64_tr_b16 {v(VXR+2*k,2)}, v{44-(k&2)+(k&1)} offset:{1024*(k&1)}" for k in range(4)]
    grp = lambda gi: w2_group(gi, f"s{S_PM}", 8192 * (gi & 1))
    E = O.w2e
    late = grp(E) + grp(E + 1) + xr
    rds = []
    w2_addr(A, f"s{S_PM}")
    def step(e, st):
        if st == 2:
            if e + LOOK + 32 in gates: ckpt(gates[e + LOOK + 32])
            A(f"s_waitcnt lgkmcnt({4 * min(LOOK - 1, 31 - e)})")
        A(mf(st, e))
        if e + LOOK < 32:
            for x in xread(st, e + LOOK): A(x)
    todo = [(e, st) for e in range(32) for st in (2, 3)]
    nst = None
    while todo:
        e, st = todo.pop(0)
        if (e, st) == (16, 2): stamp(A, "B16")
        step(e, st)
        if side: put(2)
        elif e > 48 - 32 - LOOK and nst is not None and late:
            for _ in range(O.pb):
                if late and not late[0].startswith("ds_read"): emit(late.pop(0))
        if (e, st) == (O.sck, 3):
            scheck(0)
            stamp(A, "stats0")
            for x in spread(0): A(x)
            for q in range(2):
                prev = ""
                for x in silu_ops(ACC1 + 16 * q, VRS + 2 * q, VRS + 2 * q + 1, TMP, OUT + 8 * q, True) + hstore(q, OUT + 8 * q):
                    if O.ovl and x[:5] in ("v_exp", "v_rcp") and prev[:5] != x[:5] and todo[0] != (16, 2):
                        step(*todo.pop(0))
                    emit(x, 0); prev = x
            nst = len(ops)
            stamp(A, "burst0")
        if (e, st) == (O.f0at, 3):
            A(f"s_waitcnt vmcnt({len(ops) - nst})")
            A("s_barrier")
            only_wave3(A, lambda: own_flag(A, FLG_4))
    for x in late: emit(x)
    stamp(A, "g1 mfma")
    scheck(1)
    for x in spread(1): A(x)
    for st in range(2, 4):
        for x in silu_ops(ACC1 + 16 * st, VRS + 2 * st, VRS + 2 * st + 1, TMP, OUT + 8 * (st & 1), True): A(x)
        if st == 3: A(f"buffer_load_dword v12, v14, {s(SRD_WS,4)}, s{T+8} offen sc1")
        for x in hstore(st, OUT + 8 * (st & 1)): A(x)
    stamp(A, "H stored")
    A("s_branch L_g1done")
    A("L_stat:")
    del _stamps[-7:]
    for n in range(5):
        for x in chunk(n, WS_X1): A(x)
    tr_addr16(A, 12, 5)
    A(f"s_lshl_b32 s{T+14}, s{S_WAVE}, 5")
    A(f"v_xor_b32 v12, s{T+14}, v12")
    ONES, GR, SM = 36, ACC1, ACC1 + 4
    for i in range(4): A(f"v_mov_b32 v{ONES+i}, s{S_ONES}")
    for c in range(4):
        A(f"s_waitcnt vmcnt({6 if c == 0 else 4 * (3 - c)})")
        A("s_barrier")
        if c == 0:
            stamp(A, "ckpt0")
            for n in range(5, 8):
                for x in chunk(n, WS_X1): A(x)
        for e in range(4 * c, 4 * c + 4):
            for h in range(2):
                A(f"ds_read_b64_tr_b16 {v(XF+4*(e%4)+2*h,2)}, v12 offset:{4096*e+512*h}")
        for e in range(4 * c, 4 * c + 4):
            f = v(XF + 4 * (e % 4), 4)
            A(f"v_mfma_f32_16x16x32_bf16 {v(GR,4)}, {f}, {f}, {'0' if e == 0 else v(GR,4)}")
            A(f"v_mfma_f32_16x16x32_bf16 {v(SM,4)}, {v(ONES,4)}, {f}, {'0' if e == 0 else v(SM,4)}")
    stamp(A, "half1")
    for e in ("stats0", "burst0", "B16"): stamp(A, e)
    for r, m in ((1, "0x22222222"), (2, "0x44444444"), (3, "0x88888888")):
        A(f"s_mov_b32 vcc_lo, {m}")
        A(f"s_mov_b32 vcc_hi, {m}")
        A(f"v_cndmask_b32 v{GR}, v{GR}, v{GR+r}, vcc")
    ln_finish(A, [(SM, GR, GR + 8, GR + 10)], GR + 1, hex(NLOG2E))
    A(f"v_mov_b32 v{GR+9}, 1")
    A(f"v_mov_b32 v{GR+11}, 1")
    A(f"v_and_b32 v5, 15, v{L}")
    A(f"v_lshlrev_b32 v5, 4, v5")
    A(f"s_and_b32 s{T+13}, s{S_C}, 1")
    A(f"s_lshl_b32 s{T+13}, s{T+13}, 10")
    A(f"s_lshl_b32 s{T+14}, s{S_WAVE}, 8")
    A(f"s_add_u32 s{T+13}, s{T+13}, s{T+14}")
    A(f"s_add_u32 s{T+13}, s{T+13}, s{T+7}")
    A(f"s_mov_b32 exec_lo, 0x00f0000f")
    A(f"s_mov_b32 exec_hi, 0xf0000f00")
    A(f"buffer_store_dwordx4 {v(GR+8,4)}, v5, {s(SRD_WS,4)}, s{T+13} offen sc1")
    A("s_mov_b64 exec, -1")
    stamp(A, "g1 mfma")
    for x in xres: A(x)
    only_wave3(A, w3w2)
    A("s_waitcnt vmcnt(0)")
    A("s_barrier")
    w2_addr(A, f"s{S_PM}")
    for x in grp(E) + grp(E + 1) + xr: A(x)
    if E < 4:
        A("s_waitcnt vmcnt(0)")
        for x in w2_read(E, 0) + w2_read(E + 1, 8192): A(x)
        A("s_waitcnt lgkmcnt(0)")
        for x in grp(E + 2) + grp(E + 3): A(x)
    A(f"buffer_load_dword v12, v14, {s(SRD_WS,4)}, s{T+8} offen sc1")
    A("s_waitcnt vmcnt(0)")
    stamp(A, "H stored")
    A("L_g1done:")

def gemm2(A):
    L = V_LANE
    ACC = 32; HF = 96; NB = 32
    fl = lambda r, sr: f"buffer_load_dword v{r}, v14, {s(SRD_WS,4)}, s{sr} offen sc1"
    w2_addr(A, f"s{S_PM}")
    A(f"v_lshrrev_b32 v5, 5, v{L}")
    A(f"v_lshlrev_b32 v5, 4, v5")
    A(f"s_lshl_b32 s{T+1}, s{S_WAVE}, 6")
    A(f"s_add_u32 s{T+1}, s{T+1}, {LDS_GB}")
    A(f"v_add_u32 v5, s{T+1}, v5")
    A(f"s_mov_b32 s{T}, s{S_RT}")
    A(f"s_mul_i32 s{T+2}, s{T}, {112*1024}")
    A(f"v_lshlrev_b32 v6, 4, v{L}")
    A(f"v_add_u32 v3, s{T+2}, v6")
    A(f"v_add_u32 v4, {2*112*1024}, v3")
    A(f"s_mul_i32 s{T+4}, s{S_WAVE}, {28*1024}")
    A(f"s_add_u32 s{T+4}, s{T+4}, {WS_H}")
    A(f"s_add_u32 s{T+5}, s{T+4}, {28*1024}")
    A(f"s_lshl_b32 s{T+2}, s{S_PE}, 12")
    A(f"s_add_u32 s{T+2}, s{T+2}, s{T+4}")
    A("s_waitcnt vmcnt(5)")
    for gi in range(2):
        for x in w2_read((4 if O.w2e else 2) + gi, 8192 * gi): A(x)
    def hload(n):
        st, e = divmod(n, 28)
        Ls = [f"buffer_load_dwordx4 {v(HF+4*(n%NB),4)}, v{3+st}, {s(SRD_WS,4)}, s{T+2} offen offset:{1024*(e&3)} {['sc1', 'sc0 sc1', 'sc1 nt'][O.hl]}"]
        if e % 4 == 3:
            Ls += [f"s_add_u32 s{T+2}, s{T+2}, 4096", f"s_cmp_eq_u32 s{T+2}, s{T+5}", f"s_cselect_b32 s{T+2}, s{T+4}, s{T+2}"]
        return Ls
    def first():
        recheck(A, [f"v_cmp_ne_u32 vcc, 1, v12"], [fl(12, T + 8)])
        stamp(A, "F0 seen")
        for n in range(O.hp0):
            for x in hload(n): A(x)
    if O.early0: first()
    A(f"s_waitcnt vmcnt({O.hp0 if O.early0 else 0})")
    A("s_barrier")
    stamp(A, "H acked")
    def f1():
        A(f"s_cmp_ge_u32 s{S_C}, 14")
        A(f"s_cbranch_scc1 L_nof1")
        own_flag(A, FLG_3)
        A("L_nof1:")
    only_wave3(A, f1)
    if not O.early0: first()
    for n in range(O.hp0, O.hpre):
        for x in hload(n): A(x)
        if n == O.f1pos and O.hpre > O.f1pos: A(fl(13, T + 9))
    if O.w2e == 0:
        for x in w2_group(4, f"s{S_PM}", 65536) + w2_group(5, f"s{S_PM}", 65536 + 8192) + ["s_waitcnt lgkmcnt(0)"] + w2_group(6, f"s{S_PM}", 0): A(x)
    elif not O.g6late:
        for x in w2_group(6, f"s{S_PM}", 65536): A(x)
    for k in range(2):
        A(f"ds_read_b128 {v(16+4*k,4)}, v5 offset:{32*k}")
    A(f"v_add_u32 v7, s{S_PM}, v6")
    for k in range(1, 4):
        A(f"s_xor_b32 s{T+6}, s{S_WAVE}, {k}")
        A(f"s_lshl_b32 s{T+6}, s{T+6}, 14")
        A(f"v_add_u32 v{8+k}, s{T+6}, v6")
    A(f"v_and_b32 v8, 31, v{L}")
    A(f"v_lshlrev_b32 v8, 10, v8")
    A(f"v_lshrrev_b32 v5, 5, v{L}")
    A(f"v_lshl_add_u32 v8, v5, 4, v8")
    A(f"s_lshl_b32 s{T+7}, s{T}, 15")
    A(f"s_lshl_b32 s{T+6}, s{S_J}, 7")
    A(f"s_add_u32 s{T+7}, s{T+7}, s{T+6}")
    A(f"s_lshl_b32 s{T+6}, s{S_WAVE}, 5")
    A(f"s_add_u32 s{T+7}, s{T+7}, s{T+6}")
    A(f"s_add_u32 s{T+6}, s{T+7}, {2*32768}")
    def red_write(st):
        return [f"ds_write_b128 v7, {v(ACC+32*(k>>1)+16*st+8*(k&1)+4*q,4)} offset:{6144*st+2048*(k-1)+1024*q}" for k in range(1, 4) for q in range(2)]
    def red_finish(st, PP, packed):
        P = PP[0]
        own = ACC + 16 * st
        Ls = [f"ds_read_b128 {v(PP[k]+4*q,4)}, v{9+k} offset:{6144*st+2048*k+1024*q}" for k in range(3) for q in range(2)]
        for k in range(4):
            Ls += [f"v_lshlrev_b32 v{24+2*k}, 16, v{VXR+4*st+k}", f"v_and_b32 v{25+2*k}, 0xffff0000, v{VXR+4*st+k}"]
        if packed:
            Ls += [f"v_pk_add_f32 {v(own+r,2)}, {v(own+r,2)}, {v(PP[k]+r,2)}" for k in range(3) for r in range(0, 8, 2)]
            Ls += [f"v_pk_fma_f32 {v(own+r,2)}, {v(own+r,2)}, {v(16+r,2)}, {v(24+r,2)}" for r in range(0, 8, 2)]
        else:
            Ls += [f"v_add_f32 v{own+r}, v{own+r}, v{PP[k]+r}" for k in range(3) for r in range(8)]
            Ls += [f"v_fma_f32 v{own+r}, v{own+r}, v{16+r}, v{24+r}" for r in range(8)]
        if O.err:
            import struct
            Ls += [f"v_mul_f32 v{own+r}, {hex(struct.unpack('<I', struct.pack('<f', 1 + O.err / 1000))[0])}, v{own+r}" for r in range(8)]
        Ls += [f"v_cvt_pk_bf16_f32 v{P+r//2}, v{own+r}, v{own+r+1}" for r in range(0, 8, 2)]
        Ls += [f"v_permlane32_swap_b32 v{P}, v{P+2}", f"v_permlane32_swap_b32 v{P+1}, v{P+3}"]
        Ls += [f"buffer_store_dwordx4 {v(P,4)}, v8, {s(SRD_OUT,4)}, s{T+7-st} offen{['', ' sc1', ' nt', ' sc0 sc1', ' sc1 nt'][(O.om >> (4 * st)) & 15]}"]
        return Ls
    shadow = []
    nxt = O.hpre
    mark = len(A.items)
    for n in range(56):
        st, e = divmod(n, 28)
        for u in range(2):
            acc = ACC + 32 * u + 16 * st
            A(f"v_mfma_f32_32x32x16_bf16 {v(acc,16)}, {a(w2frag(u,e),4)}, {v(HF+4*(n%NB),4)}, {'0' if e == 0 else v(acc,16)}")
            if n == O.f1pos - 1 and u == 1:
                recheck(A, [f"v_cmp_ne_u32 vcc, 1, v13"], [fl(13, T + 9)])
                stamp(A, "F1 seen")
            open_ = (n, u) >= (O.f1pos - 1, 1)
            for _ in range(2 if open_ else 1):
                if nxt < (56 if open_ else 28) and nxt < n + NB and nxt - n < O.hmax and (u == 0 or n % 2 == 0 or open_):
                    for x in hload(nxt): A(x)
                    nxt += 1
                    if nxt == O.f1pos + 1: A(fl(13, T + 9))
            for _ in range(2):
                if shadow: A(shadow.pop(0))
        if O.g6late and n == O.g6late:
            for x in w2_group(6, f"s{S_PM}", 65536): A(x)
            mark = len(A.items)
        if n in (0, 6, 12): stamp(A, f"n{n}")
        if n == 29: shadow = red_write(0)
        if n == O.red0:
            A("s_waitcnt lgkmcnt(0)")
            A("s_barrier")
            shadow = red_finish(0, [ACC + 8, ACC + 32, ACC + 40], False)
        if n == O.g6at:
            A(f"s_waitcnt vmcnt({sum('buffer_load' in y[1].text for y in A.items[mark:] if y[0] == 'i' and 'rc' not in y[1].text)})")
            if O.w2e == 0:
                for x in w2_read(6, 0): A(x)
            for k in range(4): A(f"v_add_u32 v{VW2H+k}, 0x10000, v{VW2H+k}")
            for x in (w2_read(4, 0) + w2_read(5, 8192) if O.w2e == 0 else w2_read(6, 0)): A(x)
    stamp(A, "g2 mfma")
    for x in shadow + red_write(1): A(x)
    A("s_waitcnt lgkmcnt(0)")
    A("s_barrier")
    for x in red_finish(1, [HF, HF + 8, HF + 16], True): A(x)
    stamp(A, "end")
    stamp_flush(A, 2)

HEADER = open("cdna_kernels/" + NAME + ".s.ref").read().split("; Override launch")[0]

def build():
    A = Asm()
    name = NAME + "_kernel"
    A('.amdgcn_target "amdgcn-amd-amdhsa--gfx950"')
    A(".text"); A(f".globl {name}"); A(".p2align 8"); A(f".type {name},@function"); A(f"{name}:")
    prologue(A)
    phase0(A)
    conv(A)
    window3(A)
    gemm1(A)
    gemm2(A)
    A("L_end:")
    A("s_endpgm")
    A.autowait()
    A.pad()
    out = HEADER + f"; @launch grid=(256,1,1) block=(256,1,1) lds={LDS_TOTAL}\n" + A.text()
    out += f""".section .rodata,"a"
.p2align 6
.amdhsa_kernel {name}
  .amdhsa_next_free_vgpr 512
  .amdhsa_next_free_sgpr 102
  .amdhsa_accum_offset 256
  .amdhsa_group_segment_fixed_size 0
  .amdhsa_kernarg_size 112
  .amdhsa_user_sgpr_count 2
  .amdhsa_user_sgpr_kernarg_segment_ptr 1
  .amdhsa_system_sgpr_workgroup_id_x 1
  .amdhsa_float_denorm_mode_32 3
.end_amdhsa_kernel
"""
    return out

if __name__ == "__main__":
    path = sys.argv[1]
    O.prof = "--prof" in sys.argv
    O.cyc = "--cyc" in sys.argv
    for x in sys.argv[2:]:
        if "=" in x:
            k_, v_ = x.split("="); setattr(O, k_, int(v_))
    open(path, "w").write(build())
    if O.prof:
        import json; json.dump(STAMPS, open(path + ".stamps.json", "w"))
    print("wrote", path)
```

```python
import sys
sys.path.insert(0, "dev")
from asmlib import Asm, v, a, s

NAME = "adaLN_cond__ssm_conv_h3__dense_activation_silu__prompt"
STAGE = 4
REC_LAYOUT = 2
H_SCALE = -0.6931471805599453

WS_REC = 0
WS_X1 = 4 << 20
WS_X1C = 6 << 20
WS_H = 8 << 20
WS_STAT = 16 << 20
WS_MODP = (16 << 20) + 65536
WS_SYNC = 17 << 20
WS_PROF = (17 << 20) + (512 << 10)
WS_SIZE = 18 << 20
FLG_A, EPOCH, CNT_2, FLG_2, FLG_3 = 0, 2, 16, 32, 128
FLG_4 = 1280
WS_ST2 = (16 << 20) + (128 << 10)
LF_A, LF_2, LF_B = 512, 768, 1024

S_WG = 2; S_WAVE = 3
SRD_Q, SRD_K, SRD_V, SRD_SSMK, SRD_W1, SRD_W2, SRD_WMOD, SRD_OUT, SRD_WS, SRD_SHK, SRD_C, SRD_SSMD = [4 + 4 * i for i in range(12)]
S_DBG = 52
T = 54
S_PI, S_PM, S_PS, S_PE = 88, 89, 90, 91
S_RB, S_J, S_ROT, S_CH, S_CARRY, S_SPIN = 92, 93, 94, 95, 96, 97
S_TMP = 98
S_SIG = 87
S_C = 88
S_RT = 0
S_TAG = 84
S_PO = 86
S_SELLO, S_SELHI, S_ONES = 99, 100, 101

KARG = {SRD_Q: (0, 2097152), SRD_K: (8, 2097152), SRD_V: (16, 2097152), SRD_SHK: (24, 4096), SRD_SSMK: (32, 2097152),
        SRD_SSMD: (40, 1024), SRD_W1: (56, 512 * 1792 * 2), SRD_W2: (64, 512 * 1792 * 2), SRD_C: (72, 1024),
        SRD_WMOD: (80, 512 * 3072 * 2), SRD_OUT: (88, 2097152), SRD_WS: (104, WS_SIZE)}
NLOG2E = 0xbfb8aa3b

LDS_XC = 0
LDS_X1 = 65536
LDS_GM = 98304
LDS_SC = 114688
LDS_REC = 98304
LDS_KC = 131072
LDS_CARRY = 153216
LDS_MODV = 147968
LDS_CS = 150144
LDS_ST2 = 152192
LDS_GB = 152960
LDS_STA = 116736
LDS_STB = 157440
LDS_XR = 131072
LDS_RED = 0
LDS_TOTAL = 163840

V_LANE = 2
VW1 = 238
VW3 = 236
VW2H = 232
VW2 = 244
VW2S = 228

class Opt:
    prof = False; cyc = False
    w1_depth = 8
    wpf = 1; xpre = 2; hpre = 12; f1pos = 18; sck = 8; f0at = 20; r2same = 1; post = 1; mvearly = 1; poll2 = 0; hp0 = 4; fine = 0; om = 0; g6late = 0; jit = 0; err = 0; dbgC = 0; fs = 18; pa = 1; pa0 = 1; sw = 4; pb = 1; hs = 0; hl = 0; epv = 0; lite = 0; kcm = 1; w3d = 0; stq = 16; rs = 1; w3split = 0; isleep2 = 0; tlb = 0; bthr = 48; ovl = 0; red0 = 33; bsleep = 16; isleep = 30; sigfirst = 0; eplate = 1; stsw = 1; w2e = 4; w2w1 = 0; rd01 = 24; dbgB = 0; look = 3; wmerge = 1; prog = 1; early0 = 1; w2te = 1; g6at = 7; hmax = 24; recperm = 1; kc_late = 1; sleep = 1
    conv_groups = 4; w3_depth = 10; tailg = 2; cs_early = 1; n_w1 = 3; w5 = 1; lfa = 1; lf2 = 1; kc_early = 0; n_rd = 2; poller2 = 3; map84 = 0; touch = 0; cpf = 1; w2t = 1; outsc = 0; w2l2 = 1; g01late = 0; pp = 0; bsplit = 0; t3 = 0; xpre2 = 3; fb = 28; w2side = 4; tg = 1
O = Opt()

_uid = [0]
def uid():
    _uid[0] += 1; return _uid[0]
_stamps = []
STAMPS = {}
def stamp(A, name):
    jitter(A)
    if not O.prof: return
    if O.lite:
        if name == "issued": A("s_waitcnt lgkmcnt(0)"); A(f"v_writelane_b32 v250, s76, 0")
        if name == "end":
            A("s_memrealtime s[74:75]"); A("s_waitcnt lgkmcnt(0)"); A(f"v_writelane_b32 v250, s74, 1")
        return
    n = len(_stamps); _stamps.append(name)
    A(f"s_memtime s[74:75]" if O.cyc else f"s_memrealtime s[74:75]")
    A("s_waitcnt lgkmcnt(0)")
    if n == 1: A(f"v_writelane_b32 v250, s76, 0")
    A(f"v_writelane_b32 v250, s74, {n}")
def stamp_flush(A, kidx):
    if not O.prof or kidx != 2: return
    A(f"s_lshl_b32 s74, s{S_WG}, 2")
    A(f"s_add_u32 s74, s74, s{S_WAVE}")
    A(f"s_lshl_b32 s74, s74, 8")
    A(f"s_add_u32 s74, s74, {WS_PROF}")
    A(f"v_lshlrev_b32 v254, 2, v{V_LANE}")
    A(f"buffer_store_dword v250, v254, {s(SRD_WS,4)}, s74 offen")
    STAMPS[0] = list(_stamps)

_jn = [0]
def jitter(A):
    if not O.jit: return
    _jn[0] += 1
    u = uid()
    A(f"s_lshl_b32 s74, s{S_WG}, 2")
    A(f"s_add_u32 s74, s74, s{S_WAVE}")
    A(f"s_mul_i32 s74, s74, {(2654435761 * (O.jit + 7 * _jn[0])) & 0x7fffffff | 1}")
    A(f"s_lshr_b32 s74, s74, 27")
    A(f"s_cmp_gt_u32 s74, 7")
    A(f"s_cselect_b32 s74, 0, s74")
    A(f"L_j{u}:")
    A(f"s_cmp_eq_u32 s74, 0")
    A(f"s_cbranch_scc1 L_jx{u}")
    A(f"s_sleep 40")
    A(f"s_sub_u32 s74, s74, 1")
    A(f"s_branch L_j{u}")
    A(f"L_jx{u}:")

def dma_voff(A, d0, d1, rowstride, tmp):
    A(f"v_lshrrev_b32 v{tmp}, 3, v{V_LANE}")
    A(f"v_and_b32 v{d1}, 2, v{tmp}")
    A(f"v_lshlrev_b32 v{d1}, 5, v{d1}")
    A(f"v_and_b32 v{d0}, 7, v{V_LANE}")
    A(f"v_lshlrev_b32 v{d0}, 4, v{d0}")
    A(f"v_xor_b32 v{d0}, v{d0}, v{d1}")
    A(f"v_mul_u32_u24 v{tmp}, {rowstride}, v{tmp}")
    A(f"v_add_u32 v{d0}, v{d0}, v{tmp}")
    A(f"v_xor_b32 v{d1}, 32, v{d0}")

def tr_addr32(A, d, tmp, rowmul):
    L = V_LANE
    A(f"v_lshrrev_b32 v{tmp}, 5, v{L}")
    A(f"v_bfe_u32 v{tmp+1}, v{L}, 2, 2")
    A(f"v_lshl_add_u32 v{d}, v{tmp}, {3 if rowmul == 8 else 2}, v{tmp+1}")
    A(f"v_lshlrev_b32 v{d}, 7, v{d}")
    A(f"v_and_b32 v{tmp+1}, 2, v{tmp+1}")
    if rowmul == 8: A(f"v_or_b32 v{tmp+1}, v{tmp+1}, v{tmp}")
    A(f"v_bfe_u32 v{tmp}, v{L}, 4, 1")
    A(f"v_xor_b32 v{tmp+1}, v{tmp+1}, v{tmp}")
    A(f"v_lshl_add_u32 v{d}, v{tmp+1}, 5, v{d}")
    A(f"v_and_b32 v{tmp}, 3, v{L}")
    A(f"v_lshl_add_u32 v{d}, v{tmp}, 3, v{d}")

def tr_addr16(A, d, tmp):
    L = V_LANE
    A(f"v_lshrrev_b32 v{tmp}, 4, v{L}")
    A(f"v_bfe_u32 v{tmp+1}, v{L}, 2, 2")
    A(f"v_lshl_add_u32 v{d}, v{tmp}, 3, v{tmp+1}")
    A(f"v_lshlrev_b32 v{d}, 7, v{d}")
    A(f"v_and_b32 v{tmp+1}, 2, v{tmp+1}")
    A(f"v_and_b32 v{tmp}, 1, v{tmp}")
    A(f"v_or_b32 v{tmp+1}, v{tmp+1}, v{tmp}")
    A(f"v_lshl_add_u32 v{d}, v{tmp+1}, 5, v{d}")
    A(f"v_and_b32 v{tmp}, 3, v{L}")
    A(f"v_lshl_add_u32 v{d}, v{tmp}, 3, v{d}")

def ln_finish(A, rows, tmp, scale=None):
    steps = [
        lambda su, sq, o1, o2, t: [f"v_mul_f32 v{su}, 0x3b000000, v{su}", f"v_mul_f32 v{sq}, 0x3b000000, v{sq}"],
        lambda su, sq, o1, o2, t: [f"v_fma_f32 v{sq}, -v{su}, v{su}, v{sq}"],
        lambda su, sq, o1, o2, t: [f"v_max_f32 v{sq}, 0, v{sq}"],
        lambda su, sq, o1, o2, t: [f"v_cvt_pk_bf16_f32 v{t}, v{su}, v{sq}"],
        lambda su, sq, o1, o2, t: [f"v_lshlrev_b32 v{su}, 16, v{t}", f"v_and_b32 v{sq}, 0xffff0000, v{t}"],
        lambda su, sq, o1, o2, t: [f"v_add_f32 v{sq}, 0x3727c5ac, v{sq}"],
        lambda su, sq, o1, o2, t: [f"v_cvt_pk_bf16_f32 v{sq}, v{sq}, v{sq}"],
        lambda su, sq, o1, o2, t: [f"v_lshlrev_b32 v{sq}, 16, v{sq}"],
        lambda su, sq, o1, o2, t: [f"v_sqrt_f32 v{sq}, v{sq}"],
        lambda su, sq, o1, o2, t: [f"v_cvt_pk_bf16_f32 v{sq}, v{sq}, v{sq}"],
        lambda su, sq, o1, o2, t: [f"v_lshlrev_b32 v{sq}, 16, v{sq}"],
        lambda su, sq, o1, o2, t: [f"v_rcp_f32 v{o1}, v{sq}"],
        lambda su, sq, o1, o2, t: [f"v_mul_f32 v{o1}, {scale}, v{o1}"] if scale else [],
        lambda su, sq, o1, o2, t: [f"v_mul_f32 v{o2}, -v{su}, v{o1}"],
    ]
    for st in steps:
        for i, r in enumerate(rows):
            for x in st(*r, tmp + i): A(x)


def signal_issue(A, cnt):
    A(f"s_and_b32 s{S_SIG}, s{S_WG}, 15")
    A(f"s_lshl_b32 s{S_SIG}, s{S_SIG}, 7")
    A(f"s_add_u32 s{S_SIG}, s{S_SIG}, {WS_SYNC}")
    A("s_mov_b64 exec, 1")
    A(f"v_mov_b32 v252, {128*cnt}")
    A(f"v_mov_b32 v253, 1")
    A(f"buffer_atomic_add v253, v252, {s(SRD_WS,4)}, s{S_SIG} offen sc0 sc1")
    A("s_mov_b64 exec, -1")

def signal_finish(A, flag):
    u = uid()
    A("s_mov_b64 exec, 1")
    A(f"v_cmp_eq_u32 vcc, 15, v253")
    A(f"v_mov_b32 v252, {128*flag}")
    A(f"v_mov_b32 v253, 1")
    A(f"s_cbranch_vccz L_sig{u}")
    A(f"buffer_store_dword v253, v252, {s(SRD_WS,4)}, s{S_SIG} offen sc1")
    A(f"L_sig{u}:")
    A("s_mov_b64 exec, -1")

def poll(A, nlanes, stride, base, want=1):
    u = uid()
    A(f"s_mov_b64 exec, {hex((1 << nlanes) - 1)}")
    if stride: A(f"v_mul_u32_u24 v252, {stride}, v{V_LANE}")
    A(f"s_mov_b32 s{S_TMP}, {base}")
    A(f"s_mov_b32 s{S_SPIN}, 0x80000")
    ld = lambda r: A(f"buffer_load_dword v{r}, v252, {s(SRD_WS,4)}, s{S_TMP} offen sc1 ; nowait")
    if O.pp: ld(253)
    A(f"L_poll{u}:")
    if O.pp:
        for k in range(2):
            A(f"s_sleep {O.sleep+1}")
            ld(254 - k)
            A("s_waitcnt vmcnt(1)")
            A(f"v_cmp_ne_u32 vcc, {want}, v{253+k}")
            A(f"s_cbranch_vccz L_pollx{u}")
    else:
        ld(253)
        A("s_waitcnt vmcnt(0)")
        A(f"v_cmp_ne_u32 vcc, {want}, v253")
        A(f"s_cbranch_vccz L_pollx{u}")
        A(f"s_sleep {O.sleep}")
    A(f"s_sub_u32 s{S_SPIN}, s{S_SPIN}, 1")
    A(f"s_cbranch_scc0 L_poll{u}")
    A(f"L_pollx{u}:")
    A("s_mov_b64 exec, -1")

def lf_signal(A, base):
    A(f"s_lshl_b32 s{S_TMP}, s{S_WG}, 7")
    A(f"s_add_u32 s{S_TMP}, s{S_TMP}, {WS_SYNC + 128*base}")
    A("s_mov_b64 exec, 1")
    A(f"v_mov_b32 v252, 0")
    A(f"v_mov_b32 v254, s{S_TAG}")
    A(f"v_mov_b32 v255, s{S_TAG+1}")
    A(f"buffer_store_dwordx2 v[254:255], v252, {s(SRD_WS,4)}, s{S_TMP} offen sc1")
    A("s_mov_b64 exec, -1")

def lf_poll(A, base, tmpv, first=0):
    u = uid(); M = 76
    A(f"v_lshlrev_b32 v{tmpv+16}, 7, v{V_LANE}")
    for i in range(4):
        A(f"s_mov_b64 {s(M+2*i,2)}, -1")
        if i: A(f"v_add_u32 v{tmpv+16+i}, {8192*i}, v{tmpv+16}")
    A(f"s_mov_b32 s{S_TMP}, {WS_SYNC + 128*base}")
    A(f"s_mov_b32 s{S_SPIN}, 0x40000")
    if first: A(f"s_sleep {first}")
    def issue(k):
        for i in range(4):
            A(f"s_or_b64 exec, {s(M+2*i,2)}, 1")
            A(f"buffer_load_dwordx2 {v(tmpv+8*k+2*i,2)}, v{tmpv+16+i}, {s(SRD_WS,4)}, s{S_TMP} offen sc1 ; nowait")
    def check(k):
        for i in range(4):
            A(f"s_mov_b64 exec, {s(M+2*i,2)}")
            A(f"v_cmp_ne_u64 {s(M+2*i,2)}, {s(S_TAG,2)}, {v(tmpv+8*k+2*i,2)}")
        A(f"s_or_b64 vcc, {s(M,2)}, {s(M+2,2)}")
        A(f"s_or_b64 vcc, vcc, {s(M+4,2)}")
        A(f"s_or_b64 vcc, vcc, {s(M+6,2)}")
        A(f"s_cbranch_scc0 L_lfx{u}")
    if O.pp:
        issue(0)
        A(f"L_lf{u}:")
        for k in range(2):
            A(f"s_sleep {O.sleep}")
            issue(1 - k)
            A("s_waitcnt vmcnt(4)")
            check(k)
    else:
        A(f"L_lf{u}:")
        issue(0)
        A("s_waitcnt vmcnt(0)")
        check(0)
        A(f"s_bcnt1_i32_b64 s{S_PO}, vcc")
        A(f"s_cmp_gt_u32 s{S_PO}, {O.bthr}")
        A(f"s_cbranch_scc0 L_lfs{u}")
        A(f"s_sleep {O.bsleep}")
        A(f"L_lfs{u}:")
        A(f"s_sleep {O.sleep}")
    A(f"s_sub_u32 s{S_SPIN}, s{S_SPIN}, 1")
    A(f"s_cbranch_scc0 L_lf{u}")
    A(f"L_lfx{u}:")
    A("s_mov_b64 exec, -1")

def only_wave3(A, body):
    u = uid()
    A(f"s_cmp_eq_u32 s{S_WAVE}, 3")
    A(f"s_cbranch_scc0 L_w3_{u}")
    body()
    A(f"L_w3_{u}:")

def split_wave3(A, others, w3):
    u = uid()
    A(f"s_cmp_eq_u32 s{S_WAVE}, 3")
    A(f"s_cbranch_scc1 L_s3a_{u}")
    others()
    A(f"s_branch L_s3b_{u}")
    A(f"L_s3a_{u}:")
    w3()
    A(f"L_s3b_{u}:")

def pieces8(vbase, srd, step4, depth=0):
    L = []
    for p in range(8):
        if p == 4: L += [f"s_add_u32 m0, m0, 4096", f"s_add_u32 s{S_PO}, s{S_PO}, {step4}"]
        L.append(f"buffer_load_dwordx4 v{vbase+(p&3)}, {s(srd,4)}, s{S_PO} offen offset:{1024*(p&3)} lds")
        if depth: L.append(f"s_waitcnt vmcnt({depth-1})")
    return L

def w1_group(gi, tile, ldsbase, tmp, depth=0):
    L = [f"s_add_u32 s{S_TMP}, s{S_ROT}, {gi}",
         f"s_lshl_b32 m0, {gi}, 13",
         f"s_bitcmp1_b32 s{S_TMP}, 2",
         f"s_cselect_b64 vcc, -1, 0",
         f"s_add_u32 m0, m0, {ldsbase}",
         f"s_and_b32 s{S_TMP}, s{S_TMP}, 3",
         f"v_cndmask_b32 v245, v{VW3}, v{VW3+1}, vcc"]
    L += [f"v_add_u32 v{tmp+k}, v245, v{VW1+k}" for k in range(4)]
    L += [f"s_mul_i32 s{S_PO}, s{S_TMP}, {64*3584}",
          f"s_lshl_b32 s{S_TMP}, s{S_C}, 8",
          f"s_add_u32 s{S_PO}, s{S_PO}, s{S_TMP}",
          f"s_lshl_b32 s{S_TMP}, {tile}, 6",
          f"s_add_u32 s{S_PO}, s{S_PO}, s{S_TMP}"]
    return L + pieces8(tmp, SRD_W1, 32 * 3584, depth)

def loop(A, body, n):
    u = uid()
    A(f"s_mov_b32 s{S_SPIN}, {n}")
    A(f"L_lp{u}:")
    for x in body: A(x)
    A(f"s_sub_u32 s{S_SPIN}, s{S_SPIN}, 1")
    A(f"s_cmp_lg_u32 s{S_SPIN}, 0")
    A(f"s_cbranch_scc1 L_lp{u}")

def w1_read(gi):
    return [f"ds_read_b64_tr_b16 {a((16*t+4*gi+e)*4+2*h,2)}, v{242+t} offset:{8192*gi+2048*e+512*h}" for e in range(4) for t in range(2) for h in range(2)]

LDS_ST1 = 114944
def prologue(A):
    VK, VV, VQ, VSH, VST, VC = 10, 28, 36, 44, 48, 56
    L = V_LANE
    A(f"s_cmp_ge_u32 s{S_WG}, 256")
    A(f"s_cbranch_scc1 L_end")
    if O.prof:
        A("s_memtime s[76:77]" if O.cyc else "s_memrealtime s[76:77]")
        _stamps.append("start")
    first = [SRD_Q, SRD_C, SRD_K, SRD_V, SRD_SHK, SRD_WS]
    rest = [SRD_WMOD, SRD_SSMK, SRD_SSMD, SRD_W1, SRD_W2, SRD_OUT]
    for r in first:
        A(f"s_load_dwordx2 {s(r,2)}, s[0:1], {KARG[r][0]}")
    A(f"v_lshrrev_b32 v1, 6, v0")
    A(f"v_and_b32 v{L}, 63, v0")
    A(f"v_readfirstlane_b32 s{S_WAVE}, v1")
    for r in first:
        A(f"s_mov_b32 s{r+2}, {KARG[r][1]}")
        A(f"s_mov_b32 s{r+3}, 0x20000")
    A(f"s_lshr_b32 s{T}, s{S_WG}, 1")
    A(f"s_and_b32 s{T+1}, s{S_WG}, 1")
    A(f"s_lshl_b32 s{T+1}, s{T+1}, 2")
    A(f"s_add_u32 s{T+1}, s{T+1}, s{S_WAVE}")
    A(f"s_lshl_b32 s{T+1}, s{T+1}, 5")
    A(f"v_and_b32 v3, 31, v0")
    A(f"v_add_u32 v5, s{T+1}, v3")
    A(f"v_bfe_u32 v4, v0, 5, 1")
    A(f"v_lshlrev_b32 v6, 2, v5")
    A(f"v_lshl_add_u32 v6, v4, 10, v6")
    A(f"s_lshl_b32 s{T+2}, s{T}, 14")
    for k in range(1, 4):
        A(f"s_add_u32 s{T+2+k}, s{T+2}, {4096*k}")
    A(f"s_sub_u32 s{T+6}, s{T+2}, 3072")
    A(f"v_add_u32 v8, s{T+6}, v6")
    A(f"v_add_u32 v9, 1024, v8")
    A(f"v_add_u32 v57, 2048, v8")
    A(f"v_lshlrev_b32 v7, 4, v5")
    A(f"s_lshl_b32 s{T+7}, s{S_WG}, 2")
    A(f"s_add_u32 s{T+7}, s{T+7}, s{S_WAVE}")
    A(f"s_lshl_b32 s{T+8}, s{T+7}, 11")
    A(f"v_lshlrev_b32 v58, 4, v{L}")
    A(f"s_mul_i32 s{T+9}, s{S_WG}, 1366")
    A(f"s_lshr_b32 s{T+9}, s{T+9}, 16")
    A(f"v_and_b32 v59, 127, v0")
    A(f"v_lshlrev_b32 v59, 1, v59")
    A(f"s_lshl_b32 s{T+12}, s{T+9}, 8")
    A(f"v_lshlrev_b32 v252, 11, v{L}")
    A(f"s_lshl_b32 s{T+11}, s{S_WG}, 7")
    A(f"v_mov_b32 v253, {128*FLG_3}")
    A(f"v_cmp_eq_u32 vcc, 4, v{L}")
    A(f"s_add_u32 s{T+11}, s{T+11}, {WS_SYNC}")
    A(f"v_cndmask_b32 v252, v252, v253, vcc")
    A(f"v_mov_b32 v253, {128*FLG_4}")
    A(f"v_cmp_eq_u32 vcc, 3, v{L}")
    A(f"v_cndmask_b32 v252, v252, v253, vcc")
    A(f"v_mov_b32 v253, 0")
    A("s_waitcnt lgkmcnt(0)")
    def clr():
        A(f"s_cmp_lt_u32 s{S_WG}, 16")
        A(f"s_cselect_b32 exec_lo, 0x1e, 0x18")
        A(f"s_mov_b32 exec_hi, 0")
        A(f"buffer_store_dword v253, v252, {s(SRD_WS,4)}, s{T+11} offen sc1")
        A("s_mov_b64 exec, -1")
    only_wave3(A, clr)
    A(f"buffer_load_dwordx4 {v(VST,4)}, v58, {s(SRD_Q,4)}, s{T+8} offen")
    A(f"buffer_load_dwordx4 {v(VST+4,4)}, v58, {s(SRD_Q,4)}, s{T+8} offen offset:1024")
    A(f"buffer_load_ushort v{VC}, v59, {s(SRD_C,4)}, s{T+12} offen")
    A(f"buffer_load_dword v{VK}, v8, {s(SRD_K,4)}, 0 offen")
    A(f"buffer_load_dword v{VK+1}, v9, {s(SRD_K,4)}, 0 offen")
    A(f"buffer_load_dword v{VK+2}, v57, {s(SRD_K,4)}, 0 offen")
    for r in range(15):
        A(f"buffer_load_dword v{VK+3+r}, v6, {s(SRD_K,4)}, s{T+2+(r>>2)} offen offset:{1024*(r&3)}")
    A(f"buffer_load_dwordx4 {v(VSH,4)}, v7, {s(SRD_SHK,4)}, 0 offen")
    for k in range(8):
        A(f"buffer_load_dword v{VV+k}, v6, {s(SRD_V,4)}, s{T+2+(k>>1)} offen offset:{2048*(k&1)}")
    for k in range(8):
        A(f"buffer_load_dword v{VQ+k}, v6, {s(SRD_Q,4)}, s{T+2+(k>>1)} offen offset:{2048*(k&1)}")
    for r in rest:
        A(f"s_load_dwordx2 {s(r,2)}, s[0:1], {KARG[r][0]}")
    A(f"s_load_dwordx2 {s(S_DBG,2)}, s[0:1], 96")
    A(f"s_getpc_b64 s[{T+16}:{T+17}]")
    A("L_pc:")
    A(f"s_cmp_eq_u32 s{S_WAVE}, {0 if O.cpf == 1 else 7}" if O.cpf < 2 else f"s_cmp_lt_u32 s{S_WG}, 64")
    A(f"s_cbranch_scc0 L_nopf")
    A(f"s_bfe_u32 s{T+11}, s{S_WG}, {'0x30003' if O.cpf < 2 else '0x10003'}")
    A(f"s_lshl_b32 s{T+11}, s{T+11}, {13 if O.cpf < 2 else 15}")
    A(f"v_lshlrev_b32 v254, 7, v0")
    A(f"v_add_u32 v254, s{T+11}, v254")
    A(f"v_min_u32 v254, L_end-L_pc, v254")
    A(f"global_load_dword v255, v254, s[{T+16}:{T+17}] ; nowait")
    A("L_nopf:")
    for r in rest:
        A(f"s_mov_b32 s{r+2}, {KARG[r][1]}")
        A(f"s_mov_b32 s{r+3}, 0x20000")
    A(f"s_mul_i32 s{T+10}, s{T+9}, 48")
    A(f"s_sub_u32 s{T+10}, s{S_WG}, s{T+10}")
    dma_voff(A, 60, 61, 6144, 62)
    A(f"s_lshl_b32 s{T+12}, s{T+9}, 7")
    A(f"s_lshl_b32 s{T+13}, s{S_WAVE}, 5")
    A(f"s_add_u32 s{T+12}, s{T+12}, s{T+13}")
    A(f"s_mul_i32 s{T+12}, s{T+12}, 6144")
    A(f"s_lshl_b32 s{T+11}, s{T+10}, 7")
    A(f"s_add_u32 s{T+12}, s{T+12}, s{T+11}")
    A(f"s_lshl_b32 s{T+14}, s{S_WAVE}, 12")
    A(f"s_add_u32 m0, s{T+14}, {LDS_GM}")
    A("s_waitcnt lgkmcnt(0)")
    stamp(A, "issued")
    for i in range(4):
        if i:
            A(f"s_add_u32 m0, m0, 1024")
            A(f"s_add_u32 s{T+12}, s{T+12}, {8*6144}")
        A(f"buffer_load_dwordx4 v{60+(i&1)}, {s(SRD_WMOD,4)}, s{T+12} offen lds")
    if O.epv:
        A(f"v_mov_b32 v178, {WS_SYNC + 128*EPOCH}")
        A(f"buffer_load_dwordx2 v[178:179], v178, {s(SRD_WS,4)}, 0 offen sc1")
    else:
        A(f"s_add_u32 s{T+16}, s{SRD_WS}, {WS_SYNC + 128*EPOCH}")
        A(f"s_addc_u32 s{T+17}, s{SRD_WS+1}, 0")
        A(f"s_load_dwordx2 {s(S_TAG,2)}, s[{T+16}:{T+17}], 0")
    A(f"s_mov_b32 s{S_SELLO}, 0x05040100")
    A(f"s_mov_b32 s{S_SELHI}, 0x07060302")
    A(f"s_mov_b32 s{S_ONES}, 0x3f803f80")
    A(f"s_bfe_u32 s{S_RB}, s{S_WG}, 0x20001")
    A(f"s_lshl_b32 s{S_RB}, s{S_RB}, 2")
    A(f"s_lshr_b32 s{S_TMP}, s{S_WG}, 6")
    A(f"s_add_u32 s{S_RB}, s{S_RB}, s{S_TMP}")
    A(f"s_bfe_u32 s{S_J}, s{S_WG}, 0x30003")
    A(f"s_add_u32 s{S_ROT}, s{S_J}, s{S_TMP}")
    A(f"s_and_b32 s{S_ROT}, s{S_ROT}, 7")
    A(f"s_and_b32 s{S_PE}, s{S_WG}, 1")
    A(f"s_mul_i32 s{S_C}, s{S_PE}, 7")
    A(f"s_add_u32 s{S_C}, s{S_C}, s{S_J}")
    A(f"s_add_u32 s{S_PE}, s{S_PE}, 14")
    A(f"s_cmp_eq_u32 s{S_J}, 7")
    A(f"s_cselect_b32 s{S_C}, s{S_PE}, s{S_C}")
    A(f"s_and_b32 s{S_RT}, s{S_WG}, 7")
    A(f"s_lshl_b32 s{S_RT}, s{S_RT}, 3")
    A(f"s_lshr_b32 s{S_PE}, s{S_WG}, 7")
    A(f"s_lshl_b32 s{S_PE}, s{S_PE}, 2")
    A(f"s_add_u32 s{S_RT}, s{S_RT}, s{S_PE}")
    A(f"s_bfe_u32 s{S_PE}, s{S_WG}, 0x10006")
    A(f"s_add_u32 s{S_RT}, s{S_RT}, s{S_PE}")
    A(f"s_lshl_b32 s{S_PE}, s{S_TMP}, 1")
    A(f"s_add_u32 s{S_PE}, s{S_PE}, s{S_J}")
    if O.r2same: A(f"s_mov_b32 s{S_PE}, s{S_J}")
    A(f"s_cmp_ge_u32 s{S_C}, 14")
    A(f"s_cselect_b32 s{SRD_W1+2}, 0, s{SRD_W1+2}")
    A(f"s_cmp_ge_u32 s{S_PE}, 7")
    A(f"s_cselect_b32 s{S_TMP}, 7, 0")
    A(f"s_sub_u32 s{S_PE}, s{S_PE}, s{S_TMP}")
    A(f"s_cmp_ge_u32 s{S_PE}, 7")
    A(f"s_cselect_b32 s{S_TMP}, 7, 0")
    A(f"s_sub_u32 s{S_PE}, s{S_PE}, s{S_TMP}")

def phase0(A):
    VK, VV, VQ, VSH, VST, VC = 10, 28, 36, 44, 48, 56
    L = V_LANE
    stamp(A, "issued2")
    if O.tlb:
        A("; wave 1 touches the pages that later phases use")
        A(f"s_cmp_eq_u32 s{S_WAVE}, 1")
        A(f"s_cbranch_scc0 L_notlb")
        A(f"v_lshlrev_b32 v254, {O.tlb}, v{L}")
        A(f"s_lshl_b32 s{T+14}, s{S_WG}, 7")
        A(f"buffer_load_dword v255, v254, {s(SRD_WS,4)}, s{T+14} offen ; nowait")
        for r in (SRD_OUT, SRD_W1, SRD_W2, SRD_SSMK):
            A(f"buffer_load_dword v255, v254, {s(r,4)}, s{T+14} offen ; nowait")
        A("L_notlb:")
    A(f"s_cmp_eq_u32 s{S_WAVE}, 2")
    A(f"s_cbranch_scc0 L_noclr2")
    A(f"s_lshl_b32 s{T+14}, s{S_WG}, 7")
    A(f"s_add_u32 s{T+14}, s{T+14}, {WS_ST2}")
    A(f"v_lshlrev_b32 v64, 2, v{L}")
    A(f"s_mov_b32 exec_hi, 0")
    A(f"buffer_store_dword v253, v64, {s(SRD_WS,4)}, s{T+14} offen sc1")
    A("s_mov_b64 exec, -1")
    A("L_noclr2:")
    dma_voff(A, VW1, VW1 + 1, 3584, 64)
    A(f"s_mov_b32 s{T+14}, {256*3584}")
    A(f"v_bfe_u32 v64, v{VW1}, 6, 1")
    A(f"v_mul_lo_u32 v65, v64, s{T+14}")
    A(f"v_lshlrev_b32 v64, 6, v64")
    A(f"v_sub_u32 v{VW3}, v65, v64")
    A(f"v_sub_u32 v65, s{T+14}, v65")
    A(f"v_sub_u32 v{VW3+1}, v65, v64")
    A(f"v_add_u32 v{VW1+1}, {8*3584-1024}, v{VW1+1}")
    A(f"v_add_u32 v{VW1+2}, {2*(8*3584-1024)}, v{VW1}")
    A(f"v_add_u32 v{VW1+3}, {2*(8*3584-1024)}, v{VW1+1}")
    tr_addr32(A, 242, 64, 8)
    A(f"s_lshl_b32 s{T+14}, s{S_WAVE}, 15")
    A(f"v_add_u32 v242, s{T+14}, v242")
    A(f"v_xor_b32 v243, 64, v242")
    A(f"s_lshl_b32 s{S_PM}, s{S_WAVE}, 15")
    w2_setup(A)
    A(f"s_lshr_b32 s{T+11}, s{S_WAVE}, 1")
    A(f"s_lshl_b32 s{S_CH}, s{S_WG}, 1")
    A(f"s_add_u32 s{S_CH}, s{S_CH}, s{T+11}")
    A(f"s_mul_i32 s{S_CARRY}, s{T+11}, 2080")
    A(f"s_add_u32 s{S_CARRY}, s{S_CARRY}, {LDS_CARRY}")
    A(f"s_mul_i32 s{T+13}, s{S_WAVE}, 4224")
    A(f"s_add_u32 s{T+13}, s{T+13}, {LDS_KC}")
    A(f"s_and_b32 s{T+11}, s{S_WAVE}, 1")
    A(f"s_lshl_b32 s{T+14}, s{T+11}, 2")
    A(f"s_sub_u32 s{T+14}, 4, s{T+14}")
    A(f"v_add_u32 v62, s{T+14}, v58")
    A(f"v_and_b32 v64, 7, v3")
    A(f"v_lshlrev_b32 v65, 2, v4")
    A(f"v_xor_b32 v64, v64, v65")
    A(f"v_lshlrev_b32 v57, 7, v3")
    A(f"v_lshl_add_u32 v57, v64, 4, v57")
    A(f"s_lshl_b32 s{T+14}, s{S_WAVE}, 15")
    A(f"s_add_u32 s{T+14}, s{T+14}, 24576")
    A(f"v_add_u32 v57, s{T+14}, v57")
    A(f"v_lshrrev_b32 v64, 3, v{L}")
    A(f"v_and_b32 v65, 7, v{L}")
    A(f"v_xor_b32 v66, v65, v64")
    A(f"v_lshlrev_b32 v9, 7, v64")
    A(f"v_lshl_add_u32 v9, v66, 4, v9")
    A(f"v_add_u32 v9, s{T+14}, v9")
    A(f"v_lshlrev_b32 v65, 4, v65")
    for b in range(4):
        A(f"v_add_u32 v66, s{T+1}, v64")
        if b: A(f"v_add_u32 v66, {8*b}, v66")
        if O.recperm:
            A(f"v_xor_b32 v67, s{T}, v66")
            A(f"v_and_b32 v67, 127, v67")
        else:
            A(f"v_mov_b32 v67, s{T}")
        A(f"v_lshl_add_u32 v66, v66, 7, v67")
        A(f"v_lshl_add_u32 v{168+b}, v66, 7, v65")
    for k in range(1, 4): A(f"v_xor_b32 v{173+k}, {16*k}, v57")
    B = 172
    tr_addr16(A, B, 64)
    A(f"s_lshl_b32 s{T+16}, s{S_WAVE}, 5")
    A(f"v_xor_b32 v{B}, s{T+16}, v{B}")
    A(f"v_add_u32 v{B}, {LDS_GM}, v{B}")
    A(f"v_lshrrev_b32 v{B+1}, 4, v{L}")
    A(f"v_lshlrev_b32 v{B+1}, 4, v{B+1}")
    A(f"v_add_u32 v{B+1}, {LDS_SC}, v{B+1}")
    A(f"s_mul_i32 s{T+16}, s{T+9}, {3072*4}")
    A(f"s_lshl_b32 s{T+17}, s{T+10}, 8")
    A(f"s_add_u32 s{T+16}, s{T+16}, s{T+17}")
    A(f"s_lshl_b32 s{T+17}, s{S_WAVE}, 6")
    A(f"s_add_u32 s{T+16}, s{T+16}, s{T+17}")
    A(f"s_add_u32 s{T+16}, s{T+16}, {WS_MODP}")
    A(f"s_lshl_b32 s{T+15}, s{S_WG}, 6")
    A(f"s_add_u32 s{T+15}, s{T+15}, {WS_STAT}")
    A(f"s_lshl_b32 s{T+17}, s{S_WAVE}, 3")
    A(f"s_add_u32 s{T+17}, s{T+17}, {LDS_ST1}")
    A(f"v_mov_b32 v177, s{T+17}")
    A(f"v_add_u32 v59, {LDS_SC}, v59")
    def kcopy():
        A(f"s_lshl_b32 s{T+18}, s{S_CH}, 12")
        A(f"s_add_u32 m0, s{T+13}, 32")
        A(f"v_mov_b32 v63, 0")
        A(f"buffer_load_dword v63, v63, {s(SRD_SSMK,4)}, s{T+18} offen")
        for i in range(4):
            A(f"buffer_load_dwordx4 v62, {s(SRD_SSMK,4)}, s{T+18} offen offset:{1024*i} lds")
    if O.kc_early: kcopy()
    R = 152
    for r in range(2):
        A(f"v_dot2_f32_bf16 v{R+2*r}, v{VST+4*r}, s{S_ONES}, 0")
        A(f"v_dot2_f32_bf16 v{R+2*r+1}, v{VST+4*r}, v{VST+4*r}, 0")
    for q in range(1, 4):
        for r in range(2):
            A(f"v_dot2_f32_bf16 v{R+2*r}, v{VST+4*r+q}, s{S_ONES}, v{R+2*r}")
            A(f"v_dot2_f32_bf16 v{R+2*r+1}, v{VST+4*r+q}, v{VST+4*r+q}, v{R+2*r+1}")
    X = 164
    A(f"v_lshlrev_b32 v{X}, 16, v{VC}")
    A(f"v_mul_f32 v{X+1}, {hex(NLOG2E)}, v{X}")
    A(f"v_exp_f32 v{X+1}, v{X+1}")
    for n, m in enumerate(("row_shr:1", "row_shr:2", "row_shr:4", "row_shr:8")):
        for i in range(4):
            A(f"v_add_f32_dpp v{R+i}, v{R+i}, v{R+i} {m} row_mask:0xf bank_mask:0xf bound_ctrl:0")
        A([f"v_add_f32 v{X+1}, 1.0, v{X+1}", f"v_rcp_f32 v{X+1}, v{X+1}", f"v_mul_f32 v{X+1}, v{X}, v{X+1}", f"v_cvt_pk_bf16_f32 v{X+1}, v{X+1}, v{X+1}"][n])
    A(f"ds_write_b16 v59, v{X+1}")
    for m, rm in (("row_bcast:15", "0xa"), ("row_bcast:31", "0xc")):
        for i in range(4):
            A(f"v_add_f32_dpp v{R+i}, v{R+i}, v{R+i} {m} row_mask:{rm} bank_mask:0xf")
    ln_finish(A, [(R, R+1, R+4, R+6), (R+2, R+3, R+5, R+7)], R + 8)
    A("s_lshl_b64 exec, 1, 63")
    A(f"ds_write_b64 v177, {v(R+4,2)}")
    A(f"ds_write_b64 v177, {v(R+6,2)} offset:32")
    A("s_mov_b64 exec, -1")
    stamp(A, "stats")
    A("; ---- kv ----")
    VW, VP, VKS, VVU, CA, CB = 64, 68, 86, 102, 120, 136
    for k in range(9):
        A(f"v_perm_b32 v{VP+2*k}, v{VK+2*k+1}, v{VK+2*k}, s{S_SELLO}")
        A(f"v_perm_b32 v{VP+2*k+1}, v{VK+2*k+1}, v{VK+2*k}, s{S_SELHI}")
    A(f"v_alignbit_b32 v{VW}, v{VSH+1}, v{VSH+1}, 16")
    A(f"v_alignbit_b32 v{VW+1}, v{VSH}, v{VSH}, 16")
    A(f"v_alignbit_b32 v{VW+2}, v{VSH+3}, v{VSH+3}, 16")
    A(f"v_alignbit_b32 v{VW+3}, v{VSH+2}, v{VSH+2}, 16")
    for k in range(8):
        for c in range(2):
            A(f"v_dot2_f32_bf16 v{VKS+2*k+c}, v{VP+2*k+c}, v{VW+2*c}, 0")
    for k in range(8):
        for c in range(2):
            A(f"v_dot2_f32_bf16 v{VKS+2*k+c}, v{VP+2*k+2+c}, v{VW+2*c+1}, v{VKS+2*k+c}")
    for k in range(8):
        A(f"v_lshlrev_b32 v{VVU+2*k}, 16, v{VV+k}")
        A(f"v_and_b32 v{VVU+2*k+1}, 0xffff0000, v{VV+k}")
    for k in range(8):
        A(f"v_pk_mul_f32 {v(VKS+2*k,2)}, {v(VKS+2*k,2)}, {v(VVU+2*k,2)}")
    for c in range(2):
        for q in range(4):
            A(f"v_cvt_pk_bf16_f32 v{CA+4*c+q}, v{VKS+2*(7-2*q)+c}, v{VKS+2*(6-2*q)+c}")
        A(f"ds_write_b128 v{173+c if c else 57}, {v(CA+4*c,4)}")
    for c in range(2):
        for q in range(4):
            A(f"v_perm_b32 v{CA+8+4*c+q}, v{VQ+6-2*q}, v{VQ+7-2*q}, s{S_SELHI if c else S_SELLO}")
        A(f"ds_write_b128 v{175+c}, {v(CA+8+4*c,4)}")
    stamp(A, "kvq landed")
    A("s_waitcnt lgkmcnt(0)")
    for b in range(4):
        A(f"ds_read_b128 {v(CB+4*b,4)}, v9 offset:{1024*b}")
    for b in range(4):
        A(f"buffer_store_dwordx4 {v(CB+4*b,4)}, v{168+b}, {s(SRD_WS,4)}, 0 offen sc1")
    stamp(A, "rec stored")
    if O.bsplit:
        A(f"s_waitcnt vmcnt(0) lgkmcnt(0)")
        A("s_barrier")
        stamp(A, "rec acked")
        A(f"s_add_u32 s{S_TAG}, s{S_TAG}, 1")
        only_wave3(A, lambda: lf_signal(A, LF_A))
    else:
        A(f"s_waitcnt vmcnt({9 if O.kc_early else 4}) lgkmcnt(0)")
        A("s_barrier")
    A(f"v_add_u32 v177, {LDS_ST1}, v58")
    A(f"ds_read_b128 {v(R,4)}, v177")
    FA, FB, ACC = 72, 88, 104
    for e in range(4):
        A(f"ds_read_b128 {v(FA+4*e,4)}, v{B+1} offset:{64*e}")
        A(f"ds_read_b64_tr_b16 {v(FB+4*e,2)}, v{B} offset:{4096*e}")
        A(f"ds_read_b64_tr_b16 {v(FB+4*e+2,2)}, v{B} offset:{4096*e+512}")
    A(f"s_cmp_eq_u32 s{S_WAVE}, 0")
    A(f"s_cbranch_scc0 L_nost1")
    A("s_mov_b64 exec, 0xf")
    A(f"buffer_store_dwordx4 {v(R,4)}, v58, {s(SRD_WS,4)}, s{T+15} offen sc1")
    A("s_mov_b64 exec, -1")
    A("L_nost1:")
    for e in range(4):
        A(f"v_mfma_f32_16x16x32_bf16 {v(ACC,4)}, {v(FA+4*e,4)}, {v(FB+4*e,4)}, {'0' if e == 0 else v(ACC,4)}")
    A(f"v_lshlrev_b32 v64, 2, v{L}")
    A(f"s_cmp_ge_u32 s{S_WG}, 192")
    A(f"s_cbranch_scc1 L_nogemv")
    A("s_mov_b64 exec, 0xffff")
    A(f"buffer_store_dword v{ACC}, v64, {s(SRD_WS,4)}, s{T+16} offen sc1")
    A("s_mov_b64 exec, -1")
    A("L_nogemv:")
    if O.epv:
        A(f"v_readfirstlane_b32 s{S_TAG}, v178")
        A(f"v_readfirstlane_b32 s{S_TAG+1}, v179")
    A(f"s_add_u32 s{S_TAG}, s{S_TAG}, 1")
    stamp(A, "mod stored")
    if O.bsplit:
        def kc0():
            kcopy()
            A("s_waitcnt vmcnt(5)")
        split_wave3(A, kc0, lambda: A("s_waitcnt vmcnt(0)"))
        A("s_barrier")
        stamp(A, "B acked")
    elif O.kcm:
        def kc1():
            kcopy()
            n = 5
            for gi in range(O.kcm - 1):
                for x in w1_group(gi, f"s{S_WAVE}", f"s{S_PM}", 64): A(x)
                n += 8
            A(f"s_waitcnt vmcnt({n})")
        split_wave3(A, kc1, lambda: A("s_waitcnt vmcnt(0)"))
        stamp(A, "own ack")
        A("s_barrier")
        stamp(A, "rec acked")
    else:
        A("s_waitcnt vmcnt(0)")
        stamp(A, "own ack")
        A("s_barrier")
        stamp(A, "rec acked")
    def others2():
        if not O.kc_early:
            if not O.bsplit and not O.kcm: kcopy()
            A(f"s_cmp_eq_u32 s{S_WAVE}, 2")
            A(f"s_cbranch_scc0 L_nokc3")
            A(f"s_mov_b32 m0, {LDS_KC + 3*4224 + 32}")
            for i in range(4):
                A(f"buffer_load_dwordx4 v58, {s(SRD_SSMK,4)}, s{T+18} offen offset:{1024*i} lds")
            A("L_nokc3:")
        for gi in range(max(O.kcm - 1, 0), O.n_w1):
            for x in w1_group(gi, f"s{S_WAVE}", f"s{S_PM}", 64, O.w1_depth): A(x)
        if O.w2te:
            A(f"s_mul_i32 s{T+18}, s{S_WG}, 7168")
            A(f"s_mul_i32 s{T+17}, s{S_WAVE}, {19*128}")
            A(f"s_add_u32 s{T+18}, s{T+18}, s{T+17}")
            A(f"v_lshlrev_b32 v254, 7, v{L}")
            A(f"s_mov_b64 exec, 0x7ffff")
            A(f"buffer_load_dword v255, v254, {s(SRD_W2,4)}, s{T+18} offen ; nowait")
            A(f"s_mov_b64 exec, -1")
        stamp(A, "w1r0/sig")
    def sigA():
        if O.lfa:
            if O.bsplit: lf_signal(A, LF_B)
            else:
                lf_signal(A, LF_A)
            del _stamps[-1:]
            stamp(A, "w1r0/sig")
            return
        u = uid()
        A(f"s_and_b32 s{S_SIG}, s{S_WG}, 1")
        A(f"s_lshl_b32 s{S_SIG}, s{S_SIG}, 7")
        A("s_mov_b64 exec, 1")
        A(f"v_mov_b32 v252, s{S_SIG}")
        A(f"v_mov_b32 v253, 1")
        A(f"global_atomic_add v253, v252, v253, {s(S_DBG,2)} sc0 sc1")
        A(f"v_mov_b32 v254, s{S_TAG}")
        A(f"v_mov_b32 v255, s{S_TAG+1}")
        A(f"s_mov_b32 s{S_TMP}, {WS_SYNC + 128*FLG_A}")
        A(f"v_cmp_eq_u32 vcc, 127, v253")
        A(f"s_cbranch_vccz L_sig{u}")
        A(f"buffer_store_dwordx2 v[254:255], v252, {s(SRD_WS,4)}, s{S_TMP} offen sc1")
        A(f"L_sig{u}:")
        A("s_mov_b64 exec, -1")
        del _stamps[-1:]
        stamp(A, "w1r0/sig")
    split_wave3(A, others2, sigA)
    A(f"s_mul_i32 s{T+11}, s{T+11}, 64")
    A(f"s_add_u32 s{T+11}, s{T+11}, 7")
    A(f"v_lshlrev_b32 v62, 2, v{L}")
    A(f"v_add_u32 v62, s{T+13}, v62")

TSETS = ([7, 4, 3, 0], [6, 5, 2, 1])
def conv(A):
    VAB, VAA, VAE = 8, 16, 17
    VST = 24; VKX = 200; VGH, VX0 = 72, 88; ACC = 104; U = 56
    L = V_LANE
    A(f"v_lshrrev_b32 v3, 3, v{L}")
    if O.recperm:
        A(f"s_and_b32 s{T+6}, s{S_WG}, 7")
        A(f"v_xor_b32 v3, s{T+6}, v3")
    A(f"v_lshlrev_b32 v3, 7, v3")
    A(f"v_lshrrev_b32 v4, 4, v{L}")
    A(f"v_and_b32 v7, 7, v{L}")
    A(f"v_xor_b32 v7, v7, v4")
    A(f"v_lshl_add_u32 v3, v7, 4, v3")
    A(f"v_xor_b32 v7, 64, v3")
    A(f"s_lshl_b32 s{T+6}, s{S_WG}, 14")
    A(f"s_bfe_u32 s{T+8}, s{S_WG}, 0x40003")
    A(f"s_lshl_b32 s{T+8}, s{T+8}, 10")
    A(f"s_lshl_b32 s{T+7}, s{S_WAVE}, 12")
    A(f"v_and_b32 v21, 3, v{L}")
    A(f"v_mul_u32_u24 v21, 12288, v21")
    A(f"v_bfe_u32 v22, v{L}, 2, 2")
    A(f"v_lshl_add_u32 v21, v22, 11, v21")
    A(f"v_add_u32 v23, 2048, v21")
    A(f"v_cmp_eq_u32 vcc, 3, v22")
    A(f"s_lshl_b32 s{T+9}, s{S_CH}, 2")
    A(f"s_add_u32 s{T+9}, s{T+9}, {WS_MODP}")
    A(f"v_cndmask_b32 v21, v21, v23, vcc")
    A(f"s_lshl_b32 s{T+10}, s{S_CH}, 1")
    A(f"v_and_b32 v6, 15, v{L}")
    A(f"v_lshrrev_b32 v18, 1, v4")
    A(f"v_lshlrev_b32 v18, 2, v18")
    A(f"v_and_b32 v23, 1, v4")
    A(f"v_or_b32 v18, v18, v23")
    A(f"v_lshrrev_b32 v23, 1, v6")
    A(f"v_xor_b32 v18, v18, v23")
    A(f"v_lshlrev_b32 v23, 7, v6")
    A(f"v_lshl_add_u32 v23, v18, 4, v23")
    A(f"v_add_u32 v23, {LDS_STA}, v23")
    A(f"v_xor_b32 v216, 32, v23")
    A(f"v_lshlrev_b32 v5, 4, v{L}")
    A(f"v_lshlrev_b32 v18, 4, v4")
    A(f"v_xor_b32 v226, v5, v18")
    A(f"v_xor_b32 v227, 64, v226")
    A(f"v_lshlrev_b32 v18, 3, v0")
    A(f"v_add_u32 v18, {LDS_REC}, v18")
    A(f"v_mov_b32 v{VGH}, 0")
    A(f"v_mov_b32 v{VGH+1}, 0")
    A(f"ds_write_b64 v18, {v(VGH,2)}")
    A(f"v_mov_b32 v18, s{S_CARRY}")
    A(f"ds_write_b32 v18, v{VGH}")
    A(f"s_lshr_b32 s{T+12}, s{S_WAVE}, 1")
    for b in range(4):
        A(f"v_sub_u32 v18, v6, v4")
        A(f"v_add_u32 v18, {16-4*b}, v18")
        A(f"v_bfe_u32 v19, v18, 1, 3")
        A(f"v_xor_b32 v19, s{T+12}, v19")
        A(f"v_lshlrev_b32 v18, 7, v18")
        A(f"v_lshl_add_u32 v18, v19, 4, v18")
        A(f"v_add_u32 v{VAB+2*b}, {LDS_REC}, v18")
        A(f"v_xor_b32 v{VAB+2*b+1}, 64, v{VAB+2*b}")
    A(f"v_bfe_u32 v18, v{L}, 2, 2")
    A(f"v_and_b32 v19, 1, v18")
    A(f"v_add_u32 v18, 1, v18")
    A(f"v_lshrrev_b32 v18, 1, v18")
    A(f"v_and_b32 v20, 3, v{L}")
    A(f"v_add_u32 v18, v18, v20")
    A(f"v_lshlrev_b32 v18, 3, v18")
    A(f"v_lshl_add_u32 v18, v4, 5, v18")
    A(f"v_mul_u32_u24 v19, 4224, v19")
    A(f"s_mul_i32 s{T+13}, s{T+12}, 8448")
    A(f"s_add_u32 s{T+13}, s{T+13}, {LDS_KC}")
    A(f"v_add3_u32 v{VAA}, v18, v19, s{T+13}")
    A(f"v_bfe_u32 v19, v6, 1, 3")
    A(f"v_xor_b32 v19, s{T+12}, v19")
    A(f"v_lshlrev_b32 v18, 7, v6")
    A(f"v_lshl_add_u32 v18, v19, 4, v18")
    A(f"v_sub_u32 v19, 3, v4")
    A(f"v_lshl_add_u32 v18, v19, 2, v18")
    A(f"v_add_u32 v{VAE}, {LDS_REC+2048}, v18")
    A(f"v_xor_b32 v{VAE+1}, 64, v{VAE}")
    A(f"v_xor_b32 v{VAE+2}, 32, v{VAE}")
    A(f"v_xor_b32 v{VAE+3}, 96, v{VAE}")
    A(f"v_lshl_add_u32 v218, v6, 2, v4")
    A(f"v_lshl_add_u32 v218, v218, 2, s{S_CARRY}")
    A(f"s_add_u32 s{T+14}, s{T+7}, {LDS_KC}")
    A(f"v_bfe_u32 v24, v6, 2, 1")
    A(f"v_lshlrev_b32 v24, 1, v24")
    A(f"v_xor_b32 v24, v24, v4")
    A(f"v_lshlrev_b32 v219, 5, v6")
    A(f"v_lshl_add_u32 v219, v24, 3, v219")
    A(f"v_add_u32 v219, s{T+14}, v219")
    A(f"v_bfe_u32 v24, v{L}, 3, 1")
    A(f"v_lshlrev_b32 v24, 4, v24")
    A(f"v_xor_b32 v220, v24, v5")
    A(f"v_add_u32 v220, s{T+14}, v220")
    A(f"s_bitcmp1_b32 s{S_WAVE}, 0")
    for u in range(2):
        A(f"s_cselect_b32 s{T+14}, {TSETS[1][2*u]}, {TSETS[0][2*u]}")
        A(f"s_cselect_b32 s{T+15}, {TSETS[1][2*u+1]}, {TSETS[0][2*u+1]}")
        A(f"v_mov_b32 v24, s{T+14}")
        A(f"v_mov_b32 v25, s{T+15}")
        A(f"s_mov_b32 vcc_lo, 0")
        A(f"s_mov_b32 vcc_hi, -1")
        A(f"v_cndmask_b32 v24, v24, v25, vcc")
        A(f"v_and_b32 v25, 0x1ff, v5")
        A(f"v_lshl_add_u32 v{221+u}, v24, 9, v25")
    A(f"s_lshl_b32 s{S_CARRY}, s{S_CH}, 12")
    A(f"v_mov_b32 v22, 0")
    A(f"buffer_load_ushort v22, v22, {s(SRD_SSMD,4)}, s{T+10} offen")
    def pollA():
        u = uid()
        if O.lfa:
            lf_poll(A, LF_A, 24, 0 if O.bsplit else O.isleep)
            return
        A(f"s_mov_b64 exec, 3")
        A(f"v_lshlrev_b32 v252, 7, v{L}")
        A(f"s_mov_b32 s{S_TMP}, {WS_SYNC + 128*FLG_A}")
        A(f"s_mov_b32 s{S_SPIN}, 0x80000")
        A(f"L_poll{u}:")
        A(f"buffer_load_dwordx2 v[254:255], v252, {s(SRD_WS,4)}, s{S_TMP} offen sc1")
        A(f"s_sub_u32 s{S_SPIN}, s{S_SPIN}, 1")
        A(f"s_cbranch_scc1 L_pollx{u}")
        A("s_waitcnt vmcnt(0)")
        A(f"v_cmp_ne_u64 vcc, {s(S_TAG,2)}, v[254:255]")
        A(f"s_cbranch_vccz L_pollx{u}")
        A(f"s_sleep {O.sleep}")
        A(f"s_branch L_poll{u}")
        A(f"L_pollx{u}:")
        A("s_waitcnt vmcnt(0)")
        A(f"s_cmp_eq_u32 s{S_WG}, 0")
        A(f"s_cbranch_scc0 L_noep{u}")
        A("s_mov_b64 exec, 1")
        A(f"buffer_store_dwordx2 v[254:255], v252, {s(SRD_WS,4)}, s{S_TMP} offen offset:{128*(EPOCH-FLG_A)} sc1")
        A(f"L_noep{u}:")
        A("s_mov_b64 exec, -1")
    def w3A():
        pollA()
        stamp(A, "A released")
        A(f"s_mov_b32 m0, {LDS_REC+2048}")
        for i in range(16):
            if i: A(f"s_add_u32 m0, m0, 1024")
            A(f"s_xor_b32 s{T}, s{T+8}, {1024*i}")
            A(f"s_add_u32 s{T}, s{T}, s{T+6}")
            A(f"buffer_load_dwordx4 v{7 if i&1 else 3}, {s(SRD_WS,4)}, s{T} offen sc1 lds")
        if O.bsplit: lf_poll(A, LF_B, 24)
        A(f"s_cmp_eq_u32 s{S_WG}, 0")
        A(f"s_cbranch_scc0 L_noep")
        lf_signal(A, EPOCH)
        A(f"L_noep:")
        for i in range(16):
            if i % 4 == 0 or i == 14:
                A(f"s_mov_b32 m0, {LDS_STA + 4096*(i>>2) if i < 14 else LDS_STB - 2048}")
                A(f"s_mov_b32 s{T}, {WS_STAT + 4096*(i>>2)}")
            A(f"buffer_load_dwordx4 v{226+(i&1)}, {s(SRD_WS,4)}, s{T} offen offset:{1024*(i&3)} sc1 lds")
        A(f"s_mul_i32 s{T+18}, s{S_WG}, 7168")
        A(f"v_lshlrev_b32 v254, 7, v{L}")
        A(f"s_mov_b32 exec_hi, 0xffffff")
        if O.w2te: A(f"s_mov_b64 exec, 1")
        A(f"buffer_load_dword v255, v254, {s(SRD_W2,4)}, s{T+18} offen ; nowait")
        A(f"s_mov_b64 exec, -1")
        A("s_waitcnt vmcnt(17)")
    def oA():
        for gi in range(O.n_w1):
            A(f"s_waitcnt vmcnt({8 * (O.n_w1 - 1 - gi) + 1 + O.w2te})")
            for x in w1_read(gi): A(x)
        if O.w2w1:
            A("s_waitcnt lgkmcnt(0)")
            for gi in range(O.w2w1):
                for x in w2_group(gi, f"s{S_PM}", 8192 * gi):
                    A(x)
                    if x.startswith("buffer"): A(f"s_waitcnt vmcnt({O.w1_depth-1})")
        stamp(A, "A released")
        del _stamps[-1:]
    split_wave3(A, oA, w3A)
    A(f"v_cmp_eq_u32 vcc, s{T+11}, v{L}")
    A(f"v_cndmask_b32 v63, 0, v63, vcc")
    A("s_mov_b64 exec, 0xff")
    A(f"ds_write_b32 v62, v63")
    A("s_mov_b64 exec, -1")
    A("s_waitcnt lgkmcnt(0)")
    A("s_barrier")
    stamp(A, "rec landed")
    A(f"s_bitcmp1_b32 s{S_WAVE}, 0")
    A(f"s_cbranch_scc1 L_conv1")
    for var in range(3):
        par = min(var, 1)
        TS = TSETS[par]
        if var == 1:
            A(f"L_conv1:")
            A(f"s_cmp_eq_u32 s{S_WAVE}, 3")
            A(f"s_cbranch_scc1 L_conv3")
        if var == 2: A("L_conv3:")
        def afrag(buf, a_): return 136 + 32 * buf + 4 * a_
        def bfrag(buf, p, d): return 128 + 64 * buf + 32 * p + 4 * d
        def order(b):
            pairs = [(a_, J) for a_ in range(8) for J in TS if J >= a_]
            if b == 3: return [(a_, J, p) for p in (1, 0) for a_, J in pairs]
            return [(a_, J, p) for a_, J in pairs for p in range(2)]
        def reads(b):
            buf = b & 1
            seq = []; seen = set()
            for a_, J, p in order(b):
                if a_ not in seen:
                    seen.add(a_)
                    for h in range(2):
                        seq.append(f"ds_read_b64_tr_b16 {v(afrag(buf,a_)+2*h,2)}, v{VAA} offset:{512*a_+128*b+16*h}")
                if (J - a_, p) not in seen:
                    seen.add((J - a_, p))
                    seq.append(f"ds_read_b128 {a(bfrag(buf,p,J-a_),4)}, v{VAB+2*b+p} offset:{2048*(J-a_)}")
            return seq
        mark = len(A.items)
        r0 = reads(0)
        for x in r0[:O.fs]: A(x)
        ml = [f"buffer_load_dword v21, v21, {s(SRD_WS,4)}, s{T+9} offen sc1"] + modv_loads(24)
        scal = [f"v_add_f32_dpp v21, v21, v21 quad_perm:[1,0,3,2] row_mask:0xf bank_mask:0xf",
                  f"v_lshlrev_b32 v1, 16, v22",
                  f"v_add_f32_dpp v21, v21, v21 quad_perm:[2,3,0,1] row_mask:0xf bank_mask:0xf",
                  f"v_cvt_pk_bf16_f32 v21, v21, v21",
                  f"v_lshlrev_b32 v21, 16, v21",
                  f"v_add_f32 v5, 1.0, v21",
                  f"v_cvt_pk_bf16_f32 v5, v5, v5",
                  f"v_lshlrev_b32 v5, 16, v5",
                  f"v_readlane_b32 s{T+16}, v21, 0",
                  f"v_readlane_b32 s{T+18}, v21, 8",
                  f"v_readlane_b32 s{T+17}, v5, 4",
                  f"v_readlane_b32 s{T+19}, v5, 12",
                  f"v_mov_b32 v5, s{T+18}",
                  f"v_mul_f32 v7, s{T+17}, v5",
                  f"v_mul_f32 v21, s{T+16}, v5",
                  f"v_mov_b32 v217, s{T+19}"]
        kx = []
        for ti, J in enumerate(TS):
            so = 2048 * J if J < 7 else LDS_STB - LDS_STA
            kx += [f"ds_read_b32 v{VKX+4*ti+k}, v{VAE+k} offset:{2048*J}" for k in range(4)]
            kx += [f"ds_read_b128 {v(VST+4*ti,4)}, v23 offset:{so}", f"ds_read_b128 {v(VST+16+4*ti,4)}, v216 offset:{so}"]
        side = []; side2 = []; side3 = []; ntouch = 0; postg = []
        if var < 2:
            allg = [w1_group(gi, f"s{S_WAVE}", f"s{S_PM}", 224) for gi in range(O.n_w1, 4)] + [w2_group(gi, f"s{S_PM}", 8192 * gi) for gi in range(O.w2w1, min(O.w2e, O.w2side))]
            for x in allg[:len(allg) - O.post]: side.extend(x)
            postg = sum(allg[len(allg) - O.post:], [])
            if O.n_w1 < 4 and O.w2side == 4:
                postg = sum([w1_read(gi) for gi in range(O.n_w1, 4)], []) + ["s_waitcnt lgkmcnt(0)"] + postg
        pre = []
        for ti in range(4):
            d = VKX + 4 * ti + 2
            x = VX0 + 4 * ti
            pre += [f"v_and_b32 v{x}, 0xffff0000, v{d}", f"v_and_b32 v{x+1}, 0xffff0000, v{d+1}",
                    f"v_lshlrev_b32 v{x+2}, 16, v{d}", f"v_lshlrev_b32 v{x+3}, 16, v{d+1}"]
            for r in range(4): pre.append(f"v_fma_f32 v{VGH+4*ti+r}, v{x+r}, v{VST+4*ti+r}, v{VST+16+4*ti+r}")
            for r in range(4): pre.append(f"v_fma_f32 v{VGH+4*ti+r}, v{VGH+4*ti+r}, v7, v21")
        pre.insert(0, "s_waitcnt lgkmcnt(15)")
        started = set()
        if O.dbgC & 1: side = []
        if O.dbgC & 4: pre = []; kx = []
        nside = len(side)
        tailg = w1_group(f"s{S_WAVE}", 3, 3 * 32768, 60)
        mv = modv_ops(24) if O.mvearly else []
        if O.dbgC & 2: mv = []; scal = []
        if O.dbgC & 8: tailg = []
        pre = kx + pre
        for b in range(4):
            nxt = reads(b + 1) if b < 3 else []
            if b == 0: nxt = r0[O.fs:] + nxt
            if b == 2:
                if var == 2: A(f"s_waitcnt vmcnt({2 + 8 * O.mvearly})")
                A("s_barrier")
            for n, (a_, J, p) in enumerate(order(b)):
                acc = ACC + 8 * TS.index(J) + 4 * p
                c = v(acc, 4) if (J, p) in started else "0"
                started.add((J, p))
                if b == 0:
                    need = (v(afrag(0,a_)+2,2) + ",", a(bfrag(0,p,J-a_),4) + ",")
                    while any(x.split()[1] in need for x in nxt): A(nxt.pop(0))
                A(f"v_mfma_f32_16x16x32_bf16 {v(acc,4)}, {v(afrag(b&1,a_),4)}, {a(bfrag(b&1,p,J-a_),4)}, {c}")
                if nxt: A(nxt.pop(0))
                slot = 36 * b + n
                if b == 0 and nxt and len(nxt) > 34 - n: A(nxt.pop(0))
                elif ml: A(ml.pop(0))
                elif side and slot * nside >= (nside - len(side)) * 124: A(side.pop(0))
                elif b == 1 and (scal or mv): A((scal or mv).pop(0))
                elif b >= 2 and pre: A(pre.pop(0))
                if b == 3:
                    if n == 21:
                        for ti, JJ in enumerate(TS):
                            A(f"ds_write_b32 v218, v{ACC+8*ti+7} offset:{256*JJ+4}")
                    elif n == 24:
                        assert not side and not any(x.startswith("ds_read") for x in pre)
                        A("s_waitcnt lgkmcnt(0)")
                        A("s_barrier")
                        for tj, JJ in enumerate(TS):
                            A(f"ds_read_b32 v{U+tj}, v218 offset:{256*JJ}")
                    elif n > 24:
                        for _ in range(2):
                            if tailg: A(tailg.pop(0))
                    elif pre: A(pre.pop(0))
            for x in nxt: A(x)
            if b == 1:
                for x in scal + mv: A(x)
        if var: del _stamps[-(5 if O.fine else 1):]
        stamp(A, "conv mfma")
        for x in side: A(x)
        for x in pre + tailg: A(x)
        for ti in range(4):
            z1, g_, x0 = ACC + 8 * ti + 4, VGH + 4 * ti, VX0 + 4 * ti
            A(f"v_fmac_f32 v{x0}, v{g_}, v{U+ti}")
            for r in range(1, 4):
                A(f"v_fmac_f32 v{x0+r}, v{g_+r}, v{z1+r-1}")
        for ti in range(4):
            for r in range(4):
                A(f"v_dot2_f32_bf16 v{ACC+8*ti+r}, v{VKX+4*ti+(r&1)}, v{1 if r < 2 else 22}, v{ACC+8*ti+r}")
        if O.fine:
            stamp(A, "e:prebar"); stamp(A, "e:bar")
        A(f"s_add_u32 s{T+15}, s{S_CARRY}, {WS_X1C}")
        A(f"s_add_u32 s{T+14}, s{S_CARRY}, {WS_X1}")
        O1, O2 = 136, 144
        for ti in range(4):
            z0, g_, x0 = ACC + 8 * ti, VGH + 4 * ti, VX0 + 4 * ti
            for h in range(2):
                A(f"v_pk_fma_f32 {v(x0+2*h,2)}, {v(g_+2*h,2)}, {v(z0+2*h,2)}, {v(x0+2*h,2)}")
            for h in range(2):
                A(f"v_pk_mul_f32 {v(VST+4*ti+2*h,2)}, {v(x0+2*h,2)}, v[216:217] op_sel:[0,1] op_sel_hi:[1,1]")
            for h in range(2):
                A(f"v_cvt_pk_bf16_f32 v{O2+2*ti+h}, v{VST+4*ti+2*h}, v{VST+4*ti+2*h+1}")
            A(f"ds_write_b64 v219, {v(O2+2*ti,2)} offset:{512*ti}")
        for ti in range(4):
            x0 = VX0 + 4 * ti
            for h in range(2):
                A(f"v_cvt_pk_bf16_f32 v{O1+2*ti+h}, v{x0+2*h}, v{x0+2*h+1}")
            A(f"ds_write_b64 v219, {v(O1+2*ti,2)} offset:{2048+512*ti}")
        A("s_waitcnt lgkmcnt(4)")
        for k in range(2): A(f"ds_read_b128 {v(152+4*k,4)}, v220 offset:{1024*k}")
        A("s_waitcnt lgkmcnt(2)")
        for k in range(2, 4): A(f"ds_read_b128 {v(152+4*k,4)}, v220 offset:{1024*k}")
        for k in range(4):
            A(f"buffer_store_dwordx4 {v(152+4*k,4)}, v{221+(k&1)}, {s(SRD_WS,4)}, s{T+15-(k>>1)} offen sc1")
        if O.fine: stamp(A, "e:stored")
        if postg and O.n_w1 < 4: A(f"s_waitcnt vmcnt({12 + 8 * (4 - O.post)})")
        for x in postg: A(x)
        if O.fine: stamp(A, "e:post")
        if var == 2 and O.post: A("s_waitcnt vmcnt(0)")
        if var < 2: A(f"s_branch L_convdone")
    A(f"L_convdone:")
    stamp(A, "x1 stored")
    stamp_flush(A, 0)

VCS, VSBW = 64, 80
ACC1 = 128
VXR = 236

def w2frag(u, e):
    return (128 + 8 * e if e < 16 else 8 * (e - 16)) + 4 * u

def w2_setup(A):
    dma_voff(A, VW2S, VW2S + 1, 1024, 64)
    A(f"v_add_u32 v{VW2S+1}, {8*1024-1024}, v{VW2S+1}")
    A(f"v_add_u32 v{VW2S+2}, {2*(8*1024-1024)}, v{VW2S}")
    A(f"v_add_u32 v{VW2S+3}, {2*(8*1024-1024)}, v{VW2S+1}")
    tr_addr32(A, VW2 + 2, 64, 4)
    A(f"s_lshl_b32 s{S_TMP}, s{S_WAVE}, 5")
    A(f"v_xor_b32 v{VW2+2}, s{S_TMP}, v{VW2+2}")
    A(f"v_xor_b32 v{VW2+3}, 32, v{VW2+2}")
    A(f"v_xor_b32 v{VW2+4}, 64, v{VW2+2}")
    A(f"v_xor_b32 v{VW2+5}, 96, v{VW2+2}")
    A(f"s_mul_i32 s{S_PS}, s{S_WAVE}, {448*1024}")
    A(f"s_lshl_b32 s{S_TMP}, s{S_J}, 7")
    A(f"s_add_u32 s{S_PS}, s{S_PS}, s{S_TMP}")

def w2_group(gi, ldsreg, ldsoff, src=None):
    src = src or f"s{S_PS}"
    return [f"s_add_u32 s{S_TMP}, s{S_PE}, {gi}",
            f"s_add_u32 m0, {ldsreg}, {ldsoff}",
            f"s_cmp_ge_u32 s{S_TMP}, 7",
            f"s_cselect_b32 s{S_PO}, 7, 0",
            f"s_sub_u32 s{S_TMP}, s{S_TMP}, s{S_PO}",
            f"s_lshl_b32 s{S_PO}, s{S_TMP}, 16",
            f"s_add_u32 s{S_PO}, s{S_PO}, {src}"] + pieces8(VW2S, SRD_W2, 32768)

def w2_addr(A, base):
    for k in range(4): A(f"v_add_u32 v{VW2H+k}, {base}, v{VW2+2+k}")

def w2_read(gi, off):
    return [f"ds_read_b64_tr_b16 {a(w2frag(u, 4*gi+e)+2*h,2)}, v{VW2H+2*u+h} offset:{off+2048*e+1024*h}" for e in range(4) for u in range(2) for h in range(2)]

def gemm1_setup(A):
    L = V_LANE
    dma_voff(A, 56, 57, 4096, 5)
    A(f"v_bfe_u32 v5, v56, 6, 1")
    A(f"v_lshl_add_u32 v58, v5, 6, v56")
    A(f"v_lshl_add_u32 v59, v5, 6, v57")
    A(f"v_add_u32 v57, {8*4096-1024}, v57")
    A(f"v_add_u32 v59, {8*4096-1024}, v59")
    A(f"s_lshl_b32 s{T}, s{S_WAVE}, 16")
    A(f"s_lshl_b32 s{T+1}, s{S_RB}, 8")
    A(f"s_add_u32 s{T}, s{T}, s{T+1}")
    A(f"s_and_b32 s{T+2}, s{S_C}, 1")
    A(f"s_lshl_b32 s{T+2}, s{T+2}, 7")
    A(f"s_add_u32 s{T+2}, s{T+2}, {WS_X1}")
    A(f"s_cmp_ge_u32 s{S_C}, 14")
    A(f"s_cselect_b32 s{T+2}, s{T+2}, {WS_X1C}")
    A(f"s_add_u32 s{T}, s{T}, s{T+2}")
    A(f"s_add_u32 s{SRD_K}, s{SRD_WS}, s{T}")
    A(f"s_addc_u32 s{SRD_K+1}, s{SRD_WS+1}, 0")
    A(f"v_add_u32 v60, 128, v56")
    A(f"v_add_u32 v61, 128, v57")
    A(f"s_lshl_b32 s{T+2}, s{S_WAVE}, 11")
    A(f"s_lshl_b32 s{T+5}, s{S_ROT}, 18")
    tr_addr32(A, 8, 5, 8)
    A(f"v_xor_b32 v9, 64, v8")
    A(f"v_add_u32 v10, 0x10000, v8")
    A(f"v_add_u32 v11, 0x10000, v9")
    A(f"v_lshlrev_b32 v18, 4, v{L}")
    A(f"s_mul_i32 s{T+3}, s{S_RB}, {4*112*1024}")
    A(f"s_lshl_b32 s{T+4}, s{S_C}, 13")
    A(f"s_add_u32 s{T+3}, s{T+3}, s{T+4}")
    A(f"s_add_u32 s{T+3}, s{T+3}, s{T+2}")
    A(f"s_add_u32 s{T+3}, s{T+3}, {WS_H}")
    tr_addr32(A, 44, 5, 4)
    A(f"s_add_u32 s{T+6}, s{T+2}, {LDS_XR}")
    A(f"v_add_u32 v44, s{T+6}, v44")
    A(f"v_xor_b32 v45, 32, v44")
    A(f"v_xor_b32 v42, 64, v44")
    A(f"v_xor_b32 v43, 96, v44")
    A(f"s_lshl_b32 s{T+7}, s{S_RB}, 11")
    A(f"s_add_u32 s{T+7}, s{T+7}, {WS_ST2}")
    A(f"s_lshr_b32 s{T+8}, s{S_RT}, 4")
    A(f"s_lshl_b32 s{T+8}, s{T+8}, 1")
    A(f"s_bfe_u32 s{T+9}, s{S_RT}, 0x20002")
    A(f"s_lshl_b32 s{T+9}, s{T+9}, 6")
    A(f"s_add_u32 s{T+8}, s{T+8}, s{T+9}")
    A(f"s_lshl_b32 s{T+8}, s{T+8}, 7")
    A(f"s_add_u32 s{T+9}, s{T+8}, {WS_SYNC + 128*FLG_3}")
    A(f"s_add_u32 s{T+8}, s{T+8}, {WS_SYNC + 128*FLG_4}")
    A(f"v_min_u32 v14, 13, v{L}")
    A(f"v_and_b32 v5, 1, v14")
    A(f"v_lshrrev_b32 v14, 1, v14")
    A(f"v_lshlrev_b32 v14, 10, v14")
    A(f"v_lshl_add_u32 v14, v5, 7, v14")

def modv_loads(M):
    L = [f"v_lshlrev_b32 v{M+20}, 4, v0"]
    L += [f"s_mov_b32 s{T+p}, {WS_MODP + 12288*p + 1536*4}" for p in range(4)]
    L += [f"buffer_load_dwordx4 {v(M+4*p,4)}, v{M+20}, {s(SRD_WS,4)}, s{T+p} offen sc1" for p in range(4)]
    L += [f"v_lshlrev_b32 v{M+21}, 2, v{V_LANE}", f"s_lshl_b32 s{T+4}, s{S_J}, 8"]
    L += [f"s_add_u32 s{T+p}, s{T+4}, {WS_MODP + 12288*p + 2560*4}" for p in range(4)]
    L += [f"buffer_load_dword v{M+16+p}, v{M+21}, {s(SRD_WS,4)}, s{T+p} offen sc1" for p in range(4)]
    return L

def modv_ops(M):
    L = [f"s_lshr_b32 s{T+5}, s{S_WAVE}, 1",
         f"v_cvt_f32_u32 v{M+22}, s{T+5}",
         f"s_xor_b32 s{T+5}, s{T+5}, 1",
         f"s_lshl_b32 s{T+5}, s{T+5}, 10",
         f"s_add_u32 s{T+5}, s{T+5}, {LDS_MODV}",
         f"s_lshl_b32 s{T+4}, s{S_ROT}, 7",
         f"v_lshrrev_b32 v{M+20}, 1, v{M+20}",
         f"v_subrev_u32 v{M+20}, s{T+4}, v{M+20}",
         f"v_and_b32 v{M+20}, 0x3ff, v{M+20}",
         f"v_add_u32 v{M+20}, s{T+5}, v{M+20}"]
    for k in range(4): L += [f"v_add_f32 v{M+k}, v{M+k}, v{M+4+k}", f"v_add_f32 v{M+8+k}, v{M+8+k}, v{M+12+k}"]
    for k in range(4): L += [f"v_add_f32 v{M+k}, v{M+k}, v{M+8+k}"]
    L += [f"v_add_f32 v{M+16}, v{M+16}, v{M+17}", f"v_add_f32 v{M+18}, v{M+18}, v{M+19}"]
    for k in range(2): L += [f"v_cvt_pk_bf16_f32 v{M+4+k}, v{M+2*k}, v{M+2*k+1}"]
    L += [f"v_add_f32 v{M+16}, v{M+16}, v{M+18}"]
    for k in range(2): L += [f"v_lshlrev_b32 v{M+2*k}, 16, v{M+4+k}", f"v_and_b32 v{M+2*k+1}, 0xffff0000, v{M+4+k}"]
    L += [f"v_cvt_pk_bf16_f32 v{M+16}, v{M+16}, v{M+16}"]
    for k in range(4): L += [f"v_add_f32 v{M+k}, v{M+22}, v{M+k}"]
    L += [f"v_lshlrev_b32 v{M+16}, 16, v{M+16}"]
    for k in range(2): L += [f"v_cvt_pk_bf16_f32 v{M+4+k}, v{M+2*k}, v{M+2*k+1}"]
    L += [f"v_mul_f32 v{M+16}, 0xbf317218, v{M+16}",
          f"ds_write_b64 v{M+20}, {v(M+4,2)}",
          f"v_add_u32 v{M+21}, {LDS_GB}, v{M+21}",
          f"ds_write_b32 v{M+21}, v{M+16}",
          f"v_mov_b32 v{M+17}, 0",
          f"v_and_b32 v{M+18}, 60, v{M+21}",
          f"v_add_u32 v{M+18}, {LDS_MODV+2048}, v{M+18}",
          f"ds_write_b32 v{M+18}, v{M+17}"]
    return L

def window3(A):
    L = V_LANE
    M = 168
    A(f"v_xor_b32 v7, v6, v4")
    A(f"v_and_b32 v7, 1, v7")
    A(f"v_lshrrev_b32 v45, 2, v6")
    A(f"v_or_b32 v7, v7, v45")
    A(f"v_lshrrev_b32 v45, 1, v6")
    A(f"v_lshlrev_b32 v45, 10, v45")
    A(f"v_lshrrev_b32 v46, 1, v4")
    A(f"v_lshl_add_u32 v45, v46, 4, v45")
    A(f"v_add_u32 v45, {LDS_MODV}, v45")
    A(f"v_cmp_eq_u32 vcc, 0, v7")
    A(f"v_mov_b32 v47, {LDS_MODV+2048}")
    A(f"v_cndmask_b32 v47, v47, v45, vcc")
    A(f"v_mov_b32 v46, 32")
    A(f"v_cndmask_b32 v46, 0, v46, vcc")
    w2_addr(A, f"s{S_PM}")
    gemm1_setup(A)
    A(f"s_waitcnt vmcnt({8 * O.post})")
    A("s_barrier")
    stamp(A, "x1 acked")
    def rd():
        for gi in range(4):
            if gi == 4 - O.post: A("s_waitcnt vmcnt(0)")
            for x in w2_read(gi, 8192 * gi): A(x)
        A(f"s_cmp_eq_u32 s{S_WAVE}, 2")
        A(f"s_cbranch_scc0 L_now3w2")
        A(f"s_lshl_b32 s{T+11}, s{S_J}, 7")
        A(f"s_add_u32 s{T+11}, s{T+11}, {3*448*1024}")
        A("s_waitcnt lgkmcnt(0)")
        for gi in range(4):
            for x in w2_group(gi, f"s{S_PM}", 8192 * gi, f"s{T+11}"): A(x)
        A("L_now3w2:")
    def fin():
        if O.lf2: lf_signal(A, LF_2)
        else:
            signal_issue(A, CNT_2)
        for gi in range(4):
            for x in w1_read(gi): A(x)
        w2_addr(A, 65536)
        if not O.lf2: signal_finish(A, FLG_2)
    split_wave3(A, rd, fin)
    stamp(A, "modv")
    NB = 8
    def rdv(e):
        A(f"ds_read_b128 {v(192+4*(e%NB),4)}, v47")
        A(f"v_add_u32 v47, v47, v46")
    for e in range(NB): rdv(e)
    for e in range(32):
        A(f"v_mfma_f32_16x16x32_bf16 v[48:51], {a(4*e,4)}, {v(192+4*(e%NB),4)}, {'0' if e == 0 else 'v[48:51]'}")
        if e + NB < 32: rdv(e + NB)
    A(f"v_lshrrev_b32 v4, 4, v{L}")
    A(f"v_and_b32 v6, 15, v{L}")
    A(f"s_lshl_b32 s{T+13}, s{S_WAVE}, 9")
    A(f"s_add_u32 s{T+13}, s{T+13}, {LDS_CS}")
    A(f"v_and_b32 v5, 1, v6")
    A(f"v_lshlrev_b32 v5, 6, v5")
    A(f"v_lshl_add_u32 v5, v4, 4, v5")
    A(f"v_lshrrev_b32 v7, 1, v6")
    A(f"v_lshl_add_u32 v5, v7, 8, v5")
    A(f"v_add_u32 v5, s{T+13}, v5")
    A(f"s_mov_b32 exec_lo, 0x000f000f")
    A(f"s_mov_b32 exec_hi, 0x000f000f")
    A(f"ds_write_b128 v5, v[48:51]")
    A("s_mov_b64 exec, -1")
    A(f"v_lshrrev_b32 v5, 5, v{L}")
    A(f"v_lshlrev_b32 v5, 4, v5")
    A(f"v_add_u32 v5, s{T+13}, v5")
    A("s_waitcnt lgkmcnt(0)")
    for k in range(4):
        A(f"ds_read_b128 {v(VCS+4*k,4)}, v5 offset:{32*k}")
        A(f"ds_read_b128 {v(VSBW+4*k,4)}, v5 offset:{256+32*k}")
    A(f"v_mov_b32 v6, {hex(NLOG2E)}")
    for r in range(0, 16, 2):
        A(f"v_pk_mul_f32 {v(VSBW+r,2)}, {v(VSBW+r,2)}, v[6:7] op_sel_hi:[1,0]")
    stamp(A, "colsums")
    A(f"s_cmp_eq_u32 s{S_WAVE}, {O.poll2}")
    A(f"s_cbranch_scc0 L_np2")
    if O.lf2: lf_poll(A, LF_2, 100, O.isleep2)
    else: poll(A, 16, 128, WS_SYNC + 128 * FLG_2)
    A("L_np2:")
    A("s_waitcnt vmcnt(0)")
    A("s_barrier")
    stamp(A, "2 released")

def silu_ops(acc, rin, mr, tmp, out, packed=True):
    L = []
    W = O.sw; tmp = 48 if W <= 8 else 112
    for g0 in range(0, 16, W):
        for r in range(0, W, 2):
            L.append(f"v_pk_fma_f32 {v(tmp+r,2)}, {v(VCS+g0+r,2)}, {v(rin,2)}, {v(VSBW+g0+r,2)} op_sel:[0,1,0] op_sel_hi:[1,1,1]")
        for r in range(0, W, 2):
            L.append(f"v_pk_fma_f32 {v(acc+g0+r,2)}, {v(acc+g0+r,2)}, {v(rin,2)}, {v(tmp+r,2)} op_sel:[0,0,0] op_sel_hi:[1,0,1]")
        for i in range(W): L.append(f"v_exp_f32 v{tmp+i}, v{acc+g0+i}")
        for r in range(0, W, 2): L.append(f"v_pk_add_f32 {v(tmp+r,2)}, {v(tmp+r,2)}, 1.0 op_sel_hi:[1,0]")
        for i in range(W): L.append(f"v_rcp_f32 v{tmp+i}, v{tmp+i}")
        for r in range(0, W, 2): L.append(f"v_pk_mul_f32 {v(tmp+r,2)}, {v(tmp+r,2)}, {v(acc+g0+r,2)}")
        for r in range(0, W, 2): L.append(f"v_cvt_pk_bf16_f32 v{out+(g0+r)//2}, v{tmp+r}, v{tmp+r+1}")
    return L

def mix(x, y):
    out = []; k = 0
    for i, a_ in enumerate(x):
        out.append(a_)
        while k < len(y) and k * len(x) < (i + 1) * len(y):
            out.append(y[k]); k += 1
    return out + y[k:]

def cost(ins):
    return 8 if ins.startswith(("v_exp", "v_rcp")) else 4

def own_flag(A, base):
    A(f"s_lshl_b32 s{S_TMP}, s{S_WG}, 7")
    A(f"s_add_u32 s{S_TMP}, s{S_TMP}, {WS_SYNC + 128*base}")
    A("s_mov_b64 exec, 1")
    A(f"v_mov_b32 v252, 0")
    A(f"v_mov_b32 v253, 1")
    A(f"buffer_store_dword v253, v252, {s(SRD_WS,4)}, s{S_TMP} offen sc1")
    A("s_mov_b64 exec, -1")

def recheck(A, cmp, reload_):
    u = uid()
    A(f"s_mov_b32 s{S_SPIN}, 0x80000")
    A(f"L_rc{u}:")
    for x in cmp: A(x)
    A(f"s_cbranch_vccz L_rcx{u}")
    A(f"s_sleep {O.rs}")
    for x in reload_: A(x)
    A(f"s_sub_u32 s{S_SPIN}, s{S_SPIN}, 1")
    A("s_waitcnt vmcnt(0)")
    A(f"s_cbranch_scc0 L_rc{u}")
    A(f"L_rcx{u}:")

def gemm1(A):
    L = V_LANE
    XF = 192; VRS = 96; SG = 104; TMP, OUT = 20, 24
    A("; ---- GEMM 1 ----")
    def chunk(n, src=None):
        h = 4 * (n >> 3)
        return [f"s_add_u32 m0, s{T+2}, {8192*n}",
                f"s_and_b32 s{T+5}, s{T+5}, 0x1fffff",
                f"buffer_load_dwordx4 v{56+h}, {s(SRD_K,4)}, s{T+5} offen sc1 lds",
                f"buffer_load_dwordx4 v{57+h}, {s(SRD_K,4)}, s{T+5} offen offset:1024 sc1 lds",
                f"s_add_u32 s{T+5}, s{T+5}, 262144"]
    xres = [f"s_lshl_b32 s{T+12}, s{S_J}, 18",
            f"s_lshl_b32 s{T+13}, s{S_WAVE}, 16",
            f"s_add_u32 s{T+12}, s{T+12}, s{T+13}",
            f"s_lshl_b32 s{T+13}, s{S_RT}, 6",
            f"s_add_u32 s{T+12}, s{T+12}, s{T+13}",
            f"s_add_u32 m0, s{T+2}, {LDS_XR}",
            f"s_add_u32 s{T+12}, s{T+12}, {WS_X1}",
            f"buffer_load_dwordx4 v58, {s(SRD_WS,4)}, s{T+12} offen sc1 lds",
            f"buffer_load_dwordx4 v59, {s(SRD_WS,4)}, s{T+12} offen offset:1024 sc1 lds"]
    def w3w2():
        for gi in range(O.w2e):
            for x in w2_read(gi, 8192 * gi): A(x)
        A("s_waitcnt lgkmcnt(0)")
    w2b = lambda gi: w2_group(4 + gi, f"s{S_PM}", 8192 * gi if gi < 2 else 65536)
    A(f"s_lshl_b32 s{S_PM}, s{S_WAVE}, 14")
    A(f"s_cmp_ge_u32 s{S_C}, 14")
    A(f"s_cbranch_scc1 L_stat")
    for n in range(4):
        for x in chunk(n, WS_X1C): A(x)
    only_wave3(A, w3w2)
    def xread(st, e):
        return [f"ds_read_b64_tr_b16 {v(XF+4*((2*e+(st&1))%8)+2*h,2)}, v{8+st} offset:{2048*e+512*h}" for h in range(2)]
    def hstore(st, out):
        return [f"s_add_u32 s{T+4}, s{T+3}, {112*1024*st}"] + [f"buffer_store_dwordx4 {v(out+4*k,4)}, v18, {s(SRD_WS,4)}, s{T+4} offen offset:{1024*k} {['sc1', 'sc0 sc1', 'sc1 nt'][O.hs]}" for k in range(2)]
    def mf(st, e):
        acc = ACC1 + 16 * st
        return f"v_mfma_f32_32x32x16_bf16 {v(acc,16)}, {a(4*e,4)}, {v(XF+4*((2*e+(st&1))%8),4)}, {'0' if e == 0 else v(acc,16)}"
    sld = [f"buffer_load_dwordx4 {v(SG+4*h,4)}, v18, {s(SRD_WS,4)}, s{T+7} offen offset:{1024*h} sc1" for h in range(2)]
    side = sum([chunk(n, WS_X1C + 128 * (n >> 3)) for n in range(4, 16)], []) + xres
    ops = [1] * 8
    def emit(x, tile=0):
        A(x)
        if x.startswith("buffer"): ops.append(tile)
    def put(k):
        for _ in range(k):
            if side: emit(side.pop(0), 1)
    def ckpt(need, name=None):
        while sum(ops) < need: put(1)
        pos = [k for k, t in enumerate(ops) if t][need - 1]
        A(f"s_waitcnt vmcnt({len(ops) - 1 - pos})")
        A("s_barrier")
        if name: stamp(A, name)
    LOOK = O.look
    gates = {0: 4, 8: 8, 16: 16, 32: 20, 40: 24, 48: 34} if O.prog else {0: 4, 8: 8, 16: 16, 32: 34}
    ckpt(4, "ckpt0")
    for n in range(LOOK):
        for st in range(2):
            for x in xread(st, n): A(x)
    for e in range(32):
        n = e + LOOK
        if n in gates:
            ckpt(gates[n], "half1" if n == 32 else None)
            if n == 32:
                for x in sld: emit(x)
        if O.wmerge: A(f"s_waitcnt lgkmcnt({4 * (LOOK - 1)})")
        for st in range(2):
            A(mf(st, e))
            for x in xread(st + 2 * (n >> 5), n & 31): A(x)
            put(O.pa0 if e < 8 else O.pa)
    def spread(h):
        Ls = []
        for k in range(2):
            Ls += [f"v_mov_b32 v{VRS+4*h+k}, v{SG+4*h+2*k}", f"v_mov_b32 v{VRS+4*h+2+k}, v{SG+4*h+2*k}"]
        for k in range(2):
            Ls += [f"v_permlane32_swap_b32 v{VRS+4*h+k}, v{VRS+4*h+2+k}"]
        return Ls
    def scheck(h):
        recheck(A, [f"v_and_b32 v{TMP}, v{SG+4*h+1}, v{SG+4*h+3}", f"v_cmp_ne_u32 vcc, 1, v{TMP}"], [sld[h]])
    xr = [f"ds_read_b64_tr_b16 {v(VXR+2*k,2)}, v{44-(k&2)+(k&1)} offset:{1024*(k&1)}" for k in range(4)]
    grp = lambda gi: w2_group(gi, f"s{S_PM}", 8192 * (gi & 1))
    E = O.w2e
    late = grp(E) + grp(E + 1) + xr
    rds = []
    w2_addr(A, f"s{S_PM}")
    def step(e, st):
        if st == 2:
            if e + LOOK + 32 in gates: ckpt(gates[e + LOOK + 32])
            A(f"s_waitcnt lgkmcnt({4 * min(LOOK - 1, 31 - e)})")
        A(mf(st, e))
        if e + LOOK < 32:
            for x in xread(st, e + LOOK): A(x)
    todo = [(e, st) for e in range(32) for st in (2, 3)]
    nst = None
    while todo:
        e, st = todo.pop(0)
        if (e, st) == (16, 2): stamp(A, "B16")
        step(e, st)
        if side: put(2)
        elif e > 48 - 32 - LOOK and nst is not None and late:
            for _ in range(O.pb):
                if late and not late[0].startswith("ds_read"): emit(late.pop(0))
        if (e, st) == (O.sck, 3):
            scheck(0)
            stamp(A, "stats0")
            for x in spread(0): A(x)
            for q in range(2):
                prev = ""
                for x in silu_ops(ACC1 + 16 * q, VRS + 2 * q, VRS + 2 * q + 1, TMP, OUT + 8 * q, True) + hstore(q, OUT + 8 * q):
                    if O.ovl and x[:5] in ("v_exp", "v_rcp") and prev[:5] != x[:5] and todo[0] != (16, 2):
                        step(*todo.pop(0))
                    emit(x, 0); prev = x
            nst = len(ops)
            stamp(A, "burst0")
        if (e, st) == (O.f0at, 3):
            A(f"s_waitcnt vmcnt({len(ops) - nst})")
            A("s_barrier")
            only_wave3(A, lambda: own_flag(A, FLG_4))
    for x in late: emit(x)
    stamp(A, "g1 mfma")
    scheck(1)
    for x in spread(1): A(x)
    for st in range(2, 4):
        for x in silu_ops(ACC1 + 16 * st, VRS + 2 * st, VRS + 2 * st + 1, TMP, OUT + 8 * (st & 1), True): A(x)
        if st == 3: A(f"buffer_load_dword v12, v14, {s(SRD_WS,4)}, s{T+8} offen sc1")
        for x in hstore(st, OUT + 8 * (st & 1)): A(x)
    stamp(A, "H stored")
    A("s_branch L_g1done")
    A("L_stat:")
    del _stamps[-7:]
    for n in range(5):
        for x in chunk(n, WS_X1): A(x)
    tr_addr16(A, 12, 5)
    A(f"s_lshl_b32 s{T+14}, s{S_WAVE}, 5")
    A(f"v_xor_b32 v12, s{T+14}, v12")
    ONES, GR, SM = 36, ACC1, ACC1 + 4
    for i in range(4): A(f"v_mov_b32 v{ONES+i}, s{S_ONES}")
    for c in range(4):
        A(f"s_waitcnt vmcnt({6 if c == 0 else 4 * (3 - c)})")
        A("s_barrier")
        if c == 0:
            stamp(A, "ckpt0")
            for n in range(5, 8):
                for x in chunk(n, WS_X1): A(x)
        for e in range(4 * c, 4 * c + 4):
            for h in range(2):
                A(f"ds_read_b64_tr_b16 {v(XF+4*(e%4)+2*h,2)}, v12 offset:{4096*e+512*h}")
        for e in range(4 * c, 4 * c + 4):
            f = v(XF + 4 * (e % 4), 4)
            A(f"v_mfma_f32_16x16x32_bf16 {v(GR,4)}, {f}, {f}, {'0' if e == 0 else v(GR,4)}")
            A(f"v_mfma_f32_16x16x32_bf16 {v(SM,4)}, {v(ONES,4)}, {f}, {'0' if e == 0 else v(SM,4)}")
    stamp(A, "half1")
    for e in ("stats0", "burst0", "B16"): stamp(A, e)
    for r, m in ((1, "0x22222222"), (2, "0x44444444"), (3, "0x88888888")):
        A(f"s_mov_b32 vcc_lo, {m}")
        A(f"s_mov_b32 vcc_hi, {m}")
        A(f"v_cndmask_b32 v{GR}, v{GR}, v{GR+r}, vcc")
    ln_finish(A, [(SM, GR, GR + 8, GR + 10)], GR + 1, hex(NLOG2E))
    A(f"v_mov_b32 v{GR+9}, 1")
    A(f"v_mov_b32 v{GR+11}, 1")
    A(f"v_and_b32 v5, 15, v{L}")
    A(f"v_lshlrev_b32 v5, 4, v5")
    A(f"s_and_b32 s{T+13}, s{S_C}, 1")
    A(f"s_lshl_b32 s{T+13}, s{T+13}, 10")
    A(f"s_lshl_b32 s{T+14}, s{S_WAVE}, 8")
    A(f"s_add_u32 s{T+13}, s{T+13}, s{T+14}")
    A(f"s_add_u32 s{T+13}, s{T+13}, s{T+7}")
    A(f"s_mov_b32 exec_lo, 0x00f0000f")
    A(f"s_mov_b32 exec_hi, 0xf0000f00")
    A(f"buffer_store_dwordx4 {v(GR+8,4)}, v5, {s(SRD_WS,4)}, s{T+13} offen sc1")
    A("s_mov_b64 exec, -1")
    stamp(A, "g1 mfma")
    for x in xres: A(x)
    only_wave3(A, w3w2)
    A("s_waitcnt vmcnt(0)")
    A("s_barrier")
    w2_addr(A, f"s{S_PM}")
    for x in grp(E) + grp(E + 1) + xr: A(x)
    if E < 4:
        A("s_waitcnt vmcnt(0)")
        for x in w2_read(E, 0) + w2_read(E + 1, 8192): A(x)
        A("s_waitcnt lgkmcnt(0)")
        for x in grp(E + 2) + grp(E + 3): A(x)
    if O.stq:
        A("v_mov_b32 v12, 0")
        recheck(A, [f"v_cmp_ne_u32 vcc, 1, v12"], [f"s_sleep {O.stq & 127}", f"buffer_load_dword v12, v14, {s(SRD_WS,4)}, s{T+8+(O.stq>>7)} offen sc1"])
    A(f"buffer_load_dword v12, v14, {s(SRD_WS,4)}, s{T+8} offen sc1")
    A("s_waitcnt vmcnt(0)")
    stamp(A, "H stored")
    A("L_g1done:")

def gemm2(A):
    L = V_LANE
    ACC = 32; HF = 96; NB = 32
    fl = lambda r, sr: f"buffer_load_dword v{r}, v14, {s(SRD_WS,4)}, s{sr} offen sc1"
    w2_addr(A, f"s{S_PM}")
    A(f"v_lshrrev_b32 v5, 5, v{L}")
    A(f"v_lshlrev_b32 v5, 4, v5")
    A(f"s_lshl_b32 s{T+1}, s{S_WAVE}, 6")
    A(f"s_add_u32 s{T+1}, s{T+1}, {LDS_GB}")
    A(f"v_add_u32 v5, s{T+1}, v5")
    A(f"s_mov_b32 s{T}, s{S_RT}")
    A(f"s_mul_i32 s{T+2}, s{T}, {112*1024}")
    A(f"v_lshlrev_b32 v6, 4, v{L}")
    A(f"v_add_u32 v3, s{T+2}, v6")
    A(f"v_add_u32 v4, {2*112*1024}, v3")
    A(f"s_mul_i32 s{T+4}, s{S_WAVE}, {28*1024}")
    A(f"s_add_u32 s{T+4}, s{T+4}, {WS_H}")
    A(f"s_add_u32 s{T+5}, s{T+4}, {28*1024}")
    A(f"s_lshl_b32 s{T+2}, s{S_PE}, 12")
    A(f"s_add_u32 s{T+2}, s{T+2}, s{T+4}")
    A("s_waitcnt vmcnt(5)")
    for gi in range(2):
        for x in w2_read((4 if O.w2e else 2) + gi, 8192 * gi): A(x)
    def hload(n):
        st, e = divmod(n, 28)
        Ls = [f"buffer_load_dwordx4 {v(HF+4*(n%NB),4)}, v{3+st}, {s(SRD_WS,4)}, s{T+2} offen offset:{1024*(e&3)} {['sc1', 'sc0 sc1', 'sc1 nt'][O.hl]}"]
        if e % 4 == 3:
            Ls += [f"s_add_u32 s{T+2}, s{T+2}, 4096", f"s_cmp_eq_u32 s{T+2}, s{T+5}", f"s_cselect_b32 s{T+2}, s{T+4}, s{T+2}"]
        return Ls
    def first():
        recheck(A, [f"v_cmp_ne_u32 vcc, 1, v12"], [fl(12, T + 8)])
        stamp(A, "F0 seen")
        for n in range(O.hp0):
            for x in hload(n): A(x)
    if O.early0: first()
    A(f"s_waitcnt vmcnt({O.hp0 if O.early0 else 0})")
    A("s_barrier")
    stamp(A, "H acked")
    def f1():
        A(f"s_cmp_ge_u32 s{S_C}, 14")
        A(f"s_cbranch_scc1 L_nof1")
        own_flag(A, FLG_3)
        A("L_nof1:")
    only_wave3(A, f1)
    if not O.early0: first()
    for n in range(O.hp0, O.hpre):
        for x in hload(n): A(x)
        if n == O.f1pos and O.hpre > O.f1pos: A(fl(13, T + 9))
    if O.w2e == 0:
        for x in w2_group(4, f"s{S_PM}", 65536) + w2_group(5, f"s{S_PM}", 65536 + 8192) + ["s_waitcnt lgkmcnt(0)"] + w2_group(6, f"s{S_PM}", 0): A(x)
    elif not O.g6late:
        for x in w2_group(6, f"s{S_PM}", 65536): A(x)
    for k in range(2):
        A(f"ds_read_b128 {v(16+4*k,4)}, v5 offset:{32*k}")
    A(f"v_add_u32 v7, s{S_PM}, v6")
    for k in range(1, 4):
        A(f"s_xor_b32 s{T+6}, s{S_WAVE}, {k}")
        A(f"s_lshl_b32 s{T+6}, s{T+6}, 14")
        A(f"v_add_u32 v{8+k}, s{T+6}, v6")
    A(f"v_and_b32 v8, 31, v{L}")
    A(f"v_lshlrev_b32 v8, 10, v8")
    A(f"v_lshrrev_b32 v5, 5, v{L}")
    A(f"v_lshl_add_u32 v8, v5, 4, v8")
    A(f"s_lshl_b32 s{T+7}, s{T}, 15")
    A(f"s_lshl_b32 s{T+6}, s{S_J}, 7")
    A(f"s_add_u32 s{T+7}, s{T+7}, s{T+6}")
    A(f"s_lshl_b32 s{T+6}, s{S_WAVE}, 5")
    A(f"s_add_u32 s{T+7}, s{T+7}, s{T+6}")
    A(f"s_add_u32 s{T+6}, s{T+7}, {2*32768}")
    def red_write(st):
        return [f"ds_write_b128 v7, {v(ACC+32*(k>>1)+16*st+8*(k&1)+4*q,4)} offset:{6144*st+2048*(k-1)+1024*q}" for k in range(1, 4) for q in range(2)]
    def red_finish(st, PP, packed):
        P = PP[0]
        own = ACC + 16 * st
        Ls = [f"ds_read_b128 {v(PP[k]+4*q,4)}, v{9+k} offset:{6144*st+2048*k+1024*q}" for k in range(3) for q in range(2)]
        for k in range(4):
            Ls += [f"v_lshlrev_b32 v{24+2*k}, 16, v{VXR+4*st+k}", f"v_and_b32 v{25+2*k}, 0xffff0000, v{VXR+4*st+k}"]
        if packed:
            Ls += [f"v_pk_add_f32 {v(own+r,2)}, {v(own+r,2)}, {v(PP[k]+r,2)}" for k in range(3) for r in range(0, 8, 2)]
            Ls += [f"v_pk_fma_f32 {v(own+r,2)}, {v(own+r,2)}, {v(16+r,2)}, {v(24+r,2)}" for r in range(0, 8, 2)]
        else:
            Ls += [f"v_add_f32 v{own+r}, v{own+r}, v{PP[k]+r}" for k in range(3) for r in range(8)]
            Ls += [f"v_fma_f32 v{own+r}, v{own+r}, v{16+r}, v{24+r}" for r in range(8)]
        if O.err:
            import struct
            Ls += [f"v_mul_f32 v{own+r}, {hex(struct.unpack('<I', struct.pack('<f', 1 + O.err / 1000))[0])}, v{own+r}" for r in range(8)]
        Ls += [f"v_cvt_pk_bf16_f32 v{P+r//2}, v{own+r}, v{own+r+1}" for r in range(0, 8, 2)]
        Ls += [f"v_permlane32_swap_b32 v{P}, v{P+2}", f"v_permlane32_swap_b32 v{P+1}, v{P+3}"]
        Ls += [f"buffer_store_dwordx4 {v(P,4)}, v8, {s(SRD_OUT,4)}, s{T+7-st} offen{['', ' sc1', ' nt', ' sc0 sc1', ' sc1 nt'][(O.om >> (4 * st)) & 15]}"]
        return Ls
    shadow = []
    nxt = O.hpre
    mark = len(A.items)
    for n in range(56):
        st, e = divmod(n, 28)
        for u in range(2):
            acc = ACC + 32 * u + 16 * st
            A(f"v_mfma_f32_32x32x16_bf16 {v(acc,16)}, {a(w2frag(u,e),4)}, {v(HF+4*(n%NB),4)}, {'0' if e == 0 else v(acc,16)}")
            if n == O.f1pos - 1 and u == 1:
                recheck(A, [f"v_cmp_ne_u32 vcc, 1, v13"], [fl(13, T + 9)])
                stamp(A, "F1 seen")
            open_ = (n, u) >= (O.f1pos - 1, 1)
            for _ in range(2 if open_ else 1):
                if nxt < (56 if open_ else 28) and nxt < n + NB and nxt - n < O.hmax and (u == 0 or n % 2 == 0 or open_):
                    for x in hload(nxt): A(x)
                    nxt += 1
                    if nxt == O.f1pos + 1: A(fl(13, T + 9))
            for _ in range(2):
                if shadow: A(shadow.pop(0))
        if O.g6late and n == O.g6late:
            for x in w2_group(6, f"s{S_PM}", 65536): A(x)
            mark = len(A.items)
        if n in (0, 6, 12): stamp(A, f"n{n}")
        if n == 29: shadow = red_write(0)
        if n == O.red0:
            A("s_waitcnt lgkmcnt(0)")
            A("s_barrier")
            shadow = red_finish(0, [ACC + 8, ACC + 32, ACC + 40], False)
        if n == O.g6at:
            A(f"s_waitcnt vmcnt({sum('buffer_load' in y[1].text for y in A.items[mark:] if y[0] == 'i' and 'rc' not in y[1].text)})")
            if O.w2e == 0:
                for x in w2_read(6, 0): A(x)
            for k in range(4): A(f"v_add_u32 v{VW2H+k}, 0x10000, v{VW2H+k}")
            for x in (w2_read(4, 0) + w2_read(5, 8192) if O.w2e == 0 else w2_read(6, 0)): A(x)
    stamp(A, "g2 mfma")
    for x in shadow + red_write(1): A(x)
    A("s_waitcnt lgkmcnt(0)")
    A("s_barrier")
    for x in red_finish(1, [HF, HF + 8, HF + 16], True): A(x)
    stamp(A, "end")
    stamp_flush(A, 2)

HEADER = open("cdna_kernels/" + NAME + ".s.ref").read().split("; Override launch")[0]

def build():
    A = Asm()
    name = NAME + "_kernel"
    A('.amdgcn_target "amdgcn-amd-amdhsa--gfx950"')
    A(".text"); A(f".globl {name}"); A(".p2align 8"); A(f".type {name},@function"); A(f"{name}:")
    prologue(A)
    phase0(A)
    conv(A)
    window3(A)
    gemm1(A)
    gemm2(A)
    A("L_end:")
    A("s_endpgm")
    A.autowait()
    A.pad()
    out = HEADER + f"; @launch grid=(256,1,1) block=(256,1,1) lds={LDS_TOTAL}\n" + A.text()
    out += f""".section .rodata,"a"
.p2align 6
.amdhsa_kernel {name}
  .amdhsa_next_free_vgpr 512
  .amdhsa_next_free_sgpr 102
  .amdhsa_accum_offset 256
  .amdhsa_group_segment_fixed_size 0
  .amdhsa_kernarg_size 112
  .amdhsa_user_sgpr_count 2
  .amdhsa_user_sgpr_kernarg_segment_ptr 1
  .amdhsa_system_sgpr_workgroup_id_x 1
  .amdhsa_float_denorm_mode_32 3
.end_amdhsa_kernel
"""
    return out

if __name__ == "__main__":
    path = sys.argv[1]
    O.prof = "--prof" in sys.argv
    O.cyc = "--cyc" in sys.argv
    for x in sys.argv[2:]:
        if "=" in x:
            k_, v_ = x.split("="); setattr(O, k_, int(v_))
    open(path, "w").write(build())
    if O.prof:
        import json; json.dump(STAMPS, open(path + ".stamps.json", "w"))
    print("wrote", path)
```

```python
import sys
sys.path.insert(0, "dev")
from asmlib import Asm, v, a, s

NAME = "adaLN_cond__ssm_conv_h3__dense_activation_silu__prompt"
STAGE = 4
REC_LAYOUT = 2
H_SCALE = -0.6931471805599453

WS_REC = 0
WS_X1 = 4 << 20
WS_X1C = 6 << 20
WS_H = 8 << 20
WS_STAT = 16 << 20
WS_MODP = (16 << 20) + 65536
WS_SYNC = 17 << 20
WS_PROF = (17 << 20) + (512 << 10)
WS_SIZE = 18 << 20
FLG_A, EPOCH, CNT_2, FLG_2, FLG_3 = 0, 2, 16, 32, 128
FLG_4 = 1280
WS_ST2 = (16 << 20) + (128 << 10)
LF_A, LF_2, LF_B = 512, 768, 1024

S_WG = 2; S_WAVE = 3
SRD_Q, SRD_K, SRD_V, SRD_SSMK, SRD_W1, SRD_W2, SRD_WMOD, SRD_OUT, SRD_WS, SRD_SHK, SRD_C, SRD_SSMD = [4 + 4 * i for i in range(12)]
S_DBG = 52
T = 54
S_PI, S_PM, S_PS, S_PE = 88, 89, 90, 91
S_RB, S_J, S_ROT, S_CH, S_CARRY, S_SPIN = 92, 93, 94, 95, 96, 97
S_TMP = 98
S_SIG = 87
S_C = 88
S_RT = 0
S_TAG = 84
S_PO = 86
S_SELLO, S_SELHI, S_ONES = 99, 100, 101

KARG = {SRD_Q: (0, 2097152), SRD_K: (8, 2097152), SRD_V: (16, 2097152), SRD_SHK: (24, 4096), SRD_SSMK: (32, 2097152),
        SRD_SSMD: (40, 1024), SRD_W1: (56, 512 * 1792 * 2), SRD_W2: (64, 512 * 1792 * 2), SRD_C: (72, 1024),
        SRD_WMOD: (80, 512 * 3072 * 2), SRD_OUT: (88, 2097152), SRD_WS: (104, WS_SIZE)}
NLOG2E = 0xbfb8aa3b

LDS_XC = 0
LDS_X1 = 65536
LDS_GM = 98304
LDS_SC = 114688
LDS_REC = 98304
LDS_KC = 131072
LDS_CARRY = 153216
LDS_MODV = 147968
LDS_CS = 150144
LDS_ST2 = 152192
LDS_GB = 152960
LDS_STA = 116736
LDS_STB = 157440
LDS_XR = 131072
LDS_RED = 0
LDS_TOTAL = 163840

V_LANE = 2
VW1 = 238
VW3 = 236
VW2H = 232
VW2 = 244
VW2S = 228

class Opt:
    prof = False; cyc = False
    w1_depth = 8
    wpf = 1; xpre = 2; hpre = 12; f1pos = 18; sck = 8; f0at = 20; r2same = 1; post = 1; mvearly = 1; poll2 = 0; hp0 = 4; fine = 0; om = 0; g6late = 0; jit = 0; err = 0; dbgC = 0; fs = 18; pa = 1; pa0 = 1; sw = 4; pb = 1; hs = 0; hl = 0; epv = 0; lite = 0; kcm = 1; w3d = 0; stq = 8; rs = 1; w3split = 0; isleep2 = 0; tlb = 0; bthr = 48; ovl = 0; red0 = 33; bsleep = 16; isleep = 20; sigfirst = 0; eplate = 1; stsw = 1; w2e = 4; w2w1 = 0; rd01 = 24; dbgB = 0; look = 3; wmerge = 1; prog = 1; early0 = 1; w2te = 1; g6at = 7; hmax = 24; recperm = 1; kc_late = 1; sleep = 1
    conv_groups = 4; w3_depth = 10; tailg = 2; cs_early = 1; n_w1 = 3; w5 = 1; lfa = 1; lf2 = 1; kc_early = 0; n_rd = 2; poller2 = 3; map84 = 0; touch = 0; cpf = 3; warm = 0; w2t = 1; outsc = 0; w2l2 = 1; g01late = 0; pp = 0; bsplit = 0; t3 = 0; xpre2 = 3; fb = 28; w2side = 4; tg = 1
O = Opt()

_uid = [0]
def uid():
    _uid[0] += 1; return _uid[0]
_stamps = []
STAMPS = {}
def stamp(A, name):
    jitter(A)
    if not O.prof: return
    if O.lite:
        if name == "issued": A("s_waitcnt lgkmcnt(0)"); A(f"v_writelane_b32 v250, s76, 0")
        if name == "end":
            A("s_memrealtime s[74:75]"); A("s_waitcnt lgkmcnt(0)"); A(f"v_writelane_b32 v250, s74, 1")
        return
    n = len(_stamps); _stamps.append(name)
    A(f"s_memtime s[74:75]" if O.cyc else f"s_memrealtime s[74:75]")
    A("s_waitcnt lgkmcnt(0)")
    if n == 1: A(f"v_writelane_b32 v250, s76, 0")
    A(f"v_writelane_b32 v250, s74, {n}")
def stamp_flush(A, kidx):
    if not O.prof or kidx != 2: return
    A(f"s_lshl_b32 s74, s{S_WG}, 2")
    A(f"s_add_u32 s74, s74, s{S_WAVE}")
    A(f"s_lshl_b32 s74, s74, 8")
    A(f"s_add_u32 s74, s74, {WS_PROF}")
    A(f"v_lshlrev_b32 v254, 2, v{V_LANE}")
    A(f"buffer_store_dword v250, v254, {s(SRD_WS,4)}, s74 offen")
    STAMPS[0] = list(_stamps)

_jn = [0]
def jitter(A):
    if not O.jit: return
    _jn[0] += 1
    u = uid()
    A(f"s_lshl_b32 s74, s{S_WG}, 2")
    A(f"s_add_u32 s74, s74, s{S_WAVE}")
    A(f"s_mul_i32 s74, s74, {(2654435761 * (O.jit + 7 * _jn[0])) & 0x7fffffff | 1}")
    A(f"s_lshr_b32 s74, s74, 27")
    A(f"s_cmp_gt_u32 s74, 7")
    A(f"s_cselect_b32 s74, 0, s74")
    A(f"L_j{u}:")
    A(f"s_cmp_eq_u32 s74, 0")
    A(f"s_cbranch_scc1 L_jx{u}")
    A(f"s_sleep 40")
    A(f"s_sub_u32 s74, s74, 1")
    A(f"s_branch L_j{u}")
    A(f"L_jx{u}:")

def dma_voff(A, d0, d1, rowstride, tmp):
    A(f"v_lshrrev_b32 v{tmp}, 3, v{V_LANE}")
    A(f"v_and_b32 v{d1}, 2, v{tmp}")
    A(f"v_lshlrev_b32 v{d1}, 5, v{d1}")
    A(f"v_and_b32 v{d0}, 7, v{V_LANE}")
    A(f"v_lshlrev_b32 v{d0}, 4, v{d0}")
    A(f"v_xor_b32 v{d0}, v{d0}, v{d1}")
    A(f"v_mul_u32_u24 v{tmp}, {rowstride}, v{tmp}")
    A(f"v_add_u32 v{d0}, v{d0}, v{tmp}")
    A(f"v_xor_b32 v{d1}, 32, v{d0}")

def tr_addr32(A, d, tmp, rowmul):
    L = V_LANE
    A(f"v_lshrrev_b32 v{tmp}, 5, v{L}")
    A(f"v_bfe_u32 v{tmp+1}, v{L}, 2, 2")
    A(f"v_lshl_add_u32 v{d}, v{tmp}, {3 if rowmul == 8 else 2}, v{tmp+1}")
    A(f"v_lshlrev_b32 v{d}, 7, v{d}")
    A(f"v_and_b32 v{tmp+1}, 2, v{tmp+1}")
    if rowmul == 8: A(f"v_or_b32 v{tmp+1}, v{tmp+1}, v{tmp}")
    A(f"v_bfe_u32 v{tmp}, v{L}, 4, 1")
    A(f"v_xor_b32 v{tmp+1}, v{tmp+1}, v{tmp}")
    A(f"v_lshl_add_u32 v{d}, v{tmp+1}, 5, v{d}")
    A(f"v_and_b32 v{tmp}, 3, v{L}")
    A(f"v_lshl_add_u32 v{d}, v{tmp}, 3, v{d}")

def tr_addr16(A, d, tmp):
    L = V_LANE
    A(f"v_lshrrev_b32 v{tmp}, 4, v{L}")
    A(f"v_bfe_u32 v{tmp+1}, v{L}, 2, 2")
    A(f"v_lshl_add_u32 v{d}, v{tmp}, 3, v{tmp+1}")
    A(f"v_lshlrev_b32 v{d}, 7, v{d}")
    A(f"v_and_b32 v{tmp+1}, 2, v{tmp+1}")
    A(f"v_and_b32 v{tmp}, 1, v{tmp}")
    A(f"v_or_b32 v{tmp+1}, v{tmp+1}, v{tmp}")
    A(f"v_lshl_add_u32 v{d}, v{tmp+1}, 5, v{d}")
    A(f"v_and_b32 v{tmp}, 3, v{L}")
    A(f"v_lshl_add_u32 v{d}, v{tmp}, 3, v{d}")

def ln_finish(A, rows, tmp, scale=None):
    steps = [
        lambda su, sq, o1, o2, t: [f"v_mul_f32 v{su}, 0x3b000000, v{su}", f"v_mul_f32 v{sq}, 0x3b000000, v{sq}"],
        lambda su, sq, o1, o2, t: [f"v_fma_f32 v{sq}, -v{su}, v{su}, v{sq}"],
        lambda su, sq, o1, o2, t: [f"v_max_f32 v{sq}, 0, v{sq}"],
        lambda su, sq, o1, o2, t: [f"v_cvt_pk_bf16_f32 v{t}, v{su}, v{sq}"],
        lambda su, sq, o1, o2, t: [f"v_lshlrev_b32 v{su}, 16, v{t}", f"v_and_b32 v{sq}, 0xffff0000, v{t}"],
        lambda su, sq, o1, o2, t: [f"v_add_f32 v{sq}, 0x3727c5ac, v{sq}"],
        lambda su, sq, o1, o2, t: [f"v_cvt_pk_bf16_f32 v{sq}, v{sq}, v{sq}"],
        lambda su, sq, o1, o2, t: [f"v_lshlrev_b32 v{sq}, 16, v{sq}"],
        lambda su, sq, o1, o2, t: [f"v_sqrt_f32 v{sq}, v{sq}"],
        lambda su, sq, o1, o2, t: [f"v_cvt_pk_bf16_f32 v{sq}, v{sq}, v{sq}"],
        lambda su, sq, o1, o2, t: [f"v_lshlrev_b32 v{sq}, 16, v{sq}"],
        lambda su, sq, o1, o2, t: [f"v_rcp_f32 v{o1}, v{sq}"],
        lambda su, sq, o1, o2, t: [f"v_mul_f32 v{o1}, {scale}, v{o1}"] if scale else [],
        lambda su, sq, o1, o2, t: [f"v_mul_f32 v{o2}, -v{su}, v{o1}"],
    ]
    for st in steps:
        for i, r in enumerate(rows):
            for x in st(*r, tmp + i): A(x)


def signal_issue(A, cnt):
    A(f"s_and_b32 s{S_SIG}, s{S_WG}, 15")
    A(f"s_lshl_b32 s{S_SIG}, s{S_SIG}, 7")
    A(f"s_add_u32 s{S_SIG}, s{S_SIG}, {WS_SYNC}")
    A("s_mov_b64 exec, 1")
    A(f"v_mov_b32 v252, {128*cnt}")
    A(f"v_mov_b32 v253, 1")
    A(f"buffer_atomic_add v253, v252, {s(SRD_WS,4)}, s{S_SIG} offen sc0 sc1")
    A("s_mov_b64 exec, -1")

def signal_finish(A, flag):
    u = uid()
    A("s_mov_b64 exec, 1")
    A(f"v_cmp_eq_u32 vcc, 15, v253")
    A(f"v_mov_b32 v252, {128*flag}")
    A(f"v_mov_b32 v253, 1")
    A(f"s_cbranch_vccz L_sig{u}")
    A(f"buffer_store_dword v253, v252, {s(SRD_WS,4)}, s{S_SIG} offen sc1")
    A(f"L_sig{u}:")
    A("s_mov_b64 exec, -1")

def poll(A, nlanes, stride, base, want=1):
    u = uid()
    A(f"s_mov_b64 exec, {hex((1 << nlanes) - 1)}")
    if stride: A(f"v_mul_u32_u24 v252, {stride}, v{V_LANE}")
    A(f"s_mov_b32 s{S_TMP}, {base}")
    A(f"s_mov_b32 s{S_SPIN}, 0x80000")
    ld = lambda r: A(f"buffer_load_dword v{r}, v252, {s(SRD_WS,4)}, s{S_TMP} offen sc1 ; nowait")
    if O.pp: ld(253)
    A(f"L_poll{u}:")
    if O.pp:
        for k in range(2):
            A(f"s_sleep {O.sleep+1}")
            ld(254 - k)
            A("s_waitcnt vmcnt(1)")
            A(f"v_cmp_ne_u32 vcc, {want}, v{253+k}")
            A(f"s_cbranch_vccz L_pollx{u}")
    else:
        ld(253)
        A("s_waitcnt vmcnt(0)")
        A(f"v_cmp_ne_u32 vcc, {want}, v253")
        A(f"s_cbranch_vccz L_pollx{u}")
        A(f"s_sleep {O.sleep}")
    A(f"s_sub_u32 s{S_SPIN}, s{S_SPIN}, 1")
    A(f"s_cbranch_scc0 L_poll{u}")
    A(f"L_pollx{u}:")
    A("s_mov_b64 exec, -1")

def lf_signal(A, base):
    A(f"s_lshl_b32 s{S_TMP}, s{S_WG}, 7")
    A(f"s_add_u32 s{S_TMP}, s{S_TMP}, {WS_SYNC + 128*base}")
    A("s_mov_b64 exec, 1")
    A(f"v_mov_b32 v252, 0")
    A(f"v_mov_b32 v254, s{S_TAG}")
    A(f"v_mov_b32 v255, s{S_TAG+1}")
    A(f"buffer_store_dwordx2 v[254:255], v252, {s(SRD_WS,4)}, s{S_TMP} offen sc1")
    A("s_mov_b64 exec, -1")

def lf_poll(A, base, tmpv, first=0):
    u = uid(); M = 76
    A(f"v_lshlrev_b32 v{tmpv+16}, 7, v{V_LANE}")
    for i in range(4):
        A(f"s_mov_b64 {s(M+2*i,2)}, -1")
        if i: A(f"v_add_u32 v{tmpv+16+i}, {8192*i}, v{tmpv+16}")
    A(f"s_mov_b32 s{S_TMP}, {WS_SYNC + 128*base}")
    A(f"s_mov_b32 s{S_SPIN}, 0x40000")
    if first: A(f"s_sleep {first}")
    def issue(k):
        for i in range(4):
            A(f"s_or_b64 exec, {s(M+2*i,2)}, 1")
            A(f"buffer_load_dwordx2 {v(tmpv+8*k+2*i,2)}, v{tmpv+16+i}, {s(SRD_WS,4)}, s{S_TMP} offen sc1 ; nowait")
    def check(k):
        for i in range(4):
            A(f"s_mov_b64 exec, {s(M+2*i,2)}")
            A(f"v_cmp_ne_u64 {s(M+2*i,2)}, {s(S_TAG,2)}, {v(tmpv+8*k+2*i,2)}")
        A(f"s_or_b64 vcc, {s(M,2)}, {s(M+2,2)}")
        A(f"s_or_b64 vcc, vcc, {s(M+4,2)}")
        A(f"s_or_b64 vcc, vcc, {s(M+6,2)}")
        A(f"s_cbranch_scc0 L_lfx{u}")
    if O.pp:
        issue(0)
        A(f"L_lf{u}:")
        for k in range(2):
            A(f"s_sleep {O.sleep}")
            issue(1 - k)
            A("s_waitcnt vmcnt(4)")
            check(k)
    else:
        A(f"L_lf{u}:")
        issue(0)
        A("s_waitcnt vmcnt(0)")
        check(0)
        A(f"s_bcnt1_i32_b64 s{S_PO}, vcc")
        A(f"s_cmp_gt_u32 s{S_PO}, {O.bthr}")
        A(f"s_cbranch_scc0 L_lfs{u}")
        A(f"s_sleep {O.bsleep}")
        A(f"L_lfs{u}:")
        A(f"s_sleep {O.sleep}")
    A(f"s_sub_u32 s{S_SPIN}, s{S_SPIN}, 1")
    A(f"s_cbranch_scc0 L_lf{u}")
    A(f"L_lfx{u}:")
    A("s_mov_b64 exec, -1")

STUBS = []
def stub(A, jump=None):
    if not O.warm: return
    if jump: A(f"s_branch {jump}")
    n = f"L_stub{len(STUBS)}"
    STUBS.append(n)
    A(f"{n}:")
    A("s_setpc_b64 s[74:75]")

def only_wave3(A, body):
    u = uid()
    A(f"s_cmp_eq_u32 s{S_WAVE}, 3")
    A(f"s_cbranch_scc0 L_w3_{u}")
    body()
    A(f"L_w3_{u}:")

def split_wave3(A, others, w3):
    u = uid()
    A(f"s_cmp_eq_u32 s{S_WAVE}, 3")
    A(f"s_cbranch_scc1 L_s3a_{u}")
    others()
    A(f"s_branch L_s3b_{u}")
    stub(A)
    A(f"L_s3a_{u}:")
    w3()
    stub(A, f"L_s3b_{u}")
    A(f"L_s3b_{u}:")

def pieces8(vbase, srd, step4, depth=0):
    L = []
    for p in range(8):
        if p == 4: L += [f"s_add_u32 m0, m0, 4096", f"s_add_u32 s{S_PO}, s{S_PO}, {step4}"]
        L.append(f"buffer_load_dwordx4 v{vbase+(p&3)}, {s(srd,4)}, s{S_PO} offen offset:{1024*(p&3)} lds")
        if depth: L.append(f"s_waitcnt vmcnt({depth-1})")
    return L

def w1_group(gi, tile, ldsbase, tmp, depth=0):
    L = [f"s_add_u32 s{S_TMP}, s{S_ROT}, {gi}",
         f"s_lshl_b32 m0, {gi}, 13",
         f"s_bitcmp1_b32 s{S_TMP}, 2",
         f"s_cselect_b64 vcc, -1, 0",
         f"s_add_u32 m0, m0, {ldsbase}",
         f"s_and_b32 s{S_TMP}, s{S_TMP}, 3",
         f"v_cndmask_b32 v245, v{VW3}, v{VW3+1}, vcc"]
    L += [f"v_add_u32 v{tmp+k}, v245, v{VW1+k}" for k in range(4)]
    L += [f"s_mul_i32 s{S_PO}, s{S_TMP}, {64*3584}",
          f"s_lshl_b32 s{S_TMP}, s{S_C}, 8",
          f"s_add_u32 s{S_PO}, s{S_PO}, s{S_TMP}",
          f"s_lshl_b32 s{S_TMP}, {tile}, 6",
          f"s_add_u32 s{S_PO}, s{S_PO}, s{S_TMP}"]
    return L + pieces8(tmp, SRD_W1, 32 * 3584, depth)

def loop(A, body, n):
    u = uid()
    A(f"s_mov_b32 s{S_SPIN}, {n}")
    A(f"L_lp{u}:")
    for x in body: A(x)
    A(f"s_sub_u32 s{S_SPIN}, s{S_SPIN}, 1")
    A(f"s_cmp_lg_u32 s{S_SPIN}, 0")
    A(f"s_cbranch_scc1 L_lp{u}")

def w1_read(gi):
    return [f"ds_read_b64_tr_b16 {a((16*t+4*gi+e)*4+2*h,2)}, v{242+t} offset:{8192*gi+2048*e+512*h}" for e in range(4) for t in range(2) for h in range(2)]

LDS_ST1 = 114944
def prologue(A):
    VK, VV, VQ, VSH, VST, VC = 10, 28, 36, 44, 48, 56
    L = V_LANE
    A(f"s_cmp_ge_u32 s{S_WG}, 256")
    A(f"s_cbranch_scc1 L_end")
    if O.prof:
        A("s_memtime s[76:77]" if O.cyc else "s_memrealtime s[76:77]")
        _stamps.append("start")
    first = [SRD_Q, SRD_C, SRD_K, SRD_V, SRD_SHK, SRD_WS]
    rest = [SRD_WMOD, SRD_SSMK, SRD_SSMD, SRD_W1, SRD_W2, SRD_OUT]
    for r in first:
        A(f"s_load_dwordx2 {s(r,2)}, s[0:1], {KARG[r][0]}")
    if O.cpf >= 3:
        A("; pull this kernel's code into the L2: wave 0 a slice chosen by the workgroup, wave 1 the first slice")
        A(f"s_getpc_b64 s[{T+16}:{T+17}]")
        A("L_pc:")
        A(f"s_bfe_u32 s{T+11}, s{S_WG}, 0x30003")
        A(f"s_lshl_b32 s{T+11}, s{T+11}, 13")
        A(f"v_and_b32 v254, 63, v0")
        A(f"v_lshlrev_b32 v254, 7, v254")
        A(f"v_add_u32 v255, s{T+11}, v254")
        A(f"v_cmp_gt_u32 vcc, 64, v0")
        A(f"v_cndmask_b32 v254, v254, v255, vcc")
        A(f"v_min_u32 v254, L_end-L_pc, v254")
        A(f"v_cmp_gt_u32 vcc, {64 if O.cpf == 3 else (128 if O.cpf == 4 else 96)}, v0")
        A(f"s_and_saveexec_b64 s[{T+12}:{T+13}], vcc")
        A(f"s_cbranch_execz L_nopf")
        A(f"global_load_dword v255, v254, s[{T+16}:{T+17}] ; nowait")
        A("L_nopf:")
        A("s_mov_b64 exec, -1")
    A(f"v_lshrrev_b32 v1, 6, v0")
    A(f"v_and_b32 v{L}, 63, v0")
    A(f"v_readfirstlane_b32 s{S_WAVE}, v1")
    for r in first:
        A(f"s_mov_b32 s{r+2}, {KARG[r][1]}")
        A(f"s_mov_b32 s{r+3}, 0x20000")
    A(f"s_lshr_b32 s{T}, s{S_WG}, 1")
    A(f"s_and_b32 s{T+1}, s{S_WG}, 1")
    A(f"s_lshl_b32 s{T+1}, s{T+1}, 2")
    A(f"s_add_u32 s{T+1}, s{T+1}, s{S_WAVE}")
    A(f"s_lshl_b32 s{T+1}, s{T+1}, 5")
    A(f"v_and_b32 v3, 31, v0")
    A(f"v_add_u32 v5, s{T+1}, v3")
    A(f"v_bfe_u32 v4, v0, 5, 1")
    A(f"v_lshlrev_b32 v6, 2, v5")
    A(f"v_lshl_add_u32 v6, v4, 10, v6")
    A(f"s_lshl_b32 s{T+2}, s{T}, 14")
    for k in range(1, 4):
        A(f"s_add_u32 s{T+2+k}, s{T+2}, {4096*k}")
    A(f"s_sub_u32 s{T+6}, s{T+2}, 3072")
    A(f"v_add_u32 v8, s{T+6}, v6")
    A(f"v_add_u32 v9, 1024, v8")
    A(f"v_add_u32 v57, 2048, v8")
    A(f"v_lshlrev_b32 v7, 4, v5")
    A(f"s_lshl_b32 s{T+7}, s{S_WG}, 2")
    A(f"s_add_u32 s{T+7}, s{T+7}, s{S_WAVE}")
    A(f"s_lshl_b32 s{T+8}, s{T+7}, 11")
    A(f"v_lshlrev_b32 v58, 4, v{L}")
    A(f"s_mul_i32 s{T+9}, s{S_WG}, 1366")
    A(f"s_lshr_b32 s{T+9}, s{T+9}, 16")
    A(f"v_and_b32 v59, 127, v0")
    A(f"v_lshlrev_b32 v59, 1, v59")
    A(f"s_lshl_b32 s{T+12}, s{T+9}, 8")
    A(f"v_lshlrev_b32 v252, 11, v{L}")
    A(f"s_lshl_b32 s{T+11}, s{S_WG}, 7")
    A(f"v_mov_b32 v253, {128*FLG_3}")
    A(f"v_cmp_eq_u32 vcc, 4, v{L}")
    A(f"s_add_u32 s{T+11}, s{T+11}, {WS_SYNC}")
    A(f"v_cndmask_b32 v252, v252, v253, vcc")
    A(f"v_mov_b32 v253, {128*FLG_4}")
    A(f"v_cmp_eq_u32 vcc, 3, v{L}")
    A(f"v_cndmask_b32 v252, v252, v253, vcc")
    A(f"v_mov_b32 v253, 0")
    A("s_waitcnt lgkmcnt(0)")
    def clr():
        A(f"s_cmp_lt_u32 s{S_WG}, 16")
        A(f"s_cselect_b32 exec_lo, 0x1e, 0x18")
        A(f"s_mov_b32 exec_hi, 0")
        A(f"buffer_store_dword v253, v252, {s(SRD_WS,4)}, s{T+11} offen sc1")
        A("s_mov_b64 exec, -1")
    only_wave3(A, clr)
    A(f"buffer_load_dwordx4 {v(VST,4)}, v58, {s(SRD_Q,4)}, s{T+8} offen")
    A(f"buffer_load_dwordx4 {v(VST+4,4)}, v58, {s(SRD_Q,4)}, s{T+8} offen offset:1024")
    A(f"buffer_load_ushort v{VC}, v59, {s(SRD_C,4)}, s{T+12} offen")
    A(f"buffer_load_dword v{VK}, v8, {s(SRD_K,4)}, 0 offen")
    A(f"buffer_load_dword v{VK+1}, v9, {s(SRD_K,4)}, 0 offen")
    A(f"buffer_load_dword v{VK+2}, v57, {s(SRD_K,4)}, 0 offen")
    for r in range(15):
        A(f"buffer_load_dword v{VK+3+r}, v6, {s(SRD_K,4)}, s{T+2+(r>>2)} offen offset:{1024*(r&3)}")
    A(f"buffer_load_dwordx4 {v(VSH,4)}, v7, {s(SRD_SHK,4)}, 0 offen")
    for k in range(8):
        A(f"buffer_load_dword v{VV+k}, v6, {s(SRD_V,4)}, s{T+2+(k>>1)} offen offset:{2048*(k&1)}")
    for k in range(8):
        A(f"buffer_load_dword v{VQ+k}, v6, {s(SRD_Q,4)}, s{T+2+(k>>1)} offen offset:{2048*(k&1)}")
    for r in rest:
        A(f"s_load_dwordx2 {s(r,2)}, s[0:1], {KARG[r][0]}")
    A(f"s_load_dwordx2 {s(S_DBG,2)}, s[0:1], 96")
    if O.cpf < 3:
        A("; wave 0 pulls a slice of this kernel's code into the L2")
        A(f"s_getpc_b64 s[{T+16}:{T+17}]")
        A("L_pc:")
        A(f"s_cmp_eq_u32 s{S_WAVE}, {0 if O.cpf == 1 else 7}" if O.cpf < 2 else f"s_cmp_lt_u32 s{S_WG}, 64")
        A(f"s_cbranch_scc0 L_nopf")
        A(f"s_bfe_u32 s{T+11}, s{S_WG}, {'0x30003' if O.cpf < 2 else '0x10003'}")
        A(f"s_lshl_b32 s{T+11}, s{T+11}, {13 if O.cpf < 2 else 15}")
        A(f"v_lshlrev_b32 v254, 7, v0")
        A(f"v_add_u32 v254, s{T+11}, v254")
        A(f"v_min_u32 v254, L_end-L_pc, v254")
        A(f"global_load_dword v255, v254, s[{T+16}:{T+17}] ; nowait")
        A("L_nopf:")
    for r in rest:
        A(f"s_mov_b32 s{r+2}, {KARG[r][1]}")
        A(f"s_mov_b32 s{r+3}, 0x20000")
    A(f"s_mul_i32 s{T+10}, s{T+9}, 48")
    A(f"s_sub_u32 s{T+10}, s{S_WG}, s{T+10}")
    dma_voff(A, 60, 61, 6144, 62)
    A(f"s_lshl_b32 s{T+12}, s{T+9}, 7")
    A(f"s_lshl_b32 s{T+13}, s{S_WAVE}, 5")
    A(f"s_add_u32 s{T+12}, s{T+12}, s{T+13}")
    A(f"s_mul_i32 s{T+12}, s{T+12}, 6144")
    A(f"s_lshl_b32 s{T+11}, s{T+10}, 7")
    A(f"s_add_u32 s{T+12}, s{T+12}, s{T+11}")
    A(f"s_lshl_b32 s{T+14}, s{S_WAVE}, 12")
    A(f"s_add_u32 m0, s{T+14}, {LDS_GM}")
    A("s_waitcnt lgkmcnt(0)")
    stamp(A, "issued")
    for i in range(4):
        if i:
            A(f"s_add_u32 m0, m0, 1024")
            A(f"s_add_u32 s{T+12}, s{T+12}, {8*6144}")
        A(f"buffer_load_dwordx4 v{60+(i&1)}, {s(SRD_WMOD,4)}, s{T+12} offen lds")
    if O.epv:
        A(f"v_mov_b32 v178, {WS_SYNC + 128*EPOCH}")
        A(f"buffer_load_dwordx2 v[178:179], v178, {s(SRD_WS,4)}, 0 offen sc1")
    else:
        A(f"s_add_u32 s{T+16}, s{SRD_WS}, {WS_SYNC + 128*EPOCH}")
        A(f"s_addc_u32 s{T+17}, s{SRD_WS+1}, 0")
        A(f"s_load_dwordx2 {s(S_TAG,2)}, s[{T+16}:{T+17}], 0")
    A(f"s_mov_b32 s{S_SELLO}, 0x05040100")
    A(f"s_mov_b32 s{S_SELHI}, 0x07060302")
    A(f"s_mov_b32 s{S_ONES}, 0x3f803f80")
    A(f"s_bfe_u32 s{S_RB}, s{S_WG}, 0x20001")
    A(f"s_lshl_b32 s{S_RB}, s{S_RB}, 2")
    A(f"s_lshr_b32 s{S_TMP}, s{S_WG}, 6")
    A(f"s_add_u32 s{S_RB}, s{S_RB}, s{S_TMP}")
    A(f"s_bfe_u32 s{S_J}, s{S_WG}, 0x30003")
    A(f"s_add_u32 s{S_ROT}, s{S_J}, s{S_TMP}")
    A(f"s_and_b32 s{S_ROT}, s{S_ROT}, 7")
    A(f"s_and_b32 s{S_PE}, s{S_WG}, 1")
    A(f"s_mul_i32 s{S_C}, s{S_PE}, 7")
    A(f"s_add_u32 s{S_C}, s{S_C}, s{S_J}")
    A(f"s_add_u32 s{S_PE}, s{S_PE}, 14")
    A(f"s_cmp_eq_u32 s{S_J}, 7")
    A(f"s_cselect_b32 s{S_C}, s{S_PE}, s{S_C}")
    A(f"s_and_b32 s{S_RT}, s{S_WG}, 7")
    A(f"s_lshl_b32 s{S_RT}, s{S_RT}, 3")
    A(f"s_lshr_b32 s{S_PE}, s{S_WG}, 7")
    A(f"s_lshl_b32 s{S_PE}, s{S_PE}, 2")
    A(f"s_add_u32 s{S_RT}, s{S_RT}, s{S_PE}")
    A(f"s_bfe_u32 s{S_PE}, s{S_WG}, 0x10006")
    A(f"s_add_u32 s{S_RT}, s{S_RT}, s{S_PE}")
    A(f"s_lshl_b32 s{S_PE}, s{S_TMP}, 1")
    A(f"s_add_u32 s{S_PE}, s{S_PE}, s{S_J}")
    if O.r2same: A(f"s_mov_b32 s{S_PE}, s{S_J}")
    A(f"s_cmp_ge_u32 s{S_C}, 14")
    A(f"s_cselect_b32 s{SRD_W1+2}, 0, s{SRD_W1+2}")
    A(f"s_cmp_ge_u32 s{S_PE}, 7")
    A(f"s_cselect_b32 s{S_TMP}, 7, 0")
    A(f"s_sub_u32 s{S_PE}, s{S_PE}, s{S_TMP}")
    A(f"s_cmp_ge_u32 s{S_PE}, 7")
    A(f"s_cselect_b32 s{S_TMP}, 7, 0")
    A(f"s_sub_u32 s{S_PE}, s{S_PE}, s{S_TMP}")

def phase0(A):
    VK, VV, VQ, VSH, VST, VC = 10, 28, 36, 44, 48, 56
    L = V_LANE
    stamp(A, "issued2")
    if O.tlb:
        A("; wave 1 touches the pages that later phases use")
        A(f"s_cmp_eq_u32 s{S_WAVE}, 1")
        A(f"s_cbranch_scc0 L_notlb")
        A(f"v_lshlrev_b32 v254, {O.tlb}, v{L}")
        A(f"s_lshl_b32 s{T+14}, s{S_WG}, 7")
        A(f"buffer_load_dword v255, v254, {s(SRD_WS,4)}, s{T+14} offen ; nowait")
        for r in (SRD_OUT, SRD_W1, SRD_W2, SRD_SSMK):
            A(f"buffer_load_dword v255, v254, {s(r,4)}, s{T+14} offen ; nowait")
        A("L_notlb:")
    A(f"s_cmp_eq_u32 s{S_WAVE}, 2")
    A(f"s_cbranch_scc0 L_noclr2")
    A(f"s_lshl_b32 s{T+14}, s{S_WG}, 7")
    A(f"s_add_u32 s{T+14}, s{T+14}, {WS_ST2}")
    A(f"v_lshlrev_b32 v64, 2, v{L}")
    A(f"s_mov_b32 exec_hi, 0")
    A(f"buffer_store_dword v253, v64, {s(SRD_WS,4)}, s{T+14} offen sc1")
    A("s_mov_b64 exec, -1")
    A("L_noclr2:")
    dma_voff(A, VW1, VW1 + 1, 3584, 64)
    A(f"s_mov_b32 s{T+14}, {256*3584}")
    A(f"v_bfe_u32 v64, v{VW1}, 6, 1")
    A(f"v_mul_lo_u32 v65, v64, s{T+14}")
    A(f"v_lshlrev_b32 v64, 6, v64")
    A(f"v_sub_u32 v{VW3}, v65, v64")
    A(f"v_sub_u32 v65, s{T+14}, v65")
    A(f"v_sub_u32 v{VW3+1}, v65, v64")
    A(f"v_add_u32 v{VW1+1}, {8*3584-1024}, v{VW1+1}")
    A(f"v_add_u32 v{VW1+2}, {2*(8*3584-1024)}, v{VW1}")
    A(f"v_add_u32 v{VW1+3}, {2*(8*3584-1024)}, v{VW1+1}")
    tr_addr32(A, 242, 64, 8)
    A(f"s_lshl_b32 s{T+14}, s{S_WAVE}, 15")
    A(f"v_add_u32 v242, s{T+14}, v242")
    A(f"v_xor_b32 v243, 64, v242")
    A(f"s_lshl_b32 s{S_PM}, s{S_WAVE}, 15")
    w2_setup(A)
    A(f"s_lshr_b32 s{T+11}, s{S_WAVE}, 1")
    A(f"s_lshl_b32 s{S_CH}, s{S_WG}, 1")
    A(f"s_add_u32 s{S_CH}, s{S_CH}, s{T+11}")
    A(f"s_mul_i32 s{S_CARRY}, s{T+11}, 2080")
    A(f"s_add_u32 s{S_CARRY}, s{S_CARRY}, {LDS_CARRY}")
    A(f"s_mul_i32 s{T+13}, s{S_WAVE}, 4224")
    A(f"s_add_u32 s{T+13}, s{T+13}, {LDS_KC}")
    A(f"s_and_b32 s{T+11}, s{S_WAVE}, 1")
    A(f"s_lshl_b32 s{T+14}, s{T+11}, 2")
    A(f"s_sub_u32 s{T+14}, 4, s{T+14}")
    A(f"v_add_u32 v62, s{T+14}, v58")
    A(f"v_and_b32 v64, 7, v3")
    A(f"v_lshlrev_b32 v65, 2, v4")
    A(f"v_xor_b32 v64, v64, v65")
    A(f"v_lshlrev_b32 v57, 7, v3")
    A(f"v_lshl_add_u32 v57, v64, 4, v57")
    A(f"s_lshl_b32 s{T+14}, s{S_WAVE}, 15")
    A(f"s_add_u32 s{T+14}, s{T+14}, 24576")
    A(f"v_add_u32 v57, s{T+14}, v57")
    A(f"v_lshrrev_b32 v64, 3, v{L}")
    A(f"v_and_b32 v65, 7, v{L}")
    A(f"v_xor_b32 v66, v65, v64")
    A(f"v_lshlrev_b32 v9, 7, v64")
    A(f"v_lshl_add_u32 v9, v66, 4, v9")
    A(f"v_add_u32 v9, s{T+14}, v9")
    A(f"v_lshlrev_b32 v65, 4, v65")
    for b in range(4):
        A(f"v_add_u32 v66, s{T+1}, v64")
        if b: A(f"v_add_u32 v66, {8*b}, v66")
        if O.recperm:
            A(f"v_xor_b32 v67, s{T}, v66")
            A(f"v_and_b32 v67, 127, v67")
        else:
            A(f"v_mov_b32 v67, s{T}")
        A(f"v_lshl_add_u32 v66, v66, 7, v67")
        A(f"v_lshl_add_u32 v{168+b}, v66, 7, v65")
    for k in range(1, 4): A(f"v_xor_b32 v{173+k}, {16*k}, v57")
    B = 172
    tr_addr16(A, B, 64)
    A(f"s_lshl_b32 s{T+16}, s{S_WAVE}, 5")
    A(f"v_xor_b32 v{B}, s{T+16}, v{B}")
    A(f"v_add_u32 v{B}, {LDS_GM}, v{B}")
    A(f"v_lshrrev_b32 v{B+1}, 4, v{L}")
    A(f"v_lshlrev_b32 v{B+1}, 4, v{B+1}")
    A(f"v_add_u32 v{B+1}, {LDS_SC}, v{B+1}")
    A(f"s_mul_i32 s{T+16}, s{T+9}, {3072*4}")
    A(f"s_lshl_b32 s{T+17}, s{T+10}, 8")
    A(f"s_add_u32 s{T+16}, s{T+16}, s{T+17}")
    A(f"s_lshl_b32 s{T+17}, s{S_WAVE}, 6")
    A(f"s_add_u32 s{T+16}, s{T+16}, s{T+17}")
    A(f"s_add_u32 s{T+16}, s{T+16}, {WS_MODP}")
    A(f"s_lshl_b32 s{T+15}, s{S_WG}, 6")
    A(f"s_add_u32 s{T+15}, s{T+15}, {WS_STAT}")
    A(f"s_lshl_b32 s{T+17}, s{S_WAVE}, 3")
    A(f"s_add_u32 s{T+17}, s{T+17}, {LDS_ST1}")
    A(f"v_mov_b32 v177, s{T+17}")
    A(f"v_add_u32 v59, {LDS_SC}, v59")
    def kcopy():
        A(f"s_lshl_b32 s{T+18}, s{S_CH}, 12")
        A(f"s_add_u32 m0, s{T+13}, 32")
        A(f"v_mov_b32 v63, 0")
        A(f"buffer_load_dword v63, v63, {s(SRD_SSMK,4)}, s{T+18} offen")
        for i in range(4):
            A(f"buffer_load_dwordx4 v62, {s(SRD_SSMK,4)}, s{T+18} offen offset:{1024*i} lds")
    if O.kc_early: kcopy()
    A(".warmup")
    R = 152
    for r in range(2):
        A(f"v_dot2_f32_bf16 v{R+2*r}, v{VST+4*r}, s{S_ONES}, 0")
        A(f"v_dot2_f32_bf16 v{R+2*r+1}, v{VST+4*r}, v{VST+4*r}, 0")
    for q in range(1, 4):
        for r in range(2):
            A(f"v_dot2_f32_bf16 v{R+2*r}, v{VST+4*r+q}, s{S_ONES}, v{R+2*r}")
            A(f"v_dot2_f32_bf16 v{R+2*r+1}, v{VST+4*r+q}, v{VST+4*r+q}, v{R+2*r+1}")
    X = 164
    A(f"v_lshlrev_b32 v{X}, 16, v{VC}")
    A(f"v_mul_f32 v{X+1}, {hex(NLOG2E)}, v{X}")
    A(f"v_exp_f32 v{X+1}, v{X+1}")
    for n, m in enumerate(("row_shr:1", "row_shr:2", "row_shr:4", "row_shr:8")):
        for i in range(4):
            A(f"v_add_f32_dpp v{R+i}, v{R+i}, v{R+i} {m} row_mask:0xf bank_mask:0xf bound_ctrl:0")
        A([f"v_add_f32 v{X+1}, 1.0, v{X+1}", f"v_rcp_f32 v{X+1}, v{X+1}", f"v_mul_f32 v{X+1}, v{X}, v{X+1}", f"v_cvt_pk_bf16_f32 v{X+1}, v{X+1}, v{X+1}"][n])
    A(f"ds_write_b16 v59, v{X+1}")
    for m, rm in (("row_bcast:15", "0xa"), ("row_bcast:31", "0xc")):
        for i in range(4):
            A(f"v_add_f32_dpp v{R+i}, v{R+i}, v{R+i} {m} row_mask:{rm} bank_mask:0xf")
    ln_finish(A, [(R, R+1, R+4, R+6), (R+2, R+3, R+5, R+7)], R + 8)
    A("s_lshl_b64 exec, 1, 63")
    A(f"ds_write_b64 v177, {v(R+4,2)}")
    A(f"ds_write_b64 v177, {v(R+6,2)} offset:32")
    A("s_mov_b64 exec, -1")
    stamp(A, "stats")
    A("; ---- kv ----")
    VW, VP, VKS, VVU, CA, CB = 64, 68, 86, 102, 120, 136
    for k in range(9):
        A(f"v_perm_b32 v{VP+2*k}, v{VK+2*k+1}, v{VK+2*k}, s{S_SELLO}")
        A(f"v_perm_b32 v{VP+2*k+1}, v{VK+2*k+1}, v{VK+2*k}, s{S_SELHI}")
    A(f"v_alignbit_b32 v{VW}, v{VSH+1}, v{VSH+1}, 16")
    A(f"v_alignbit_b32 v{VW+1}, v{VSH}, v{VSH}, 16")
    A(f"v_alignbit_b32 v{VW+2}, v{VSH+3}, v{VSH+3}, 16")
    A(f"v_alignbit_b32 v{VW+3}, v{VSH+2}, v{VSH+2}, 16")
    for k in range(8):
        for c in range(2):
            A(f"v_dot2_f32_bf16 v{VKS+2*k+c}, v{VP+2*k+c}, v{VW+2*c}, 0")
    for k in range(8):
        for c in range(2):
            A(f"v_dot2_f32_bf16 v{VKS+2*k+c}, v{VP+2*k+2+c}, v{VW+2*c+1}, v{VKS+2*k+c}")
    for k in range(8):
        A(f"v_lshlrev_b32 v{VVU+2*k}, 16, v{VV+k}")
        A(f"v_and_b32 v{VVU+2*k+1}, 0xffff0000, v{VV+k}")
    for k in range(8):
        A(f"v_pk_mul_f32 {v(VKS+2*k,2)}, {v(VKS+2*k,2)}, {v(VVU+2*k,2)}")
    for c in range(2):
        for q in range(4):
            A(f"v_cvt_pk_bf16_f32 v{CA+4*c+q}, v{VKS+2*(7-2*q)+c}, v{VKS+2*(6-2*q)+c}")
        A(f"ds_write_b128 v{173+c if c else 57}, {v(CA+4*c,4)}")
    for c in range(2):
        for q in range(4):
            A(f"v_perm_b32 v{CA+8+4*c+q}, v{VQ+6-2*q}, v{VQ+7-2*q}, s{S_SELHI if c else S_SELLO}")
        A(f"ds_write_b128 v{175+c}, {v(CA+8+4*c,4)}")
    stamp(A, "kvq landed")
    A("s_waitcnt lgkmcnt(0)")
    for b in range(4):
        A(f"ds_read_b128 {v(CB+4*b,4)}, v9 offset:{1024*b}")
    for b in range(4):
        A(f"buffer_store_dwordx4 {v(CB+4*b,4)}, v{168+b}, {s(SRD_WS,4)}, 0 offen sc1")
    stamp(A, "rec stored")
    if O.bsplit:
        A(f"s_waitcnt vmcnt(0) lgkmcnt(0)")
        A("s_barrier")
        stamp(A, "rec acked")
        A(f"s_add_u32 s{S_TAG}, s{S_TAG}, 1")
        only_wave3(A, lambda: lf_signal(A, LF_A))
    else:
        A(f"s_waitcnt vmcnt({9 if O.kc_early else 4}) lgkmcnt(0)")
        A("s_barrier")
    A(f"v_add_u32 v177, {LDS_ST1}, v58")
    A(f"ds_read_b128 {v(R,4)}, v177")
    FA, FB, ACC = 72, 88, 104
    for e in range(4):
        A(f"ds_read_b128 {v(FA+4*e,4)}, v{B+1} offset:{64*e}")
        A(f"ds_read_b64_tr_b16 {v(FB+4*e,2)}, v{B} offset:{4096*e}")
        A(f"ds_read_b64_tr_b16 {v(FB+4*e+2,2)}, v{B} offset:{4096*e+512}")
    A(f"s_cmp_eq_u32 s{S_WAVE}, 0")
    A(f"s_cbranch_scc0 L_nost1")
    A("s_mov_b64 exec, 0xf")
    A(f"buffer_store_dwordx4 {v(R,4)}, v58, {s(SRD_WS,4)}, s{T+15} offen sc1")
    A("s_mov_b64 exec, -1")
    A("L_nost1:")
    for e in range(4):
        A(f"v_mfma_f32_16x16x32_bf16 {v(ACC,4)}, {v(FA+4*e,4)}, {v(FB+4*e,4)}, {'0' if e == 0 else v(ACC,4)}")
    A(f"v_lshlrev_b32 v64, 2, v{L}")
    A(f"s_cmp_ge_u32 s{S_WG}, 192")
    A(f"s_cbranch_scc1 L_nogemv")
    A("s_mov_b64 exec, 0xffff")
    A(f"buffer_store_dword v{ACC}, v64, {s(SRD_WS,4)}, s{T+16} offen sc1")
    A("s_mov_b64 exec, -1")
    A("L_nogemv:")
    if O.epv:
        A(f"v_readfirstlane_b32 s{S_TAG}, v178")
        A(f"v_readfirstlane_b32 s{S_TAG+1}, v179")
    A(f"s_add_u32 s{S_TAG}, s{S_TAG}, 1")
    stamp(A, "mod stored")
    if O.bsplit:
        def kc0():
            kcopy()
            A("s_waitcnt vmcnt(5)")
        split_wave3(A, kc0, lambda: A("s_waitcnt vmcnt(0)"))
        A("s_barrier")
        stamp(A, "B acked")
    elif O.kcm:
        def kc1():
            kcopy()
            n = 5
            for gi in range(O.kcm - 1):
                for x in w1_group(gi, f"s{S_WAVE}", f"s{S_PM}", 64): A(x)
                n += 8
            A(f"s_waitcnt vmcnt({n})")
        split_wave3(A, kc1, lambda: A("s_waitcnt vmcnt(0)"))
        stamp(A, "own ack")
        A("s_barrier")
        stamp(A, "rec acked")
    else:
        A("s_waitcnt vmcnt(0)")
        stamp(A, "own ack")
        A("s_barrier")
        stamp(A, "rec acked")
    def others2():
        if not O.kc_early:
            if not O.bsplit and not O.kcm: kcopy()
            A(f"s_cmp_eq_u32 s{S_WAVE}, 2")
            A(f"s_cbranch_scc0 L_nokc3")
            A(f"s_mov_b32 m0, {LDS_KC + 3*4224 + 32}")
            for i in range(4):
                A(f"buffer_load_dwordx4 v58, {s(SRD_SSMK,4)}, s{T+18} offen offset:{1024*i} lds")
            A("L_nokc3:")
        for gi in range(max(O.kcm - 1, 0), O.n_w1):
            for x in w1_group(gi, f"s{S_WAVE}", f"s{S_PM}", 64, O.w1_depth): A(x)
        if O.w2te:
            A(f"s_mul_i32 s{T+18}, s{S_WG}, 7168")
            A(f"s_mul_i32 s{T+17}, s{S_WAVE}, {19*128}")
            A(f"s_add_u32 s{T+18}, s{T+18}, s{T+17}")
            A(f"v_lshlrev_b32 v254, 7, v{L}")
            A(f"s_mov_b64 exec, 0x7ffff")
            A(f"buffer_load_dword v255, v254, {s(SRD_W2,4)}, s{T+18} offen ; nowait")
            A(f"s_mov_b64 exec, -1")
        stamp(A, "w1r0/sig")
    def sigA():
        if O.lfa:
            if O.bsplit: lf_signal(A, LF_B)
            else:
                lf_signal(A, LF_A)
            del _stamps[-1:]
            stamp(A, "w1r0/sig")
            return
        u = uid()
        A(f"s_and_b32 s{S_SIG}, s{S_WG}, 1")
        A(f"s_lshl_b32 s{S_SIG}, s{S_SIG}, 7")
        A("s_mov_b64 exec, 1")
        A(f"v_mov_b32 v252, s{S_SIG}")
        A(f"v_mov_b32 v253, 1")
        A(f"global_atomic_add v253, v252, v253, {s(S_DBG,2)} sc0 sc1")
        A(f"v_mov_b32 v254, s{S_TAG}")
        A(f"v_mov_b32 v255, s{S_TAG+1}")
        A(f"s_mov_b32 s{S_TMP}, {WS_SYNC + 128*FLG_A}")
        A(f"v_cmp_eq_u32 vcc, 127, v253")
        A(f"s_cbranch_vccz L_sig{u}")
        A(f"buffer_store_dwordx2 v[254:255], v252, {s(SRD_WS,4)}, s{S_TMP} offen sc1")
        A(f"L_sig{u}:")
        A("s_mov_b64 exec, -1")
        del _stamps[-1:]
        stamp(A, "w1r0/sig")
    split_wave3(A, others2, sigA)
    A(f"s_mul_i32 s{T+11}, s{T+11}, 64")
    A(f"s_add_u32 s{T+11}, s{T+11}, 7")
    A(f"v_lshlrev_b32 v62, 2, v{L}")
    A(f"v_add_u32 v62, s{T+13}, v62")

TSETS = ([7, 4, 3, 0], [6, 5, 2, 1])
def conv(A):
    VAB, VAA, VAE = 8, 16, 17
    VST = 24; VKX = 200; VGH, VX0 = 72, 88; ACC = 104; U = 56
    L = V_LANE
    A(f"v_lshrrev_b32 v3, 3, v{L}")
    if O.recperm:
        A(f"s_and_b32 s{T+6}, s{S_WG}, 7")
        A(f"v_xor_b32 v3, s{T+6}, v3")
    A(f"v_lshlrev_b32 v3, 7, v3")
    A(f"v_lshrrev_b32 v4, 4, v{L}")
    A(f"v_and_b32 v7, 7, v{L}")
    A(f"v_xor_b32 v7, v7, v4")
    A(f"v_lshl_add_u32 v3, v7, 4, v3")
    A(f"v_xor_b32 v7, 64, v3")
    A(f"s_lshl_b32 s{T+6}, s{S_WG}, 14")
    A(f"s_bfe_u32 s{T+8}, s{S_WG}, 0x40003")
    A(f"s_lshl_b32 s{T+8}, s{T+8}, 10")
    A(f"s_lshl_b32 s{T+7}, s{S_WAVE}, 12")
    A(f"v_and_b32 v21, 3, v{L}")
    A(f"v_mul_u32_u24 v21, 12288, v21")
    A(f"v_bfe_u32 v22, v{L}, 2, 2")
    A(f"v_lshl_add_u32 v21, v22, 11, v21")
    A(f"v_add_u32 v23, 2048, v21")
    A(f"v_cmp_eq_u32 vcc, 3, v22")
    A(f"s_lshl_b32 s{T+9}, s{S_CH}, 2")
    A(f"s_add_u32 s{T+9}, s{T+9}, {WS_MODP}")
    A(f"v_cndmask_b32 v21, v21, v23, vcc")
    A(f"s_lshl_b32 s{T+10}, s{S_CH}, 1")
    A(f"v_and_b32 v6, 15, v{L}")
    A(f"v_lshrrev_b32 v18, 1, v4")
    A(f"v_lshlrev_b32 v18, 2, v18")
    A(f"v_and_b32 v23, 1, v4")
    A(f"v_or_b32 v18, v18, v23")
    A(f"v_lshrrev_b32 v23, 1, v6")
    A(f"v_xor_b32 v18, v18, v23")
    A(f"v_lshlrev_b32 v23, 7, v6")
    A(f"v_lshl_add_u32 v23, v18, 4, v23")
    A(f"v_add_u32 v23, {LDS_STA}, v23")
    A(f"v_xor_b32 v216, 32, v23")
    A(f"v_lshlrev_b32 v5, 4, v{L}")
    A(f"v_lshlrev_b32 v18, 4, v4")
    A(f"v_xor_b32 v226, v5, v18")
    A(f"v_xor_b32 v227, 64, v226")
    A(f"v_lshlrev_b32 v18, 3, v0")
    A(f"v_add_u32 v18, {LDS_REC}, v18")
    A(f"v_mov_b32 v{VGH}, 0")
    A(f"v_mov_b32 v{VGH+1}, 0")
    A(f"ds_write_b64 v18, {v(VGH,2)}")
    A(f"v_mov_b32 v18, s{S_CARRY}")
    A(f"ds_write_b32 v18, v{VGH}")
    A(f"s_lshr_b32 s{T+12}, s{S_WAVE}, 1")
    for b in range(4):
        A(f"v_sub_u32 v18, v6, v4")
        A(f"v_add_u32 v18, {16-4*b}, v18")
        A(f"v_bfe_u32 v19, v18, 1, 3")
        A(f"v_xor_b32 v19, s{T+12}, v19")
        A(f"v_lshlrev_b32 v18, 7, v18")
        A(f"v_lshl_add_u32 v18, v19, 4, v18")
        A(f"v_add_u32 v{VAB+2*b}, {LDS_REC}, v18")
        A(f"v_xor_b32 v{VAB+2*b+1}, 64, v{VAB+2*b}")
    A(f"v_bfe_u32 v18, v{L}, 2, 2")
    A(f"v_and_b32 v19, 1, v18")
    A(f"v_add_u32 v18, 1, v18")
    A(f"v_lshrrev_b32 v18, 1, v18")
    A(f"v_and_b32 v20, 3, v{L}")
    A(f"v_add_u32 v18, v18, v20")
    A(f"v_lshlrev_b32 v18, 3, v18")
    A(f"v_lshl_add_u32 v18, v4, 5, v18")
    A(f"v_mul_u32_u24 v19, 4224, v19")
    A(f"s_mul_i32 s{T+13}, s{T+12}, 8448")
    A(f"s_add_u32 s{T+13}, s{T+13}, {LDS_KC}")
    A(f"v_add3_u32 v{VAA}, v18, v19, s{T+13}")
    A(f"v_bfe_u32 v19, v6, 1, 3")
    A(f"v_xor_b32 v19, s{T+12}, v19")
    A(f"v_lshlrev_b32 v18, 7, v6")
    A(f"v_lshl_add_u32 v18, v19, 4, v18")
    A(f"v_sub_u32 v19, 3, v4")
    A(f"v_lshl_add_u32 v18, v19, 2, v18")
    A(f"v_add_u32 v{VAE}, {LDS_REC+2048}, v18")
    A(f"v_xor_b32 v{VAE+1}, 64, v{VAE}")
    A(f"v_xor_b32 v{VAE+2}, 32, v{VAE}")
    A(f"v_xor_b32 v{VAE+3}, 96, v{VAE}")
    A(f"v_lshl_add_u32 v218, v6, 2, v4")
    A(f"v_lshl_add_u32 v218, v218, 2, s{S_CARRY}")
    A(f"s_add_u32 s{T+14}, s{T+7}, {LDS_KC}")
    A(f"v_bfe_u32 v24, v6, 2, 1")
    A(f"v_lshlrev_b32 v24, 1, v24")
    A(f"v_xor_b32 v24, v24, v4")
    A(f"v_lshlrev_b32 v219, 5, v6")
    A(f"v_lshl_add_u32 v219, v24, 3, v219")
    A(f"v_add_u32 v219, s{T+14}, v219")
    A(f"v_bfe_u32 v24, v{L}, 3, 1")
    A(f"v_lshlrev_b32 v24, 4, v24")
    A(f"v_xor_b32 v220, v24, v5")
    A(f"v_add_u32 v220, s{T+14}, v220")
    A(f"s_bitcmp1_b32 s{S_WAVE}, 0")
    for u in range(2):
        A(f"s_cselect_b32 s{T+14}, {TSETS[1][2*u]}, {TSETS[0][2*u]}")
        A(f"s_cselect_b32 s{T+15}, {TSETS[1][2*u+1]}, {TSETS[0][2*u+1]}")
        A(f"v_mov_b32 v24, s{T+14}")
        A(f"v_mov_b32 v25, s{T+15}")
        A(f"s_mov_b32 vcc_lo, 0")
        A(f"s_mov_b32 vcc_hi, -1")
        A(f"v_cndmask_b32 v24, v24, v25, vcc")
        A(f"v_and_b32 v25, 0x1ff, v5")
        A(f"v_lshl_add_u32 v{221+u}, v24, 9, v25")
    A(f"s_lshl_b32 s{S_CARRY}, s{S_CH}, 12")
    A(f"v_mov_b32 v22, 0")
    A(f"buffer_load_ushort v22, v22, {s(SRD_SSMD,4)}, s{T+10} offen")
    def pollA():
        u = uid()
        if O.lfa:
            lf_poll(A, LF_A, 24, 0 if O.bsplit else O.isleep)
            return
        A(f"s_mov_b64 exec, 3")
        A(f"v_lshlrev_b32 v252, 7, v{L}")
        A(f"s_mov_b32 s{S_TMP}, {WS_SYNC + 128*FLG_A}")
        A(f"s_mov_b32 s{S_SPIN}, 0x80000")
        A(f"L_poll{u}:")
        A(f"buffer_load_dwordx2 v[254:255], v252, {s(SRD_WS,4)}, s{S_TMP} offen sc1")
        A(f"s_sub_u32 s{S_SPIN}, s{S_SPIN}, 1")
        A(f"s_cbranch_scc1 L_pollx{u}")
        A("s_waitcnt vmcnt(0)")
        A(f"v_cmp_ne_u64 vcc, {s(S_TAG,2)}, v[254:255]")
        A(f"s_cbranch_vccz L_pollx{u}")
        A(f"s_sleep {O.sleep}")
        A(f"s_branch L_poll{u}")
        A(f"L_pollx{u}:")
        A("s_waitcnt vmcnt(0)")
        A(f"s_cmp_eq_u32 s{S_WG}, 0")
        A(f"s_cbranch_scc0 L_noep{u}")
        A("s_mov_b64 exec, 1")
        A(f"buffer_store_dwordx2 v[254:255], v252, {s(SRD_WS,4)}, s{S_TMP} offen offset:{128*(EPOCH-FLG_A)} sc1")
        A(f"L_noep{u}:")
        A("s_mov_b64 exec, -1")
    def w3A():
        pollA()
        stamp(A, "A released")
        A(f"s_mov_b32 m0, {LDS_REC+2048}")
        for i in range(16):
            if i: A(f"s_add_u32 m0, m0, 1024")
            A(f"s_xor_b32 s{T}, s{T+8}, {1024*i}")
            A(f"s_add_u32 s{T}, s{T}, s{T+6}")
            A(f"buffer_load_dwordx4 v{7 if i&1 else 3}, {s(SRD_WS,4)}, s{T} offen sc1 lds")
        if O.bsplit: lf_poll(A, LF_B, 24)
        A(f"s_cmp_eq_u32 s{S_WG}, 0")
        A(f"s_cbranch_scc0 L_noep")
        lf_signal(A, EPOCH)
        A(f"L_noep:")
        for i in range(16):
            if i % 4 == 0 or i == 14:
                A(f"s_mov_b32 m0, {LDS_STA + 4096*(i>>2) if i < 14 else LDS_STB - 2048}")
                A(f"s_mov_b32 s{T}, {WS_STAT + 4096*(i>>2)}")
            A(f"buffer_load_dwordx4 v{226+(i&1)}, {s(SRD_WS,4)}, s{T} offen offset:{1024*(i&3)} sc1 lds")
        A(f"s_mul_i32 s{T+18}, s{S_WG}, 7168")
        A(f"v_lshlrev_b32 v254, 7, v{L}")
        A(f"s_mov_b32 exec_hi, 0xffffff")
        if O.w2te: A(f"s_mov_b64 exec, 1")
        A(f"buffer_load_dword v255, v254, {s(SRD_W2,4)}, s{T+18} offen ; nowait")
        A(f"s_mov_b64 exec, -1")
        A("s_waitcnt vmcnt(17)")
    def oA():
        for gi in range(O.n_w1):
            A(f"s_waitcnt vmcnt({8 * (O.n_w1 - 1 - gi) + 1 + O.w2te})")
            for x in w1_read(gi): A(x)
        if O.w2w1:
            A("s_waitcnt lgkmcnt(0)")
            for gi in range(O.w2w1):
                for x in w2_group(gi, f"s{S_PM}", 8192 * gi):
                    A(x)
                    if x.startswith("buffer"): A(f"s_waitcnt vmcnt({O.w1_depth-1})")
        stamp(A, "A released")
        del _stamps[-1:]
    split_wave3(A, oA, w3A)
    A(f"v_cmp_eq_u32 vcc, s{T+11}, v{L}")
    A(f"v_cndmask_b32 v63, 0, v63, vcc")
    A("s_mov_b64 exec, 0xff")
    A(f"ds_write_b32 v62, v63")
    A("s_mov_b64 exec, -1")
    A("s_waitcnt lgkmcnt(0)")
    A("s_barrier")
    stamp(A, "rec landed")
    A(f"s_bitcmp1_b32 s{S_WAVE}, 0")
    A(f"s_cbranch_scc1 L_conv1")
    for var in range(3):
        par = min(var, 1)
        TS = TSETS[par]
        if var == 1:
            stub(A)
            A(f"L_conv1:")
            A(f"s_cmp_eq_u32 s{S_WAVE}, 3")
            A(f"s_cbranch_scc1 L_conv3")
        if var == 2:
            stub(A)
            A("L_conv3:")
        def afrag(buf, a_): return 136 + 32 * buf + 4 * a_
        def bfrag(buf, p, d): return 128 + 64 * buf + 32 * p + 4 * d
        def order(b):
            pairs = [(a_, J) for a_ in range(8) for J in TS if J >= a_]
            if b == 3: return [(a_, J, p) for p in (1, 0) for a_, J in pairs]
            return [(a_, J, p) for a_, J in pairs for p in range(2)]
        def reads(b):
            buf = b & 1
            seq = []; seen = set()
            for a_, J, p in order(b):
                if a_ not in seen:
                    seen.add(a_)
                    for h in range(2):
                        seq.append(f"ds_read_b64_tr_b16 {v(afrag(buf,a_)+2*h,2)}, v{VAA} offset:{512*a_+128*b+16*h}")
                if (J - a_, p) not in seen:
                    seen.add((J - a_, p))
                    seq.append(f"ds_read_b128 {a(bfrag(buf,p,J-a_),4)}, v{VAB+2*b+p} offset:{2048*(J-a_)}")
            return seq
        mark = len(A.items)
        r0 = reads(0)
        for x in r0[:O.fs]: A(x)
        ml = [f"buffer_load_dword v21, v21, {s(SRD_WS,4)}, s{T+9} offen sc1"] + modv_loads(24)
        scal = [f"v_add_f32_dpp v21, v21, v21 quad_perm:[1,0,3,2] row_mask:0xf bank_mask:0xf",
                  f"v_lshlrev_b32 v1, 16, v22",
                  f"v_add_f32_dpp v21, v21, v21 quad_perm:[2,3,0,1] row_mask:0xf bank_mask:0xf",
                  f"v_cvt_pk_bf16_f32 v21, v21, v21",
                  f"v_lshlrev_b32 v21, 16, v21",
                  f"v_add_f32 v5, 1.0, v21",
                  f"v_cvt_pk_bf16_f32 v5, v5, v5",
                  f"v_lshlrev_b32 v5, 16, v5",
                  f"v_readlane_b32 s{T+16}, v21, 0",
                  f"v_readlane_b32 s{T+18}, v21, 8",
                  f"v_readlane_b32 s{T+17}, v5, 4",
                  f"v_readlane_b32 s{T+19}, v5, 12",
                  f"v_mov_b32 v5, s{T+18}",
                  f"v_mul_f32 v7, s{T+17}, v5",
                  f"v_mul_f32 v21, s{T+16}, v5",
                  f"v_mov_b32 v217, s{T+19}"]
        kx = []
        for ti, J in enumerate(TS):
            so = 2048 * J if J < 7 else LDS_STB - LDS_STA
            kx += [f"ds_read_b32 v{VKX+4*ti+k}, v{VAE+k} offset:{2048*J}" for k in range(4)]
            kx += [f"ds_read_b128 {v(VST+4*ti,4)}, v23 offset:{so}", f"ds_read_b128 {v(VST+16+4*ti,4)}, v216 offset:{so}"]
        side = []; side2 = []; side3 = []; ntouch = 0; postg = []
        if var < 2:
            allg = [w1_group(gi, f"s{S_WAVE}", f"s{S_PM}", 224) for gi in range(O.n_w1, 4)] + [w2_group(gi, f"s{S_PM}", 8192 * gi) for gi in range(O.w2w1, min(O.w2e, O.w2side))]
            for x in allg[:len(allg) - O.post]: side.extend(x)
            postg = sum(allg[len(allg) - O.post:], [])
            if O.n_w1 < 4 and O.w2side == 4:
                postg = sum([w1_read(gi) for gi in range(O.n_w1, 4)], []) + ["s_waitcnt lgkmcnt(0)"] + postg
        pre = []
        for ti in range(4):
            d = VKX + 4 * ti + 2
            x = VX0 + 4 * ti
            pre += [f"v_and_b32 v{x}, 0xffff0000, v{d}", f"v_and_b32 v{x+1}, 0xffff0000, v{d+1}",
                    f"v_lshlrev_b32 v{x+2}, 16, v{d}", f"v_lshlrev_b32 v{x+3}, 16, v{d+1}"]
            for r in range(4): pre.append(f"v_fma_f32 v{VGH+4*ti+r}, v{x+r}, v{VST+4*ti+r}, v{VST+16+4*ti+r}")
            for r in range(4): pre.append(f"v_fma_f32 v{VGH+4*ti+r}, v{VGH+4*ti+r}, v7, v21")
        pre.insert(0, "s_waitcnt lgkmcnt(15)")
        started = set()
        if O.dbgC & 1: side = []
        if O.dbgC & 4: pre = []; kx = []
        nside = len(side)
        tailg = w1_group(f"s{S_WAVE}", 3, 3 * 32768, 60)
        mv = modv_ops(24) if O.mvearly else []
        if O.dbgC & 2: mv = []; scal = []
        if O.dbgC & 8: tailg = []
        pre = kx + pre
        for b in range(4):
            nxt = reads(b + 1) if b < 3 else []
            if b == 0: nxt = r0[O.fs:] + nxt
            if b == 2:
                if var == 2: A(f"s_waitcnt vmcnt({2 + 8 * O.mvearly})")
                A("s_barrier")
            for n, (a_, J, p) in enumerate(order(b)):
                acc = ACC + 8 * TS.index(J) + 4 * p
                c = v(acc, 4) if (J, p) in started else "0"
                started.add((J, p))
                if b == 0:
                    need = (v(afrag(0,a_)+2,2) + ",", a(bfrag(0,p,J-a_),4) + ",")
                    while any(x.split()[1] in need for x in nxt): A(nxt.pop(0))
                A(f"v_mfma_f32_16x16x32_bf16 {v(acc,4)}, {v(afrag(b&1,a_),4)}, {a(bfrag(b&1,p,J-a_),4)}, {c}")
                if nxt: A(nxt.pop(0))
                slot = 36 * b + n
                if b == 0 and nxt and len(nxt) > 34 - n: A(nxt.pop(0))
                elif ml: A(ml.pop(0))
                elif side and slot * nside >= (nside - len(side)) * 124: A(side.pop(0))
                elif b == 1 and (scal or mv): A((scal or mv).pop(0))
                elif b >= 2 and pre: A(pre.pop(0))
                if b == 3:
                    if n == 21:
                        for ti, JJ in enumerate(TS):
                            A(f"ds_write_b32 v218, v{ACC+8*ti+7} offset:{256*JJ+4}")
                    elif n == 24:
                        assert not side and not any(x.startswith("ds_read") for x in pre)
                        A("s_waitcnt lgkmcnt(0)")
                        A("s_barrier")
                        for tj, JJ in enumerate(TS):
                            A(f"ds_read_b32 v{U+tj}, v218 offset:{256*JJ}")
                    elif n > 24:
                        for _ in range(2):
                            if tailg: A(tailg.pop(0))
                    elif pre: A(pre.pop(0))
            for x in nxt: A(x)
            if b == 1:
                for x in scal + mv: A(x)
        if var: del _stamps[-(5 if O.fine else 1):]
        stamp(A, "conv mfma")
        for x in side: A(x)
        for x in pre + tailg: A(x)
        for ti in range(4):
            z1, g_, x0 = ACC + 8 * ti + 4, VGH + 4 * ti, VX0 + 4 * ti
            A(f"v_fmac_f32 v{x0}, v{g_}, v{U+ti}")
            for r in range(1, 4):
                A(f"v_fmac_f32 v{x0+r}, v{g_+r}, v{z1+r-1}")
        for ti in range(4):
            for r in range(4):
                A(f"v_dot2_f32_bf16 v{ACC+8*ti+r}, v{VKX+4*ti+(r&1)}, v{1 if r < 2 else 22}, v{ACC+8*ti+r}")
        if O.fine:
            stamp(A, "e:prebar"); stamp(A, "e:bar")
        A(f"s_add_u32 s{T+15}, s{S_CARRY}, {WS_X1C}")
        A(f"s_add_u32 s{T+14}, s{S_CARRY}, {WS_X1}")
        O1, O2 = 136, 144
        for ti in range(4):
            z0, g_, x0 = ACC + 8 * ti, VGH + 4 * ti, VX0 + 4 * ti
            for h in range(2):
                A(f"v_pk_fma_f32 {v(x0+2*h,2)}, {v(g_+2*h,2)}, {v(z0+2*h,2)}, {v(x0+2*h,2)}")
            for h in range(2):
                A(f"v_pk_mul_f32 {v(VST+4*ti+2*h,2)}, {v(x0+2*h,2)}, v[216:217] op_sel:[0,1] op_sel_hi:[1,1]")
            for h in range(2):
                A(f"v_cvt_pk_bf16_f32 v{O2+2*ti+h}, v{VST+4*ti+2*h}, v{VST+4*ti+2*h+1}")
            A(f"ds_write_b64 v219, {v(O2+2*ti,2)} offset:{512*ti}")
        for ti in range(4):
            x0 = VX0 + 4 * ti
            for h in range(2):
                A(f"v_cvt_pk_bf16_f32 v{O1+2*ti+h}, v{x0+2*h}, v{x0+2*h+1}")
            A(f"ds_write_b64 v219, {v(O1+2*ti,2)} offset:{2048+512*ti}")
        A("s_waitcnt lgkmcnt(4)")
        for k in range(2): A(f"ds_read_b128 {v(152+4*k,4)}, v220 offset:{1024*k}")
        A("s_waitcnt lgkmcnt(2)")
        for k in range(2, 4): A(f"ds_read_b128 {v(152+4*k,4)}, v220 offset:{1024*k}")
        for k in range(4):
            A(f"buffer_store_dwordx4 {v(152+4*k,4)}, v{221+(k&1)}, {s(SRD_WS,4)}, s{T+15-(k>>1)} offen sc1")
        if O.fine: stamp(A, "e:stored")
        if postg and O.n_w1 < 4: A(f"s_waitcnt vmcnt({12 + 8 * (4 - O.post)})")
        for x in postg: A(x)
        if O.fine: stamp(A, "e:post")
        if var == 2 and O.post: A("s_waitcnt vmcnt(0)")
        if var < 2: A(f"s_branch L_convdone")
    stub(A, "L_convdone")
    A(f"L_convdone:")
    stamp(A, "x1 stored")
    stamp_flush(A, 0)

VCS, VSBW = 64, 80
ACC1 = 128
VXR = 236

def w2frag(u, e):
    return (128 + 8 * e if e < 16 else 8 * (e - 16)) + 4 * u

def w2_setup(A):
    dma_voff(A, VW2S, VW2S + 1, 1024, 64)
    A(f"v_add_u32 v{VW2S+1}, {8*1024-1024}, v{VW2S+1}")
    A(f"v_add_u32 v{VW2S+2}, {2*(8*1024-1024)}, v{VW2S}")
    A(f"v_add_u32 v{VW2S+3}, {2*(8*1024-1024)}, v{VW2S+1}")
    tr_addr32(A, VW2 + 2, 64, 4)
    A(f"s_lshl_b32 s{S_TMP}, s{S_WAVE}, 5")
    A(f"v_xor_b32 v{VW2+2}, s{S_TMP}, v{VW2+2}")
    A(f"v_xor_b32 v{VW2+3}, 32, v{VW2+2}")
    A(f"v_xor_b32 v{VW2+4}, 64, v{VW2+2}")
    A(f"v_xor_b32 v{VW2+5}, 96, v{VW2+2}")
    A(f"s_mul_i32 s{S_PS}, s{S_WAVE}, {448*1024}")
    A(f"s_lshl_b32 s{S_TMP}, s{S_J}, 7")
    A(f"s_add_u32 s{S_PS}, s{S_PS}, s{S_TMP}")

def w2_group(gi, ldsreg, ldsoff, src=None):
    src = src or f"s{S_PS}"
    return [f"s_add_u32 s{S_TMP}, s{S_PE}, {gi}",
            f"s_add_u32 m0, {ldsreg}, {ldsoff}",
            f"s_cmp_ge_u32 s{S_TMP}, 7",
            f"s_cselect_b32 s{S_PO}, 7, 0",
            f"s_sub_u32 s{S_TMP}, s{S_TMP}, s{S_PO}",
            f"s_lshl_b32 s{S_PO}, s{S_TMP}, 16",
            f"s_add_u32 s{S_PO}, s{S_PO}, {src}"] + pieces8(VW2S, SRD_W2, 32768)

def w2_addr(A, base):
    for k in range(4): A(f"v_add_u32 v{VW2H+k}, {base}, v{VW2+2+k}")

def w2_read(gi, off):
    return [f"ds_read_b64_tr_b16 {a(w2frag(u, 4*gi+e)+2*h,2)}, v{VW2H+2*u+h} offset:{off+2048*e+1024*h}" for e in range(4) for u in range(2) for h in range(2)]

def gemm1_setup(A):
    L = V_LANE
    dma_voff(A, 56, 57, 4096, 5)
    A(f"v_bfe_u32 v5, v56, 6, 1")
    A(f"v_lshl_add_u32 v58, v5, 6, v56")
    A(f"v_lshl_add_u32 v59, v5, 6, v57")
    A(f"v_add_u32 v57, {8*4096-1024}, v57")
    A(f"v_add_u32 v59, {8*4096-1024}, v59")
    A(f"s_lshl_b32 s{T}, s{S_WAVE}, 16")
    A(f"s_lshl_b32 s{T+1}, s{S_RB}, 8")
    A(f"s_add_u32 s{T}, s{T}, s{T+1}")
    A(f"s_and_b32 s{T+2}, s{S_C}, 1")
    A(f"s_lshl_b32 s{T+2}, s{T+2}, 7")
    A(f"s_add_u32 s{T+2}, s{T+2}, {WS_X1}")
    A(f"s_cmp_ge_u32 s{S_C}, 14")
    A(f"s_cselect_b32 s{T+2}, s{T+2}, {WS_X1C}")
    A(f"s_add_u32 s{T}, s{T}, s{T+2}")
    A(f"s_add_u32 s{SRD_K}, s{SRD_WS}, s{T}")
    A(f"s_addc_u32 s{SRD_K+1}, s{SRD_WS+1}, 0")
    A(f"v_add_u32 v60, 128, v56")
    A(f"v_add_u32 v61, 128, v57")
    A(f"s_lshl_b32 s{T+2}, s{S_WAVE}, 11")
    A(f"s_lshl_b32 s{T+5}, s{S_ROT}, 18")
    tr_addr32(A, 8, 5, 8)
    A(f"v_xor_b32 v9, 64, v8")
    A(f"v_add_u32 v10, 0x10000, v8")
    A(f"v_add_u32 v11, 0x10000, v9")
    A(f"v_lshlrev_b32 v18, 4, v{L}")
    A(f"s_mul_i32 s{T+3}, s{S_RB}, {4*112*1024}")
    A(f"s_lshl_b32 s{T+4}, s{S_C}, 13")
    A(f"s_add_u32 s{T+3}, s{T+3}, s{T+4}")
    A(f"s_add_u32 s{T+3}, s{T+3}, s{T+2}")
    A(f"s_add_u32 s{T+3}, s{T+3}, {WS_H}")
    tr_addr32(A, 44, 5, 4)
    A(f"s_add_u32 s{T+6}, s{T+2}, {LDS_XR}")
    A(f"v_add_u32 v44, s{T+6}, v44")
    A(f"v_xor_b32 v45, 32, v44")
    A(f"v_xor_b32 v42, 64, v44")
    A(f"v_xor_b32 v43, 96, v44")
    A(f"s_lshl_b32 s{T+7}, s{S_RB}, 11")
    A(f"s_add_u32 s{T+7}, s{T+7}, {WS_ST2}")
    A(f"s_lshr_b32 s{T+8}, s{S_RT}, 4")
    A(f"s_lshl_b32 s{T+8}, s{T+8}, 1")
    A(f"s_bfe_u32 s{T+9}, s{S_RT}, 0x20002")
    A(f"s_lshl_b32 s{T+9}, s{T+9}, 6")
    A(f"s_add_u32 s{T+8}, s{T+8}, s{T+9}")
    A(f"s_lshl_b32 s{T+8}, s{T+8}, 7")
    A(f"s_add_u32 s{T+9}, s{T+8}, {WS_SYNC + 128*FLG_3}")
    A(f"s_add_u32 s{T+8}, s{T+8}, {WS_SYNC + 128*FLG_4}")
    A(f"v_min_u32 v14, 13, v{L}")
    A(f"v_and_b32 v5, 1, v14")
    A(f"v_lshrrev_b32 v14, 1, v14")
    A(f"v_lshlrev_b32 v14, 10, v14")
    A(f"v_lshl_add_u32 v14, v5, 7, v14")

def modv_loads(M):
    L = [f"v_lshlrev_b32 v{M+20}, 4, v0"]
    L += [f"s_mov_b32 s{T+p}, {WS_MODP + 12288*p + 1536*4}" for p in range(4)]
    L += [f"buffer_load_dwordx4 {v(M+4*p,4)}, v{M+20}, {s(SRD_WS,4)}, s{T+p} offen sc1" for p in range(4)]
    L += [f"v_lshlrev_b32 v{M+21}, 2, v{V_LANE}", f"s_lshl_b32 s{T+4}, s{S_J}, 8"]
    L += [f"s_add_u32 s{T+p}, s{T+4}, {WS_MODP + 12288*p + 2560*4}" for p in range(4)]
    L += [f"buffer_load_dword v{M+16+p}, v{M+21}, {s(SRD_WS,4)}, s{T+p} offen sc1" for p in range(4)]
    return L

def modv_ops(M):
    L = [f"s_lshr_b32 s{T+5}, s{S_WAVE}, 1",
         f"v_cvt_f32_u32 v{M+22}, s{T+5}",
         f"s_xor_b32 s{T+5}, s{T+5}, 1",
         f"s_lshl_b32 s{T+5}, s{T+5}, 10",
         f"s_add_u32 s{T+5}, s{T+5}, {LDS_MODV}",
         f"s_lshl_b32 s{T+4}, s{S_ROT}, 7",
         f"v_lshrrev_b32 v{M+20}, 1, v{M+20}",
         f"v_subrev_u32 v{M+20}, s{T+4}, v{M+20}",
         f"v_and_b32 v{M+20}, 0x3ff, v{M+20}",
         f"v_add_u32 v{M+20}, s{T+5}, v{M+20}"]
    for k in range(4): L += [f"v_add_f32 v{M+k}, v{M+k}, v{M+4+k}", f"v_add_f32 v{M+8+k}, v{M+8+k}, v{M+12+k}"]
    for k in range(4): L += [f"v_add_f32 v{M+k}, v{M+k}, v{M+8+k}"]
    L += [f"v_add_f32 v{M+16}, v{M+16}, v{M+17}", f"v_add_f32 v{M+18}, v{M+18}, v{M+19}"]
    for k in range(2): L += [f"v_cvt_pk_bf16_f32 v{M+4+k}, v{M+2*k}, v{M+2*k+1}"]
    L += [f"v_add_f32 v{M+16}, v{M+16}, v{M+18}"]
    for k in range(2): L += [f"v_lshlrev_b32 v{M+2*k}, 16, v{M+4+k}", f"v_and_b32 v{M+2*k+1}, 0xffff0000, v{M+4+k}"]
    L += [f"v_cvt_pk_bf16_f32 v{M+16}, v{M+16}, v{M+16}"]
    for k in range(4): L += [f"v_add_f32 v{M+k}, v{M+22}, v{M+k}"]
    L += [f"v_lshlrev_b32 v{M+16}, 16, v{M+16}"]
    for k in range(2): L += [f"v_cvt_pk_bf16_f32 v{M+4+k}, v{M+2*k}, v{M+2*k+1}"]
    L += [f"v_mul_f32 v{M+16}, 0xbf317218, v{M+16}",
          f"ds_write_b64 v{M+20}, {v(M+4,2)}",
          f"v_add_u32 v{M+21}, {LDS_GB}, v{M+21}",
          f"ds_write_b32 v{M+21}, v{M+16}",
          f"v_mov_b32 v{M+17}, 0",
          f"v_and_b32 v{M+18}, 60, v{M+21}",
          f"v_add_u32 v{M+18}, {LDS_MODV+2048}, v{M+18}",
          f"ds_write_b32 v{M+18}, v{M+17}"]
    return L

def window3(A):
    L = V_LANE
    M = 168
    A(f"v_xor_b32 v7, v6, v4")
    A(f"v_and_b32 v7, 1, v7")
    A(f"v_lshrrev_b32 v45, 2, v6")
    A(f"v_or_b32 v7, v7, v45")
    A(f"v_lshrrev_b32 v45, 1, v6")
    A(f"v_lshlrev_b32 v45, 10, v45")
    A(f"v_lshrrev_b32 v46, 1, v4")
    A(f"v_lshl_add_u32 v45, v46, 4, v45")
    A(f"v_add_u32 v45, {LDS_MODV}, v45")
    A(f"v_cmp_eq_u32 vcc, 0, v7")
    A(f"v_mov_b32 v47, {LDS_MODV+2048}")
    A(f"v_cndmask_b32 v47, v47, v45, vcc")
    A(f"v_mov_b32 v46, 32")
    A(f"v_cndmask_b32 v46, 0, v46, vcc")
    w2_addr(A, f"s{S_PM}")
    gemm1_setup(A)
    A(f"s_waitcnt vmcnt({8 * O.post})")
    A("s_barrier")
    stamp(A, "x1 acked")
    def rd():
        for gi in range(4):
            if gi == 4 - O.post: A("s_waitcnt vmcnt(0)")
            for x in w2_read(gi, 8192 * gi): A(x)
        A(f"s_cmp_eq_u32 s{S_WAVE}, 2")
        A(f"s_cbranch_scc0 L_now3w2")
        A(f"s_lshl_b32 s{T+11}, s{S_J}, 7")
        A(f"s_add_u32 s{T+11}, s{T+11}, {3*448*1024}")
        A("s_waitcnt lgkmcnt(0)")
        for gi in range(4):
            for x in w2_group(gi, f"s{S_PM}", 8192 * gi, f"s{T+11}"): A(x)
        A("L_now3w2:")
    def fin():
        if O.lf2: lf_signal(A, LF_2)
        else:
            signal_issue(A, CNT_2)
        for gi in range(4):
            for x in w1_read(gi): A(x)
        w2_addr(A, 65536)
        if not O.lf2: signal_finish(A, FLG_2)
    split_wave3(A, rd, fin)
    stamp(A, "modv")
    NB = 8
    def rdv(e):
        A(f"ds_read_b128 {v(192+4*(e%NB),4)}, v47")
        A(f"v_add_u32 v47, v47, v46")
    for e in range(NB): rdv(e)
    for e in range(32):
        A(f"v_mfma_f32_16x16x32_bf16 v[48:51], {a(4*e,4)}, {v(192+4*(e%NB),4)}, {'0' if e == 0 else 'v[48:51]'}")
        if e + NB < 32: rdv(e + NB)
    A(f"v_lshrrev_b32 v4, 4, v{L}")
    A(f"v_and_b32 v6, 15, v{L}")
    A(f"s_lshl_b32 s{T+13}, s{S_WAVE}, 9")
    A(f"s_add_u32 s{T+13}, s{T+13}, {LDS_CS}")
    A(f"v_and_b32 v5, 1, v6")
    A(f"v_lshlrev_b32 v5, 6, v5")
    A(f"v_lshl_add_u32 v5, v4, 4, v5")
    A(f"v_lshrrev_b32 v7, 1, v6")
    A(f"v_lshl_add_u32 v5, v7, 8, v5")
    A(f"v_add_u32 v5, s{T+13}, v5")
    A(f"s_mov_b32 exec_lo, 0x000f000f")
    A(f"s_mov_b32 exec_hi, 0x000f000f")
    A(f"ds_write_b128 v5, v[48:51]")
    A("s_mov_b64 exec, -1")
    A(f"v_lshrrev_b32 v5, 5, v{L}")
    A(f"v_lshlrev_b32 v5, 4, v5")
    A(f"v_add_u32 v5, s{T+13}, v5")
    A("s_waitcnt lgkmcnt(0)")
    for k in range(4):
        A(f"ds_read_b128 {v(VCS+4*k,4)}, v5 offset:{32*k}")
        A(f"ds_read_b128 {v(VSBW+4*k,4)}, v5 offset:{256+32*k}")
    A(f"v_mov_b32 v6, {hex(NLOG2E)}")
    for r in range(0, 16, 2):
        A(f"v_pk_mul_f32 {v(VSBW+r,2)}, {v(VSBW+r,2)}, v[6:7] op_sel_hi:[1,0]")
    stamp(A, "colsums")
    A(f"s_cmp_eq_u32 s{S_WAVE}, {O.poll2}")
    A(f"s_cbranch_scc0 L_np2")
    if O.lf2: lf_poll(A, LF_2, 100, O.isleep2)
    else: poll(A, 16, 128, WS_SYNC + 128 * FLG_2)
    A("L_np2:")
    A("s_waitcnt vmcnt(0)")
    A("s_barrier")
    stamp(A, "2 released")

def silu_ops(acc, rin, mr, tmp, out, packed=True):
    L = []
    W = O.sw; tmp = 48 if W <= 8 else 112
    for g0 in range(0, 16, W):
        for r in range(0, W, 2):
            L.append(f"v_pk_fma_f32 {v(tmp+r,2)}, {v(VCS+g0+r,2)}, {v(rin,2)}, {v(VSBW+g0+r,2)} op_sel:[0,1,0] op_sel_hi:[1,1,1]")
        for r in range(0, W, 2):
            L.append(f"v_pk_fma_f32 {v(acc+g0+r,2)}, {v(acc+g0+r,2)}, {v(rin,2)}, {v(tmp+r,2)} op_sel:[0,0,0] op_sel_hi:[1,0,1]")
        for i in range(W): L.append(f"v_exp_f32 v{tmp+i}, v{acc+g0+i}")
        for r in range(0, W, 2): L.append(f"v_pk_add_f32 {v(tmp+r,2)}, {v(tmp+r,2)}, 1.0 op_sel_hi:[1,0]")
        for i in range(W): L.append(f"v_rcp_f32 v{tmp+i}, v{tmp+i}")
        for r in range(0, W, 2): L.append(f"v_pk_mul_f32 {v(tmp+r,2)}, {v(tmp+r,2)}, {v(acc+g0+r,2)}")
        for r in range(0, W, 2): L.append(f"v_cvt_pk_bf16_f32 v{out+(g0+r)//2}, v{tmp+r}, v{tmp+r+1}")
    return L

def mix(x, y):
    out = []; k = 0
    for i, a_ in enumerate(x):
        out.append(a_)
        while k < len(y) and k * len(x) < (i + 1) * len(y):
            out.append(y[k]); k += 1
    return out + y[k:]

def cost(ins):
    return 8 if ins.startswith(("v_exp", "v_rcp")) else 4

def own_flag(A, base):
    A(f"s_lshl_b32 s{S_TMP}, s{S_WG}, 7")
    A(f"s_add_u32 s{S_TMP}, s{S_TMP}, {WS_SYNC + 128*base}")
    A("s_mov_b64 exec, 1")
    A(f"v_mov_b32 v252, 0")
    A(f"v_mov_b32 v253, 1")
    A(f"buffer_store_dword v253, v252, {s(SRD_WS,4)}, s{S_TMP} offen sc1")
    A("s_mov_b64 exec, -1")

def recheck(A, cmp, reload_):
    u = uid()
    A(f"s_mov_b32 s{S_SPIN}, 0x80000")
    A(f"L_rc{u}:")
    for x in cmp: A(x)
    A(f"s_cbranch_vccz L_rcx{u}")
    A(f"s_sleep {O.rs}")
    for x in reload_: A(x)
    A(f"s_sub_u32 s{S_SPIN}, s{S_SPIN}, 1")
    A("s_waitcnt vmcnt(0)")
    A(f"s_cbranch_scc0 L_rc{u}")
    A(f"L_rcx{u}:")

def gemm1(A):
    L = V_LANE
    XF = 192; VRS = 96; SG = 104; TMP, OUT = 20, 24
    A("; ---- GEMM 1 ----")
    def chunk(n, src=None):
        h = 4 * (n >> 3)
        return [f"s_add_u32 m0, s{T+2}, {8192*n}",
                f"s_and_b32 s{T+5}, s{T+5}, 0x1fffff",
                f"buffer_load_dwordx4 v{56+h}, {s(SRD_K,4)}, s{T+5} offen sc1 lds",
                f"buffer_load_dwordx4 v{57+h}, {s(SRD_K,4)}, s{T+5} offen offset:1024 sc1 lds",
                f"s_add_u32 s{T+5}, s{T+5}, 262144"]
    xres = [f"s_lshl_b32 s{T+12}, s{S_J}, 18",
            f"s_lshl_b32 s{T+13}, s{S_WAVE}, 16",
            f"s_add_u32 s{T+12}, s{T+12}, s{T+13}",
            f"s_lshl_b32 s{T+13}, s{S_RT}, 6",
            f"s_add_u32 s{T+12}, s{T+12}, s{T+13}",
            f"s_add_u32 m0, s{T+2}, {LDS_XR}",
            f"s_add_u32 s{T+12}, s{T+12}, {WS_X1}",
            f"buffer_load_dwordx4 v58, {s(SRD_WS,4)}, s{T+12} offen sc1 lds",
            f"buffer_load_dwordx4 v59, {s(SRD_WS,4)}, s{T+12} offen offset:1024 sc1 lds"]
    def w3w2():
        for gi in range(O.w2e):
            for x in w2_read(gi, 8192 * gi): A(x)
        A("s_waitcnt lgkmcnt(0)")
    w2b = lambda gi: w2_group(4 + gi, f"s{S_PM}", 8192 * gi if gi < 2 else 65536)
    A(f"s_lshl_b32 s{S_PM}, s{S_WAVE}, 14")
    A(f"s_cmp_ge_u32 s{S_C}, 14")
    A(f"s_cbranch_scc1 L_stat")
    for n in range(4):
        for x in chunk(n, WS_X1C): A(x)
    only_wave3(A, w3w2)
    def xread(st, e):
        return [f"ds_read_b64_tr_b16 {v(XF+4*((2*e+(st&1))%8)+2*h,2)}, v{8+st} offset:{2048*e+512*h}" for h in range(2)]
    def hstore(st, out):
        return [f"s_add_u32 s{T+4}, s{T+3}, {112*1024*st}"] + [f"buffer_store_dwordx4 {v(out+4*k,4)}, v18, {s(SRD_WS,4)}, s{T+4} offen offset:{1024*k} {['sc1', 'sc0 sc1', 'sc1 nt'][O.hs]}" for k in range(2)]
    def mf(st, e):
        acc = ACC1 + 16 * st
        return f"v_mfma_f32_32x32x16_bf16 {v(acc,16)}, {a(4*e,4)}, {v(XF+4*((2*e+(st&1))%8),4)}, {'0' if e == 0 else v(acc,16)}"
    sld = [f"buffer_load_dwordx4 {v(SG+4*h,4)}, v18, {s(SRD_WS,4)}, s{T+7} offen offset:{1024*h} sc1" for h in range(2)]
    side = sum([chunk(n, WS_X1C + 128 * (n >> 3)) for n in range(4, 16)], []) + xres
    ops = [1] * 8
    def emit(x, tile=0):
        A(x)
        if x.startswith("buffer"): ops.append(tile)
    def put(k):
        for _ in range(k):
            if side: emit(side.pop(0), 1)
    def ckpt(need, name=None):
        while sum(ops) < need: put(1)
        pos = [k for k, t in enumerate(ops) if t][need - 1]
        A(f"s_waitcnt vmcnt({len(ops) - 1 - pos})")
        A("s_barrier")
        if name: stamp(A, name)
    LOOK = O.look
    gates = {0: 4, 8: 8, 16: 16, 32: 20, 40: 24, 48: 34} if O.prog else {0: 4, 8: 8, 16: 16, 32: 34}
    ckpt(4, "ckpt0")
    for n in range(LOOK):
        for st in range(2):
            for x in xread(st, n): A(x)
    for e in range(32):
        n = e + LOOK
        if n in gates:
            ckpt(gates[n], "half1" if n == 32 else None)
            if n == 32:
                for x in sld: emit(x)
        if O.wmerge: A(f"s_waitcnt lgkmcnt({4 * (LOOK - 1)})")
        for st in range(2):
            A(mf(st, e))
            for x in xread(st + 2 * (n >> 5), n & 31): A(x)
            put(O.pa0 if e < 8 else O.pa)
    def spread(h):
        Ls = []
        for k in range(2):
            Ls += [f"v_mov_b32 v{VRS+4*h+k}, v{SG+4*h+2*k}", f"v_mov_b32 v{VRS+4*h+2+k}, v{SG+4*h+2*k}"]
        for k in range(2):
            Ls += [f"v_permlane32_swap_b32 v{VRS+4*h+k}, v{VRS+4*h+2+k}"]
        return Ls
    def scheck(h):
        recheck(A, [f"v_and_b32 v{TMP}, v{SG+4*h+1}, v{SG+4*h+3}", f"v_cmp_ne_u32 vcc, 1, v{TMP}"], [sld[h]])
    xr = [f"ds_read_b64_tr_b16 {v(VXR+2*k,2)}, v{44-(k&2)+(k&1)} offset:{1024*(k&1)}" for k in range(4)]
    grp = lambda gi: w2_group(gi, f"s{S_PM}", 8192 * (gi & 1))
    E = O.w2e
    late = grp(E) + grp(E + 1) + xr
    rds = []
    w2_addr(A, f"s{S_PM}")
    def step(e, st):
        if st == 2:
            if e + LOOK + 32 in gates: ckpt(gates[e + LOOK + 32])
            A(f"s_waitcnt lgkmcnt({4 * min(LOOK - 1, 31 - e)})")
        A(mf(st, e))
        if e + LOOK < 32:
            for x in xread(st, e + LOOK): A(x)
    todo = [(e, st) for e in range(32) for st in (2, 3)]
    nst = None
    while todo:
        e, st = todo.pop(0)
        if (e, st) == (16, 2): stamp(A, "B16")
        step(e, st)
        if side: put(2)
        elif e > 48 - 32 - LOOK and nst is not None and late:
            for _ in range(O.pb):
                if late and not late[0].startswith("ds_read"): emit(late.pop(0))
        if (e, st) == (O.sck, 3):
            scheck(0)
            stamp(A, "stats0")
            for x in spread(0): A(x)
            for q in range(2):
                prev = ""
                for x in silu_ops(ACC1 + 16 * q, VRS + 2 * q, VRS + 2 * q + 1, TMP, OUT + 8 * q, True) + hstore(q, OUT + 8 * q):
                    if O.ovl and x[:5] in ("v_exp", "v_rcp") and prev[:5] != x[:5] and todo[0] != (16, 2):
                        step(*todo.pop(0))
                    emit(x, 0); prev = x
            nst = len(ops)
            stamp(A, "burst0")
        if (e, st) == (O.f0at, 3):
            A(f"s_waitcnt vmcnt({len(ops) - nst})")
            A("s_barrier")
            only_wave3(A, lambda: own_flag(A, FLG_4))
    for x in late: emit(x)
    stamp(A, "g1 mfma")
    scheck(1)
    for x in spread(1): A(x)
    for st in range(2, 4):
        for x in silu_ops(ACC1 + 16 * st, VRS + 2 * st, VRS + 2 * st + 1, TMP, OUT + 8 * (st & 1), True): A(x)
        if st == 3: A(f"buffer_load_dword v12, v14, {s(SRD_WS,4)}, s{T+8} offen sc1")
        for x in hstore(st, OUT + 8 * (st & 1)): A(x)
    stamp(A, "H stored")
    A("s_branch L_g1done")
    stub(A)
    A("L_stat:")
    del _stamps[-7:]
    for n in range(5):
        for x in chunk(n, WS_X1): A(x)
    tr_addr16(A, 12, 5)
    A(f"s_lshl_b32 s{T+14}, s{S_WAVE}, 5")
    A(f"v_xor_b32 v12, s{T+14}, v12")
    ONES, GR, SM = 36, ACC1, ACC1 + 4
    for i in range(4): A(f"v_mov_b32 v{ONES+i}, s{S_ONES}")
    for c in range(4):
        A(f"s_waitcnt vmcnt({6 if c == 0 else 4 * (3 - c)})")
        A("s_barrier")
        if c == 0:
            stamp(A, "ckpt0")
            for n in range(5, 8):
                for x in chunk(n, WS_X1): A(x)
        for e in range(4 * c, 4 * c + 4):
            for h in range(2):
                A(f"ds_read_b64_tr_b16 {v(XF+4*(e%4)+2*h,2)}, v12 offset:{4096*e+512*h}")
        for e in range(4 * c, 4 * c + 4):
            f = v(XF + 4 * (e % 4), 4)
            A(f"v_mfma_f32_16x16x32_bf16 {v(GR,4)}, {f}, {f}, {'0' if e == 0 else v(GR,4)}")
            A(f"v_mfma_f32_16x16x32_bf16 {v(SM,4)}, {v(ONES,4)}, {f}, {'0' if e == 0 else v(SM,4)}")
    stamp(A, "half1")
    for e in ("stats0", "burst0", "B16"): stamp(A, e)
    for r, m in ((1, "0x22222222"), (2, "0x44444444"), (3, "0x88888888")):
        A(f"s_mov_b32 vcc_lo, {m}")
        A(f"s_mov_b32 vcc_hi, {m}")
        A(f"v_cndmask_b32 v{GR}, v{GR}, v{GR+r}, vcc")
    ln_finish(A, [(SM, GR, GR + 8, GR + 10)], GR + 1, hex(NLOG2E))
    A(f"v_mov_b32 v{GR+9}, 1")
    A(f"v_mov_b32 v{GR+11}, 1")
    A(f"v_and_b32 v5, 15, v{L}")
    A(f"v_lshlrev_b32 v5, 4, v5")
    A(f"s_and_b32 s{T+13}, s{S_C}, 1")
    A(f"s_lshl_b32 s{T+13}, s{T+13}, 10")
    A(f"s_lshl_b32 s{T+14}, s{S_WAVE}, 8")
    A(f"s_add_u32 s{T+13}, s{T+13}, s{T+14}")
    A(f"s_add_u32 s{T+13}, s{T+13}, s{T+7}")
    A(f"s_mov_b32 exec_lo, 0x00f0000f")
    A(f"s_mov_b32 exec_hi, 0xf0000f00")
    A(f"buffer_store_dwordx4 {v(GR+8,4)}, v5, {s(SRD_WS,4)}, s{T+13} offen sc1")
    A("s_mov_b64 exec, -1")
    stamp(A, "g1 mfma")
    for x in xres: A(x)
    only_wave3(A, w3w2)
    A("s_waitcnt vmcnt(0)")
    A("s_barrier")
    w2_addr(A, f"s{S_PM}")
    for x in grp(E) + grp(E + 1) + xr: A(x)
    if E < 4:
        A("s_waitcnt vmcnt(0)")
        for x in w2_read(E, 0) + w2_read(E + 1, 8192): A(x)
        A("s_waitcnt lgkmcnt(0)")
        for x in grp(E + 2) + grp(E + 3): A(x)
    if O.stq:
        A("v_mov_b32 v12, 0")
        recheck(A, [f"v_cmp_ne_u32 vcc, 1, v12"], [f"s_sleep {O.stq & 127}", f"buffer_load_dword v12, v14, {s(SRD_WS,4)}, s{T+8+(O.stq>>7)} offen sc1"])
    A(f"buffer_load_dword v12, v14, {s(SRD_WS,4)}, s{T+8} offen sc1")
    A("s_waitcnt vmcnt(0)")
    stamp(A, "H stored")
    stub(A, "L_g1done")
    A("L_g1done:")

def gemm2(A):
    L = V_LANE
    ACC = 32; HF = 96; NB = 32
    fl = lambda r, sr: f"buffer_load_dword v{r}, v14, {s(SRD_WS,4)}, s{sr} offen sc1"
    w2_addr(A, f"s{S_PM}")
    A(f"v_lshrrev_b32 v5, 5, v{L}")
    A(f"v_lshlrev_b32 v5, 4, v5")
    A(f"s_lshl_b32 s{T+1}, s{S_WAVE}, 6")
    A(f"s_add_u32 s{T+1}, s{T+1}, {LDS_GB}")
    A(f"v_add_u32 v5, s{T+1}, v5")
    A(f"s_mov_b32 s{T}, s{S_RT}")
    A(f"s_mul_i32 s{T+2}, s{T}, {112*1024}")
    A(f"v_lshlrev_b32 v6, 4, v{L}")
    A(f"v_add_u32 v3, s{T+2}, v6")
    A(f"v_add_u32 v4, {2*112*1024}, v3")
    A(f"s_mul_i32 s{T+4}, s{S_WAVE}, {28*1024}")
    A(f"s_add_u32 s{T+4}, s{T+4}, {WS_H}")
    A(f"s_add_u32 s{T+5}, s{T+4}, {28*1024}")
    A(f"s_lshl_b32 s{T+2}, s{S_PE}, 12")
    A(f"s_add_u32 s{T+2}, s{T+2}, s{T+4}")
    A("s_waitcnt vmcnt(5)")
    for gi in range(2):
        for x in w2_read((4 if O.w2e else 2) + gi, 8192 * gi): A(x)
    def hload(n):
        st, e = divmod(n, 28)
        Ls = [f"buffer_load_dwordx4 {v(HF+4*(n%NB),4)}, v{3+st}, {s(SRD_WS,4)}, s{T+2} offen offset:{1024*(e&3)} {['sc1', 'sc0 sc1', 'sc1 nt'][O.hl]}"]
        if e % 4 == 3:
            Ls += [f"s_add_u32 s{T+2}, s{T+2}, 4096", f"s_cmp_eq_u32 s{T+2}, s{T+5}", f"s_cselect_b32 s{T+2}, s{T+4}, s{T+2}"]
        return Ls
    def first():
        recheck(A, [f"v_cmp_ne_u32 vcc, 1, v12"], [fl(12, T + 8)])
        stamp(A, "F0 seen")
        for n in range(O.hp0):
            for x in hload(n): A(x)
    if O.early0: first()
    A(f"s_waitcnt vmcnt({O.hp0 if O.early0 else 0})")
    A("s_barrier")
    stamp(A, "H acked")
    def f1():
        A(f"s_cmp_ge_u32 s{S_C}, 14")
        A(f"s_cbranch_scc1 L_nof1")
        own_flag(A, FLG_3)
        A("L_nof1:")
    only_wave3(A, f1)
    if not O.early0: first()
    for n in range(O.hp0, O.hpre):
        for x in hload(n): A(x)
        if n == O.f1pos and O.hpre > O.f1pos: A(fl(13, T + 9))
    if O.w2e == 0:
        for x in w2_group(4, f"s{S_PM}", 65536) + w2_group(5, f"s{S_PM}", 65536 + 8192) + ["s_waitcnt lgkmcnt(0)"] + w2_group(6, f"s{S_PM}", 0): A(x)
    elif not O.g6late:
        for x in w2_group(6, f"s{S_PM}", 65536): A(x)
    for k in range(2):
        A(f"ds_read_b128 {v(16+4*k,4)}, v5 offset:{32*k}")
    A(f"v_add_u32 v7, s{S_PM}, v6")
    for k in range(1, 4):
        A(f"s_xor_b32 s{T+6}, s{S_WAVE}, {k}")
        A(f"s_lshl_b32 s{T+6}, s{T+6}, 14")
        A(f"v_add_u32 v{8+k}, s{T+6}, v6")
    A(f"v_and_b32 v8, 31, v{L}")
    A(f"v_lshlrev_b32 v8, 10, v8")
    A(f"v_lshrrev_b32 v5, 5, v{L}")
    A(f"v_lshl_add_u32 v8, v5, 4, v8")
    A(f"s_lshl_b32 s{T+7}, s{T}, 15")
    A(f"s_lshl_b32 s{T+6}, s{S_J}, 7")
    A(f"s_add_u32 s{T+7}, s{T+7}, s{T+6}")
    A(f"s_lshl_b32 s{T+6}, s{S_WAVE}, 5")
    A(f"s_add_u32 s{T+7}, s{T+7}, s{T+6}")
    A(f"s_add_u32 s{T+6}, s{T+7}, {2*32768}")
    def red_write(st):
        return [f"ds_write_b128 v7, {v(ACC+32*(k>>1)+16*st+8*(k&1)+4*q,4)} offset:{6144*st+2048*(k-1)+1024*q}" for k in range(1, 4) for q in range(2)]
    def red_finish(st, PP, packed):
        P = PP[0]
        own = ACC + 16 * st
        Ls = [f"ds_read_b128 {v(PP[k]+4*q,4)}, v{9+k} offset:{6144*st+2048*k+1024*q}" for k in range(3) for q in range(2)]
        for k in range(4):
            Ls += [f"v_lshlrev_b32 v{24+2*k}, 16, v{VXR+4*st+k}", f"v_and_b32 v{25+2*k}, 0xffff0000, v{VXR+4*st+k}"]
        if packed:
            Ls += [f"v_pk_add_f32 {v(own+r,2)}, {v(own+r,2)}, {v(PP[k]+r,2)}" for k in range(3) for r in range(0, 8, 2)]
            Ls += [f"v_pk_fma_f32 {v(own+r,2)}, {v(own+r,2)}, {v(16+r,2)}, {v(24+r,2)}" for r in range(0, 8, 2)]
        else:
            Ls += [f"v_add_f32 v{own+r}, v{own+r}, v{PP[k]+r}" for k in range(3) for r in range(8)]
            Ls += [f"v_fma_f32 v{own+r}, v{own+r}, v{16+r}, v{24+r}" for r in range(8)]
        if O.err:
            import struct
            Ls += [f"v_mul_f32 v{own+r}, {hex(struct.unpack('<I', struct.pack('<f', 1 + O.err / 1000))[0])}, v{own+r}" for r in range(8)]
        Ls += [f"v_cvt_pk_bf16_f32 v{P+r//2}, v{own+r}, v{own+r+1}" for r in range(0, 8, 2)]
        Ls += [f"v_permlane32_swap_b32 v{P}, v{P+2}", f"v_permlane32_swap_b32 v{P+1}, v{P+3}"]
        Ls += [f"buffer_store_dwordx4 {v(P,4)}, v8, {s(SRD_OUT,4)}, s{T+7-st} offen{['', ' sc1', ' nt', ' sc0 sc1', ' sc1 nt'][(O.om >> (4 * st)) & 15]}"]
        return Ls
    shadow = []
    nxt = O.hpre
    mark = len(A.items)
    for n in range(56):
        st, e = divmod(n, 28)
        for u in range(2):
            acc = ACC + 32 * u + 16 * st
            A(f"v_mfma_f32_32x32x16_bf16 {v(acc,16)}, {a(w2frag(u,e),4)}, {v(HF+4*(n%NB),4)}, {'0' if e == 0 else v(acc,16)}")
            if n == O.f1pos - 1 and u == 1:
                recheck(A, [f"v_cmp_ne_u32 vcc, 1, v13"], [fl(13, T + 9)])
                stamp(A, "F1 seen")
            open_ = (n, u) >= (O.f1pos - 1, 1)
            for _ in range(2 if open_ else 1):
                if nxt < (56 if open_ else 28) and nxt < n + NB and nxt - n < O.hmax and (u == 0 or n % 2 == 0 or open_):
                    for x in hload(nxt): A(x)
                    nxt += 1
                    if nxt == O.f1pos + 1: A(fl(13, T + 9))
            for _ in range(2):
                if shadow: A(shadow.pop(0))
        if O.g6late and n == O.g6late:
            for x in w2_group(6, f"s{S_PM}", 65536): A(x)
            mark = len(A.items)
        if n in (0, 6, 12): stamp(A, f"n{n}")
        if n == 29: shadow = red_write(0)
        if n == O.red0:
            A("s_waitcnt lgkmcnt(0)")
            A("s_barrier")
            shadow = red_finish(0, [ACC + 8, ACC + 32, ACC + 40], False)
        if n == O.g6at:
            A(f"s_waitcnt vmcnt({sum('buffer_load' in y[1].text for y in A.items[mark:] if y[0] == 'i' and 'rc' not in y[1].text)})")
            if O.w2e == 0:
                for x in w2_read(6, 0): A(x)
            for k in range(4): A(f"v_add_u32 v{VW2H+k}, 0x10000, v{VW2H+k}")
            for x in (w2_read(4, 0) + w2_read(5, 8192) if O.w2e == 0 else w2_read(6, 0)): A(x)
    stamp(A, "g2 mfma")
    for x in shadow + red_write(1): A(x)
    A("s_waitcnt lgkmcnt(0)")
    A("s_barrier")
    for x in red_finish(1, [HF, HF + 8, HF + 16], True): A(x)
    stamp(A, "end")
    stamp_flush(A, 2)

HEADER = open("cdna_kernels/" + NAME + ".s.ref").read().split("; Override launch")[0]

def build():
    A = Asm()
    name = NAME + "_kernel"
    A('.amdgcn_target "amdgcn-amd-amdhsa--gfx950"')
    A(".text"); A(f".globl {name}"); A(".p2align 8"); A(f".type {name},@function"); A(f"{name}:")
    prologue(A)
    phase0(A)
    conv(A)
    window3(A)
    gemm1(A)
    gemm2(A)
    A("L_end:")
    A("s_endpgm")
    k = A.items.index(("d", ".warmup"))
    W = Asm()
    if O.warm:
        for w in range(4):
            W(f"s_cmp_eq_u32 s{S_WAVE}, {w}")
            W(f"s_cbranch_scc0 L_wu{w}")
            for n in STUBS[w::4]: W(f"s_call_b64 s[74:75], {n}")
            W(f"L_wu{w}:")
    A.items[k:k+1] = W.items
    A.autowait()
    A.pad()
    out = HEADER + f"; @launch grid=(256,1,1) block=(256,1,1) lds={LDS_TOTAL}\n" + A.text()
    out += f""".section .rodata,"a"
.p2align 6
.amdhsa_kernel {name}
  .amdhsa_next_free_vgpr 512
  .amdhsa_next_free_sgpr 102
  .amdhsa_accum_offset 256
  .amdhsa_group_segment_fixed_size 0
  .amdhsa_kernarg_size 112
  .amdhsa_user_sgpr_count 2
  .amdhsa_user_sgpr_kernarg_segment_ptr 1
  .amdhsa_system_sgpr_workgroup_id_x 1
  .amdhsa_float_denorm_mode_32 3
.end_amdhsa_kernel
"""
    return out

if __name__ == "__main__":
    path = sys.argv[1]
    O.prof = "--prof" in sys.argv
    O.cyc = "--cyc" in sys.argv
    for x in sys.argv[2:]:
        if "=" in x:
            k_, v_ = x.split("="); setattr(O, k_, int(v_))
    open(path, "w").write(build())
    if O.prof:
        import json; json.dump(STAMPS, open(path + ".stamps.json", "w"))
    print("wrote", path)
```

```python
import sys
sys.path.insert(0, "dev")
from asmlib import Asm, v, a, s

NAME = "adaLN_cond__ssm_conv_h3__dense_activation_silu__prompt"
STAGE = 4
REC_LAYOUT = 2
H_SCALE = -0.6931471805599453

WS_REC = 0
WS_X1 = 4 << 20
WS_X1C = 6 << 20
WS_H = 8 << 20
WS_STAT = 16 << 20
WS_MODP = (16 << 20) + 65536
WS_SYNC = 17 << 20
WS_PROF = (17 << 20) + (512 << 10)
WS_SIZE = 18 << 20
FLG_A, EPOCH, CNT_2, FLG_2, FLG_3 = 0, 2, 16, 32, 128
FLG_4 = 1280
WS_ST2 = (16 << 20) + (128 << 10)
LF_A, LF_2, LF_B = 512, 768, 1024

S_WG = 2; S_WAVE = 3
SRD_Q, SRD_K, SRD_V, SRD_SSMK, SRD_W1, SRD_W2, SRD_WMOD, SRD_OUT, SRD_WS, SRD_SHK, SRD_C, SRD_SSMD = [4 + 4 * i for i in range(12)]
S_DBG = 52
T = 54
S_PI, S_PM, S_PS, S_PE = 88, 89, 90, 91
S_RB, S_J, S_ROT, S_CH, S_CARRY, S_SPIN = 92, 93, 94, 95, 96, 97
S_TMP = 98
S_SIG = 87
S_C = 88
S_RT = 0
S_TAG = 84
S_PO = 86
S_SELLO, S_SELHI, S_ONES = 99, 100, 101

KARG = {SRD_Q: (0, 2097152), SRD_K: (8, 2097152), SRD_V: (16, 2097152), SRD_SHK: (24, 4096), SRD_SSMK: (32, 2097152),
        SRD_SSMD: (40, 1024), SRD_W1: (56, 512 * 1792 * 2), SRD_W2: (64, 512 * 1792 * 2), SRD_C: (72, 1024),
        SRD_WMOD: (80, 512 * 3072 * 2), SRD_OUT: (88, 2097152), SRD_WS: (104, WS_SIZE)}
NLOG2E = 0xbfb8aa3b

LDS_XC = 0
LDS_X1 = 65536
LDS_GM = 98304
LDS_SC = 114688
LDS_REC = 98304
LDS_KC = 131072
LDS_CARRY = 153216
LDS_MODV = 147968
LDS_CS = 150144
LDS_ST2 = 152192
LDS_GB = 152960
LDS_STA = 116736
LDS_STB = 157440
LDS_XR = 131072
LDS_RED = 0
LDS_TOTAL = 163840

V_LANE = 2
VW1 = 238
VW3 = 236
VW2H = 232
VW2 = 244
VW2S = 228

class Opt:
    prof = False; cyc = False
    w1_depth = 8
    wpf = 1; xpre = 2; hpre = 12; f1pos = 18; sck = 8; f0at = 20; r2same = 1; post = 1; mvearly = 1; poll2 = 0; hp0 = 4; fine = 0; om = 0; g6late = 0; jit = 0; err = 0; dbgC = 0; fs = 18; pa = 1; pa0 = 1; sw = 4; pb = 1; hs = 0; hl = 0; epv = 0; lite = 0; kcm = 1; w3d = 0; stq = 8; rs = 1; w3split = 0; isleep2 = 0; tlb = 0; bthr = 48; ovl = 0; red0 = 33; bsleep = 16; isleep = 20; sigfirst = 0; eplate = 1; stsw = 1; w2e = 4; w2w1 = 0; rd01 = 24; dbgB = 0; look = 3; wmerge = 1; prog = 1; early0 = 1; w2te = 0; w1t = 0; g6at = 7; hmax = 24; recperm = 1; kc_late = 1; sleep = 1
    conv_groups = 4; w3_depth = 10; tailg = 2; cs_early = 1; n_w1 = 3; w5 = 1; lfa = 1; lf2 = 1; kc_early = 0; n_rd = 2; poller2 = 3; map84 = 0; touch = 0; cpf = 3; warm = 0; w2t = 1; outsc = 0; w2l2 = 1; g01late = 0; pp = 0; bsplit = 0; t3 = 0; xpre2 = 3; fb = 28; w2side = 4; tg = 1
O = Opt()

_uid = [0]
def uid():
    _uid[0] += 1; return _uid[0]
_stamps = []
STAMPS = {}
def stamp(A, name):
    jitter(A)
    if not O.prof: return
    if O.lite:
        if name == "issued": A("s_waitcnt lgkmcnt(0)"); A(f"v_writelane_b32 v250, s76, 0")
        if name == "end":
            A("s_memrealtime s[74:75]"); A("s_waitcnt lgkmcnt(0)"); A(f"v_writelane_b32 v250, s74, 1")
        return
    n = len(_stamps); _stamps.append(name)
    A(f"s_memtime s[74:75]" if O.cyc else f"s_memrealtime s[74:75]")
    A("s_waitcnt lgkmcnt(0)")
    if n == 1: A(f"v_writelane_b32 v250, s76, 0")
    A(f"v_writelane_b32 v250, s74, {n}")
def stamp_flush(A, kidx):
    if not O.prof or kidx != 2: return
    A(f"s_lshl_b32 s74, s{S_WG}, 2")
    A(f"s_add_u32 s74, s74, s{S_WAVE}")
    A(f"s_lshl_b32 s74, s74, 8")
    A(f"s_add_u32 s74, s74, {WS_PROF}")
    A(f"v_lshlrev_b32 v254, 2, v{V_LANE}")
    A(f"buffer_store_dword v250, v254, {s(SRD_WS,4)}, s74 offen")
    STAMPS[0] = list(_stamps)

_jn = [0]
def jitter(A):
    if not O.jit: return
    _jn[0] += 1
    u = uid()
    A(f"s_lshl_b32 s74, s{S_WG}, 2")
    A(f"s_add_u32 s74, s74, s{S_WAVE}")
    A(f"s_mul_i32 s74, s74, {(2654435761 * (O.jit + 7 * _jn[0])) & 0x7fffffff | 1}")
    A(f"s_lshr_b32 s74, s74, 27")
    A(f"s_cmp_gt_u32 s74, 7")
    A(f"s_cselect_b32 s74, 0, s74")
    A(f"L_j{u}:")
    A(f"s_cmp_eq_u32 s74, 0")
    A(f"s_cbranch_scc1 L_jx{u}")
    A(f"s_sleep 40")
    A(f"s_sub_u32 s74, s74, 1")
    A(f"s_branch L_j{u}")
    A(f"L_jx{u}:")

def dma_voff(A, d0, d1, rowstride, tmp):
    A(f"v_lshrrev_b32 v{tmp}, 3, v{V_LANE}")
    A(f"v_and_b32 v{d1}, 2, v{tmp}")
    A(f"v_lshlrev_b32 v{d1}, 5, v{d1}")
    A(f"v_and_b32 v{d0}, 7, v{V_LANE}")
    A(f"v_lshlrev_b32 v{d0}, 4, v{d0}")
    A(f"v_xor_b32 v{d0}, v{d0}, v{d1}")
    A(f"v_mul_u32_u24 v{tmp}, {rowstride}, v{tmp}")
    A(f"v_add_u32 v{d0}, v{d0}, v{tmp}")
    A(f"v_xor_b32 v{d1}, 32, v{d0}")

def tr_addr32(A, d, tmp, rowmul):
    L = V_LANE
    A(f"v_lshrrev_b32 v{tmp}, 5, v{L}")
    A(f"v_bfe_u32 v{tmp+1}, v{L}, 2, 2")
    A(f"v_lshl_add_u32 v{d}, v{tmp}, {3 if rowmul == 8 else 2}, v{tmp+1}")
    A(f"v_lshlrev_b32 v{d}, 7, v{d}")
    A(f"v_and_b32 v{tmp+1}, 2, v{tmp+1}")
    if rowmul == 8: A(f"v_or_b32 v{tmp+1}, v{tmp+1}, v{tmp}")
    A(f"v_bfe_u32 v{tmp}, v{L}, 4, 1")
    A(f"v_xor_b32 v{tmp+1}, v{tmp+1}, v{tmp}")
    A(f"v_lshl_add_u32 v{d}, v{tmp+1}, 5, v{d}")
    A(f"v_and_b32 v{tmp}, 3, v{L}")
    A(f"v_lshl_add_u32 v{d}, v{tmp}, 3, v{d}")

def tr_addr16(A, d, tmp):
    L = V_LANE
    A(f"v_lshrrev_b32 v{tmp}, 4, v{L}")
    A(f"v_bfe_u32 v{tmp+1}, v{L}, 2, 2")
    A(f"v_lshl_add_u32 v{d}, v{tmp}, 3, v{tmp+1}")
    A(f"v_lshlrev_b32 v{d}, 7, v{d}")
    A(f"v_and_b32 v{tmp+1}, 2, v{tmp+1}")
    A(f"v_and_b32 v{tmp}, 1, v{tmp}")
    A(f"v_or_b32 v{tmp+1}, v{tmp+1}, v{tmp}")
    A(f"v_lshl_add_u32 v{d}, v{tmp+1}, 5, v{d}")
    A(f"v_and_b32 v{tmp}, 3, v{L}")
    A(f"v_lshl_add_u32 v{d}, v{tmp}, 3, v{d}")

def ln_finish(A, rows, tmp, scale=None):
    steps = [
        lambda su, sq, o1, o2, t: [f"v_mul_f32 v{su}, 0x3b000000, v{su}", f"v_mul_f32 v{sq}, 0x3b000000, v{sq}"],
        lambda su, sq, o1, o2, t: [f"v_fma_f32 v{sq}, -v{su}, v{su}, v{sq}"],
        lambda su, sq, o1, o2, t: [f"v_max_f32 v{sq}, 0, v{sq}"],
        lambda su, sq, o1, o2, t: [f"v_cvt_pk_bf16_f32 v{t}, v{su}, v{sq}"],
        lambda su, sq, o1, o2, t: [f"v_lshlrev_b32 v{su}, 16, v{t}", f"v_and_b32 v{sq}, 0xffff0000, v{t}"],
        lambda su, sq, o1, o2, t: [f"v_add_f32 v{sq}, 0x3727c5ac, v{sq}"],
        lambda su, sq, o1, o2, t: [f"v_cvt_pk_bf16_f32 v{sq}, v{sq}, v{sq}"],
        lambda su, sq, o1, o2, t: [f"v_lshlrev_b32 v{sq}, 16, v{sq}"],
        lambda su, sq, o1, o2, t: [f"v_sqrt_f32 v{sq}, v{sq}"],
        lambda su, sq, o1, o2, t: [f"v_cvt_pk_bf16_f32 v{sq}, v{sq}, v{sq}"],
        lambda su, sq, o1, o2, t: [f"v_lshlrev_b32 v{sq}, 16, v{sq}"],
        lambda su, sq, o1, o2, t: [f"v_rcp_f32 v{o1}, v{sq}"],
        lambda su, sq, o1, o2, t: [f"v_mul_f32 v{o1}, {scale}, v{o1}"] if scale else [],
        lambda su, sq, o1, o2, t: [f"v_mul_f32 v{o2}, -v{su}, v{o1}"],
    ]
    for st in steps:
        for i, r in enumerate(rows):
            for x in st(*r, tmp + i): A(x)


def signal_issue(A, cnt):
    A(f"s_and_b32 s{S_SIG}, s{S_WG}, 15")
    A(f"s_lshl_b32 s{S_SIG}, s{S_SIG}, 7")
    A(f"s_add_u32 s{S_SIG}, s{S_SIG}, {WS_SYNC}")
    A("s_mov_b64 exec, 1")
    A(f"v_mov_b32 v252, {128*cnt}")
    A(f"v_mov_b32 v253, 1")
    A(f"buffer_atomic_add v253, v252, {s(SRD_WS,4)}, s{S_SIG} offen sc0 sc1")
    A("s_mov_b64 exec, -1")

def signal_finish(A, flag):
    u = uid()
    A("s_mov_b64 exec, 1")
    A(f"v_cmp_eq_u32 vcc, 15, v253")
    A(f"v_mov_b32 v252, {128*flag}")
    A(f"v_mov_b32 v253, 1")
    A(f"s_cbranch_vccz L_sig{u}")
    A(f"buffer_store_dword v253, v252, {s(SRD_WS,4)}, s{S_SIG} offen sc1")
    A(f"L_sig{u}:")
    A("s_mov_b64 exec, -1")

def poll(A, nlanes, stride, base, want=1):
    u = uid()
    A(f"s_mov_b64 exec, {hex((1 << nlanes) - 1)}")
    if stride: A(f"v_mul_u32_u24 v252, {stride}, v{V_LANE}")
    A(f"s_mov_b32 s{S_TMP}, {base}")
    A(f"s_mov_b32 s{S_SPIN}, 0x80000")
    ld = lambda r: A(f"buffer_load_dword v{r}, v252, {s(SRD_WS,4)}, s{S_TMP} offen sc1 ; nowait")
    if O.pp: ld(253)
    A(f"L_poll{u}:")
    if O.pp:
        for k in range(2):
            A(f"s_sleep {O.sleep+1}")
            ld(254 - k)
            A("s_waitcnt vmcnt(1)")
            A(f"v_cmp_ne_u32 vcc, {want}, v{253+k}")
            A(f"s_cbranch_vccz L_pollx{u}")
    else:
        ld(253)
        A("s_waitcnt vmcnt(0)")
        A(f"v_cmp_ne_u32 vcc, {want}, v253")
        A(f"s_cbranch_vccz L_pollx{u}")
        A(f"s_sleep {O.sleep}")
    A(f"s_sub_u32 s{S_SPIN}, s{S_SPIN}, 1")
    A(f"s_cbranch_scc0 L_poll{u}")
    A(f"L_pollx{u}:")
    A("s_mov_b64 exec, -1")

def lf_signal(A, base):
    A(f"s_lshl_b32 s{S_TMP}, s{S_WG}, 7")
    A(f"s_add_u32 s{S_TMP}, s{S_TMP}, {WS_SYNC + 128*base}")
    A("s_mov_b64 exec, 1")
    A(f"v_mov_b32 v252, 0")
    A(f"v_mov_b32 v254, s{S_TAG}")
    A(f"v_mov_b32 v255, s{S_TAG+1}")
    A(f"buffer_store_dwordx2 v[254:255], v252, {s(SRD_WS,4)}, s{S_TMP} offen sc1")
    A("s_mov_b64 exec, -1")

def lf_poll(A, base, tmpv, first=0):
    u = uid(); M = 76
    A(f"v_lshlrev_b32 v{tmpv+16}, 7, v{V_LANE}")
    for i in range(4):
        A(f"s_mov_b64 {s(M+2*i,2)}, -1")
        if i: A(f"v_add_u32 v{tmpv+16+i}, {8192*i}, v{tmpv+16}")
    A(f"s_mov_b32 s{S_TMP}, {WS_SYNC + 128*base}")
    A(f"s_mov_b32 s{S_SPIN}, 0x40000")
    if first: A(f"s_sleep {first}")
    def issue(k):
        for i in range(4):
            A(f"s_or_b64 exec, {s(M+2*i,2)}, 1")
            A(f"buffer_load_dwordx2 {v(tmpv+8*k+2*i,2)}, v{tmpv+16+i}, {s(SRD_WS,4)}, s{S_TMP} offen sc1 ; nowait")
    def check(k):
        for i in range(4):
            A(f"s_mov_b64 exec, {s(M+2*i,2)}")
            A(f"v_cmp_ne_u64 {s(M+2*i,2)}, {s(S_TAG,2)}, {v(tmpv+8*k+2*i,2)}")
        A(f"s_or_b64 vcc, {s(M,2)}, {s(M+2,2)}")
        A(f"s_or_b64 vcc, vcc, {s(M+4,2)}")
        A(f"s_or_b64 vcc, vcc, {s(M+6,2)}")
        A(f"s_cbranch_scc0 L_lfx{u}")
    if O.pp:
        issue(0)
        A(f"L_lf{u}:")
        for k in range(2):
            A(f"s_sleep {O.sleep}")
            issue(1 - k)
            A("s_waitcnt vmcnt(4)")
            check(k)
    else:
        A(f"L_lf{u}:")
        issue(0)
        A("s_waitcnt vmcnt(0)")
        check(0)
        A(f"s_bcnt1_i32_b64 s{S_PO}, vcc")
        A(f"s_cmp_gt_u32 s{S_PO}, {O.bthr}")
        A(f"s_cbranch_scc0 L_lfs{u}")
        A(f"s_sleep {O.bsleep}")
        A(f"L_lfs{u}:")
        A(f"s_sleep {O.sleep}")
    A(f"s_sub_u32 s{S_SPIN}, s{S_SPIN}, 1")
    A(f"s_cbranch_scc0 L_lf{u}")
    A(f"L_lfx{u}:")
    A("s_mov_b64 exec, -1")

STUBS = []
def stub(A, jump=None):
    if not O.warm: return
    if jump: A(f"s_branch {jump}")
    n = f"L_stub{len(STUBS)}"
    STUBS.append(n)
    A(f"{n}:")
    A("s_setpc_b64 s[74:75]")

def only_wave3(A, body):
    u = uid()
    A(f"s_cmp_eq_u32 s{S_WAVE}, 3")
    A(f"s_cbranch_scc0 L_w3_{u}")
    body()
    A(f"L_w3_{u}:")

def split_wave3(A, others, w3):
    u = uid()
    A(f"s_cmp_eq_u32 s{S_WAVE}, 3")
    A(f"s_cbranch_scc1 L_s3a_{u}")
    others()
    A(f"s_branch L_s3b_{u}")
    stub(A)
    A(f"L_s3a_{u}:")
    w3()
    stub(A, f"L_s3b_{u}")
    A(f"L_s3b_{u}:")

def pieces8(vbase, srd, step4, depth=0):
    L = []
    for p in range(8):
        if p == 4: L += [f"s_add_u32 m0, m0, 4096", f"s_add_u32 s{S_PO}, s{S_PO}, {step4}"]
        L.append(f"buffer_load_dwordx4 v{vbase+(p&3)}, {s(srd,4)}, s{S_PO} offen offset:{1024*(p&3)} lds")
        if depth: L.append(f"s_waitcnt vmcnt({depth-1})")
    return L

def w1_group(gi, tile, ldsbase, tmp, depth=0):
    L = [f"s_add_u32 s{S_TMP}, s{S_ROT}, {gi}",
         f"s_lshl_b32 m0, {gi}, 13",
         f"s_bitcmp1_b32 s{S_TMP}, 2",
         f"s_cselect_b64 vcc, -1, 0",
         f"s_add_u32 m0, m0, {ldsbase}",
         f"s_and_b32 s{S_TMP}, s{S_TMP}, 3",
         f"v_cndmask_b32 v245, v{VW3}, v{VW3+1}, vcc"]
    L += [f"v_add_u32 v{tmp+k}, v245, v{VW1+k}" for k in range(4)]
    L += [f"s_mul_i32 s{S_PO}, s{S_TMP}, {64*3584}",
          f"s_lshl_b32 s{S_TMP}, s{S_C}, 8",
          f"s_add_u32 s{S_PO}, s{S_PO}, s{S_TMP}",
          f"s_lshl_b32 s{S_TMP}, {tile}, 6",
          f"s_add_u32 s{S_PO}, s{S_PO}, s{S_TMP}"]
    return L + pieces8(tmp, SRD_W1, 32 * 3584, depth)

def loop(A, body, n):
    u = uid()
    A(f"s_mov_b32 s{S_SPIN}, {n}")
    A(f"L_lp{u}:")
    for x in body: A(x)
    A(f"s_sub_u32 s{S_SPIN}, s{S_SPIN}, 1")
    A(f"s_cmp_lg_u32 s{S_SPIN}, 0")
    A(f"s_cbranch_scc1 L_lp{u}")

def w1_read(gi):
    return [f"ds_read_b64_tr_b16 {a((16*t+4*gi+e)*4+2*h,2)}, v{242+t} offset:{8192*gi+2048*e+512*h}" for e in range(4) for t in range(2) for h in range(2)]

LDS_ST1 = 114944
def prologue(A):
    VK, VV, VQ, VSH, VST, VC = 10, 28, 36, 44, 48, 56
    L = V_LANE
    A(f"s_cmp_ge_u32 s{S_WG}, 256")
    A(f"s_cbranch_scc1 L_end")
    if O.prof:
        A("s_memtime s[76:77]" if O.cyc else "s_memrealtime s[76:77]")
        _stamps.append("start")
    first = [SRD_Q, SRD_C, SRD_K, SRD_V, SRD_SHK, SRD_WS]
    rest = [SRD_WMOD, SRD_SSMK, SRD_SSMD, SRD_W1, SRD_W2, SRD_OUT]
    for r in first:
        A(f"s_load_dwordx2 {s(r,2)}, s[0:1], {KARG[r][0]}")
    if O.cpf >= 3:
        A("; pull this kernel's code into the L2: wave 0 a slice chosen by the workgroup, wave 1 the first slice")
        A(f"s_getpc_b64 s[{T+16}:{T+17}]")
        A("L_pc:")
        A(f"s_bfe_u32 s{T+11}, s{S_WG}, 0x30003")
        A(f"s_lshl_b32 s{T+11}, s{T+11}, 13")
        A(f"v_and_b32 v254, 63, v0")
        A(f"v_lshlrev_b32 v254, 7, v254")
        A(f"v_add_u32 v255, s{T+11}, v254")
        A(f"v_cmp_gt_u32 vcc, 64, v0")
        A(f"v_cndmask_b32 v254, v254, v255, vcc")
        A(f"v_min_u32 v254, L_end-L_pc, v254")
        A(f"v_cmp_gt_u32 vcc, {64 if O.cpf == 3 else (128 if O.cpf == 4 else 96)}, v0")
        A(f"s_and_saveexec_b64 s[{T+12}:{T+13}], vcc")
        A(f"s_cbranch_execz L_nopf")
        A(f"global_load_dword v255, v254, s[{T+16}:{T+17}] ; nowait")
        A("L_nopf:")
        A("s_mov_b64 exec, -1")
    A(f"v_lshrrev_b32 v1, 6, v0")
    A(f"v_and_b32 v{L}, 63, v0")
    A(f"v_readfirstlane_b32 s{S_WAVE}, v1")
    for r in first:
        A(f"s_mov_b32 s{r+2}, {KARG[r][1]}")
        A(f"s_mov_b32 s{r+3}, 0x20000")
    A(f"s_lshr_b32 s{T}, s{S_WG}, 1")
    A(f"s_and_b32 s{T+1}, s{S_WG}, 1")
    A(f"s_lshl_b32 s{T+1}, s{T+1}, 2")
    A(f"s_add_u32 s{T+1}, s{T+1}, s{S_WAVE}")
    A(f"s_lshl_b32 s{T+1}, s{T+1}, 5")
    A(f"v_and_b32 v3, 31, v0")
    A(f"v_add_u32 v5, s{T+1}, v3")
    A(f"v_bfe_u32 v4, v0, 5, 1")
    A(f"v_lshlrev_b32 v6, 2, v5")
    A(f"v_lshl_add_u32 v6, v4, 10, v6")
    A(f"s_lshl_b32 s{T+2}, s{T}, 14")
    for k in range(1, 4):
        A(f"s_add_u32 s{T+2+k}, s{T+2}, {4096*k}")
    A(f"s_sub_u32 s{T+6}, s{T+2}, 3072")
    A(f"v_add_u32 v8, s{T+6}, v6")
    A(f"v_add_u32 v9, 1024, v8")
    A(f"v_add_u32 v57, 2048, v8")
    A(f"v_lshlrev_b32 v7, 4, v5")
    A(f"s_lshl_b32 s{T+7}, s{S_WG}, 2")
    A(f"s_add_u32 s{T+7}, s{T+7}, s{S_WAVE}")
    A(f"s_lshl_b32 s{T+8}, s{T+7}, 11")
    A(f"v_lshlrev_b32 v58, 4, v{L}")
    A(f"s_mul_i32 s{T+9}, s{S_WG}, 1366")
    A(f"s_lshr_b32 s{T+9}, s{T+9}, 16")
    A(f"v_and_b32 v59, 127, v0")
    A(f"v_lshlrev_b32 v59, 1, v59")
    A(f"s_lshl_b32 s{T+12}, s{T+9}, 8")
    A(f"v_lshlrev_b32 v252, 11, v{L}")
    A(f"s_lshl_b32 s{T+11}, s{S_WG}, 7")
    A(f"v_mov_b32 v253, {128*FLG_3}")
    A(f"v_cmp_eq_u32 vcc, 4, v{L}")
    A(f"s_add_u32 s{T+11}, s{T+11}, {WS_SYNC}")
    A(f"v_cndmask_b32 v252, v252, v253, vcc")
    A(f"v_mov_b32 v253, {128*FLG_4}")
    A(f"v_cmp_eq_u32 vcc, 3, v{L}")
    A(f"v_cndmask_b32 v252, v252, v253, vcc")
    A(f"v_mov_b32 v253, 0")
    A("s_waitcnt lgkmcnt(0)")
    def clr():
        A(f"s_cmp_lt_u32 s{S_WG}, 16")
        A(f"s_cselect_b32 exec_lo, 0x1e, 0x18")
        A(f"s_mov_b32 exec_hi, 0")
        A(f"buffer_store_dword v253, v252, {s(SRD_WS,4)}, s{T+11} offen sc1")
        A("s_mov_b64 exec, -1")
    only_wave3(A, clr)
    A(f"buffer_load_dwordx4 {v(VST,4)}, v58, {s(SRD_Q,4)}, s{T+8} offen")
    A(f"buffer_load_dwordx4 {v(VST+4,4)}, v58, {s(SRD_Q,4)}, s{T+8} offen offset:1024")
    A(f"buffer_load_ushort v{VC}, v59, {s(SRD_C,4)}, s{T+12} offen")
    A(f"buffer_load_dword v{VK}, v8, {s(SRD_K,4)}, 0 offen")
    A(f"buffer_load_dword v{VK+1}, v9, {s(SRD_K,4)}, 0 offen")
    A(f"buffer_load_dword v{VK+2}, v57, {s(SRD_K,4)}, 0 offen")
    for r in range(15):
        A(f"buffer_load_dword v{VK+3+r}, v6, {s(SRD_K,4)}, s{T+2+(r>>2)} offen offset:{1024*(r&3)}")
    A(f"buffer_load_dwordx4 {v(VSH,4)}, v7, {s(SRD_SHK,4)}, 0 offen")
    for k in range(8):
        A(f"buffer_load_dword v{VV+k}, v6, {s(SRD_V,4)}, s{T+2+(k>>1)} offen offset:{2048*(k&1)}")
    for k in range(8):
        A(f"buffer_load_dword v{VQ+k}, v6, {s(SRD_Q,4)}, s{T+2+(k>>1)} offen offset:{2048*(k&1)}")
    for r in rest:
        A(f"s_load_dwordx2 {s(r,2)}, s[0:1], {KARG[r][0]}")
    A(f"s_load_dwordx2 {s(S_DBG,2)}, s[0:1], 96")
    if O.cpf < 3:
        A("; wave 0 pulls a slice of this kernel's code into the L2")
        A(f"s_getpc_b64 s[{T+16}:{T+17}]")
        A("L_pc:")
        A(f"s_cmp_eq_u32 s{S_WAVE}, {0 if O.cpf == 1 else 7}" if O.cpf < 2 else f"s_cmp_lt_u32 s{S_WG}, 64")
        A(f"s_cbranch_scc0 L_nopf")
        A(f"s_bfe_u32 s{T+11}, s{S_WG}, {'0x30003' if O.cpf < 2 else '0x10003'}")
        A(f"s_lshl_b32 s{T+11}, s{T+11}, {13 if O.cpf < 2 else 15}")
        A(f"v_lshlrev_b32 v254, 7, v0")
        A(f"v_add_u32 v254, s{T+11}, v254")
        A(f"v_min_u32 v254, L_end-L_pc, v254")
        A(f"global_load_dword v255, v254, s[{T+16}:{T+17}] ; nowait")
        A("L_nopf:")
    for r in rest:
        A(f"s_mov_b32 s{r+2}, {KARG[r][1]}")
        A(f"s_mov_b32 s{r+3}, 0x20000")
    A(f"s_mul_i32 s{T+10}, s{T+9}, 48")
    A(f"s_sub_u32 s{T+10}, s{S_WG}, s{T+10}")
    dma_voff(A, 60, 61, 6144, 62)
    A(f"s_lshl_b32 s{T+12}, s{T+9}, 7")
    A(f"s_lshl_b32 s{T+13}, s{S_WAVE}, 5")
    A(f"s_add_u32 s{T+12}, s{T+12}, s{T+13}")
    A(f"s_mul_i32 s{T+12}, s{T+12}, 6144")
    A(f"s_lshl_b32 s{T+11}, s{T+10}, 7")
    A(f"s_add_u32 s{T+12}, s{T+12}, s{T+11}")
    A(f"s_lshl_b32 s{T+14}, s{S_WAVE}, 12")
    A(f"s_add_u32 m0, s{T+14}, {LDS_GM}")
    A("s_waitcnt lgkmcnt(0)")
    stamp(A, "issued")
    for i in range(4):
        if i:
            A(f"s_add_u32 m0, m0, 1024")
            A(f"s_add_u32 s{T+12}, s{T+12}, {8*6144}")
        A(f"buffer_load_dwordx4 v{60+(i&1)}, {s(SRD_WMOD,4)}, s{T+12} offen lds")
    if O.epv:
        A(f"v_mov_b32 v178, {WS_SYNC + 128*EPOCH}")
        A(f"buffer_load_dwordx2 v[178:179], v178, {s(SRD_WS,4)}, 0 offen sc1")
    else:
        A(f"s_add_u32 s{T+16}, s{SRD_WS}, {WS_SYNC + 128*EPOCH}")
        A(f"s_addc_u32 s{T+17}, s{SRD_WS+1}, 0")
        A(f"s_load_dwordx2 {s(S_TAG,2)}, s[{T+16}:{T+17}], 0")
    A(f"s_mov_b32 s{S_SELLO}, 0x05040100")
    A(f"s_mov_b32 s{S_SELHI}, 0x07060302")
    A(f"s_mov_b32 s{S_ONES}, 0x3f803f80")
    A(f"s_bfe_u32 s{S_RB}, s{S_WG}, 0x20001")
    A(f"s_lshl_b32 s{S_RB}, s{S_RB}, 2")
    A(f"s_lshr_b32 s{S_TMP}, s{S_WG}, 6")
    A(f"s_add_u32 s{S_RB}, s{S_RB}, s{S_TMP}")
    A(f"s_bfe_u32 s{S_J}, s{S_WG}, 0x30003")
    A(f"s_add_u32 s{S_ROT}, s{S_J}, s{S_TMP}")
    A(f"s_and_b32 s{S_ROT}, s{S_ROT}, 7")
    A(f"s_and_b32 s{S_PE}, s{S_WG}, 1")
    A(f"s_mul_i32 s{S_C}, s{S_PE}, 7")
    A(f"s_add_u32 s{S_C}, s{S_C}, s{S_J}")
    A(f"s_add_u32 s{S_PE}, s{S_PE}, 14")
    A(f"s_cmp_eq_u32 s{S_J}, 7")
    A(f"s_cselect_b32 s{S_C}, s{S_PE}, s{S_C}")
    A(f"s_and_b32 s{S_RT}, s{S_WG}, 7")
    A(f"s_lshl_b32 s{S_RT}, s{S_RT}, 3")
    A(f"s_lshr_b32 s{S_PE}, s{S_WG}, 7")
    A(f"s_lshl_b32 s{S_PE}, s{S_PE}, 2")
    A(f"s_add_u32 s{S_RT}, s{S_RT}, s{S_PE}")
    A(f"s_bfe_u32 s{S_PE}, s{S_WG}, 0x10006")
    A(f"s_add_u32 s{S_RT}, s{S_RT}, s{S_PE}")
    A(f"s_lshl_b32 s{S_PE}, s{S_TMP}, 1")
    A(f"s_add_u32 s{S_PE}, s{S_PE}, s{S_J}")
    if O.r2same: A(f"s_mov_b32 s{S_PE}, s{S_J}")
    A(f"s_cmp_ge_u32 s{S_C}, 14")
    A(f"s_cselect_b32 s{SRD_W1+2}, 0, s{SRD_W1+2}")
    A(f"s_cmp_ge_u32 s{S_PE}, 7")
    A(f"s_cselect_b32 s{S_TMP}, 7, 0")
    A(f"s_sub_u32 s{S_PE}, s{S_PE}, s{S_TMP}")
    A(f"s_cmp_ge_u32 s{S_PE}, 7")
    A(f"s_cselect_b32 s{S_TMP}, 7, 0")
    A(f"s_sub_u32 s{S_PE}, s{S_PE}, s{S_TMP}")

def phase0(A):
    VK, VV, VQ, VSH, VST, VC = 10, 28, 36, 44, 48, 56
    L = V_LANE
    stamp(A, "issued2")
    if O.tlb:
        A("; wave 1 touches the pages that later phases use")
        A(f"s_cmp_eq_u32 s{S_WAVE}, 1")
        A(f"s_cbranch_scc0 L_notlb")
        A(f"v_lshlrev_b32 v254, {O.tlb}, v{L}")
        A(f"s_lshl_b32 s{T+14}, s{S_WG}, 7")
        A(f"buffer_load_dword v255, v254, {s(SRD_WS,4)}, s{T+14} offen ; nowait")
        for r in (SRD_OUT, SRD_W1, SRD_W2, SRD_SSMK):
            A(f"buffer_load_dword v255, v254, {s(r,4)}, s{T+14} offen ; nowait")
        A("L_notlb:")
    if O.w1t:
        A("; every wave touches a quarter of this workgroup's share of the w1 (and filter) lines")
        A(f"s_mul_i32 s{T+14}, s{S_WG}, 7168")
        A(f"s_mul_i32 s{T+15}, s{S_WAVE}, 1792")
        A(f"s_add_u32 s{T+14}, s{T+14}, s{T+15}")
        A(f"v_lshlrev_b32 v254, 7, v{L}")
        A(f"s_mov_b64 exec, {'0x3fff' if O.w1t & 1 else '1'}")
        A(f"s_mov_b32 s{SRD_SHK}, s{SRD_W1}")
        A(f"s_mov_b32 s{SRD_SHK+1}, s{SRD_W1+1}")
        A(f"s_mov_b32 s{SRD_SHK+2}, {512*1792*2}")
        A(f"buffer_load_dword v255, v254, {s(SRD_SHK,4)}, s{T+14} offen ; nowait")
        if O.w1t & 2:
            A(f"s_lshl_b32 s{T+14}, s{S_WG}, 13")
            A(f"s_lshl_b32 s{T+15}, s{S_WAVE}, 11")
            A(f"s_add_u32 s{T+14}, s{T+14}, s{T+15}")
            A(f"s_mov_b64 exec, 0xffff")
            A(f"buffer_load_dword v255, v254, {s(SRD_SSMK,4)}, s{T+14} offen ; nowait")
        A(f"s_mov_b64 exec, -1")
    A(f"s_cmp_eq_u32 s{S_WAVE}, 2")
    A(f"s_cbranch_scc0 L_noclr2")
    A(f"s_lshl_b32 s{T+14}, s{S_WG}, 7")
    A(f"s_add_u32 s{T+14}, s{T+14}, {WS_ST2}")
    A(f"v_lshlrev_b32 v64, 2, v{L}")
    A(f"s_mov_b32 exec_hi, 0")
    A(f"buffer_store_dword v253, v64, {s(SRD_WS,4)}, s{T+14} offen sc1")
    A("s_mov_b64 exec, -1")
    A("L_noclr2:")
    dma_voff(A, VW1, VW1 + 1, 3584, 64)
    A(f"s_mov_b32 s{T+14}, {256*3584}")
    A(f"v_bfe_u32 v64, v{VW1}, 6, 1")
    A(f"v_mul_lo_u32 v65, v64, s{T+14}")
    A(f"v_lshlrev_b32 v64, 6, v64")
    A(f"v_sub_u32 v{VW3}, v65, v64")
    A(f"v_sub_u32 v65, s{T+14}, v65")
    A(f"v_sub_u32 v{VW3+1}, v65, v64")
    A(f"v_add_u32 v{VW1+1}, {8*3584-1024}, v{VW1+1}")
    A(f"v_add_u32 v{VW1+2}, {2*(8*3584-1024)}, v{VW1}")
    A(f"v_add_u32 v{VW1+3}, {2*(8*3584-1024)}, v{VW1+1}")
    tr_addr32(A, 242, 64, 8)
    A(f"s_lshl_b32 s{T+14}, s{S_WAVE}, 15")
    A(f"v_add_u32 v242, s{T+14}, v242")
    A(f"v_xor_b32 v243, 64, v242")
    A(f"s_lshl_b32 s{S_PM}, s{S_WAVE}, 15")
    w2_setup(A)
    A(f"s_lshr_b32 s{T+11}, s{S_WAVE}, 1")
    A(f"s_lshl_b32 s{S_CH}, s{S_WG}, 1")
    A(f"s_add_u32 s{S_CH}, s{S_CH}, s{T+11}")
    A(f"s_mul_i32 s{S_CARRY}, s{T+11}, 2080")
    A(f"s_add_u32 s{S_CARRY}, s{S_CARRY}, {LDS_CARRY}")
    A(f"s_mul_i32 s{T+13}, s{S_WAVE}, 4224")
    A(f"s_add_u32 s{T+13}, s{T+13}, {LDS_KC}")
    A(f"s_and_b32 s{T+11}, s{S_WAVE}, 1")
    A(f"s_lshl_b32 s{T+14}, s{T+11}, 2")
    A(f"s_sub_u32 s{T+14}, 4, s{T+14}")
    A(f"v_add_u32 v62, s{T+14}, v58")
    A(f"v_and_b32 v64, 7, v3")
    A(f"v_lshlrev_b32 v65, 2, v4")
    A(f"v_xor_b32 v64, v64, v65")
    A(f"v_lshlrev_b32 v57, 7, v3")
    A(f"v_lshl_add_u32 v57, v64, 4, v57")
    A(f"s_lshl_b32 s{T+14}, s{S_WAVE}, 15")
    A(f"s_add_u32 s{T+14}, s{T+14}, 24576")
    A(f"v_add_u32 v57, s{T+14}, v57")
    A(f"v_lshrrev_b32 v64, 3, v{L}")
    A(f"v_and_b32 v65, 7, v{L}")
    A(f"v_xor_b32 v66, v65, v64")
    A(f"v_lshlrev_b32 v9, 7, v64")
    A(f"v_lshl_add_u32 v9, v66, 4, v9")
    A(f"v_add_u32 v9, s{T+14}, v9")
    A(f"v_lshlrev_b32 v65, 4, v65")
    for b in range(4):
        A(f"v_add_u32 v66, s{T+1}, v64")
        if b: A(f"v_add_u32 v66, {8*b}, v66")
        if O.recperm:
            A(f"v_xor_b32 v67, s{T}, v66")
            A(f"v_and_b32 v67, 127, v67")
        else:
            A(f"v_mov_b32 v67, s{T}")
        A(f"v_lshl_add_u32 v66, v66, 7, v67")
        A(f"v_lshl_add_u32 v{168+b}, v66, 7, v65")
    for k in range(1, 4): A(f"v_xor_b32 v{173+k}, {16*k}, v57")
    B = 172
    tr_addr16(A, B, 64)
    A(f"s_lshl_b32 s{T+16}, s{S_WAVE}, 5")
    A(f"v_xor_b32 v{B}, s{T+16}, v{B}")
    A(f"v_add_u32 v{B}, {LDS_GM}, v{B}")
    A(f"v_lshrrev_b32 v{B+1}, 4, v{L}")
    A(f"v_lshlrev_b32 v{B+1}, 4, v{B+1}")
    A(f"v_add_u32 v{B+1}, {LDS_SC}, v{B+1}")
    A(f"s_mul_i32 s{T+16}, s{T+9}, {3072*4}")
    A(f"s_lshl_b32 s{T+17}, s{T+10}, 8")
    A(f"s_add_u32 s{T+16}, s{T+16}, s{T+17}")
    A(f"s_lshl_b32 s{T+17}, s{S_WAVE}, 6")
    A(f"s_add_u32 s{T+16}, s{T+16}, s{T+17}")
    A(f"s_add_u32 s{T+16}, s{T+16}, {WS_MODP}")
    A(f"s_lshl_b32 s{T+15}, s{S_WG}, 6")
    A(f"s_add_u32 s{T+15}, s{T+15}, {WS_STAT}")
    A(f"s_lshl_b32 s{T+17}, s{S_WAVE}, 3")
    A(f"s_add_u32 s{T+17}, s{T+17}, {LDS_ST1}")
    A(f"v_mov_b32 v177, s{T+17}")
    A(f"v_add_u32 v59, {LDS_SC}, v59")
    def kcopy():
        A(f"s_lshl_b32 s{T+18}, s{S_CH}, 12")
        A(f"s_add_u32 m0, s{T+13}, 32")
        A(f"v_mov_b32 v63, 0")
        A(f"buffer_load_dword v63, v63, {s(SRD_SSMK,4)}, s{T+18} offen")
        for i in range(4):
            A(f"buffer_load_dwordx4 v62, {s(SRD_SSMK,4)}, s{T+18} offen offset:{1024*i} lds")
    if O.kc_early: kcopy()
    A(".warmup")
    R = 152
    for r in range(2):
        A(f"v_dot2_f32_bf16 v{R+2*r}, v{VST+4*r}, s{S_ONES}, 0")
        A(f"v_dot2_f32_bf16 v{R+2*r+1}, v{VST+4*r}, v{VST+4*r}, 0")
    for q in range(1, 4):
        for r in range(2):
            A(f"v_dot2_f32_bf16 v{R+2*r}, v{VST+4*r+q}, s{S_ONES}, v{R+2*r}")
            A(f"v_dot2_f32_bf16 v{R+2*r+1}, v{VST+4*r+q}, v{VST+4*r+q}, v{R+2*r+1}")
    X = 164
    A(f"v_lshlrev_b32 v{X}, 16, v{VC}")
    A(f"v_mul_f32 v{X+1}, {hex(NLOG2E)}, v{X}")
    A(f"v_exp_f32 v{X+1}, v{X+1}")
    for n, m in enumerate(("row_shr:1", "row_shr:2", "row_shr:4", "row_shr:8")):
        for i in range(4):
            A(f"v_add_f32_dpp v{R+i}, v{R+i}, v{R+i} {m} row_mask:0xf bank_mask:0xf bound_ctrl:0")
        A([f"v_add_f32 v{X+1}, 1.0, v{X+1}", f"v_rcp_f32 v{X+1}, v{X+1}", f"v_mul_f32 v{X+1}, v{X}, v{X+1}", f"v_cvt_pk_bf16_f32 v{X+1}, v{X+1}, v{X+1}"][n])
    A(f"ds_write_b16 v59, v{X+1}")
    for m, rm in (("row_bcast:15", "0xa"), ("row_bcast:31", "0xc")):
        for i in range(4):
            A(f"v_add_f32_dpp v{R+i}, v{R+i}, v{R+i} {m} row_mask:{rm} bank_mask:0xf")
    ln_finish(A, [(R, R+1, R+4, R+6), (R+2, R+3, R+5, R+7)], R + 8)
    A("s_lshl_b64 exec, 1, 63")
    A(f"ds_write_b64 v177, {v(R+4,2)}")
    A(f"ds_write_b64 v177, {v(R+6,2)} offset:32")
    A("s_mov_b64 exec, -1")
    stamp(A, "stats")
    A("; ---- kv ----")
    VW, VP, VKS, VVU, CA, CB = 64, 68, 86, 102, 120, 136
    for k in range(9):
        A(f"v_perm_b32 v{VP+2*k}, v{VK+2*k+1}, v{VK+2*k}, s{S_SELLO}")
        A(f"v_perm_b32 v{VP+2*k+1}, v{VK+2*k+1}, v{VK+2*k}, s{S_SELHI}")
    A(f"v_alignbit_b32 v{VW}, v{VSH+1}, v{VSH+1}, 16")
    A(f"v_alignbit_b32 v{VW+1}, v{VSH}, v{VSH}, 16")
    A(f"v_alignbit_b32 v{VW+2}, v{VSH+3}, v{VSH+3}, 16")
    A(f"v_alignbit_b32 v{VW+3}, v{VSH+2}, v{VSH+2}, 16")
    for k in range(8):
        for c in range(2):
            A(f"v_dot2_f32_bf16 v{VKS+2*k+c}, v{VP+2*k+c}, v{VW+2*c}, 0")
    for k in range(8):
        for c in range(2):
            A(f"v_dot2_f32_bf16 v{VKS+2*k+c}, v{VP+2*k+2+c}, v{VW+2*c+1}, v{VKS+2*k+c}")
    for k in range(8):
        A(f"v_lshlrev_b32 v{VVU+2*k}, 16, v{VV+k}")
        A(f"v_and_b32 v{VVU+2*k+1}, 0xffff0000, v{VV+k}")
    for k in range(8):
        A(f"v_pk_mul_f32 {v(VKS+2*k,2)}, {v(VKS+2*k,2)}, {v(VVU+2*k,2)}")
    for c in range(2):
        for q in range(4):
            A(f"v_cvt_pk_bf16_f32 v{CA+4*c+q}, v{VKS+2*(7-2*q)+c}, v{VKS+2*(6-2*q)+c}")
        A(f"ds_write_b128 v{173+c if c else 57}, {v(CA+4*c,4)}")
    for c in range(2):
        for q in range(4):
            A(f"v_perm_b32 v{CA+8+4*c+q}, v{VQ+6-2*q}, v{VQ+7-2*q}, s{S_SELHI if c else S_SELLO}")
        A(f"ds_write_b128 v{175+c}, {v(CA+8+4*c,4)}")
    stamp(A, "kvq landed")
    A("s_waitcnt lgkmcnt(0)")
    for b in range(4):
        A(f"ds_read_b128 {v(CB+4*b,4)}, v9 offset:{1024*b}")
    for b in range(4):
        A(f"buffer_store_dwordx4 {v(CB+4*b,4)}, v{168+b}, {s(SRD_WS,4)}, 0 offen sc1")
    stamp(A, "rec stored")
    if O.bsplit:
        A(f"s_waitcnt vmcnt(0) lgkmcnt(0)")
        A("s_barrier")
        stamp(A, "rec acked")
        A(f"s_add_u32 s{S_TAG}, s{S_TAG}, 1")
        only_wave3(A, lambda: lf_signal(A, LF_A))
    else:
        A(f"s_waitcnt vmcnt({9 if O.kc_early else 4}) lgkmcnt(0)")
        A("s_barrier")
    A(f"v_add_u32 v177, {LDS_ST1}, v58")
    A(f"ds_read_b128 {v(R,4)}, v177")
    FA, FB, ACC = 72, 88, 104
    for e in range(4):
        A(f"ds_read_b128 {v(FA+4*e,4)}, v{B+1} offset:{64*e}")
        A(f"ds_read_b64_tr_b16 {v(FB+4*e,2)}, v{B} offset:{4096*e}")
        A(f"ds_read_b64_tr_b16 {v(FB+4*e+2,2)}, v{B} offset:{4096*e+512}")
    A(f"s_cmp_eq_u32 s{S_WAVE}, 0")
    A(f"s_cbranch_scc0 L_nost1")
    A("s_mov_b64 exec, 0xf")
    A(f"buffer_store_dwordx4 {v(R,4)}, v58, {s(SRD_WS,4)}, s{T+15} offen sc1")
    A("s_mov_b64 exec, -1")
    A("L_nost1:")
    for e in range(4):
        A(f"v_mfma_f32_16x16x32_bf16 {v(ACC,4)}, {v(FA+4*e,4)}, {v(FB+4*e,4)}, {'0' if e == 0 else v(ACC,4)}")
    A(f"v_lshlrev_b32 v64, 2, v{L}")
    A(f"s_cmp_ge_u32 s{S_WG}, 192")
    A(f"s_cbranch_scc1 L_nogemv")
    A("s_mov_b64 exec, 0xffff")
    A(f"buffer_store_dword v{ACC}, v64, {s(SRD_WS,4)}, s{T+16} offen sc1")
    A("s_mov_b64 exec, -1")
    A("L_nogemv:")
    if O.epv:
        A(f"v_readfirstlane_b32 s{S_TAG}, v178")
        A(f"v_readfirstlane_b32 s{S_TAG+1}, v179")
    A(f"s_add_u32 s{S_TAG}, s{S_TAG}, 1")
    stamp(A, "mod stored")
    if O.bsplit:
        def kc0():
            kcopy()
            A("s_waitcnt vmcnt(5)")
        split_wave3(A, kc0, lambda: A("s_waitcnt vmcnt(0)"))
        A("s_barrier")
        stamp(A, "B acked")
    elif O.kcm:
        def kc1():
            kcopy()
            n = 5
            for gi in range(O.kcm - 1):
                for x in w1_group(gi, f"s{S_WAVE}", f"s{S_PM}", 64): A(x)
                n += 8
            A(f"s_waitcnt vmcnt({n})")
        split_wave3(A, kc1, lambda: A("s_waitcnt vmcnt(0)"))
        stamp(A, "own ack")
        A("s_barrier")
        stamp(A, "rec acked")
    else:
        A("s_waitcnt vmcnt(0)")
        stamp(A, "own ack")
        A("s_barrier")
        stamp(A, "rec acked")
    def others2():
        if not O.kc_early:
            if not O.bsplit and not O.kcm: kcopy()
            A(f"s_cmp_eq_u32 s{S_WAVE}, 2")
            A(f"s_cbranch_scc0 L_nokc3")
            A(f"s_mov_b32 m0, {LDS_KC + 3*4224 + 32}")
            for i in range(4):
                A(f"buffer_load_dwordx4 v58, {s(SRD_SSMK,4)}, s{T+18} offen offset:{1024*i} lds")
            A("L_nokc3:")
        for gi in range(max(O.kcm - 1, 0), O.n_w1):
            for x in w1_group(gi, f"s{S_WAVE}", f"s{S_PM}", 64, O.w1_depth): A(x)
        if O.w2te:
            A(f"s_mul_i32 s{T+18}, s{S_WG}, 7168")
            A(f"s_mul_i32 s{T+17}, s{S_WAVE}, {19*128}")
            A(f"s_add_u32 s{T+18}, s{T+18}, s{T+17}")
            A(f"v_lshlrev_b32 v254, 7, v{L}")
            A(f"s_mov_b64 exec, 0x7ffff")
            A(f"buffer_load_dword v255, v254, {s(SRD_W2,4)}, s{T+18} offen ; nowait")
            A(f"s_mov_b64 exec, -1")
        stamp(A, "w1r0/sig")
    def sigA():
        if O.lfa:
            if O.bsplit: lf_signal(A, LF_B)
            else:
                lf_signal(A, LF_A)
            del _stamps[-1:]
            stamp(A, "w1r0/sig")
            return
        u = uid()
        A(f"s_and_b32 s{S_SIG}, s{S_WG}, 1")
        A(f"s_lshl_b32 s{S_SIG}, s{S_SIG}, 7")
        A("s_mov_b64 exec, 1")
        A(f"v_mov_b32 v252, s{S_SIG}")
        A(f"v_mov_b32 v253, 1")
        A(f"global_atomic_add v253, v252, v253, {s(S_DBG,2)} sc0 sc1")
        A(f"v_mov_b32 v254, s{S_TAG}")
        A(f"v_mov_b32 v255, s{S_TAG+1}")
        A(f"s_mov_b32 s{S_TMP}, {WS_SYNC + 128*FLG_A}")
        A(f"v_cmp_eq_u32 vcc, 127, v253")
        A(f"s_cbranch_vccz L_sig{u}")
        A(f"buffer_store_dwordx2 v[254:255], v252, {s(SRD_WS,4)}, s{S_TMP} offen sc1")
        A(f"L_sig{u}:")
        A("s_mov_b64 exec, -1")
        del _stamps[-1:]
        stamp(A, "w1r0/sig")
    split_wave3(A, others2, sigA)
    A(f"s_mul_i32 s{T+11}, s{T+11}, 64")
    A(f"s_add_u32 s{T+11}, s{T+11}, 7")
    A(f"v_lshlrev_b32 v62, 2, v{L}")
    A(f"v_add_u32 v62, s{T+13}, v62")

TSETS = ([7, 4, 3, 0], [6, 5, 2, 1])
def conv(A):
    VAB, VAA, VAE = 8, 16, 17
    VST = 24; VKX = 200; VGH, VX0 = 72, 88; ACC = 104; U = 56
    L = V_LANE
    A(f"v_lshrrev_b32 v3, 3, v{L}")
    if O.recperm:
        A(f"s_and_b32 s{T+6}, s{S_WG}, 7")
        A(f"v_xor_b32 v3, s{T+6}, v3")
    A(f"v_lshlrev_b32 v3, 7, v3")
    A(f"v_lshrrev_b32 v4, 4, v{L}")
    A(f"v_and_b32 v7, 7, v{L}")
    A(f"v_xor_b32 v7, v7, v4")
    A(f"v_lshl_add_u32 v3, v7, 4, v3")
    A(f"v_xor_b32 v7, 64, v3")
    A(f"s_lshl_b32 s{T+6}, s{S_WG}, 14")
    A(f"s_bfe_u32 s{T+8}, s{S_WG}, 0x40003")
    A(f"s_lshl_b32 s{T+8}, s{T+8}, 10")
    A(f"s_lshl_b32 s{T+7}, s{S_WAVE}, 12")
    A(f"v_and_b32 v21, 3, v{L}")
    A(f"v_mul_u32_u24 v21, 12288, v21")
    A(f"v_bfe_u32 v22, v{L}, 2, 2")
    A(f"v_lshl_add_u32 v21, v22, 11, v21")
    A(f"v_add_u32 v23, 2048, v21")
    A(f"v_cmp_eq_u32 vcc, 3, v22")
    A(f"s_lshl_b32 s{T+9}, s{S_CH}, 2")
    A(f"s_add_u32 s{T+9}, s{T+9}, {WS_MODP}")
    A(f"v_cndmask_b32 v21, v21, v23, vcc")
    A(f"s_lshl_b32 s{T+10}, s{S_CH}, 1")
    A(f"v_and_b32 v6, 15, v{L}")
    A(f"v_lshrrev_b32 v18, 1, v4")
    A(f"v_lshlrev_b32 v18, 2, v18")
    A(f"v_and_b32 v23, 1, v4")
    A(f"v_or_b32 v18, v18, v23")
    A(f"v_lshrrev_b32 v23, 1, v6")
    A(f"v_xor_b32 v18, v18, v23")
    A(f"v_lshlrev_b32 v23, 7, v6")
    A(f"v_lshl_add_u32 v23, v18, 4, v23")
    A(f"v_add_u32 v23, {LDS_STA}, v23")
    A(f"v_xor_b32 v216, 32, v23")
    A(f"v_lshlrev_b32 v5, 4, v{L}")
    A(f"v_lshlrev_b32 v18, 4, v4")
    A(f"v_xor_b32 v226, v5, v18")
    A(f"v_xor_b32 v227, 64, v226")
    A(f"v_lshlrev_b32 v18, 3, v0")
    A(f"v_add_u32 v18, {LDS_REC}, v18")
    A(f"v_mov_b32 v{VGH}, 0")
    A(f"v_mov_b32 v{VGH+1}, 0")
    A(f"ds_write_b64 v18, {v(VGH,2)}")
    A(f"v_mov_b32 v18, s{S_CARRY}")
    A(f"ds_write_b32 v18, v{VGH}")
    A(f"s_lshr_b32 s{T+12}, s{S_WAVE}, 1")
    for b in range(4):
        A(f"v_sub_u32 v18, v6, v4")
        A(f"v_add_u32 v18, {16-4*b}, v18")
        A(f"v_bfe_u32 v19, v18, 1, 3")
        A(f"v_xor_b32 v19, s{T+12}, v19")
        A(f"v_lshlrev_b32 v18, 7, v18")
        A(f"v_lshl_add_u32 v18, v19, 4, v18")
        A(f"v_add_u32 v{VAB+2*b}, {LDS_REC}, v18")
        A(f"v_xor_b32 v{VAB+2*b+1}, 64, v{VAB+2*b}")
    A(f"v_bfe_u32 v18, v{L}, 2, 2")
    A(f"v_and_b32 v19, 1, v18")
    A(f"v_add_u32 v18, 1, v18")
    A(f"v_lshrrev_b32 v18, 1, v18")
    A(f"v_and_b32 v20, 3, v{L}")
    A(f"v_add_u32 v18, v18, v20")
    A(f"v_lshlrev_b32 v18, 3, v18")
    A(f"v_lshl_add_u32 v18, v4, 5, v18")
    A(f"v_mul_u32_u24 v19, 4224, v19")
    A(f"s_mul_i32 s{T+13}, s{T+12}, 8448")
    A(f"s_add_u32 s{T+13}, s{T+13}, {LDS_KC}")
    A(f"v_add3_u32 v{VAA}, v18, v19, s{T+13}")
    A(f"v_bfe_u32 v19, v6, 1, 3")
    A(f"v_xor_b32 v19, s{T+12}, v19")
    A(f"v_lshlrev_b32 v18, 7, v6")
    A(f"v_lshl_add_u32 v18, v19, 4, v18")
    A(f"v_sub_u32 v19, 3, v4")
    A(f"v_lshl_add_u32 v18, v19, 2, v18")
    A(f"v_add_u32 v{VAE}, {LDS_REC+2048}, v18")
    A(f"v_xor_b32 v{VAE+1}, 64, v{VAE}")
    A(f"v_xor_b32 v{VAE+2}, 32, v{VAE}")
    A(f"v_xor_b32 v{VAE+3}, 96, v{VAE}")
    A(f"v_lshl_add_u32 v218, v6, 2, v4")
    A(f"v_lshl_add_u32 v218, v218, 2, s{S_CARRY}")
    A(f"s_add_u32 s{T+14}, s{T+7}, {LDS_KC}")
    A(f"v_bfe_u32 v24, v6, 2, 1")
    A(f"v_lshlrev_b32 v24, 1, v24")
    A(f"v_xor_b32 v24, v24, v4")
    A(f"v_lshlrev_b32 v219, 5, v6")
    A(f"v_lshl_add_u32 v219, v24, 3, v219")
    A(f"v_add_u32 v219, s{T+14}, v219")
    A(f"v_bfe_u32 v24, v{L}, 3, 1")
    A(f"v_lshlrev_b32 v24, 4, v24")
    A(f"v_xor_b32 v220, v24, v5")
    A(f"v_add_u32 v220, s{T+14}, v220")
    A(f"s_bitcmp1_b32 s{S_WAVE}, 0")
    for u in range(2):
        A(f"s_cselect_b32 s{T+14}, {TSETS[1][2*u]}, {TSETS[0][2*u]}")
        A(f"s_cselect_b32 s{T+15}, {TSETS[1][2*u+1]}, {TSETS[0][2*u+1]}")
        A(f"v_mov_b32 v24, s{T+14}")
        A(f"v_mov_b32 v25, s{T+15}")
        A(f"s_mov_b32 vcc_lo, 0")
        A(f"s_mov_b32 vcc_hi, -1")
        A(f"v_cndmask_b32 v24, v24, v25, vcc")
        A(f"v_and_b32 v25, 0x1ff, v5")
        A(f"v_lshl_add_u32 v{221+u}, v24, 9, v25")
    A(f"s_lshl_b32 s{S_CARRY}, s{S_CH}, 12")
    A(f"v_mov_b32 v22, 0")
    A(f"buffer_load_ushort v22, v22, {s(SRD_SSMD,4)}, s{T+10} offen")
    def pollA():
        u = uid()
        if O.lfa:
            lf_poll(A, LF_A, 24, 0 if O.bsplit else O.isleep)
            return
        A(f"s_mov_b64 exec, 3")
        A(f"v_lshlrev_b32 v252, 7, v{L}")
        A(f"s_mov_b32 s{S_TMP}, {WS_SYNC + 128*FLG_A}")
        A(f"s_mov_b32 s{S_SPIN}, 0x80000")
        A(f"L_poll{u}:")
        A(f"buffer_load_dwordx2 v[254:255], v252, {s(SRD_WS,4)}, s{S_TMP} offen sc1")
        A(f"s_sub_u32 s{S_SPIN}, s{S_SPIN}, 1")
        A(f"s_cbranch_scc1 L_pollx{u}")
        A("s_waitcnt vmcnt(0)")
        A(f"v_cmp_ne_u64 vcc, {s(S_TAG,2)}, v[254:255]")
        A(f"s_cbranch_vccz L_pollx{u}")
        A(f"s_sleep {O.sleep}")
        A(f"s_branch L_poll{u}")
        A(f"L_pollx{u}:")
        A("s_waitcnt vmcnt(0)")
        A(f"s_cmp_eq_u32 s{S_WG}, 0")
        A(f"s_cbranch_scc0 L_noep{u}")
        A("s_mov_b64 exec, 1")
        A(f"buffer_store_dwordx2 v[254:255], v252, {s(SRD_WS,4)}, s{S_TMP} offen offset:{128*(EPOCH-FLG_A)} sc1")
        A(f"L_noep{u}:")
        A("s_mov_b64 exec, -1")
    def w3A():
        pollA()
        stamp(A, "A released")
        A(f"s_mov_b32 m0, {LDS_REC+2048}")
        for i in range(16):
            if i: A(f"s_add_u32 m0, m0, 1024")
            A(f"s_xor_b32 s{T}, s{T+8}, {1024*i}")
            A(f"s_add_u32 s{T}, s{T}, s{T+6}")
            A(f"buffer_load_dwordx4 v{7 if i&1 else 3}, {s(SRD_WS,4)}, s{T} offen sc1 lds")
        if O.bsplit: lf_poll(A, LF_B, 24)
        A(f"s_cmp_eq_u32 s{S_WG}, 0")
        A(f"s_cbranch_scc0 L_noep")
        lf_signal(A, EPOCH)
        A(f"L_noep:")
        for i in range(16):
            if i % 4 == 0 or i == 14:
                A(f"s_mov_b32 m0, {LDS_STA + 4096*(i>>2) if i < 14 else LDS_STB - 2048}")
                A(f"s_mov_b32 s{T}, {WS_STAT + 4096*(i>>2)}")
            A(f"buffer_load_dwordx4 v{226+(i&1)}, {s(SRD_WS,4)}, s{T} offen offset:{1024*(i&3)} sc1 lds")
        A(f"s_mul_i32 s{T+18}, s{S_WG}, 7168")
        A(f"v_lshlrev_b32 v254, 7, v{L}")
        A(f"s_mov_b32 exec_hi, 0xffffff")
        if O.w2te: A(f"s_mov_b64 exec, 1")
        A(f"buffer_load_dword v255, v254, {s(SRD_W2,4)}, s{T+18} offen ; nowait")
        A(f"s_mov_b64 exec, -1")
        A("s_waitcnt vmcnt(17)")
    def oA():
        for gi in range(O.n_w1):
            A(f"s_waitcnt vmcnt({8 * (O.n_w1 - 1 - gi) + 1 + O.w2te})")
            for x in w1_read(gi): A(x)
        if O.w2w1:
            A("s_waitcnt lgkmcnt(0)")
            for gi in range(O.w2w1):
                for x in w2_group(gi, f"s{S_PM}", 8192 * gi):
                    A(x)
                    if x.startswith("buffer"): A(f"s_waitcnt vmcnt({O.w1_depth-1})")
        stamp(A, "A released")
        del _stamps[-1:]
    split_wave3(A, oA, w3A)
    A(f"v_cmp_eq_u32 vcc, s{T+11}, v{L}")
    A(f"v_cndmask_b32 v63, 0, v63, vcc")
    A("s_mov_b64 exec, 0xff")
    A(f"ds_write_b32 v62, v63")
    A("s_mov_b64 exec, -1")
    A("s_waitcnt lgkmcnt(0)")
    A("s_barrier")
    stamp(A, "rec landed")
    A(f"s_bitcmp1_b32 s{S_WAVE}, 0")
    A(f"s_cbranch_scc1 L_conv1")
    for var in range(3):
        par = min(var, 1)
        TS = TSETS[par]
        if var == 1:
            stub(A)
            A(f"L_conv1:")
            A(f"s_cmp_eq_u32 s{S_WAVE}, 3")
            A(f"s_cbranch_scc1 L_conv3")
        if var == 2:
            stub(A)
            A("L_conv3:")
        def afrag(buf, a_): return 136 + 32 * buf + 4 * a_
        def bfrag(buf, p, d): return 128 + 64 * buf + 32 * p + 4 * d
        def order(b):
            pairs = [(a_, J) for a_ in range(8) for J in TS if J >= a_]
            if b == 3: return [(a_, J, p) for p in (1, 0) for a_, J in pairs]
            return [(a_, J, p) for a_, J in pairs for p in range(2)]
        def reads(b):
            buf = b & 1
            seq = []; seen = set()
            for a_, J, p in order(b):
                if a_ not in seen:
                    seen.add(a_)
                    for h in range(2):
                        seq.append(f"ds_read_b64_tr_b16 {v(afrag(buf,a_)+2*h,2)}, v{VAA} offset:{512*a_+128*b+16*h}")
                if (J - a_, p) not in seen:
                    seen.add((J - a_, p))
                    seq.append(f"ds_read_b128 {a(bfrag(buf,p,J-a_),4)}, v{VAB+2*b+p} offset:{2048*(J-a_)}")
            return seq
        mark = len(A.items)
        r0 = reads(0)
        for x in r0[:O.fs]: A(x)
        ml = [f"buffer_load_dword v21, v21, {s(SRD_WS,4)}, s{T+9} offen sc1"] + modv_loads(24)
        scal = [f"v_add_f32_dpp v21, v21, v21 quad_perm:[1,0,3,2] row_mask:0xf bank_mask:0xf",
                  f"v_lshlrev_b32 v1, 16, v22",
                  f"v_add_f32_dpp v21, v21, v21 quad_perm:[2,3,0,1] row_mask:0xf bank_mask:0xf",
                  f"v_cvt_pk_bf16_f32 v21, v21, v21",
                  f"v_lshlrev_b32 v21, 16, v21",
                  f"v_add_f32 v5, 1.0, v21",
                  f"v_cvt_pk_bf16_f32 v5, v5, v5",
                  f"v_lshlrev_b32 v5, 16, v5",
                  f"v_readlane_b32 s{T+16}, v21, 0",
                  f"v_readlane_b32 s{T+18}, v21, 8",
                  f"v_readlane_b32 s{T+17}, v5, 4",
                  f"v_readlane_b32 s{T+19}, v5, 12",
                  f"v_mov_b32 v5, s{T+18}",
                  f"v_mul_f32 v7, s{T+17}, v5",
                  f"v_mul_f32 v21, s{T+16}, v5",
                  f"v_mov_b32 v217, s{T+19}"]
        kx = []
        for ti, J in enumerate(TS):
            so = 2048 * J if J < 7 else LDS_STB - LDS_STA
            kx += [f"ds_read_b32 v{VKX+4*ti+k}, v{VAE+k} offset:{2048*J}" for k in range(4)]
            kx += [f"ds_read_b128 {v(VST+4*ti,4)}, v23 offset:{so}", f"ds_read_b128 {v(VST+16+4*ti,4)}, v216 offset:{so}"]
        side = []; side2 = []; side3 = []; ntouch = 0; postg = []
        if var < 2:
            allg = [w1_group(gi, f"s{S_WAVE}", f"s{S_PM}", 224) for gi in range(O.n_w1, 4)] + [w2_group(gi, f"s{S_PM}", 8192 * gi) for gi in range(O.w2w1, min(O.w2e, O.w2side))]
            for x in allg[:len(allg) - O.post]: side.extend(x)
            postg = sum(allg[len(allg) - O.post:], [])
            if O.n_w1 < 4 and O.w2side == 4:
                postg = sum([w1_read(gi) for gi in range(O.n_w1, 4)], []) + ["s_waitcnt lgkmcnt(0)"] + postg
        pre = []
        for ti in range(4):
            d = VKX + 4 * ti + 2
            x = VX0 + 4 * ti
            pre += [f"v_and_b32 v{x}, 0xffff0000, v{d}", f"v_and_b32 v{x+1}, 0xffff0000, v{d+1}",
                    f"v_lshlrev_b32 v{x+2}, 16, v{d}", f"v_lshlrev_b32 v{x+3}, 16, v{d+1}"]
            for r in range(4): pre.append(f"v_fma_f32 v{VGH+4*ti+r}, v{x+r}, v{VST+4*ti+r}, v{VST+16+4*ti+r}")
            for r in range(4): pre.append(f"v_fma_f32 v{VGH+4*ti+r}, v{VGH+4*ti+r}, v7, v21")
        pre.insert(0, "s_waitcnt lgkmcnt(15)")
        started = set()
        if O.dbgC & 1: side = []
        if O.dbgC & 4: pre = []; kx = []
        nside = len(side)
        tailg = w1_group(f"s{S_WAVE}", 3, 3 * 32768, 60)
        mv = modv_ops(24) if O.mvearly else []
        if O.dbgC & 2: mv = []; scal = []
        if O.dbgC & 8: tailg = []
        pre = kx + pre
        for b in range(4):
            nxt = reads(b + 1) if b < 3 else []
            if b == 0: nxt = r0[O.fs:] + nxt
            if b == 2:
                if var == 2: A(f"s_waitcnt vmcnt({2 + 8 * O.mvearly})")
                A("s_barrier")
            for n, (a_, J, p) in enumerate(order(b)):
                acc = ACC + 8 * TS.index(J) + 4 * p
                c = v(acc, 4) if (J, p) in started else "0"
                started.add((J, p))
                if b == 0:
                    need = (v(afrag(0,a_)+2,2) + ",", a(bfrag(0,p,J-a_),4) + ",")
                    while any(x.split()[1] in need for x in nxt): A(nxt.pop(0))
                A(f"v_mfma_f32_16x16x32_bf16 {v(acc,4)}, {v(afrag(b&1,a_),4)}, {a(bfrag(b&1,p,J-a_),4)}, {c}")
                if nxt: A(nxt.pop(0))
                slot = 36 * b + n
                if b == 0 and nxt and len(nxt) > 34 - n: A(nxt.pop(0))
                elif ml: A(ml.pop(0))
                elif side and slot * nside >= (nside - len(side)) * 124: A(side.pop(0))
                elif b == 1 and (scal or mv): A((scal or mv).pop(0))
                elif b >= 2 and pre: A(pre.pop(0))
                if b == 3:
                    if n == 21:
                        for ti, JJ in enumerate(TS):
                            A(f"ds_write_b32 v218, v{ACC+8*ti+7} offset:{256*JJ+4}")
                    elif n == 24:
                        assert not side and not any(x.startswith("ds_read") for x in pre)
                        A("s_waitcnt lgkmcnt(0)")
                        A("s_barrier")
                        for tj, JJ in enumerate(TS):
                            A(f"ds_read_b32 v{U+tj}, v218 offset:{256*JJ}")
                    elif n > 24:
                        for _ in range(2):
                            if tailg: A(tailg.pop(0))
                    elif pre: A(pre.pop(0))
            for x in nxt: A(x)
            if b == 1:
                for x in scal + mv: A(x)
        if var: del _stamps[-(5 if O.fine else 1):]
        stamp(A, "conv mfma")
        for x in side: A(x)
        for x in pre + tailg: A(x)
        for ti in range(4):
            z1, g_, x0 = ACC + 8 * ti + 4, VGH + 4 * ti, VX0 + 4 * ti
            A(f"v_fmac_f32 v{x0}, v{g_}, v{U+ti}")
            for r in range(1, 4):
                A(f"v_fmac_f32 v{x0+r}, v{g_+r}, v{z1+r-1}")
        for ti in range(4):
            for r in range(4):
                A(f"v_dot2_f32_bf16 v{ACC+8*ti+r}, v{VKX+4*ti+(r&1)}, v{1 if r < 2 else 22}, v{ACC+8*ti+r}")
        if O.fine:
            stamp(A, "e:prebar"); stamp(A, "e:bar")
        A(f"s_add_u32 s{T+15}, s{S_CARRY}, {WS_X1C}")
        A(f"s_add_u32 s{T+14}, s{S_CARRY}, {WS_X1}")
        O1, O2 = 136, 144
        for ti in range(4):
            z0, g_, x0 = ACC + 8 * ti, VGH + 4 * ti, VX0 + 4 * ti
            for h in range(2):
                A(f"v_pk_fma_f32 {v(x0+2*h,2)}, {v(g_+2*h,2)}, {v(z0+2*h,2)}, {v(x0+2*h,2)}")
            for h in range(2):
                A(f"v_pk_mul_f32 {v(VST+4*ti+2*h,2)}, {v(x0+2*h,2)}, v[216:217] op_sel:[0,1] op_sel_hi:[1,1]")
            for h in range(2):
                A(f"v_cvt_pk_bf16_f32 v{O2+2*ti+h}, v{VST+4*ti+2*h}, v{VST+4*ti+2*h+1}")
            A(f"ds_write_b64 v219, {v(O2+2*ti,2)} offset:{512*ti}")
        for ti in range(4):
            x0 = VX0 + 4 * ti
            for h in range(2):
                A(f"v_cvt_pk_bf16_f32 v{O1+2*ti+h}, v{x0+2*h}, v{x0+2*h+1}")
            A(f"ds_write_b64 v219, {v(O1+2*ti,2)} offset:{2048+512*ti}")
        A("s_waitcnt lgkmcnt(4)")
        for k in range(2): A(f"ds_read_b128 {v(152+4*k,4)}, v220 offset:{1024*k}")
        A("s_waitcnt lgkmcnt(2)")
        for k in range(2, 4): A(f"ds_read_b128 {v(152+4*k,4)}, v220 offset:{1024*k}")
        for k in range(4):
            A(f"buffer_store_dwordx4 {v(152+4*k,4)}, v{221+(k&1)}, {s(SRD_WS,4)}, s{T+15-(k>>1)} offen sc1")
        if O.fine: stamp(A, "e:stored")
        if postg and O.n_w1 < 4: A(f"s_waitcnt vmcnt({12 + 8 * (4 - O.post)})")
        for x in postg: A(x)
        if O.fine: stamp(A, "e:post")
        if var == 2 and O.post: A("s_waitcnt vmcnt(0)")
        if var < 2: A(f"s_branch L_convdone")
    stub(A, "L_convdone")
    A(f"L_convdone:")
    stamp(A, "x1 stored")
    stamp_flush(A, 0)

VCS, VSBW = 64, 80
ACC1 = 128
VXR = 236

def w2frag(u, e):
    return (128 + 8 * e if e < 16 else 8 * (e - 16)) + 4 * u

def w2_setup(A):
    dma_voff(A, VW2S, VW2S + 1, 1024, 64)
    A(f"v_add_u32 v{VW2S+1}, {8*1024-1024}, v{VW2S+1}")
    A(f"v_add_u32 v{VW2S+2}, {2*(8*1024-1024)}, v{VW2S}")
    A(f"v_add_u32 v{VW2S+3}, {2*(8*1024-1024)}, v{VW2S+1}")
    tr_addr32(A, VW2 + 2, 64, 4)
    A(f"s_lshl_b32 s{S_TMP}, s{S_WAVE}, 5")
    A(f"v_xor_b32 v{VW2+2}, s{S_TMP}, v{VW2+2}")
    A(f"v_xor_b32 v{VW2+3}, 32, v{VW2+2}")
    A(f"v_xor_b32 v{VW2+4}, 64, v{VW2+2}")
    A(f"v_xor_b32 v{VW2+5}, 96, v{VW2+2}")
    A(f"s_mul_i32 s{S_PS}, s{S_WAVE}, {448*1024}")
    A(f"s_lshl_b32 s{S_TMP}, s{S_J}, 7")
    A(f"s_add_u32 s{S_PS}, s{S_PS}, s{S_TMP}")

def w2_group(gi, ldsreg, ldsoff, src=None):
    src = src or f"s{S_PS}"
    return [f"s_add_u32 s{S_TMP}, s{S_PE}, {gi}",
            f"s_add_u32 m0, {ldsreg}, {ldsoff}",
            f"s_cmp_ge_u32 s{S_TMP}, 7",
            f"s_cselect_b32 s{S_PO}, 7, 0",
            f"s_sub_u32 s{S_TMP}, s{S_TMP}, s{S_PO}",
            f"s_lshl_b32 s{S_PO}, s{S_TMP}, 16",
            f"s_add_u32 s{S_PO}, s{S_PO}, {src}"] + pieces8(VW2S, SRD_W2, 32768)

def w2_addr(A, base):
    for k in range(4): A(f"v_add_u32 v{VW2H+k}, {base}, v{VW2+2+k}")

def w2_read(gi, off):
    return [f"ds_read_b64_tr_b16 {a(w2frag(u, 4*gi+e)+2*h,2)}, v{VW2H+2*u+h} offset:{off+2048*e+1024*h}" for e in range(4) for u in range(2) for h in range(2)]

def gemm1_setup(A):
    L = V_LANE
    dma_voff(A, 56, 57, 4096, 5)
    A(f"v_bfe_u32 v5, v56, 6, 1")
    A(f"v_lshl_add_u32 v58, v5, 6, v56")
    A(f"v_lshl_add_u32 v59, v5, 6, v57")
    A(f"v_add_u32 v57, {8*4096-1024}, v57")
    A(f"v_add_u32 v59, {8*4096-1024}, v59")
    A(f"s_lshl_b32 s{T}, s{S_WAVE}, 16")
    A(f"s_lshl_b32 s{T+1}, s{S_RB}, 8")
    A(f"s_add_u32 s{T}, s{T}, s{T+1}")
    A(f"s_and_b32 s{T+2}, s{S_C}, 1")
    A(f"s_lshl_b32 s{T+2}, s{T+2}, 7")
    A(f"s_add_u32 s{T+2}, s{T+2}, {WS_X1}")
    A(f"s_cmp_ge_u32 s{S_C}, 14")
    A(f"s_cselect_b32 s{T+2}, s{T+2}, {WS_X1C}")
    A(f"s_add_u32 s{T}, s{T}, s{T+2}")
    A(f"s_add_u32 s{SRD_K}, s{SRD_WS}, s{T}")
    A(f"s_addc_u32 s{SRD_K+1}, s{SRD_WS+1}, 0")
    A(f"v_add_u32 v60, 128, v56")
    A(f"v_add_u32 v61, 128, v57")
    A(f"s_lshl_b32 s{T+2}, s{S_WAVE}, 11")
    A(f"s_lshl_b32 s{T+5}, s{S_ROT}, 18")
    tr_addr32(A, 8, 5, 8)
    A(f"v_xor_b32 v9, 64, v8")
    A(f"v_add_u32 v10, 0x10000, v8")
    A(f"v_add_u32 v11, 0x10000, v9")
    A(f"v_lshlrev_b32 v18, 4, v{L}")
    A(f"s_mul_i32 s{T+3}, s{S_RB}, {4*112*1024}")
    A(f"s_lshl_b32 s{T+4}, s{S_C}, 13")
    A(f"s_add_u32 s{T+3}, s{T+3}, s{T+4}")
    A(f"s_add_u32 s{T+3}, s{T+3}, s{T+2}")
    A(f"s_add_u32 s{T+3}, s{T+3}, {WS_H}")
    tr_addr32(A, 44, 5, 4)
    A(f"s_add_u32 s{T+6}, s{T+2}, {LDS_XR}")
    A(f"v_add_u32 v44, s{T+6}, v44")
    A(f"v_xor_b32 v45, 32, v44")
    A(f"v_xor_b32 v42, 64, v44")
    A(f"v_xor_b32 v43, 96, v44")
    A(f"s_lshl_b32 s{T+7}, s{S_RB}, 11")
    A(f"s_add_u32 s{T+7}, s{T+7}, {WS_ST2}")
    A(f"s_lshr_b32 s{T+8}, s{S_RT}, 4")
    A(f"s_lshl_b32 s{T+8}, s{T+8}, 1")
    A(f"s_bfe_u32 s{T+9}, s{S_RT}, 0x20002")
    A(f"s_lshl_b32 s{T+9}, s{T+9}, 6")
    A(f"s_add_u32 s{T+8}, s{T+8}, s{T+9}")
    A(f"s_lshl_b32 s{T+8}, s{T+8}, 7")
    A(f"s_add_u32 s{T+9}, s{T+8}, {WS_SYNC + 128*FLG_3}")
    A(f"s_add_u32 s{T+8}, s{T+8}, {WS_SYNC + 128*FLG_4}")
    A(f"v_min_u32 v14, 13, v{L}")
    A(f"v_and_b32 v5, 1, v14")
    A(f"v_lshrrev_b32 v14, 1, v14")
    A(f"v_lshlrev_b32 v14, 10, v14")
    A(f"v_lshl_add_u32 v14, v5, 7, v14")

def modv_loads(M):
    L = [f"v_lshlrev_b32 v{M+20}, 4, v0"]
    L += [f"s_mov_b32 s{T+p}, {WS_MODP + 12288*p + 1536*4}" for p in range(4)]
    L += [f"buffer_load_dwordx4 {v(M+4*p,4)}, v{M+20}, {s(SRD_WS,4)}, s{T+p} offen sc1" for p in range(4)]
    L += [f"v_lshlrev_b32 v{M+21}, 2, v{V_LANE}", f"s_lshl_b32 s{T+4}, s{S_J}, 8"]
    L += [f"s_add_u32 s{T+p}, s{T+4}, {WS_MODP + 12288*p + 2560*4}" for p in range(4)]
    L += [f"buffer_load_dword v{M+16+p}, v{M+21}, {s(SRD_WS,4)}, s{T+p} offen sc1" for p in range(4)]
    return L

def modv_ops(M):
    L = [f"s_lshr_b32 s{T+5}, s{S_WAVE}, 1",
         f"v_cvt_f32_u32 v{M+22}, s{T+5}",
         f"s_xor_b32 s{T+5}, s{T+5}, 1",
         f"s_lshl_b32 s{T+5}, s{T+5}, 10",
         f"s_add_u32 s{T+5}, s{T+5}, {LDS_MODV}",
         f"s_lshl_b32 s{T+4}, s{S_ROT}, 7",
         f"v_lshrrev_b32 v{M+20}, 1, v{M+20}",
         f"v_subrev_u32 v{M+20}, s{T+4}, v{M+20}",
         f"v_and_b32 v{M+20}, 0x3ff, v{M+20}",
         f"v_add_u32 v{M+20}, s{T+5}, v{M+20}"]
    for k in range(4): L += [f"v_add_f32 v{M+k}, v{M+k}, v{M+4+k}", f"v_add_f32 v{M+8+k}, v{M+8+k}, v{M+12+k}"]
    for k in range(4): L += [f"v_add_f32 v{M+k}, v{M+k}, v{M+8+k}"]
    L += [f"v_add_f32 v{M+16}, v{M+16}, v{M+17}", f"v_add_f32 v{M+18}, v{M+18}, v{M+19}"]
    for k in range(2): L += [f"v_cvt_pk_bf16_f32 v{M+4+k}, v{M+2*k}, v{M+2*k+1}"]
    L += [f"v_add_f32 v{M+16}, v{M+16}, v{M+18}"]
    for k in range(2): L += [f"v_lshlrev_b32 v{M+2*k}, 16, v{M+4+k}", f"v_and_b32 v{M+2*k+1}, 0xffff0000, v{M+4+k}"]
    L += [f"v_cvt_pk_bf16_f32 v{M+16}, v{M+16}, v{M+16}"]
    for k in range(4): L += [f"v_add_f32 v{M+k}, v{M+22}, v{M+k}"]
    L += [f"v_lshlrev_b32 v{M+16}, 16, v{M+16}"]
    for k in range(2): L += [f"v_cvt_pk_bf16_f32 v{M+4+k}, v{M+2*k}, v{M+2*k+1}"]
    L += [f"v_mul_f32 v{M+16}, 0xbf317218, v{M+16}",
          f"ds_write_b64 v{M+20}, {v(M+4,2)}",
          f"v_add_u32 v{M+21}, {LDS_GB}, v{M+21}",
          f"ds_write_b32 v{M+21}, v{M+16}",
          f"v_mov_b32 v{M+17}, 0",
          f"v_and_b32 v{M+18}, 60, v{M+21}",
          f"v_add_u32 v{M+18}, {LDS_MODV+2048}, v{M+18}",
          f"ds_write_b32 v{M+18}, v{M+17}"]
    return L

def window3(A):
    L = V_LANE
    M = 168
    A(f"v_xor_b32 v7, v6, v4")
    A(f"v_and_b32 v7, 1, v7")
    A(f"v_lshrrev_b32 v45, 2, v6")
    A(f"v_or_b32 v7, v7, v45")
    A(f"v_lshrrev_b32 v45, 1, v6")
    A(f"v_lshlrev_b32 v45, 10, v45")
    A(f"v_lshrrev_b32 v46, 1, v4")
    A(f"v_lshl_add_u32 v45, v46, 4, v45")
    A(f"v_add_u32 v45, {LDS_MODV}, v45")
    A(f"v_cmp_eq_u32 vcc, 0, v7")
    A(f"v_mov_b32 v47, {LDS_MODV+2048}")
    A(f"v_cndmask_b32 v47, v47, v45, vcc")
    A(f"v_mov_b32 v46, 32")
    A(f"v_cndmask_b32 v46, 0, v46, vcc")
    w2_addr(A, f"s{S_PM}")
    gemm1_setup(A)
    A(f"s_waitcnt vmcnt({8 * O.post})")
    A("s_barrier")
    stamp(A, "x1 acked")
    def rd():
        for gi in range(4):
            if gi == 4 - O.post: A("s_waitcnt vmcnt(0)")
            for x in w2_read(gi, 8192 * gi): A(x)
        A(f"s_cmp_eq_u32 s{S_WAVE}, 2")
        A(f"s_cbranch_scc0 L_now3w2")
        A(f"s_lshl_b32 s{T+11}, s{S_J}, 7")
        A(f"s_add_u32 s{T+11}, s{T+11}, {3*448*1024}")
        A("s_waitcnt lgkmcnt(0)")
        for gi in range(4):
            for x in w2_group(gi, f"s{S_PM}", 8192 * gi, f"s{T+11}"): A(x)
        A("L_now3w2:")
    def fin():
        if O.lf2: lf_signal(A, LF_2)
        else:
            signal_issue(A, CNT_2)
        for gi in range(4):
            for x in w1_read(gi): A(x)
        w2_addr(A, 65536)
        if not O.lf2: signal_finish(A, FLG_2)
    split_wave3(A, rd, fin)
    stamp(A, "modv")
    NB = 8
    def rdv(e):
        A(f"ds_read_b128 {v(192+4*(e%NB),4)}, v47")
        A(f"v_add_u32 v47, v47, v46")
    for e in range(NB): rdv(e)
    for e in range(32):
        A(f"v_mfma_f32_16x16x32_bf16 v[48:51], {a(4*e,4)}, {v(192+4*(e%NB),4)}, {'0' if e == 0 else 'v[48:51]'}")
        if e + NB < 32: rdv(e + NB)
    A(f"v_lshrrev_b32 v4, 4, v{L}")
    A(f"v_and_b32 v6, 15, v{L}")
    A(f"s_lshl_b32 s{T+13}, s{S_WAVE}, 9")
    A(f"s_add_u32 s{T+13}, s{T+13}, {LDS_CS}")
    A(f"v_and_b32 v5, 1, v6")
    A(f"v_lshlrev_b32 v5, 6, v5")
    A(f"v_lshl_add_u32 v5, v4, 4, v5")
    A(f"v_lshrrev_b32 v7, 1, v6")
    A(f"v_lshl_add_u32 v5, v7, 8, v5")
    A(f"v_add_u32 v5, s{T+13}, v5")
    A(f"s_mov_b32 exec_lo, 0x000f000f")
    A(f"s_mov_b32 exec_hi, 0x000f000f")
    A(f"ds_write_b128 v5, v[48:51]")
    A("s_mov_b64 exec, -1")
    A(f"v_lshrrev_b32 v5, 5, v{L}")
    A(f"v_lshlrev_b32 v5, 4, v5")
    A(f"v_add_u32 v5, s{T+13}, v5")
    A("s_waitcnt lgkmcnt(0)")
    for k in range(4):
        A(f"ds_read_b128 {v(VCS+4*k,4)}, v5 offset:{32*k}")
        A(f"ds_read_b128 {v(VSBW+4*k,4)}, v5 offset:{256+32*k}")
    A(f"v_mov_b32 v6, {hex(NLOG2E)}")
    for r in range(0, 16, 2):
        A(f"v_pk_mul_f32 {v(VSBW+r,2)}, {v(VSBW+r,2)}, v[6:7] op_sel_hi:[1,0]")
    stamp(A, "colsums")
    A(f"s_cmp_eq_u32 s{S_WAVE}, {O.poll2}")
    A(f"s_cbranch_scc0 L_np2")
    if O.lf2: lf_poll(A, LF_2, 100, O.isleep2)
    else: poll(A, 16, 128, WS_SYNC + 128 * FLG_2)
    A("L_np2:")
    A("s_waitcnt vmcnt(0)")
    A("s_barrier")
    stamp(A, "2 released")

def silu_ops(acc, rin, mr, tmp, out, packed=True):
    L = []
    W = O.sw; tmp = 48 if W <= 8 else 112
    for g0 in range(0, 16, W):
        for r in range(0, W, 2):
            L.append(f"v_pk_fma_f32 {v(tmp+r,2)}, {v(VCS+g0+r,2)}, {v(rin,2)}, {v(VSBW+g0+r,2)} op_sel:[0,1,0] op_sel_hi:[1,1,1]")
        for r in range(0, W, 2):
            L.append(f"v_pk_fma_f32 {v(acc+g0+r,2)}, {v(acc+g0+r,2)}, {v(rin,2)}, {v(tmp+r,2)} op_sel:[0,0,0] op_sel_hi:[1,0,1]")
        for i in range(W): L.append(f"v_exp_f32 v{tmp+i}, v{acc+g0+i}")
        for r in range(0, W, 2): L.append(f"v_pk_add_f32 {v(tmp+r,2)}, {v(tmp+r,2)}, 1.0 op_sel_hi:[1,0]")
        for i in range(W): L.append(f"v_rcp_f32 v{tmp+i}, v{tmp+i}")
        for r in range(0, W, 2): L.append(f"v_pk_mul_f32 {v(tmp+r,2)}, {v(tmp+r,2)}, {v(acc+g0+r,2)}")
        for r in range(0, W, 2): L.append(f"v_cvt_pk_bf16_f32 v{out+(g0+r)//2}, v{tmp+r}, v{tmp+r+1}")
    return L

def mix(x, y):
    out = []; k = 0
    for i, a_ in enumerate(x):
        out.append(a_)
        while k < len(y) and k * len(x) < (i + 1) * len(y):
            out.append(y[k]); k += 1
    return out + y[k:]

def cost(ins):
    return 8 if ins.startswith(("v_exp", "v_rcp")) else 4

def own_flag(A, base):
    A(f"s_lshl_b32 s{S_TMP}, s{S_WG}, 7")
    A(f"s_add_u32 s{S_TMP}, s{S_TMP}, {WS_SYNC + 128*base}")
    A("s_mov_b64 exec, 1")
    A(f"v_mov_b32 v252, 0")
    A(f"v_mov_b32 v253, 1")
    A(f"buffer_store_dword v253, v252, {s(SRD_WS,4)}, s{S_TMP} offen sc1")
    A("s_mov_b64 exec, -1")

def recheck(A, cmp, reload_):
    u = uid()
    A(f"s_mov_b32 s{S_SPIN}, 0x80000")
    A(f"L_rc{u}:")
    for x in cmp: A(x)
    A(f"s_cbranch_vccz L_rcx{u}")
    A(f"s_sleep {O.rs}")
    for x in reload_: A(x)
    A(f"s_sub_u32 s{S_SPIN}, s{S_SPIN}, 1")
    A("s_waitcnt vmcnt(0)")
    A(f"s_cbranch_scc0 L_rc{u}")
    A(f"L_rcx{u}:")

def gemm1(A):
    L = V_LANE
    XF = 192; VRS = 96; SG = 104; TMP, OUT = 20, 24
    A("; ---- GEMM 1 ----")
    def chunk(n, src=None):
        h = 4 * (n >> 3)
        return [f"s_add_u32 m0, s{T+2}, {8192*n}",
                f"s_and_b32 s{T+5}, s{T+5}, 0x1fffff",
                f"buffer_load_dwordx4 v{56+h}, {s(SRD_K,4)}, s{T+5} offen sc1 lds",
                f"buffer_load_dwordx4 v{57+h}, {s(SRD_K,4)}, s{T+5} offen offset:1024 sc1 lds",
                f"s_add_u32 s{T+5}, s{T+5}, 262144"]
    xres = [f"s_lshl_b32 s{T+12}, s{S_J}, 18",
            f"s_lshl_b32 s{T+13}, s{S_WAVE}, 16",
            f"s_add_u32 s{T+12}, s{T+12}, s{T+13}",
            f"s_lshl_b32 s{T+13}, s{S_RT}, 6",
            f"s_add_u32 s{T+12}, s{T+12}, s{T+13}",
            f"s_add_u32 m0, s{T+2}, {LDS_XR}",
            f"s_add_u32 s{T+12}, s{T+12}, {WS_X1}",
            f"buffer_load_dwordx4 v58, {s(SRD_WS,4)}, s{T+12} offen sc1 lds",
            f"buffer_load_dwordx4 v59, {s(SRD_WS,4)}, s{T+12} offen offset:1024 sc1 lds"]
    def w3w2():
        for gi in range(O.w2e):
            for x in w2_read(gi, 8192 * gi): A(x)
        A("s_waitcnt lgkmcnt(0)")
    w2b = lambda gi: w2_group(4 + gi, f"s{S_PM}", 8192 * gi if gi < 2 else 65536)
    A(f"s_lshl_b32 s{S_PM}, s{S_WAVE}, 14")
    A(f"s_cmp_ge_u32 s{S_C}, 14")
    A(f"s_cbranch_scc1 L_stat")
    for n in range(4):
        for x in chunk(n, WS_X1C): A(x)
    only_wave3(A, w3w2)
    def xread(st, e):
        return [f"ds_read_b64_tr_b16 {v(XF+4*((2*e+(st&1))%8)+2*h,2)}, v{8+st} offset:{2048*e+512*h}" for h in range(2)]
    def hstore(st, out):
        return [f"s_add_u32 s{T+4}, s{T+3}, {112*1024*st}"] + [f"buffer_store_dwordx4 {v(out+4*k,4)}, v18, {s(SRD_WS,4)}, s{T+4} offen offset:{1024*k} {['sc1', 'sc0 sc1', 'sc1 nt'][O.hs]}" for k in range(2)]
    def mf(st, e):
        acc = ACC1 + 16 * st
        return f"v_mfma_f32_32x32x16_bf16 {v(acc,16)}, {a(4*e,4)}, {v(XF+4*((2*e+(st&1))%8),4)}, {'0' if e == 0 else v(acc,16)}"
    sld = [f"buffer_load_dwordx4 {v(SG+4*h,4)}, v18, {s(SRD_WS,4)}, s{T+7} offen offset:{1024*h} sc1" for h in range(2)]
    side = sum([chunk(n, WS_X1C + 128 * (n >> 3)) for n in range(4, 16)], []) + xres
    ops = [1] * 8
    def emit(x, tile=0):
        A(x)
        if x.startswith("buffer"): ops.append(tile)
    def put(k):
        for _ in range(k):
            if side: emit(side.pop(0), 1)
    def ckpt(need, name=None):
        while sum(ops) < need: put(1)
        pos = [k for k, t in enumerate(ops) if t][need - 1]
        A(f"s_waitcnt vmcnt({len(ops) - 1 - pos})")
        A("s_barrier")
        if name: stamp(A, name)
    LOOK = O.look
    gates = {0: 4, 8: 8, 16: 16, 32: 20, 40: 24, 48: 34} if O.prog else {0: 4, 8: 8, 16: 16, 32: 34}
    ckpt(4, "ckpt0")
    for n in range(LOOK):
        for st in range(2):
            for x in xread(st, n): A(x)
    for e in range(32):
        n = e + LOOK
        if n in gates:
            ckpt(gates[n], "half1" if n == 32 else None)
            if n == 32:
                for x in sld: emit(x)
        if O.wmerge: A(f"s_waitcnt lgkmcnt({4 * (LOOK - 1)})")
        for st in range(2):
            A(mf(st, e))
            for x in xread(st + 2 * (n >> 5), n & 31): A(x)
            put(O.pa0 if e < 8 else O.pa)
    def spread(h):
        Ls = []
        for k in range(2):
            Ls += [f"v_mov_b32 v{VRS+4*h+k}, v{SG+4*h+2*k}", f"v_mov_b32 v{VRS+4*h+2+k}, v{SG+4*h+2*k}"]
        for k in range(2):
            Ls += [f"v_permlane32_swap_b32 v{VRS+4*h+k}, v{VRS+4*h+2+k}"]
        return Ls
    def scheck(h):
        recheck(A, [f"v_and_b32 v{TMP}, v{SG+4*h+1}, v{SG+4*h+3}", f"v_cmp_ne_u32 vcc, 1, v{TMP}"], [sld[h]])
    xr = [f"ds_read_b64_tr_b16 {v(VXR+2*k,2)}, v{44-(k&2)+(k&1)} offset:{1024*(k&1)}" for k in range(4)]
    grp = lambda gi: w2_group(gi, f"s{S_PM}", 8192 * (gi & 1))
    E = O.w2e
    late = grp(E) + grp(E + 1) + xr
    rds = []
    w2_addr(A, f"s{S_PM}")
    def step(e, st):
        if st == 2:
            if e + LOOK + 32 in gates: ckpt(gates[e + LOOK + 32])
            A(f"s_waitcnt lgkmcnt({4 * min(LOOK - 1, 31 - e)})")
        A(mf(st, e))
        if e + LOOK < 32:
            for x in xread(st, e + LOOK): A(x)
    todo = [(e, st) for e in range(32) for st in (2, 3)]
    nst = None
    while todo:
        e, st = todo.pop(0)
        if (e, st) == (16, 2): stamp(A, "B16")
        step(e, st)
        if side: put(2)
        elif e > 48 - 32 - LOOK and nst is not None and late:
            for _ in range(O.pb):
                if late and not late[0].startswith("ds_read"): emit(late.pop(0))
        if (e, st) == (O.sck, 3):
            scheck(0)
            stamp(A, "stats0")
            for x in spread(0): A(x)
            for q in range(2):
                prev = ""
                for x in silu_ops(ACC1 + 16 * q, VRS + 2 * q, VRS + 2 * q + 1, TMP, OUT + 8 * q, True) + hstore(q, OUT + 8 * q):
                    if O.ovl and x[:5] in ("v_exp", "v_rcp") and prev[:5] != x[:5] and todo[0] != (16, 2):
                        step(*todo.pop(0))
                    emit(x, 0); prev = x
            nst = len(ops)
            stamp(A, "burst0")
        if (e, st) == (O.f0at, 3):
            A(f"s_waitcnt vmcnt({len(ops) - nst})")
            A("s_barrier")
            only_wave3(A, lambda: own_flag(A, FLG_4))
    for x in late: emit(x)
    stamp(A, "g1 mfma")
    scheck(1)
    for x in spread(1): A(x)
    for st in range(2, 4):
        for x in silu_ops(ACC1 + 16 * st, VRS + 2 * st, VRS + 2 * st + 1, TMP, OUT + 8 * (st & 1), True): A(x)
        if st == 3: A(f"buffer_load_dword v12, v14, {s(SRD_WS,4)}, s{T+8} offen sc1")
        for x in hstore(st, OUT + 8 * (st & 1)): A(x)
    stamp(A, "H stored")
    A("s_branch L_g1done")
    stub(A)
    A("L_stat:")
    del _stamps[-7:]
    for n in range(5):
        for x in chunk(n, WS_X1): A(x)
    tr_addr16(A, 12, 5)
    A(f"s_lshl_b32 s{T+14}, s{S_WAVE}, 5")
    A(f"v_xor_b32 v12, s{T+14}, v12")
    ONES, GR, SM = 36, ACC1, ACC1 + 4
    for i in range(4): A(f"v_mov_b32 v{ONES+i}, s{S_ONES}")
    for c in range(4):
        A(f"s_waitcnt vmcnt({6 if c == 0 else 4 * (3 - c)})")
        A("s_barrier")
        if c == 0:
            stamp(A, "ckpt0")
            for n in range(5, 8):
                for x in chunk(n, WS_X1): A(x)
        for e in range(4 * c, 4 * c + 4):
            for h in range(2):
                A(f"ds_read_b64_tr_b16 {v(XF+4*(e%4)+2*h,2)}, v12 offset:{4096*e+512*h}")
        for e in range(4 * c, 4 * c + 4):
            f = v(XF + 4 * (e % 4), 4)
            A(f"v_mfma_f32_16x16x32_bf16 {v(GR,4)}, {f}, {f}, {'0' if e == 0 else v(GR,4)}")
            A(f"v_mfma_f32_16x16x32_bf16 {v(SM,4)}, {v(ONES,4)}, {f}, {'0' if e == 0 else v(SM,4)}")
    stamp(A, "half1")
    for e in ("stats0", "burst0", "B16"): stamp(A, e)
    for r, m in ((1, "0x22222222"), (2, "0x44444444"), (3, "0x88888888")):
        A(f"s_mov_b32 vcc_lo, {m}")
        A(f"s_mov_b32 vcc_hi, {m}")
        A(f"v_cndmask_b32 v{GR}, v{GR}, v{GR+r}, vcc")
    ln_finish(A, [(SM, GR, GR + 8, GR + 10)], GR + 1, hex(NLOG2E))
    A(f"v_mov_b32 v{GR+9}, 1")
    A(f"v_mov_b32 v{GR+11}, 1")
    A(f"v_and_b32 v5, 15, v{L}")
    A(f"v_lshlrev_b32 v5, 4, v5")
    A(f"s_and_b32 s{T+13}, s{S_C}, 1")
    A(f"s_lshl_b32 s{T+13}, s{T+13}, 10")
    A(f"s_lshl_b32 s{T+14}, s{S_WAVE}, 8")
    A(f"s_add_u32 s{T+13}, s{T+13}, s{T+14}")
    A(f"s_add_u32 s{T+13}, s{T+13}, s{T+7}")
    A(f"s_mov_b32 exec_lo, 0x00f0000f")
    A(f"s_mov_b32 exec_hi, 0xf0000f00")
    A(f"buffer_store_dwordx4 {v(GR+8,4)}, v5, {s(SRD_WS,4)}, s{T+13} offen sc1")
    A("s_mov_b64 exec, -1")
    stamp(A, "g1 mfma")
    for x in xres: A(x)
    only_wave3(A, w3w2)
    A("s_waitcnt vmcnt(0)")
    A("s_barrier")
    w2_addr(A, f"s{S_PM}")
    for x in grp(E) + grp(E + 1) + xr: A(x)
    if E < 4:
        A("s_waitcnt vmcnt(0)")
        for x in w2_read(E, 0) + w2_read(E + 1, 8192): A(x)
        A("s_waitcnt lgkmcnt(0)")
        for x in grp(E + 2) + grp(E + 3): A(x)
    if O.stq:
        A("v_mov_b32 v12, 0")
        recheck(A, [f"v_cmp_ne_u32 vcc, 1, v12"], [f"s_sleep {O.stq & 127}", f"buffer_load_dword v12, v14, {s(SRD_WS,4)}, s{T+8+(O.stq>>7)} offen sc1"])
    A(f"buffer_load_dword v12, v14, {s(SRD_WS,4)}, s{T+8} offen sc1")
    A("s_waitcnt vmcnt(0)")
    stamp(A, "H stored")
    stub(A, "L_g1done")
    A("L_g1done:")

def gemm2(A):
    L = V_LANE
    ACC = 32; HF = 96; NB = 32
    fl = lambda r, sr: f"buffer_load_dword v{r}, v14, {s(SRD_WS,4)}, s{sr} offen sc1"
    w2_addr(A, f"s{S_PM}")
    A(f"v_lshrrev_b32 v5, 5, v{L}")
    A(f"v_lshlrev_b32 v5, 4, v5")
    A(f"s_lshl_b32 s{T+1}, s{S_WAVE}, 6")
    A(f"s_add_u32 s{T+1}, s{T+1}, {LDS_GB}")
    A(f"v_add_u32 v5, s{T+1}, v5")
    A(f"s_mov_b32 s{T}, s{S_RT}")
    A(f"s_mul_i32 s{T+2}, s{T}, {112*1024}")
    A(f"v_lshlrev_b32 v6, 4, v{L}")
    A(f"v_add_u32 v3, s{T+2}, v6")
    A(f"v_add_u32 v4, {2*112*1024}, v3")
    A(f"s_mul_i32 s{T+4}, s{S_WAVE}, {28*1024}")
    A(f"s_add_u32 s{T+4}, s{T+4}, {WS_H}")
    A(f"s_add_u32 s{T+5}, s{T+4}, {28*1024}")
    A(f"s_lshl_b32 s{T+2}, s{S_PE}, 12")
    A(f"s_add_u32 s{T+2}, s{T+2}, s{T+4}")
    A("s_waitcnt vmcnt(5)")
    for gi in range(2):
        for x in w2_read((4 if O.w2e else 2) + gi, 8192 * gi): A(x)
    def hload(n):
        st, e = divmod(n, 28)
        Ls = [f"buffer_load_dwordx4 {v(HF+4*(n%NB),4)}, v{3+st}, {s(SRD_WS,4)}, s{T+2} offen offset:{1024*(e&3)} {['sc1', 'sc0 sc1', 'sc1 nt'][O.hl]}"]
        if e % 4 == 3:
            Ls += [f"s_add_u32 s{T+2}, s{T+2}, 4096", f"s_cmp_eq_u32 s{T+2}, s{T+5}", f"s_cselect_b32 s{T+2}, s{T+4}, s{T+2}"]
        return Ls
    def first():
        recheck(A, [f"v_cmp_ne_u32 vcc, 1, v12"], [fl(12, T + 8)])
        stamp(A, "F0 seen")
        for n in range(O.hp0):
            for x in hload(n): A(x)
    if O.early0: first()
    A(f"s_waitcnt vmcnt({O.hp0 if O.early0 else 0})")
    A("s_barrier")
    stamp(A, "H acked")
    def f1():
        A(f"s_cmp_ge_u32 s{S_C}, 14")
        A(f"s_cbranch_scc1 L_nof1")
        own_flag(A, FLG_3)
        A("L_nof1:")
    only_wave3(A, f1)
    if not O.early0: first()
    for n in range(O.hp0, O.hpre):
        for x in hload(n): A(x)
        if n == O.f1pos and O.hpre > O.f1pos: A(fl(13, T + 9))
    if O.w2e == 0:
        for x in w2_group(4, f"s{S_PM}", 65536) + w2_group(5, f"s{S_PM}", 65536 + 8192) + ["s_waitcnt lgkmcnt(0)"] + w2_group(6, f"s{S_PM}", 0): A(x)
    elif not O.g6late:
        for x in w2_group(6, f"s{S_PM}", 65536): A(x)
    for k in range(2):
        A(f"ds_read_b128 {v(16+4*k,4)}, v5 offset:{32*k}")
    A(f"v_add_u32 v7, s{S_PM}, v6")
    for k in range(1, 4):
        A(f"s_xor_b32 s{T+6}, s{S_WAVE}, {k}")
        A(f"s_lshl_b32 s{T+6}, s{T+6}, 14")
        A(f"v_add_u32 v{8+k}, s{T+6}, v6")
    A(f"v_and_b32 v8, 31, v{L}")
    A(f"v_lshlrev_b32 v8, 10, v8")
    A(f"v_lshrrev_b32 v5, 5, v{L}")
    A(f"v_lshl_add_u32 v8, v5, 4, v8")
    A(f"s_lshl_b32 s{T+7}, s{T}, 15")
    A(f"s_lshl_b32 s{T+6}, s{S_J}, 7")
    A(f"s_add_u32 s{T+7}, s{T+7}, s{T+6}")
    A(f"s_lshl_b32 s{T+6}, s{S_WAVE}, 5")
    A(f"s_add_u32 s{T+7}, s{T+7}, s{T+6}")
    A(f"s_add_u32 s{T+6}, s{T+7}, {2*32768}")
    def red_write(st):
        return [f"ds_write_b128 v7, {v(ACC+32*(k>>1)+16*st+8*(k&1)+4*q,4)} offset:{6144*st+2048*(k-1)+1024*q}" for k in range(1, 4) for q in range(2)]
    def red_finish(st, PP, packed):
        P = PP[0]
        own = ACC + 16 * st
        Ls = [f"ds_read_b128 {v(PP[k]+4*q,4)}, v{9+k} offset:{6144*st+2048*k+1024*q}" for k in range(3) for q in range(2)]
        for k in range(4):
            Ls += [f"v_lshlrev_b32 v{24+2*k}, 16, v{VXR+4*st+k}", f"v_and_b32 v{25+2*k}, 0xffff0000, v{VXR+4*st+k}"]
        if packed:
            Ls += [f"v_pk_add_f32 {v(own+r,2)}, {v(own+r,2)}, {v(PP[k]+r,2)}" for k in range(3) for r in range(0, 8, 2)]
            Ls += [f"v_pk_fma_f32 {v(own+r,2)}, {v(own+r,2)}, {v(16+r,2)}, {v(24+r,2)}" for r in range(0, 8, 2)]
        else:
            Ls += [f"v_add_f32 v{own+r}, v{own+r}, v{PP[k]+r}" for k in range(3) for r in range(8)]
            Ls += [f"v_fma_f32 v{own+r}, v{own+r}, v{16+r}, v{24+r}" for r in range(8)]
        if O.err:
            import struct
            Ls += [f"v_mul_f32 v{own+r}, {hex(struct.unpack('<I', struct.pack('<f', 1 + O.err / 1000))[0])}, v{own+r}" for r in range(8)]
        Ls += [f"v_cvt_pk_bf16_f32 v{P+r//2}, v{own+r}, v{own+r+1}" for r in range(0, 8, 2)]
        Ls += [f"v_permlane32_swap_b32 v{P}, v{P+2}", f"v_permlane32_swap_b32 v{P+1}, v{P+3}"]
        Ls += [f"buffer_store_dwordx4 {v(P,4)}, v8, {s(SRD_OUT,4)}, s{T+7-st} offen{['', ' sc1', ' nt', ' sc0 sc1', ' sc1 nt'][(O.om >> (4 * st)) & 15]}"]
        return Ls
    shadow = []
    nxt = O.hpre
    mark = len(A.items)
    for n in range(56):
        st, e = divmod(n, 28)
        for u in range(2):
            acc = ACC + 32 * u + 16 * st
            A(f"v_mfma_f32_32x32x16_bf16 {v(acc,16)}, {a(w2frag(u,e),4)}, {v(HF+4*(n%NB),4)}, {'0' if e == 0 else v(acc,16)}")
            if n == O.f1pos - 1 and u == 1:
                recheck(A, [f"v_cmp_ne_u32 vcc, 1, v13"], [fl(13, T + 9)])
                stamp(A, "F1 seen")
            open_ = (n, u) >= (O.f1pos - 1, 1)
            for _ in range(2 if open_ else 1):
                if nxt < (56 if open_ else 28) and nxt < n + NB and nxt - n < O.hmax and (u == 0 or n % 2 == 0 or open_):
                    for x in hload(nxt): A(x)
                    nxt += 1
                    if nxt == O.f1pos + 1: A(fl(13, T + 9))
            for _ in range(2):
                if shadow: A(shadow.pop(0))
        if O.g6late and n == O.g6late:
            for x in w2_group(6, f"s{S_PM}", 65536): A(x)
            mark = len(A.items)
        if n in (0, 6, 12): stamp(A, f"n{n}")
        if n == 29: shadow = red_write(0)
        if n == O.red0:
            A("s_waitcnt lgkmcnt(0)")
            A("s_barrier")
            shadow = red_finish(0, [ACC + 8, ACC + 32, ACC + 40], False)
        if n == O.g6at:
            A(f"s_waitcnt vmcnt({sum('buffer_load' in y[1].text for y in A.items[mark:] if y[0] == 'i' and 'rc' not in y[1].text)})")
            if O.w2e == 0:
                for x in w2_read(6, 0): A(x)
            for k in range(4): A(f"v_add_u32 v{VW2H+k}, 0x10000, v{VW2H+k}")
            for x in (w2_read(4, 0) + w2_read(5, 8192) if O.w2e == 0 else w2_read(6, 0)): A(x)
    stamp(A, "g2 mfma")
    for x in shadow + red_write(1): A(x)
    A("s_waitcnt lgkmcnt(0)")
    A("s_barrier")
    for x in red_finish(1, [HF, HF + 8, HF + 16], True): A(x)
    stamp(A, "end")
    stamp_flush(A, 2)

HEADER = open("cdna_kernels/" + NAME + ".s.ref").read().split("; Override launch")[0]

def build():
    A = Asm()
    name = NAME + "_kernel"
    A('.amdgcn_target "amdgcn-amd-amdhsa--gfx950"')
    A(".text"); A(f".globl {name}"); A(".p2align 8"); A(f".type {name},@function"); A(f"{name}:")
    prologue(A)
    phase0(A)
    conv(A)
    window3(A)
    gemm1(A)
    gemm2(A)
    A("L_end:")
    A("s_endpgm")
    k = A.items.index(("d", ".warmup"))
    W = Asm()
    if O.warm:
        for w in range(4):
            W(f"s_cmp_eq_u32 s{S_WAVE}, {w}")
            W(f"s_cbranch_scc0 L_wu{w}")
            for n in STUBS[w::4]: W(f"s_call_b64 s[74:75], {n}")
            W(f"L_wu{w}:")
    A.items[k:k+1] = W.items
    A.autowait()
    A.pad()
    out = HEADER + f"; @launch grid=(256,1,1) block=(256,1,1) lds={LDS_TOTAL}\n" + A.text()
    out += f""".section .rodata,"a"
.p2align 6
.amdhsa_kernel {name}
  .amdhsa_next_free_vgpr 512
  .amdhsa_next_free_sgpr 102
  .amdhsa_accum_offset 256
  .amdhsa_group_segment_fixed_size 0
  .amdhsa_kernarg_size 112
  .amdhsa_user_sgpr_count 2
  .amdhsa_user_sgpr_kernarg_segment_ptr 1
  .amdhsa_system_sgpr_workgroup_id_x 1
  .amdhsa_float_denorm_mode_32 3
.end_amdhsa_kernel
"""
    return out

if __name__ == "__main__":
    path = sys.argv[1]
    O.prof = "--prof" in sys.argv
    O.cyc = "--cyc" in sys.argv
    for x in sys.argv[2:]:
        if "=" in x:
            k_, v_ = x.split("="); setattr(O, k_, int(v_))
    open(path, "w").write(build())
    if O.prof:
        import json; json.dump(STAMPS, open(path + ".stamps.json", "w"))
    print("wrote", path)
```

```python
import sys
sys.path.insert(0, "dev")
from asmlib import Asm, v, a, s

NAME = "adaLN_cond__ssm_conv_h3__dense_activation_silu__prompt"
STAGE = 4
REC_LAYOUT = 2
H_SCALE = -0.6931471805599453

WS_REC = 0
WS_X1 = 4 << 20
WS_X1C = 6 << 20
WS_H = 8 << 20
WS_STAT = 16 << 20
WS_MODP = (16 << 20) + 65536
WS_SYNC = 17 << 20
WS_PROF = (17 << 20) + (512 << 10)
WS_SIZE = 18 << 20
FLG_A, EPOCH, CNT_2, FLG_2, FLG_3 = 0, 2, 16, 32, 128
FLG_4 = 1280
WS_ST2 = (16 << 20) + (128 << 10)
LF_A, LF_2, LF_B = 512, 768, 1024

S_WG = 2; S_WAVE = 3
SRD_Q, SRD_K, SRD_V, SRD_SSMK, SRD_W1, SRD_W2, SRD_WMOD, SRD_OUT, SRD_WS, SRD_SHK, SRD_C, SRD_SSMD = [4 + 4 * i for i in range(12)]
S_DBG = 52
T = 54
S_PI, S_PM, S_PS, S_PE = 88, 89, 90, 91
S_RB, S_J, S_ROT, S_CH, S_CARRY, S_SPIN = 92, 93, 94, 95, 96, 97
S_TMP = 98
S_SIG = 87
S_C = 88
S_RT = 0
S_TAG = 84
S_PO = 86
S_SELLO, S_SELHI, S_ONES = 99, 100, 101

KARG = {SRD_Q: (0, 2097152), SRD_K: (8, 2097152), SRD_V: (16, 2097152), SRD_SHK: (24, 4096), SRD_SSMK: (32, 2097152),
        SRD_SSMD: (40, 1024), SRD_W1: (56, 512 * 1792 * 2), SRD_W2: (64, 512 * 1792 * 2), SRD_C: (72, 1024),
        SRD_WMOD: (80, 512 * 3072 * 2), SRD_OUT: (88, 2097152), SRD_WS: (104, WS_SIZE)}
NLOG2E = 0xbfb8aa3b

LDS_XC = 0
LDS_X1 = 65536
LDS_GM = 98304
LDS_SC = 114688
LDS_REC = 98304
LDS_KC = 131072
LDS_CARRY = 153216
LDS_MODV = 147968
LDS_CS = 150144
LDS_ST2 = 152192
LDS_GB = 152960
LDS_STA = 116736
LDS_STB = 157440
LDS_XR = 131072
LDS_RED = 0
LDS_TOTAL = 163840

V_LANE = 2
VW1 = 238
VW3 = 236
VW2H = 232
VW2 = 244
VW2S = 228

class Opt:
    prof = False; cyc = False
    w1_depth = 8
    wpf = 1; xpre = 2; hpre = 12; f1pos = 18; sck = 8; f0at = 20; r2same = 1; post = 1; mvearly = 1; poll2 = 0; hp0 = 4; fine = 0; om = 0; g6late = 0; jit = 0; err = 0; dbgC = 0; fs = 18; pa = 1; pa0 = 1; sw = 4; pb = 1; hs = 0; hl = 0; epv = 0; lite = 0; kcm = 1; w3d = 0; stq = 8; rs = 1; w3split = 0; isleep2 = 0; tlb = 0; bthr = 20; ovl = 0; red0 = 33; bsleep = 24; isleep = 36; sigfirst = 0; eplate = 1; stsw = 1; w2e = 4; w2w1 = 0; rd01 = 24; dbgB = 0; look = 3; wmerge = 1; prog = 1; early0 = 1; w2te = 0; w1t = 0; g6at = 7; hmax = 24; recperm = 1; kc_late = 1; sleep = 1
    conv_groups = 4; w3_depth = 10; tailg = 2; cs_early = 1; n_w1 = 3; w5 = 1; lfa = 1; lf2 = 1; kc_early = 0; n_rd = 2; poller2 = 3; map84 = 0; touch = 0; cpf = 3; warm = 0; w2t = 1; outsc = 0; w2l2 = 1; g01late = 0; pp = 0; bsplit = 0; t3 = 0; xpre2 = 3; fb = 28; w2side = 4; tg = 1
O = Opt()

_uid = [0]
def uid():
    _uid[0] += 1; return _uid[0]
_stamps = []
STAMPS = {}
def stamp(A, name):
    jitter(A)
    if not O.prof: return
    if O.lite:
        if name == "issued": A("s_waitcnt lgkmcnt(0)"); A(f"v_writelane_b32 v250, s76, 0")
        if name == "end":
            A("s_memrealtime s[74:75]"); A("s_waitcnt lgkmcnt(0)"); A(f"v_writelane_b32 v250, s74, 1")
        return
    n = len(_stamps); _stamps.append(name)
    A(f"s_memtime s[74:75]" if O.cyc else f"s_memrealtime s[74:75]")
    A("s_waitcnt lgkmcnt(0)")
    if n == 1: A(f"v_writelane_b32 v250, s76, 0")
    A(f"v_writelane_b32 v250, s74, {n}")
def stamp_flush(A, kidx):
    if not O.prof or kidx != 2: return
    A(f"s_lshl_b32 s74, s{S_WG}, 2")
    A(f"s_add_u32 s74, s74, s{S_WAVE}")
    A(f"s_lshl_b32 s74, s74, 8")
    A(f"s_add_u32 s74, s74, {WS_PROF}")
    A(f"v_lshlrev_b32 v254, 2, v{V_LANE}")
    A(f"buffer_store_dword v250, v254, {s(SRD_WS,4)}, s74 offen")
    STAMPS[0] = list(_stamps)

_jn = [0]
def jitter(A):
    if not O.jit: return
    _jn[0] += 1
    u = uid()
    A(f"s_lshl_b32 s74, s{S_WG}, 2")
    A(f"s_add_u32 s74, s74, s{S_WAVE}")
    A(f"s_mul_i32 s74, s74, {(2654435761 * (O.jit + 7 * _jn[0])) & 0x7fffffff | 1}")
    A(f"s_lshr_b32 s74, s74, 27")
    A(f"s_cmp_gt_u32 s74, 7")
    A(f"s_cselect_b32 s74, 0, s74")
    A(f"L_j{u}:")
    A(f"s_cmp_eq_u32 s74, 0")
    A(f"s_cbranch_scc1 L_jx{u}")
    A(f"s_sleep 40")
    A(f"s_sub_u32 s74, s74, 1")
    A(f"s_branch L_j{u}")
    A(f"L_jx{u}:")

def dma_voff(A, d0, d1, rowstride, tmp):
    A(f"v_lshrrev_b32 v{tmp}, 3, v{V_LANE}")
    A(f"v_and_b32 v{d1}, 2, v{tmp}")
    A(f"v_lshlrev_b32 v{d1}, 5, v{d1}")
    A(f"v_and_b32 v{d0}, 7, v{V_LANE}")
    A(f"v_lshlrev_b32 v{d0}, 4, v{d0}")
    A(f"v_xor_b32 v{d0}, v{d0}, v{d1}")
    A(f"v_mul_u32_u24 v{tmp}, {rowstride}, v{tmp}")
    A(f"v_add_u32 v{d0}, v{d0}, v{tmp}")
    A(f"v_xor_b32 v{d1}, 32, v{d0}")

def tr_addr32(A, d, tmp, rowmul):
    L = V_LANE
    A(f"v_lshrrev_b32 v{tmp}, 5, v{L}")
    A(f"v_bfe_u32 v{tmp+1}, v{L}, 2, 2")
    A(f"v_lshl_add_u32 v{d}, v{tmp}, {3 if rowmul == 8 else 2}, v{tmp+1}")
    A(f"v_lshlrev_b32 v{d}, 7, v{d}")
    A(f"v_and_b32 v{tmp+1}, 2, v{tmp+1}")
    if rowmul == 8: A(f"v_or_b32 v{tmp+1}, v{tmp+1}, v{tmp}")
    A(f"v_bfe_u32 v{tmp}, v{L}, 4, 1")
    A(f"v_xor_b32 v{tmp+1}, v{tmp+1}, v{tmp}")
    A(f"v_lshl_add_u32 v{d}, v{tmp+1}, 5, v{d}")
    A(f"v_and_b32 v{tmp}, 3, v{L}")
    A(f"v_lshl_add_u32 v{d}, v{tmp}, 3, v{d}")

def tr_addr16(A, d, tmp):
    L = V_LANE
    A(f"v_lshrrev_b32 v{tmp}, 4, v{L}")
    A(f"v_bfe_u32 v{tmp+1}, v{L}, 2, 2")
    A(f"v_lshl_add_u32 v{d}, v{tmp}, 3, v{tmp+1}")
    A(f"v_lshlrev_b32 v{d}, 7, v{d}")
    A(f"v_and_b32 v{tmp+1}, 2, v{tmp+1}")
    A(f"v_and_b32 v{tmp}, 1, v{tmp}")
    A(f"v_or_b32 v{tmp+1}, v{tmp+1}, v{tmp}")
    A(f"v_lshl_add_u32 v{d}, v{tmp+1}, 5, v{d}")
    A(f"v_and_b32 v{tmp}, 3, v{L}")
    A(f"v_lshl_add_u32 v{d}, v{tmp}, 3, v{d}")

def ln_finish(A, rows, tmp, scale=None):
    steps = [
        lambda su, sq, o1, o2, t: [f"v_mul_f32 v{su}, 0x3b000000, v{su}", f"v_mul_f32 v{sq}, 0x3b000000, v{sq}"],
        lambda su, sq, o1, o2, t: [f"v_fma_f32 v{sq}, -v{su}, v{su}, v{sq}"],
        lambda su, sq, o1, o2, t: [f"v_max_f32 v{sq}, 0, v{sq}"],
        lambda su, sq, o1, o2, t: [f"v_cvt_pk_bf16_f32 v{t}, v{su}, v{sq}"],
        lambda su, sq, o1, o2, t: [f"v_lshlrev_b32 v{su}, 16, v{t}", f"v_and_b32 v{sq}, 0xffff0000, v{t}"],
        lambda su, sq, o1, o2, t: [f"v_add_f32 v{sq}, 0x3727c5ac, v{sq}"],
        lambda su, sq, o1, o2, t: [f"v_cvt_pk_bf16_f32 v{sq}, v{sq}, v{sq}"],
        lambda su, sq, o1, o2, t: [f"v_lshlrev_b32 v{sq}, 16, v{sq}"],
        lambda su, sq, o1, o2, t: [f"v_sqrt_f32 v{sq}, v{sq}"],
        lambda su, sq, o1, o2, t: [f"v_cvt_pk_bf16_f32 v{sq}, v{sq}, v{sq}"],
        lambda su, sq, o1, o2, t: [f"v_lshlrev_b32 v{sq}, 16, v{sq}"],
        lambda su, sq, o1, o2, t: [f"v_rcp_f32 v{o1}, v{sq}"],
        lambda su, sq, o1, o2, t: [f"v_mul_f32 v{o1}, {scale}, v{o1}"] if scale else [],
        lambda su, sq, o1, o2, t: [f"v_mul_f32 v{o2}, -v{su}, v{o1}"],
    ]
    for st in steps:
        for i, r in enumerate(rows):
            for x in st(*r, tmp + i): A(x)


def signal_issue(A, cnt):
    A(f"s_and_b32 s{S_SIG}, s{S_WG}, 15")
    A(f"s_lshl_b32 s{S_SIG}, s{S_SIG}, 7")
    A(f"s_add_u32 s{S_SIG}, s{S_SIG}, {WS_SYNC}")
    A("s_mov_b64 exec, 1")
    A(f"v_mov_b32 v252, {128*cnt}")
    A(f"v_mov_b32 v253, 1")
    A(f"buffer_atomic_add v253, v252, {s(SRD_WS,4)}, s{S_SIG} offen sc0 sc1")
    A("s_mov_b64 exec, -1")

def signal_finish(A, flag):
    u = uid()
    A("s_mov_b64 exec, 1")
    A(f"v_cmp_eq_u32 vcc, 15, v253")
    A(f"v_mov_b32 v252, {128*flag}")
    A(f"v_mov_b32 v253, 1")
    A(f"s_cbranch_vccz L_sig{u}")
    A(f"buffer_store_dword v253, v252, {s(SRD_WS,4)}, s{S_SIG} offen sc1")
    A(f"L_sig{u}:")
    A("s_mov_b64 exec, -1")

def poll(A, nlanes, stride, base, want=1):
    u = uid()
    A(f"s_mov_b64 exec, {hex((1 << nlanes) - 1)}")
    if stride: A(f"v_mul_u32_u24 v252, {stride}, v{V_LANE}")
    A(f"s_mov_b32 s{S_TMP}, {base}")
    A(f"s_mov_b32 s{S_SPIN}, 0x80000")
    ld = lambda r: A(f"buffer_load_dword v{r}, v252, {s(SRD_WS,4)}, s{S_TMP} offen sc1 ; nowait")
    if O.pp: ld(253)
    A(f"L_poll{u}:")
    if O.pp:
        for k in range(2):
            A(f"s_sleep {O.sleep+1}")
            ld(254 - k)
            A("s_waitcnt vmcnt(1)")
            A(f"v_cmp_ne_u32 vcc, {want}, v{253+k}")
            A(f"s_cbranch_vccz L_pollx{u}")
    else:
        ld(253)
        A("s_waitcnt vmcnt(0)")
        A(f"v_cmp_ne_u32 vcc, {want}, v253")
        A(f"s_cbranch_vccz L_pollx{u}")
        A(f"s_sleep {O.sleep}")
    A(f"s_sub_u32 s{S_SPIN}, s{S_SPIN}, 1")
    A(f"s_cbranch_scc0 L_poll{u}")
    A(f"L_pollx{u}:")
    A("s_mov_b64 exec, -1")

def lf_signal(A, base):
    A(f"s_lshl_b32 s{S_TMP}, s{S_WG}, 7")
    A(f"s_add_u32 s{S_TMP}, s{S_TMP}, {WS_SYNC + 128*base}")
    A("s_mov_b64 exec, 1")
    A(f"v_mov_b32 v252, 0")
    A(f"v_mov_b32 v254, s{S_TAG}")
    A(f"v_mov_b32 v255, s{S_TAG+1}")
    A(f"buffer_store_dwordx2 v[254:255], v252, {s(SRD_WS,4)}, s{S_TMP} offen sc1")
    A("s_mov_b64 exec, -1")

def lf_poll(A, base, tmpv, first=0):
    u = uid(); M = 76
    A(f"v_lshlrev_b32 v{tmpv+16}, 7, v{V_LANE}")
    for i in range(4):
        A(f"s_mov_b64 {s(M+2*i,2)}, -1")
        if i: A(f"v_add_u32 v{tmpv+16+i}, {8192*i}, v{tmpv+16}")
    A(f"s_mov_b32 s{S_TMP}, {WS_SYNC + 128*base}")
    A(f"s_mov_b32 s{S_SPIN}, 0x40000")
    if first: A(f"s_sleep {first}")
    def issue(k):
        for i in range(4):
            A(f"s_or_b64 exec, {s(M+2*i,2)}, 1")
            A(f"buffer_load_dwordx2 {v(tmpv+8*k+2*i,2)}, v{tmpv+16+i}, {s(SRD_WS,4)}, s{S_TMP} offen sc1 ; nowait")
    def check(k):
        for i in range(4):
            A(f"s_mov_b64 exec, {s(M+2*i,2)}")
            A(f"v_cmp_ne_u64 {s(M+2*i,2)}, {s(S_TAG,2)}, {v(tmpv+8*k+2*i,2)}")
        A(f"s_or_b64 vcc, {s(M,2)}, {s(M+2,2)}")
        A(f"s_or_b64 vcc, vcc, {s(M+4,2)}")
        A(f"s_or_b64 vcc, vcc, {s(M+6,2)}")
        A(f"s_cbranch_scc0 L_lfx{u}")
    if O.pp:
        issue(0)
        A(f"L_lf{u}:")
        for k in range(2):
            A(f"s_sleep {O.sleep}")
            issue(1 - k)
            A("s_waitcnt vmcnt(4)")
            check(k)
    else:
        A(f"L_lf{u}:")
        issue(0)
        A("s_waitcnt vmcnt(0)")
        check(0)
        A(f"s_bcnt1_i32_b64 s{S_PO}, vcc")
        A(f"s_cmp_gt_u32 s{S_PO}, {O.bthr}")
        A(f"s_cbranch_scc0 L_lfs{u}")
        A(f"s_sleep {O.bsleep}")
        A(f"L_lfs{u}:")
        A(f"s_sleep {O.sleep}")
    A(f"s_sub_u32 s{S_SPIN}, s{S_SPIN}, 1")
    A(f"s_cbranch_scc0 L_lf{u}")
    A(f"L_lfx{u}:")
    A("s_mov_b64 exec, -1")

STUBS = []
def stub(A, jump=None):
    if not O.warm: return
    if jump: A(f"s_branch {jump}")
    n = f"L_stub{len(STUBS)}"
    STUBS.append(n)
    A(f"{n}:")
    A("s_setpc_b64 s[74:75]")

def only_wave3(A, body):
    u = uid()
    A(f"s_cmp_eq_u32 s{S_WAVE}, 3")
    A(f"s_cbranch_scc0 L_w3_{u}")
    body()
    A(f"L_w3_{u}:")

def split_wave3(A, others, w3):
    u = uid()
    A(f"s_cmp_eq_u32 s{S_WAVE}, 3")
    A(f"s_cbranch_scc1 L_s3a_{u}")
    others()
    A(f"s_branch L_s3b_{u}")
    stub(A)
    A(f"L_s3a_{u}:")
    w3()
    stub(A, f"L_s3b_{u}")
    A(f"L_s3b_{u}:")

def pieces8(vbase, srd, step4, depth=0):
    L = []
    for p in range(8):
        if p == 4: L += [f"s_add_u32 m0, m0, 4096", f"s_add_u32 s{S_PO}, s{S_PO}, {step4}"]
        L.append(f"buffer_load_dwordx4 v{vbase+(p&3)}, {s(srd,4)}, s{S_PO} offen offset:{1024*(p&3)} lds")
        if depth: L.append(f"s_waitcnt vmcnt({depth-1})")
    return L

def w1_group(gi, tile, ldsbase, tmp, depth=0):
    L = [f"s_add_u32 s{S_TMP}, s{S_ROT}, {gi}",
         f"s_lshl_b32 m0, {gi}, 13",
         f"s_bitcmp1_b32 s{S_TMP}, 2",
         f"s_cselect_b64 vcc, -1, 0",
         f"s_add_u32 m0, m0, {ldsbase}",
         f"s_and_b32 s{S_TMP}, s{S_TMP}, 3",
         f"v_cndmask_b32 v245, v{VW3}, v{VW3+1}, vcc"]
    L += [f"v_add_u32 v{tmp+k}, v245, v{VW1+k}" for k in range(4)]
    L += [f"s_mul_i32 s{S_PO}, s{S_TMP}, {64*3584}",
          f"s_lshl_b32 s{S_TMP}, s{S_C}, 8",
          f"s_add_u32 s{S_PO}, s{S_PO}, s{S_TMP}",
          f"s_lshl_b32 s{S_TMP}, {tile}, 6",
          f"s_add_u32 s{S_PO}, s{S_PO}, s{S_TMP}"]
    return L + pieces8(tmp, SRD_W1, 32 * 3584, depth)

def loop(A, body, n):
    u = uid()
    A(f"s_mov_b32 s{S_SPIN}, {n}")
    A(f"L_lp{u}:")
    for x in body: A(x)
    A(f"s_sub_u32 s{S_SPIN}, s{S_SPIN}, 1")
    A(f"s_cmp_lg_u32 s{S_SPIN}, 0")
    A(f"s_cbranch_scc1 L_lp{u}")

def w1_read(gi):
    return [f"ds_read_b64_tr_b16 {a((16*t+4*gi+e)*4+2*h,2)}, v{242+t} offset:{8192*gi+2048*e+512*h}" for e in range(4) for t in range(2) for h in range(2)]

LDS_ST1 = 114944
def prologue(A):
    VK, VV, VQ, VSH, VST, VC = 10, 28, 36, 44, 48, 56
    L = V_LANE
    A(f"s_cmp_ge_u32 s{S_WG}, 256")
    A(f"s_cbranch_scc1 L_end")
    if O.prof:
        A("s_memtime s[76:77]" if O.cyc else "s_memrealtime s[76:77]")
        _stamps.append("start")
    first = [SRD_Q, SRD_C, SRD_K, SRD_V, SRD_SHK, SRD_WS]
    rest = [SRD_WMOD, SRD_SSMK, SRD_SSMD, SRD_W1, SRD_W2, SRD_OUT]
    for r in first:
        A(f"s_load_dwordx2 {s(r,2)}, s[0:1], {KARG[r][0]}")
    if O.cpf >= 3:
        A("; pull this kernel's code into the L2: wave 0 a slice chosen by the workgroup, wave 1 the first slice")
        A(f"s_getpc_b64 s[{T+16}:{T+17}]")
        A("L_pc:")
        A(f"s_bfe_u32 s{T+11}, s{S_WG}, 0x30003")
        A(f"s_lshl_b32 s{T+11}, s{T+11}, 13")
        A(f"v_and_b32 v254, 63, v0")
        A(f"v_lshlrev_b32 v254, 7, v254")
        A(f"v_add_u32 v255, s{T+11}, v254")
        A(f"v_cmp_gt_u32 vcc, 64, v0")
        A(f"v_cndmask_b32 v254, v254, v255, vcc")
        A(f"v_min_u32 v254, L_end-L_pc, v254")
        A(f"v_cmp_gt_u32 vcc, {64 if O.cpf == 3 else (128 if O.cpf == 4 else 96)}, v0")
        A(f"s_and_saveexec_b64 s[{T+12}:{T+13}], vcc")
        A(f"s_cbranch_execz L_nopf")
        A(f"global_load_dword v255, v254, s[{T+16}:{T+17}] ; nowait")
        A("L_nopf:")
        A("s_mov_b64 exec, -1")
    A(f"v_lshrrev_b32 v1, 6, v0")
    A(f"v_and_b32 v{L}, 63, v0")
    A(f"v_readfirstlane_b32 s{S_WAVE}, v1")
    for r in first:
        A(f"s_mov_b32 s{r+2}, {KARG[r][1]}")
        A(f"s_mov_b32 s{r+3}, 0x20000")
    A(f"s_lshr_b32 s{T}, s{S_WG}, 1")
    A(f"s_and_b32 s{T+1}, s{S_WG}, 1")
    A(f"s_lshl_b32 s{T+1}, s{T+1}, 2")
    A(f"s_add_u32 s{T+1}, s{T+1}, s{S_WAVE}")
    A(f"s_lshl_b32 s{T+1}, s{T+1}, 5")
    A(f"v_and_b32 v3, 31, v0")
    A(f"v_add_u32 v5, s{T+1}, v3")
    A(f"v_bfe_u32 v4, v0, 5, 1")
    A(f"v_lshlrev_b32 v6, 2, v5")
    A(f"v_lshl_add_u32 v6, v4, 10, v6")
    A(f"s_lshl_b32 s{T+2}, s{T}, 14")
    for k in range(1, 4):
        A(f"s_add_u32 s{T+2+k}, s{T+2}, {4096*k}")
    A(f"s_sub_u32 s{T+6}, s{T+2}, 3072")
    A(f"v_add_u32 v8, s{T+6}, v6")
    A(f"v_add_u32 v9, 1024, v8")
    A(f"v_add_u32 v57, 2048, v8")
    A(f"v_lshlrev_b32 v7, 4, v5")
    A(f"s_lshl_b32 s{T+7}, s{S_WG}, 2")
    A(f"s_add_u32 s{T+7}, s{T+7}, s{S_WAVE}")
    A(f"s_lshl_b32 s{T+8}, s{T+7}, 11")
    A(f"v_lshlrev_b32 v58, 4, v{L}")
    A(f"s_mul_i32 s{T+9}, s{S_WG}, 1366")
    A(f"s_lshr_b32 s{T+9}, s{T+9}, 16")
    A(f"v_and_b32 v59, 127, v0")
    A(f"v_lshlrev_b32 v59, 1, v59")
    A(f"s_lshl_b32 s{T+12}, s{T+9}, 8")
    A(f"v_lshlrev_b32 v252, 11, v{L}")
    A(f"s_lshl_b32 s{T+11}, s{S_WG}, 7")
    A(f"v_mov_b32 v253, {128*FLG_3}")
    A(f"v_cmp_eq_u32 vcc, 4, v{L}")
    A(f"s_add_u32 s{T+11}, s{T+11}, {WS_SYNC}")
    A(f"v_cndmask_b32 v252, v252, v253, vcc")
    A(f"v_mov_b32 v253, {128*FLG_4}")
    A(f"v_cmp_eq_u32 vcc, 3, v{L}")
    A(f"v_cndmask_b32 v252, v252, v253, vcc")
    A(f"v_mov_b32 v253, 0")
    A("s_waitcnt lgkmcnt(0)")
    def clr():
        A(f"s_cmp_lt_u32 s{S_WG}, 16")
        A(f"s_cselect_b32 exec_lo, 0x1e, 0x18")
        A(f"s_mov_b32 exec_hi, 0")
        A(f"buffer_store_dword v253, v252, {s(SRD_WS,4)}, s{T+11} offen sc1")
        A("s_mov_b64 exec, -1")
    only_wave3(A, clr)
    A(f"buffer_load_dwordx4 {v(VST,4)}, v58, {s(SRD_Q,4)}, s{T+8} offen")
    A(f"buffer_load_dwordx4 {v(VST+4,4)}, v58, {s(SRD_Q,4)}, s{T+8} offen offset:1024")
    A(f"buffer_load_ushort v{VC}, v59, {s(SRD_C,4)}, s{T+12} offen")
    A(f"buffer_load_dword v{VK}, v8, {s(SRD_K,4)}, 0 offen")
    A(f"buffer_load_dword v{VK+1}, v9, {s(SRD_K,4)}, 0 offen")
    A(f"buffer_load_dword v{VK+2}, v57, {s(SRD_K,4)}, 0 offen")
    for r in range(15):
        A(f"buffer_load_dword v{VK+3+r}, v6, {s(SRD_K,4)}, s{T+2+(r>>2)} offen offset:{1024*(r&3)}")
    A(f"buffer_load_dwordx4 {v(VSH,4)}, v7, {s(SRD_SHK,4)}, 0 offen")
    for k in range(8):
        A(f"buffer_load_dword v{VV+k}, v6, {s(SRD_V,4)}, s{T+2+(k>>1)} offen offset:{2048*(k&1)}")
    for k in range(8):
        A(f"buffer_load_dword v{VQ+k}, v6, {s(SRD_Q,4)}, s{T+2+(k>>1)} offen offset:{2048*(k&1)}")
    for r in rest:
        A(f"s_load_dwordx2 {s(r,2)}, s[0:1], {KARG[r][0]}")
    A(f"s_load_dwordx2 {s(S_DBG,2)}, s[0:1], 96")
    if O.cpf < 3:
        A("; wave 0 pulls a slice of this kernel's code into the L2")
        A(f"s_getpc_b64 s[{T+16}:{T+17}]")
        A("L_pc:")
        A(f"s_cmp_eq_u32 s{S_WAVE}, {0 if O.cpf == 1 else 7}" if O.cpf < 2 else f"s_cmp_lt_u32 s{S_WG}, 64")
        A(f"s_cbranch_scc0 L_nopf")
        A(f"s_bfe_u32 s{T+11}, s{S_WG}, {'0x30003' if O.cpf < 2 else '0x10003'}")
        A(f"s_lshl_b32 s{T+11}, s{T+11}, {13 if O.cpf < 2 else 15}")
        A(f"v_lshlrev_b32 v254, 7, v0")
        A(f"v_add_u32 v254, s{T+11}, v254")
        A(f"v_min_u32 v254, L_end-L_pc, v254")
        A(f"global_load_dword v255, v254, s[{T+16}:{T+17}] ; nowait")
        A("L_nopf:")
    for r in rest:
        A(f"s_mov_b32 s{r+2}, {KARG[r][1]}")
        A(f"s_mov_b32 s{r+3}, 0x20000")
    A(f"s_mul_i32 s{T+10}, s{T+9}, 48")
    A(f"s_sub_u32 s{T+10}, s{S_WG}, s{T+10}")
    dma_voff(A, 60, 61, 6144, 62)
    A(f"s_lshl_b32 s{T+12}, s{T+9}, 7")
    A(f"s_lshl_b32 s{T+13}, s{S_WAVE}, 5")
    A(f"s_add_u32 s{T+12}, s{T+12}, s{T+13}")
    A(f"s_mul_i32 s{T+12}, s{T+12}, 6144")
    A(f"s_lshl_b32 s{T+11}, s{T+10}, 7")
    A(f"s_add_u32 s{T+12}, s{T+12}, s{T+11}")
    A(f"s_lshl_b32 s{T+14}, s{S_WAVE}, 12")
    A(f"s_add_u32 m0, s{T+14}, {LDS_GM}")
    A("s_waitcnt lgkmcnt(0)")
    stamp(A, "issued")
    for i in range(4):
        if i:
            A(f"s_add_u32 m0, m0, 1024")
            A(f"s_add_u32 s{T+12}, s{T+12}, {8*6144}")
        A(f"buffer_load_dwordx4 v{60+(i&1)}, {s(SRD_WMOD,4)}, s{T+12} offen lds")
    if O.epv:
        A(f"v_mov_b32 v178, {WS_SYNC + 128*EPOCH}")
        A(f"buffer_load_dwordx2 v[178:179], v178, {s(SRD_WS,4)}, 0 offen sc1")
    else:
        A(f"s_add_u32 s{T+16}, s{SRD_WS}, {WS_SYNC + 128*EPOCH}")
        A(f"s_addc_u32 s{T+17}, s{SRD_WS+1}, 0")
        A(f"s_load_dwordx2 {s(S_TAG,2)}, s[{T+16}:{T+17}], 0")
    A(f"s_mov_b32 s{S_SELLO}, 0x05040100")
    A(f"s_mov_b32 s{S_SELHI}, 0x07060302")
    A(f"s_mov_b32 s{S_ONES}, 0x3f803f80")
    A(f"s_bfe_u32 s{S_RB}, s{S_WG}, 0x20001")
    A(f"s_lshl_b32 s{S_RB}, s{S_RB}, 2")
    A(f"s_lshr_b32 s{S_TMP}, s{S_WG}, 6")
    A(f"s_add_u32 s{S_RB}, s{S_RB}, s{S_TMP}")
    A(f"s_bfe_u32 s{S_J}, s{S_WG}, 0x30003")
    A(f"s_add_u32 s{S_ROT}, s{S_J}, s{S_TMP}")
    A(f"s_and_b32 s{S_ROT}, s{S_ROT}, 7")
    A(f"s_and_b32 s{S_PE}, s{S_WG}, 1")
    A(f"s_mul_i32 s{S_C}, s{S_PE}, 7")
    A(f"s_add_u32 s{S_C}, s{S_C}, s{S_J}")
    A(f"s_add_u32 s{S_PE}, s{S_PE}, 14")
    A(f"s_cmp_eq_u32 s{S_J}, 7")
    A(f"s_cselect_b32 s{S_C}, s{S_PE}, s{S_C}")
    A(f"s_and_b32 s{S_RT}, s{S_WG}, 7")
    A(f"s_lshl_b32 s{S_RT}, s{S_RT}, 3")
    A(f"s_lshr_b32 s{S_PE}, s{S_WG}, 7")
    A(f"s_lshl_b32 s{S_PE}, s{S_PE}, 2")
    A(f"s_add_u32 s{S_RT}, s{S_RT}, s{S_PE}")
    A(f"s_bfe_u32 s{S_PE}, s{S_WG}, 0x10006")
    A(f"s_add_u32 s{S_RT}, s{S_RT}, s{S_PE}")
    A(f"s_lshl_b32 s{S_PE}, s{S_TMP}, 1")
    A(f"s_add_u32 s{S_PE}, s{S_PE}, s{S_J}")
    if O.r2same: A(f"s_mov_b32 s{S_PE}, s{S_J}")
    A(f"s_cmp_ge_u32 s{S_C}, 14")
    A(f"s_cselect_b32 s{SRD_W1+2}, 0, s{SRD_W1+2}")
    A(f"s_cmp_ge_u32 s{S_PE}, 7")
    A(f"s_cselect_b32 s{S_TMP}, 7, 0")
    A(f"s_sub_u32 s{S_PE}, s{S_PE}, s{S_TMP}")
    A(f"s_cmp_ge_u32 s{S_PE}, 7")
    A(f"s_cselect_b32 s{S_TMP}, 7, 0")
    A(f"s_sub_u32 s{S_PE}, s{S_PE}, s{S_TMP}")

def phase0(A):
    VK, VV, VQ, VSH, VST, VC = 10, 28, 36, 44, 48, 56
    L = V_LANE
    stamp(A, "issued2")
    if O.tlb:
        A("; wave 1 touches the pages that later phases use")
        A(f"s_cmp_eq_u32 s{S_WAVE}, 1")
        A(f"s_cbranch_scc0 L_notlb")
        A(f"v_lshlrev_b32 v254, {O.tlb}, v{L}")
        A(f"s_lshl_b32 s{T+14}, s{S_WG}, 7")
        A(f"buffer_load_dword v255, v254, {s(SRD_WS,4)}, s{T+14} offen ; nowait")
        for r in (SRD_OUT, SRD_W1, SRD_W2, SRD_SSMK):
            A(f"buffer_load_dword v255, v254, {s(r,4)}, s{T+14} offen ; nowait")
        A("L_notlb:")
    if O.w1t:
        A("; every wave touches a quarter of this workgroup's share of the w1 (and filter) lines")
        A(f"s_mul_i32 s{T+14}, s{S_WG}, 7168")
        A(f"s_mul_i32 s{T+15}, s{S_WAVE}, 1792")
        A(f"s_add_u32 s{T+14}, s{T+14}, s{T+15}")
        A(f"v_lshlrev_b32 v254, 7, v{L}")
        A(f"s_mov_b64 exec, {'0x3fff' if O.w1t & 1 else '1'}")
        A(f"s_mov_b32 s{SRD_SHK}, s{SRD_W1}")
        A(f"s_mov_b32 s{SRD_SHK+1}, s{SRD_W1+1}")
        A(f"s_mov_b32 s{SRD_SHK+2}, {512*1792*2}")
        A(f"buffer_load_dword v255, v254, {s(SRD_SHK,4)}, s{T+14} offen ; nowait")
        if O.w1t & 2:
            A(f"s_lshl_b32 s{T+14}, s{S_WG}, 13")
            A(f"s_lshl_b32 s{T+15}, s{S_WAVE}, 11")
            A(f"s_add_u32 s{T+14}, s{T+14}, s{T+15}")
            A(f"s_mov_b64 exec, 0xffff")
            A(f"buffer_load_dword v255, v254, {s(SRD_SSMK,4)}, s{T+14} offen ; nowait")
        A(f"s_mov_b64 exec, -1")
    A(f"s_cmp_eq_u32 s{S_WAVE}, 2")
    A(f"s_cbranch_scc0 L_noclr2")
    A(f"s_lshl_b32 s{T+14}, s{S_WG}, 7")
    A(f"s_add_u32 s{T+14}, s{T+14}, {WS_ST2}")
    A(f"v_lshlrev_b32 v64, 2, v{L}")
    A(f"s_mov_b32 exec_hi, 0")
    A(f"buffer_store_dword v253, v64, {s(SRD_WS,4)}, s{T+14} offen sc1")
    A("s_mov_b64 exec, -1")
    A("L_noclr2:")
    dma_voff(A, VW1, VW1 + 1, 3584, 64)
    A(f"s_mov_b32 s{T+14}, {256*3584}")
    A(f"v_bfe_u32 v64, v{VW1}, 6, 1")
    A(f"v_mul_lo_u32 v65, v64, s{T+14}")
    A(f"v_lshlrev_b32 v64, 6, v64")
    A(f"v_sub_u32 v{VW3}, v65, v64")
    A(f"v_sub_u32 v65, s{T+14}, v65")
    A(f"v_sub_u32 v{VW3+1}, v65, v64")
    A(f"v_add_u32 v{VW1+1}, {8*3584-1024}, v{VW1+1}")
    A(f"v_add_u32 v{VW1+2}, {2*(8*3584-1024)}, v{VW1}")
    A(f"v_add_u32 v{VW1+3}, {2*(8*3584-1024)}, v{VW1+1}")
    tr_addr32(A, 242, 64, 8)
    A(f"s_lshl_b32 s{T+14}, s{S_WAVE}, 15")
    A(f"v_add_u32 v242, s{T+14}, v242")
    A(f"v_xor_b32 v243, 64, v242")
    A(f"s_lshl_b32 s{S_PM}, s{S_WAVE}, 15")
    w2_setup(A)
    A(f"s_lshr_b32 s{T+11}, s{S_WAVE}, 1")
    A(f"s_lshl_b32 s{S_CH}, s{S_WG}, 1")
    A(f"s_add_u32 s{S_CH}, s{S_CH}, s{T+11}")
    A(f"s_mul_i32 s{S_CARRY}, s{T+11}, 2080")
    A(f"s_add_u32 s{S_CARRY}, s{S_CARRY}, {LDS_CARRY}")
    A(f"s_mul_i32 s{T+13}, s{S_WAVE}, 4224")
    A(f"s_add_u32 s{T+13}, s{T+13}, {LDS_KC}")
    A(f"s_and_b32 s{T+11}, s{S_WAVE}, 1")
    A(f"s_lshl_b32 s{T+14}, s{T+11}, 2")
    A(f"s_sub_u32 s{T+14}, 4, s{T+14}")
    A(f"v_add_u32 v62, s{T+14}, v58")
    A(f"v_and_b32 v64, 7, v3")
    A(f"v_lshlrev_b32 v65, 2, v4")
    A(f"v_xor_b32 v64, v64, v65")
    A(f"v_lshlrev_b32 v57, 7, v3")
    A(f"v_lshl_add_u32 v57, v64, 4, v57")
    A(f"s_lshl_b32 s{T+14}, s{S_WAVE}, 15")
    A(f"s_add_u32 s{T+14}, s{T+14}, 24576")
    A(f"v_add_u32 v57, s{T+14}, v57")
    A(f"v_lshrrev_b32 v64, 3, v{L}")
    A(f"v_and_b32 v65, 7, v{L}")
    A(f"v_xor_b32 v66, v65, v64")
    A(f"v_lshlrev_b32 v9, 7, v64")
    A(f"v_lshl_add_u32 v9, v66, 4, v9")
    A(f"v_add_u32 v9, s{T+14}, v9")
    A(f"v_lshlrev_b32 v65, 4, v65")
    for b in range(4):
        A(f"v_add_u32 v66, s{T+1}, v64")
        if b: A(f"v_add_u32 v66, {8*b}, v66")
        if O.recperm:
            A(f"v_xor_b32 v67, s{T}, v66")
            A(f"v_and_b32 v67, 127, v67")
        else:
            A(f"v_mov_b32 v67, s{T}")
        A(f"v_lshl_add_u32 v66, v66, 7, v67")
        A(f"v_lshl_add_u32 v{168+b}, v66, 7, v65")
    for k in range(1, 4): A(f"v_xor_b32 v{173+k}, {16*k}, v57")
    B = 172
    tr_addr16(A, B, 64)
    A(f"s_lshl_b32 s{T+16}, s{S_WAVE}, 5")
    A(f"v_xor_b32 v{B}, s{T+16}, v{B}")
    A(f"v_add_u32 v{B}, {LDS_GM}, v{B}")
    A(f"v_lshrrev_b32 v{B+1}, 4, v{L}")
    A(f"v_lshlrev_b32 v{B+1}, 4, v{B+1}")
    A(f"v_add_u32 v{B+1}, {LDS_SC}, v{B+1}")
    A(f"s_mul_i32 s{T+16}, s{T+9}, {3072*4}")
    A(f"s_lshl_b32 s{T+17}, s{T+10}, 8")
    A(f"s_add_u32 s{T+16}, s{T+16}, s{T+17}")
    A(f"s_lshl_b32 s{T+17}, s{S_WAVE}, 6")
    A(f"s_add_u32 s{T+16}, s{T+16}, s{T+17}")
    A(f"s_add_u32 s{T+16}, s{T+16}, {WS_MODP}")
    A(f"s_lshl_b32 s{T+15}, s{S_WG}, 6")
    A(f"s_add_u32 s{T+15}, s{T+15}, {WS_STAT}")
    A(f"s_lshl_b32 s{T+17}, s{S_WAVE}, 3")
    A(f"s_add_u32 s{T+17}, s{T+17}, {LDS_ST1}")
    A(f"v_mov_b32 v177, s{T+17}")
    A(f"v_add_u32 v59, {LDS_SC}, v59")
    def kcopy():
        A(f"s_lshl_b32 s{T+18}, s{S_CH}, 12")
        A(f"s_add_u32 m0, s{T+13}, 32")
        A(f"v_mov_b32 v63, 0")
        A(f"buffer_load_dword v63, v63, {s(SRD_SSMK,4)}, s{T+18} offen")
        for i in range(4):
            A(f"buffer_load_dwordx4 v62, {s(SRD_SSMK,4)}, s{T+18} offen offset:{1024*i} lds")
    if O.kc_early: kcopy()
    A(".warmup")
    R = 152
    for r in range(2):
        A(f"v_dot2_f32_bf16 v{R+2*r}, v{VST+4*r}, s{S_ONES}, 0")
        A(f"v_dot2_f32_bf16 v{R+2*r+1}, v{VST+4*r}, v{VST+4*r}, 0")
    for q in range(1, 4):
        for r in range(2):
            A(f"v_dot2_f32_bf16 v{R+2*r}, v{VST+4*r+q}, s{S_ONES}, v{R+2*r}")
            A(f"v_dot2_f32_bf16 v{R+2*r+1}, v{VST+4*r+q}, v{VST+4*r+q}, v{R+2*r+1}")
    X = 164
    A(f"v_lshlrev_b32 v{X}, 16, v{VC}")
    A(f"v_mul_f32 v{X+1}, {hex(NLOG2E)}, v{X}")
    A(f"v_exp_f32 v{X+1}, v{X+1}")
    for n, m in enumerate(("row_shr:1", "row_shr:2", "row_shr:4", "row_shr:8")):
        for i in range(4):
            A(f"v_add_f32_dpp v{R+i}, v{R+i}, v{R+i} {m} row_mask:0xf bank_mask:0xf bound_ctrl:0")
        A([f"v_add_f32 v{X+1}, 1.0, v{X+1}", f"v_rcp_f32 v{X+1}, v{X+1}", f"v_mul_f32 v{X+1}, v{X}, v{X+1}", f"v_cvt_pk_bf16_f32 v{X+1}, v{X+1}, v{X+1}"][n])
    A(f"ds_write_b16 v59, v{X+1}")
    for m, rm in (("row_bcast:15", "0xa"), ("row_bcast:31", "0xc")):
        for i in range(4):
            A(f"v_add_f32_dpp v{R+i}, v{R+i}, v{R+i} {m} row_mask:{rm} bank_mask:0xf")
    ln_finish(A, [(R, R+1, R+4, R+6), (R+2, R+3, R+5, R+7)], R + 8)
    A("s_lshl_b64 exec, 1, 63")
    A(f"ds_write_b64 v177, {v(R+4,2)}")
    A(f"ds_write_b64 v177, {v(R+6,2)} offset:32")
    A("s_mov_b64 exec, -1")
    stamp(A, "stats")
    A("; ---- kv ----")
    VW, VP, VKS, VVU, CA, CB = 64, 68, 86, 102, 120, 136
    for k in range(9):
        A(f"v_perm_b32 v{VP+2*k}, v{VK+2*k+1}, v{VK+2*k}, s{S_SELLO}")
        A(f"v_perm_b32 v{VP+2*k+1}, v{VK+2*k+1}, v{VK+2*k}, s{S_SELHI}")
    A(f"v_alignbit_b32 v{VW}, v{VSH+1}, v{VSH+1}, 16")
    A(f"v_alignbit_b32 v{VW+1}, v{VSH}, v{VSH}, 16")
    A(f"v_alignbit_b32 v{VW+2}, v{VSH+3}, v{VSH+3}, 16")
    A(f"v_alignbit_b32 v{VW+3}, v{VSH+2}, v{VSH+2}, 16")
    for k in range(8):
        for c in range(2):
            A(f"v_dot2_f32_bf16 v{VKS+2*k+c}, v{VP+2*k+c}, v{VW+2*c}, 0")
    for k in range(8):
        for c in range(2):
            A(f"v_dot2_f32_bf16 v{VKS+2*k+c}, v{VP+2*k+2+c}, v{VW+2*c+1}, v{VKS+2*k+c}")
    for k in range(8):
        A(f"v_lshlrev_b32 v{VVU+2*k}, 16, v{VV+k}")
        A(f"v_and_b32 v{VVU+2*k+1}, 0xffff0000, v{VV+k}")
    for k in range(8):
        A(f"v_pk_mul_f32 {v(VKS+2*k,2)}, {v(VKS+2*k,2)}, {v(VVU+2*k,2)}")
    for c in range(2):
        for q in range(4):
            A(f"v_cvt_pk_bf16_f32 v{CA+4*c+q}, v{VKS+2*(7-2*q)+c}, v{VKS+2*(6-2*q)+c}")
        A(f"ds_write_b128 v{173+c if c else 57}, {v(CA+4*c,4)}")
    for c in range(2):
        for q in range(4):
            A(f"v_perm_b32 v{CA+8+4*c+q}, v{VQ+6-2*q}, v{VQ+7-2*q}, s{S_SELHI if c else S_SELLO}")
        A(f"ds_write_b128 v{175+c}, {v(CA+8+4*c,4)}")
    stamp(A, "kvq landed")
    A("s_waitcnt lgkmcnt(0)")
    for b in range(4):
        A(f"ds_read_b128 {v(CB+4*b,4)}, v9 offset:{1024*b}")
    for b in range(4):
        A(f"buffer_store_dwordx4 {v(CB+4*b,4)}, v{168+b}, {s(SRD_WS,4)}, 0 offen sc1")
    stamp(A, "rec stored")
    if O.bsplit:
        A(f"s_waitcnt vmcnt(0) lgkmcnt(0)")
        A("s_barrier")
        stamp(A, "rec acked")
        A(f"s_add_u32 s{S_TAG}, s{S_TAG}, 1")
        only_wave3(A, lambda: lf_signal(A, LF_A))
    else:
        A(f"s_waitcnt vmcnt({9 if O.kc_early else 4}) lgkmcnt(0)")
        A("s_barrier")
    A(f"v_add_u32 v177, {LDS_ST1}, v58")
    A(f"ds_read_b128 {v(R,4)}, v177")
    FA, FB, ACC = 72, 88, 104
    for e in range(4):
        A(f"ds_read_b128 {v(FA+4*e,4)}, v{B+1} offset:{64*e}")
        A(f"ds_read_b64_tr_b16 {v(FB+4*e,2)}, v{B} offset:{4096*e}")
        A(f"ds_read_b64_tr_b16 {v(FB+4*e+2,2)}, v{B} offset:{4096*e+512}")
    A(f"s_cmp_eq_u32 s{S_WAVE}, 0")
    A(f"s_cbranch_scc0 L_nost1")
    A("s_mov_b64 exec, 0xf")
    A(f"buffer_store_dwordx4 {v(R,4)}, v58, {s(SRD_WS,4)}, s{T+15} offen sc1")
    A("s_mov_b64 exec, -1")
    A("L_nost1:")
    for e in range(4):
        A(f"v_mfma_f32_16x16x32_bf16 {v(ACC,4)}, {v(FA+4*e,4)}, {v(FB+4*e,4)}, {'0' if e == 0 else v(ACC,4)}")
    A(f"v_lshlrev_b32 v64, 2, v{L}")
    A(f"s_cmp_ge_u32 s{S_WG}, 192")
    A(f"s_cbranch_scc1 L_nogemv")
    A("s_mov_b64 exec, 0xffff")
    A(f"buffer_store_dword v{ACC}, v64, {s(SRD_WS,4)}, s{T+16} offen sc1")
    A("s_mov_b64 exec, -1")
    A("L_nogemv:")
    if O.epv:
        A(f"v_readfirstlane_b32 s{S_TAG}, v178")
        A(f"v_readfirstlane_b32 s{S_TAG+1}, v179")
    A(f"s_add_u32 s{S_TAG}, s{S_TAG}, 1")
    stamp(A, "mod stored")
    if O.bsplit:
        def kc0():
            kcopy()
            A("s_waitcnt vmcnt(5)")
        split_wave3(A, kc0, lambda: A("s_waitcnt vmcnt(0)"))
        A("s_barrier")
        stamp(A, "B acked")
    elif O.kcm:
        def kc1():
            kcopy()
            n = 5
            for gi in range(O.kcm - 1):
                for x in w1_group(gi, f"s{S_WAVE}", f"s{S_PM}", 64): A(x)
                n += 8
            A(f"s_waitcnt vmcnt({n})")
        split_wave3(A, kc1, lambda: A("s_waitcnt vmcnt(0)"))
        stamp(A, "own ack")
        A("s_barrier")
        stamp(A, "rec acked")
    else:
        A("s_waitcnt vmcnt(0)")
        stamp(A, "own ack")
        A("s_barrier")
        stamp(A, "rec acked")
    def others2():
        if not O.kc_early:
            if not O.bsplit and not O.kcm: kcopy()
            A(f"s_cmp_eq_u32 s{S_WAVE}, 2")
            A(f"s_cbranch_scc0 L_nokc3")
            A(f"s_mov_b32 m0, {LDS_KC + 3*4224 + 32}")
            for i in range(4):
                A(f"buffer_load_dwordx4 v58, {s(SRD_SSMK,4)}, s{T+18} offen offset:{1024*i} lds")
            A("L_nokc3:")
        for gi in range(max(O.kcm - 1, 0), O.n_w1):
            for x in w1_group(gi, f"s{S_WAVE}", f"s{S_PM}", 64, O.w1_depth): A(x)
        if O.w2te:
            A(f"s_mul_i32 s{T+18}, s{S_WG}, 7168")
            A(f"s_mul_i32 s{T+17}, s{S_WAVE}, {19*128}")
            A(f"s_add_u32 s{T+18}, s{T+18}, s{T+17}")
            A(f"v_lshlrev_b32 v254, 7, v{L}")
            A(f"s_mov_b64 exec, 0x7ffff")
            A(f"buffer_load_dword v255, v254, {s(SRD_W2,4)}, s{T+18} offen ; nowait")
            A(f"s_mov_b64 exec, -1")
        stamp(A, "w1r0/sig")
    def sigA():
        if O.lfa:
            if O.bsplit: lf_signal(A, LF_B)
            else:
                lf_signal(A, LF_A)
            if O.w2t >= 2:
                A(f"s_mul_i32 s{T+18}, s{S_WG}, 7168")
                A(f"v_lshlrev_b32 v254, 7, v{L}")
                A(f"s_mov_b32 exec_hi, 0xffffff")
                A(f"buffer_load_dword v255, v254, {s(SRD_W2,4)}, s{T+18} offen ; nowait")
                if O.w2t == 3:
                    A(f"s_mov_b32 s{SRD_SHK}, s{SRD_W1}")
                    A(f"s_mov_b32 s{SRD_SHK+1}, s{SRD_W1+1}")
                    A(f"s_mov_b32 s{SRD_SHK+2}, {512*1792*2}")
                    A(f"buffer_load_dword v255, v254, {s(SRD_SHK,4)}, s{T+18} offen ; nowait")
                A(f"s_mov_b64 exec, -1")
            del _stamps[-1:]
            stamp(A, "w1r0/sig")
            return
        u = uid()
        A(f"s_and_b32 s{S_SIG}, s{S_WG}, 1")
        A(f"s_lshl_b32 s{S_SIG}, s{S_SIG}, 7")
        A("s_mov_b64 exec, 1")
        A(f"v_mov_b32 v252, s{S_SIG}")
        A(f"v_mov_b32 v253, 1")
        A(f"global_atomic_add v253, v252, v253, {s(S_DBG,2)} sc0 sc1")
        A(f"v_mov_b32 v254, s{S_TAG}")
        A(f"v_mov_b32 v255, s{S_TAG+1}")
        A(f"s_mov_b32 s{S_TMP}, {WS_SYNC + 128*FLG_A}")
        A(f"v_cmp_eq_u32 vcc, 127, v253")
        A(f"s_cbranch_vccz L_sig{u}")
        A(f"buffer_store_dwordx2 v[254:255], v252, {s(SRD_WS,4)}, s{S_TMP} offen sc1")
        A(f"L_sig{u}:")
        A("s_mov_b64 exec, -1")
        del _stamps[-1:]
        stamp(A, "w1r0/sig")
    split_wave3(A, others2, sigA)
    A(f"s_mul_i32 s{T+11}, s{T+11}, 64")
    A(f"s_add_u32 s{T+11}, s{T+11}, 7")
    A(f"v_lshlrev_b32 v62, 2, v{L}")
    A(f"v_add_u32 v62, s{T+13}, v62")

TSETS = ([7, 4, 3, 0], [6, 5, 2, 1])
def conv(A):
    VAB, VAA, VAE = 8, 16, 17
    VST = 24; VKX = 200; VGH, VX0 = 72, 88; ACC = 104; U = 56
    L = V_LANE
    A(f"v_lshrrev_b32 v3, 3, v{L}")
    if O.recperm:
        A(f"s_and_b32 s{T+6}, s{S_WG}, 7")
        A(f"v_xor_b32 v3, s{T+6}, v3")
    A(f"v_lshlrev_b32 v3, 7, v3")
    A(f"v_lshrrev_b32 v4, 4, v{L}")
    A(f"v_and_b32 v7, 7, v{L}")
    A(f"v_xor_b32 v7, v7, v4")
    A(f"v_lshl_add_u32 v3, v7, 4, v3")
    A(f"v_xor_b32 v7, 64, v3")
    A(f"s_lshl_b32 s{T+6}, s{S_WG}, 14")
    A(f"s_bfe_u32 s{T+8}, s{S_WG}, 0x40003")
    A(f"s_lshl_b32 s{T+8}, s{T+8}, 10")
    A(f"s_lshl_b32 s{T+7}, s{S_WAVE}, 12")
    A(f"v_and_b32 v21, 3, v{L}")
    A(f"v_mul_u32_u24 v21, 12288, v21")
    A(f"v_bfe_u32 v22, v{L}, 2, 2")
    A(f"v_lshl_add_u32 v21, v22, 11, v21")
    A(f"v_add_u32 v23, 2048, v21")
    A(f"v_cmp_eq_u32 vcc, 3, v22")
    A(f"s_lshl_b32 s{T+9}, s{S_CH}, 2")
    A(f"s_add_u32 s{T+9}, s{T+9}, {WS_MODP}")
    A(f"v_cndmask_b32 v21, v21, v23, vcc")
    A(f"s_lshl_b32 s{T+10}, s{S_CH}, 1")
    A(f"v_and_b32 v6, 15, v{L}")
    A(f"v_lshrrev_b32 v18, 1, v4")
    A(f"v_lshlrev_b32 v18, 2, v18")
    A(f"v_and_b32 v23, 1, v4")
    A(f"v_or_b32 v18, v18, v23")
    A(f"v_lshrrev_b32 v23, 1, v6")
    A(f"v_xor_b32 v18, v18, v23")
    A(f"v_lshlrev_b32 v23, 7, v6")
    A(f"v_lshl_add_u32 v23, v18, 4, v23")
    A(f"v_add_u32 v23, {LDS_STA}, v23")
    A(f"v_xor_b32 v216, 32, v23")
    A(f"v_lshlrev_b32 v5, 4, v{L}")
    A(f"v_lshlrev_b32 v18, 4, v4")
    A(f"v_xor_b32 v226, v5, v18")
    A(f"v_xor_b32 v227, 64, v226")
    A(f"v_lshlrev_b32 v18, 3, v0")
    A(f"v_add_u32 v18, {LDS_REC}, v18")
    A(f"v_mov_b32 v{VGH}, 0")
    A(f"v_mov_b32 v{VGH+1}, 0")
    A(f"ds_write_b64 v18, {v(VGH,2)}")
    A(f"v_mov_b32 v18, s{S_CARRY}")
    A(f"ds_write_b32 v18, v{VGH}")
    A(f"s_lshr_b32 s{T+12}, s{S_WAVE}, 1")
    for b in range(4):
        A(f"v_sub_u32 v18, v6, v4")
        A(f"v_add_u32 v18, {16-4*b}, v18")
        A(f"v_bfe_u32 v19, v18, 1, 3")
        A(f"v_xor_b32 v19, s{T+12}, v19")
        A(f"v_lshlrev_b32 v18, 7, v18")
        A(f"v_lshl_add_u32 v18, v19, 4, v18")
        A(f"v_add_u32 v{VAB+2*b}, {LDS_REC}, v18")
        A(f"v_xor_b32 v{VAB+2*b+1}, 64, v{VAB+2*b}")
    A(f"v_bfe_u32 v18, v{L}, 2, 2")
    A(f"v_and_b32 v19, 1, v18")
    A(f"v_add_u32 v18, 1, v18")
    A(f"v_lshrrev_b32 v18, 1, v18")
    A(f"v_and_b32 v20, 3, v{L}")
    A(f"v_add_u32 v18, v18, v20")
    A(f"v_lshlrev_b32 v18, 3, v18")
    A(f"v_lshl_add_u32 v18, v4, 5, v18")
    A(f"v_mul_u32_u24 v19, 4224, v19")
    A(f"s_mul_i32 s{T+13}, s{T+12}, 8448")
    A(f"s_add_u32 s{T+13}, s{T+13}, {LDS_KC}")
    A(f"v_add3_u32 v{VAA}, v18, v19, s{T+13}")
    A(f"v_bfe_u32 v19, v6, 1, 3")
    A(f"v_xor_b32 v19, s{T+12}, v19")
    A(f"v_lshlrev_b32 v18, 7, v6")
    A(f"v_lshl_add_u32 v18, v19, 4, v18")
    A(f"v_sub_u32 v19, 3, v4")
    A(f"v_lshl_add_u32 v18, v19, 2, v18")
    A(f"v_add_u32 v{VAE}, {LDS_REC+2048}, v18")
    A(f"v_xor_b32 v{VAE+1}, 64, v{VAE}")
    A(f"v_xor_b32 v{VAE+2}, 32, v{VAE}")
    A(f"v_xor_b32 v{VAE+3}, 96, v{VAE}")
    A(f"v_lshl_add_u32 v218, v6, 2, v4")
    A(f"v_lshl_add_u32 v218, v218, 2, s{S_CARRY}")
    A(f"s_add_u32 s{T+14}, s{T+7}, {LDS_KC}")
    A(f"v_bfe_u32 v24, v6, 2, 1")
    A(f"v_lshlrev_b32 v24, 1, v24")
    A(f"v_xor_b32 v24, v24, v4")
    A(f"v_lshlrev_b32 v219, 5, v6")
    A(f"v_lshl_add_u32 v219, v24, 3, v219")
    A(f"v_add_u32 v219, s{T+14}, v219")
    A(f"v_bfe_u32 v24, v{L}, 3, 1")
    A(f"v_lshlrev_b32 v24, 4, v24")
    A(f"v_xor_b32 v220, v24, v5")
    A(f"v_add_u32 v220, s{T+14}, v220")
    A(f"s_bitcmp1_b32 s{S_WAVE}, 0")
    for u in range(2):
        A(f"s_cselect_b32 s{T+14}, {TSETS[1][2*u]}, {TSETS[0][2*u]}")
        A(f"s_cselect_b32 s{T+15}, {TSETS[1][2*u+1]}, {TSETS[0][2*u+1]}")
        A(f"v_mov_b32 v24, s{T+14}")
        A(f"v_mov_b32 v25, s{T+15}")
        A(f"s_mov_b32 vcc_lo, 0")
        A(f"s_mov_b32 vcc_hi, -1")
        A(f"v_cndmask_b32 v24, v24, v25, vcc")
        A(f"v_and_b32 v25, 0x1ff, v5")
        A(f"v_lshl_add_u32 v{221+u}, v24, 9, v25")
    A(f"s_lshl_b32 s{S_CARRY}, s{S_CH}, 12")
    A(f"v_mov_b32 v22, 0")
    A(f"buffer_load_ushort v22, v22, {s(SRD_SSMD,4)}, s{T+10} offen")
    def pollA():
        u = uid()
        if O.lfa:
            lf_poll(A, LF_A, 24, 0 if O.bsplit else O.isleep)
            return
        A(f"s_mov_b64 exec, 3")
        A(f"v_lshlrev_b32 v252, 7, v{L}")
        A(f"s_mov_b32 s{S_TMP}, {WS_SYNC + 128*FLG_A}")
        A(f"s_mov_b32 s{S_SPIN}, 0x80000")
        A(f"L_poll{u}:")
        A(f"buffer_load_dwordx2 v[254:255], v252, {s(SRD_WS,4)}, s{S_TMP} offen sc1")
        A(f"s_sub_u32 s{S_SPIN}, s{S_SPIN}, 1")
        A(f"s_cbranch_scc1 L_pollx{u}")
        A("s_waitcnt vmcnt(0)")
        A(f"v_cmp_ne_u64 vcc, {s(S_TAG,2)}, v[254:255]")
        A(f"s_cbranch_vccz L_pollx{u}")
        A(f"s_sleep {O.sleep}")
        A(f"s_branch L_poll{u}")
        A(f"L_pollx{u}:")
        A("s_waitcnt vmcnt(0)")
        A(f"s_cmp_eq_u32 s{S_WG}, 0")
        A(f"s_cbranch_scc0 L_noep{u}")
        A("s_mov_b64 exec, 1")
        A(f"buffer_store_dwordx2 v[254:255], v252, {s(SRD_WS,4)}, s{S_TMP} offen offset:{128*(EPOCH-FLG_A)} sc1")
        A(f"L_noep{u}:")
        A("s_mov_b64 exec, -1")
    def w3A():
        pollA()
        stamp(A, "A released")
        A(f"s_mov_b32 m0, {LDS_REC+2048}")
        for i in range(16):
            if i: A(f"s_add_u32 m0, m0, 1024")
            A(f"s_xor_b32 s{T}, s{T+8}, {1024*i}")
            A(f"s_add_u32 s{T}, s{T}, s{T+6}")
            A(f"buffer_load_dwordx4 v{7 if i&1 else 3}, {s(SRD_WS,4)}, s{T} offen sc1 lds")
        if O.bsplit: lf_poll(A, LF_B, 24)
        A(f"s_cmp_eq_u32 s{S_WG}, 0")
        A(f"s_cbranch_scc0 L_noep")
        lf_signal(A, EPOCH)
        A(f"L_noep:")
        for i in range(16):
            if i % 4 == 0 or i == 14:
                A(f"s_mov_b32 m0, {LDS_STA + 4096*(i>>2) if i < 14 else LDS_STB - 2048}")
                A(f"s_mov_b32 s{T}, {WS_STAT + 4096*(i>>2)}")
            A(f"buffer_load_dwordx4 v{226+(i&1)}, {s(SRD_WS,4)}, s{T} offen offset:{1024*(i&3)} sc1 lds")
        A(f"s_mul_i32 s{T+18}, s{S_WG}, 7168")
        A(f"v_lshlrev_b32 v254, 7, v{L}")
        A(f"s_mov_b32 exec_hi, 0xffffff")
        if O.w2te or O.w2t != 1: A(f"s_mov_b64 exec, 1")
        A(f"buffer_load_dword v255, v254, {s(SRD_W2,4)}, s{T+18} offen ; nowait")
        A(f"s_mov_b64 exec, -1")
        A("s_waitcnt vmcnt(17)")
    def oA():
        for gi in range(O.n_w1):
            A(f"s_waitcnt vmcnt({8 * (O.n_w1 - 1 - gi) + 1 + O.w2te})")
            for x in w1_read(gi): A(x)
        if O.w2w1:
            A("s_waitcnt lgkmcnt(0)")
            for gi in range(O.w2w1):
                for x in w2_group(gi, f"s{S_PM}", 8192 * gi):
                    A(x)
                    if x.startswith("buffer"): A(f"s_waitcnt vmcnt({O.w1_depth-1})")
        stamp(A, "A released")
        del _stamps[-1:]
    split_wave3(A, oA, w3A)
    A(f"v_cmp_eq_u32 vcc, s{T+11}, v{L}")
    A(f"v_cndmask_b32 v63, 0, v63, vcc")
    A("s_mov_b64 exec, 0xff")
    A(f"ds_write_b32 v62, v63")
    A("s_mov_b64 exec, -1")
    A("s_waitcnt lgkmcnt(0)")
    A("s_barrier")
    stamp(A, "rec landed")
    A(f"s_bitcmp1_b32 s{S_WAVE}, 0")
    A(f"s_cbranch_scc1 L_conv1")
    for var in range(3):
        par = min(var, 1)
        TS = TSETS[par]
        if var == 1:
            stub(A)
            A(f"L_conv1:")
            A(f"s_cmp_eq_u32 s{S_WAVE}, 3")
            A(f"s_cbranch_scc1 L_conv3")
        if var == 2:
            stub(A)
            A("L_conv3:")
        def afrag(buf, a_): return 136 + 32 * buf + 4 * a_
        def bfrag(buf, p, d): return 128 + 64 * buf + 32 * p + 4 * d
        def order(b):
            pairs = [(a_, J) for a_ in range(8) for J in TS if J >= a_]
            if b == 3: return [(a_, J, p) for p in (1, 0) for a_, J in pairs]
            return [(a_, J, p) for a_, J in pairs for p in range(2)]
        def reads(b):
            buf = b & 1
            seq = []; seen = set()
            for a_, J, p in order(b):
                if a_ not in seen:
                    seen.add(a_)
                    for h in range(2):
                        seq.append(f"ds_read_b64_tr_b16 {v(afrag(buf,a_)+2*h,2)}, v{VAA} offset:{512*a_+128*b+16*h}")
                if (J - a_, p) not in seen:
                    seen.add((J - a_, p))
                    seq.append(f"ds_read_b128 {a(bfrag(buf,p,J-a_),4)}, v{VAB+2*b+p} offset:{2048*(J-a_)}")
            return seq
        mark = len(A.items)
        r0 = reads(0)
        for x in r0[:O.fs]: A(x)
        ml = [f"buffer_load_dword v21, v21, {s(SRD_WS,4)}, s{T+9} offen sc1"] + modv_loads(24)
        scal = [f"v_add_f32_dpp v21, v21, v21 quad_perm:[1,0,3,2] row_mask:0xf bank_mask:0xf",
                  f"v_lshlrev_b32 v1, 16, v22",
                  f"v_add_f32_dpp v21, v21, v21 quad_perm:[2,3,0,1] row_mask:0xf bank_mask:0xf",
                  f"v_cvt_pk_bf16_f32 v21, v21, v21",
                  f"v_lshlrev_b32 v21, 16, v21",
                  f"v_add_f32 v5, 1.0, v21",
                  f"v_cvt_pk_bf16_f32 v5, v5, v5",
                  f"v_lshlrev_b32 v5, 16, v5",
                  f"v_readlane_b32 s{T+16}, v21, 0",
                  f"v_readlane_b32 s{T+18}, v21, 8",
                  f"v_readlane_b32 s{T+17}, v5, 4",
                  f"v_readlane_b32 s{T+19}, v5, 12",
                  f"v_mov_b32 v5, s{T+18}",
                  f"v_mul_f32 v7, s{T+17}, v5",
                  f"v_mul_f32 v21, s{T+16}, v5",
                  f"v_mov_b32 v217, s{T+19}"]
        kx = []
        for ti, J in enumerate(TS):
            so = 2048 * J if J < 7 else LDS_STB - LDS_STA
            kx += [f"ds_read_b32 v{VKX+4*ti+k}, v{VAE+k} offset:{2048*J}" for k in range(4)]
            kx += [f"ds_read_b128 {v(VST+4*ti,4)}, v23 offset:{so}", f"ds_read_b128 {v(VST+16+4*ti,4)}, v216 offset:{so}"]
        side = []; side2 = []; side3 = []; ntouch = 0; postg = []
        if var < 2:
            allg = [w1_group(gi, f"s{S_WAVE}", f"s{S_PM}", 224) for gi in range(O.n_w1, 4)] + [w2_group(gi, f"s{S_PM}", 8192 * gi) for gi in range(O.w2w1, min(O.w2e, O.w2side))]
            for x in allg[:len(allg) - O.post]: side.extend(x)
            postg = sum(allg[len(allg) - O.post:], [])
            if O.n_w1 < 4 and O.w2side == 4:
                postg = sum([w1_read(gi) for gi in range(O.n_w1, 4)], []) + ["s_waitcnt lgkmcnt(0)"] + postg
        pre = []
        for ti in range(4):
            d = VKX + 4 * ti + 2
            x = VX0 + 4 * ti
            pre += [f"v_and_b32 v{x}, 0xffff0000, v{d}", f"v_and_b32 v{x+1}, 0xffff0000, v{d+1}",
                    f"v_lshlrev_b32 v{x+2}, 16, v{d}", f"v_lshlrev_b32 v{x+3}, 16, v{d+1}"]
            for r in range(4): pre.append(f"v_fma_f32 v{VGH+4*ti+r}, v{x+r}, v{VST+4*ti+r}, v{VST+16+4*ti+r}")
            for r in range(4): pre.append(f"v_fma_f32 v{VGH+4*ti+r}, v{VGH+4*ti+r}, v7, v21")
        pre.insert(0, "s_waitcnt lgkmcnt(15)")
        started = set()
        if O.dbgC & 1: side = []
        if O.dbgC & 4: pre = []; kx = []
        nside = len(side)
        tailg = w1_group(f"s{S_WAVE}", 3, 3 * 32768, 60)
        mv = modv_ops(24) if O.mvearly else []
        if O.dbgC & 2: mv = []; scal = []
        if O.dbgC & 8: tailg = []
        pre = kx + pre
        for b in range(4):
            nxt = reads(b + 1) if b < 3 else []
            if b == 0: nxt = r0[O.fs:] + nxt
            if b == 2:
                if var == 2: A(f"s_waitcnt vmcnt({2 + 8 * O.mvearly})")
                A("s_barrier")
            for n, (a_, J, p) in enumerate(order(b)):
                acc = ACC + 8 * TS.index(J) + 4 * p
                c = v(acc, 4) if (J, p) in started else "0"
                started.add((J, p))
                if b == 0:
                    need = (v(afrag(0,a_)+2,2) + ",", a(bfrag(0,p,J-a_),4) + ",")
                    while any(x.split()[1] in need for x in nxt): A(nxt.pop(0))
                A(f"v_mfma_f32_16x16x32_bf16 {v(acc,4)}, {v(afrag(b&1,a_),4)}, {a(bfrag(b&1,p,J-a_),4)}, {c}")
                if nxt: A(nxt.pop(0))
                slot = 36 * b + n
                if b == 0 and nxt and len(nxt) > 34 - n: A(nxt.pop(0))
                elif ml: A(ml.pop(0))
                elif side and slot * nside >= (nside - len(side)) * 124: A(side.pop(0))
                elif b == 1 and (scal or mv): A((scal or mv).pop(0))
                elif b >= 2 and pre: A(pre.pop(0))
                if b == 3:
                    if n == 21:
                        for ti, JJ in enumerate(TS):
                            A(f"ds_write_b32 v218, v{ACC+8*ti+7} offset:{256*JJ+4}")
                    elif n == 24:
                        assert not side and not any(x.startswith("ds_read") for x in pre)
                        A("s_waitcnt lgkmcnt(0)")
                        A("s_barrier")
                        for tj, JJ in enumerate(TS):
                            A(f"ds_read_b32 v{U+tj}, v218 offset:{256*JJ}")
                    elif n > 24:
                        for _ in range(2):
                            if tailg: A(tailg.pop(0))
                    elif pre: A(pre.pop(0))
            for x in nxt: A(x)
            if b == 1:
                for x in scal + mv: A(x)
        if var: del _stamps[-(5 if O.fine else 1):]
        stamp(A, "conv mfma")
        for x in side: A(x)
        for x in pre + tailg: A(x)
        for ti in range(4):
            z1, g_, x0 = ACC + 8 * ti + 4, VGH + 4 * ti, VX0 + 4 * ti
            A(f"v_fmac_f32 v{x0}, v{g_}, v{U+ti}")
            for r in range(1, 4):
                A(f"v_fmac_f32 v{x0+r}, v{g_+r}, v{z1+r-1}")
        for ti in range(4):
            for r in range(4):
                A(f"v_dot2_f32_bf16 v{ACC+8*ti+r}, v{VKX+4*ti+(r&1)}, v{1 if r < 2 else 22}, v{ACC+8*ti+r}")
        if O.fine:
            stamp(A, "e:prebar"); stamp(A, "e:bar")
        A(f"s_add_u32 s{T+15}, s{S_CARRY}, {WS_X1C}")
        A(f"s_add_u32 s{T+14}, s{S_CARRY}, {WS_X1}")
        O1, O2 = 136, 144
        for ti in range(4):
            z0, g_, x0 = ACC + 8 * ti, VGH + 4 * ti, VX0 + 4 * ti
            for h in range(2):
                A(f"v_pk_fma_f32 {v(x0+2*h,2)}, {v(g_+2*h,2)}, {v(z0+2*h,2)}, {v(x0+2*h,2)}")
            for h in range(2):
                A(f"v_pk_mul_f32 {v(VST+4*ti+2*h,2)}, {v(x0+2*h,2)}, v[216:217] op_sel:[0,1] op_sel_hi:[1,1]")
            for h in range(2):
                A(f"v_cvt_pk_bf16_f32 v{O2+2*ti+h}, v{VST+4*ti+2*h}, v{VST+4*ti+2*h+1}")
            A(f"ds_write_b64 v219, {v(O2+2*ti,2)} offset:{512*ti}")
        for ti in range(4):
            x0 = VX0 + 4 * ti
            for h in range(2):
                A(f"v_cvt_pk_bf16_f32 v{O1+2*ti+h}, v{x0+2*h}, v{x0+2*h+1}")
            A(f"ds_write_b64 v219, {v(O1+2*ti,2)} offset:{2048+512*ti}")
        A("s_waitcnt lgkmcnt(4)")
        for k in range(2): A(f"ds_read_b128 {v(152+4*k,4)}, v220 offset:{1024*k}")
        A("s_waitcnt lgkmcnt(2)")
        for k in range(2, 4): A(f"ds_read_b128 {v(152+4*k,4)}, v220 offset:{1024*k}")
        for k in range(4):
            A(f"buffer_store_dwordx4 {v(152+4*k,4)}, v{221+(k&1)}, {s(SRD_WS,4)}, s{T+15-(k>>1)} offen sc1")
        if O.fine: stamp(A, "e:stored")
        if postg and O.n_w1 < 4: A(f"s_waitcnt vmcnt({12 + 8 * (4 - O.post)})")
        for x in postg: A(x)
        if O.fine: stamp(A, "e:post")
        if var == 2 and O.post: A("s_waitcnt vmcnt(0)")
        if var < 2: A(f"s_branch L_convdone")
    stub(A, "L_convdone")
    A(f"L_convdone:")
    stamp(A, "x1 stored")
    stamp_flush(A, 0)

VCS, VSBW = 64, 80
ACC1 = 128
VXR = 236

def w2frag(u, e):
    return (128 + 8 * e if e < 16 else 8 * (e - 16)) + 4 * u

def w2_setup(A):
    dma_voff(A, VW2S, VW2S + 1, 1024, 64)
    A(f"v_add_u32 v{VW2S+1}, {8*1024-1024}, v{VW2S+1}")
    A(f"v_add_u32 v{VW2S+2}, {2*(8*1024-1024)}, v{VW2S}")
    A(f"v_add_u32 v{VW2S+3}, {2*(8*1024-1024)}, v{VW2S+1}")
    tr_addr32(A, VW2 + 2, 64, 4)
    A(f"s_lshl_b32 s{S_TMP}, s{S_WAVE}, 5")
    A(f"v_xor_b32 v{VW2+2}, s{S_TMP}, v{VW2+2}")
    A(f"v_xor_b32 v{VW2+3}, 32, v{VW2+2}")
    A(f"v_xor_b32 v{VW2+4}, 64, v{VW2+2}")
    A(f"v_xor_b32 v{VW2+5}, 96, v{VW2+2}")
    A(f"s_mul_i32 s{S_PS}, s{S_WAVE}, {448*1024}")
    A(f"s_lshl_b32 s{S_TMP}, s{S_J}, 7")
    A(f"s_add_u32 s{S_PS}, s{S_PS}, s{S_TMP}")

def w2_group(gi, ldsreg, ldsoff, src=None):
    src = src or f"s{S_PS}"
    return [f"s_add_u32 s{S_TMP}, s{S_PE}, {gi}",
            f"s_add_u32 m0, {ldsreg}, {ldsoff}",
            f"s_cmp_ge_u32 s{S_TMP}, 7",
            f"s_cselect_b32 s{S_PO}, 7, 0",
            f"s_sub_u32 s{S_TMP}, s{S_TMP}, s{S_PO}",
            f"s_lshl_b32 s{S_PO}, s{S_TMP}, 16",
            f"s_add_u32 s{S_PO}, s{S_PO}, {src}"] + pieces8(VW2S, SRD_W2, 32768)

def w2_addr(A, base):
    for k in range(4): A(f"v_add_u32 v{VW2H+k}, {base}, v{VW2+2+k}")

def w2_read(gi, off):
    return [f"ds_read_b64_tr_b16 {a(w2frag(u, 4*gi+e)+2*h,2)}, v{VW2H+2*u+h} offset:{off+2048*e+1024*h}" for e in range(4) for u in range(2) for h in range(2)]

def gemm1_setup(A):
    L = V_LANE
    dma_voff(A, 56, 57, 4096, 5)
    A(f"v_bfe_u32 v5, v56, 6, 1")
    A(f"v_lshl_add_u32 v58, v5, 6, v56")
    A(f"v_lshl_add_u32 v59, v5, 6, v57")
    A(f"v_add_u32 v57, {8*4096-1024}, v57")
    A(f"v_add_u32 v59, {8*4096-1024}, v59")
    A(f"s_lshl_b32 s{T}, s{S_WAVE}, 16")
    A(f"s_lshl_b32 s{T+1}, s{S_RB}, 8")
    A(f"s_add_u32 s{T}, s{T}, s{T+1}")
    A(f"s_and_b32 s{T+2}, s{S_C}, 1")
    A(f"s_lshl_b32 s{T+2}, s{T+2}, 7")
    A(f"s_add_u32 s{T+2}, s{T+2}, {WS_X1}")
    A(f"s_cmp_ge_u32 s{S_C}, 14")
    A(f"s_cselect_b32 s{T+2}, s{T+2}, {WS_X1C}")
    A(f"s_add_u32 s{T}, s{T}, s{T+2}")
    A(f"s_add_u32 s{SRD_K}, s{SRD_WS}, s{T}")
    A(f"s_addc_u32 s{SRD_K+1}, s{SRD_WS+1}, 0")
    A(f"v_add_u32 v60, 128, v56")
    A(f"v_add_u32 v61, 128, v57")
    A(f"s_lshl_b32 s{T+2}, s{S_WAVE}, 11")
    A(f"s_lshl_b32 s{T+5}, s{S_ROT}, 18")
    tr_addr32(A, 8, 5, 8)
    A(f"v_xor_b32 v9, 64, v8")
    A(f"v_add_u32 v10, 0x10000, v8")
    A(f"v_add_u32 v11, 0x10000, v9")
    A(f"v_lshlrev_b32 v18, 4, v{L}")
    A(f"s_mul_i32 s{T+3}, s{S_RB}, {4*112*1024}")
    A(f"s_lshl_b32 s{T+4}, s{S_C}, 13")
    A(f"s_add_u32 s{T+3}, s{T+3}, s{T+4}")
    A(f"s_add_u32 s{T+3}, s{T+3}, s{T+2}")
    A(f"s_add_u32 s{T+3}, s{T+3}, {WS_H}")
    tr_addr32(A, 44, 5, 4)
    A(f"s_add_u32 s{T+6}, s{T+2}, {LDS_XR}")
    A(f"v_add_u32 v44, s{T+6}, v44")
    A(f"v_xor_b32 v45, 32, v44")
    A(f"v_xor_b32 v42, 64, v44")
    A(f"v_xor_b32 v43, 96, v44")
    A(f"s_lshl_b32 s{T+7}, s{S_RB}, 11")
    A(f"s_add_u32 s{T+7}, s{T+7}, {WS_ST2}")
    A(f"s_lshr_b32 s{T+8}, s{S_RT}, 4")
    A(f"s_lshl_b32 s{T+8}, s{T+8}, 1")
    A(f"s_bfe_u32 s{T+9}, s{S_RT}, 0x20002")
    A(f"s_lshl_b32 s{T+9}, s{T+9}, 6")
    A(f"s_add_u32 s{T+8}, s{T+8}, s{T+9}")
    A(f"s_lshl_b32 s{T+8}, s{T+8}, 7")
    A(f"s_add_u32 s{T+9}, s{T+8}, {WS_SYNC + 128*FLG_3}")
    A(f"s_add_u32 s{T+8}, s{T+8}, {WS_SYNC + 128*FLG_4}")
    A(f"v_min_u32 v14, 13, v{L}")
    A(f"v_and_b32 v5, 1, v14")
    A(f"v_lshrrev_b32 v14, 1, v14")
    A(f"v_lshlrev_b32 v14, 10, v14")
    A(f"v_lshl_add_u32 v14, v5, 7, v14")

def modv_loads(M):
    L = [f"v_lshlrev_b32 v{M+20}, 4, v0"]
    L += [f"s_mov_b32 s{T+p}, {WS_MODP + 12288*p + 1536*4}" for p in range(4)]
    L += [f"buffer_load_dwordx4 {v(M+4*p,4)}, v{M+20}, {s(SRD_WS,4)}, s{T+p} offen sc1" for p in range(4)]
    L += [f"v_lshlrev_b32 v{M+21}, 2, v{V_LANE}", f"s_lshl_b32 s{T+4}, s{S_J}, 8"]
    L += [f"s_add_u32 s{T+p}, s{T+4}, {WS_MODP + 12288*p + 2560*4}" for p in range(4)]
    L += [f"buffer_load_dword v{M+16+p}, v{M+21}, {s(SRD_WS,4)}, s{T+p} offen sc1" for p in range(4)]
    return L

def modv_ops(M):
    L = [f"s_lshr_b32 s{T+5}, s{S_WAVE}, 1",
         f"v_cvt_f32_u32 v{M+22}, s{T+5}",
         f"s_xor_b32 s{T+5}, s{T+5}, 1",
         f"s_lshl_b32 s{T+5}, s{T+5}, 10",
         f"s_add_u32 s{T+5}, s{T+5}, {LDS_MODV}",
         f"s_lshl_b32 s{T+4}, s{S_ROT}, 7",
         f"v_lshrrev_b32 v{M+20}, 1, v{M+20}",
         f"v_subrev_u32 v{M+20}, s{T+4}, v{M+20}",
         f"v_and_b32 v{M+20}, 0x3ff, v{M+20}",
         f"v_add_u32 v{M+20}, s{T+5}, v{M+20}"]
    for k in range(4): L += [f"v_add_f32 v{M+k}, v{M+k}, v{M+4+k}", f"v_add_f32 v{M+8+k}, v{M+8+k}, v{M+12+k}"]
    for k in range(4): L += [f"v_add_f32 v{M+k}, v{M+k}, v{M+8+k}"]
    L += [f"v_add_f32 v{M+16}, v{M+16}, v{M+17}", f"v_add_f32 v{M+18}, v{M+18}, v{M+19}"]
    for k in range(2): L += [f"v_cvt_pk_bf16_f32 v{M+4+k}, v{M+2*k}, v{M+2*k+1}"]
    L += [f"v_add_f32 v{M+16}, v{M+16}, v{M+18}"]
    for k in range(2): L += [f"v_lshlrev_b32 v{M+2*k}, 16, v{M+4+k}", f"v_and_b32 v{M+2*k+1}, 0xffff0000, v{M+4+k}"]
    L += [f"v_cvt_pk_bf16_f32 v{M+16}, v{M+16}, v{M+16}"]
    for k in range(4): L += [f"v_add_f32 v{M+k}, v{M+22}, v{M+k}"]
    L += [f"v_lshlrev_b32 v{M+16}, 16, v{M+16}"]
    for k in range(2): L += [f"v_cvt_pk_bf16_f32 v{M+4+k}, v{M+2*k}, v{M+2*k+1}"]
    L += [f"v_mul_f32 v{M+16}, 0xbf317218, v{M+16}",
          f"ds_write_b64 v{M+20}, {v(M+4,2)}",
          f"v_add_u32 v{M+21}, {LDS_GB}, v{M+21}",
          f"ds_write_b32 v{M+21}, v{M+16}",
          f"v_mov_b32 v{M+17}, 0",
          f"v_and_b32 v{M+18}, 60, v{M+21}",
          f"v_add_u32 v{M+18}, {LDS_MODV+2048}, v{M+18}",
          f"ds_write_b32 v{M+18}, v{M+17}"]
    return L

def window3(A):
    L = V_LANE
    M = 168
    A(f"v_xor_b32 v7, v6, v4")
    A(f"v_and_b32 v7, 1, v7")
    A(f"v_lshrrev_b32 v45, 2, v6")
    A(f"v_or_b32 v7, v7, v45")
    A(f"v_lshrrev_b32 v45, 1, v6")
    A(f"v_lshlrev_b32 v45, 10, v45")
    A(f"v_lshrrev_b32 v46, 1, v4")
    A(f"v_lshl_add_u32 v45, v46, 4, v45")
    A(f"v_add_u32 v45, {LDS_MODV}, v45")
    A(f"v_cmp_eq_u32 vcc, 0, v7")
    A(f"v_mov_b32 v47, {LDS_MODV+2048}")
    A(f"v_cndmask_b32 v47, v47, v45, vcc")
    A(f"v_mov_b32 v46, 32")
    A(f"v_cndmask_b32 v46, 0, v46, vcc")
    w2_addr(A, f"s{S_PM}")
    gemm1_setup(A)
    A(f"s_waitcnt vmcnt({8 * O.post})")
    A("s_barrier")
    stamp(A, "x1 acked")
    def rd():
        for gi in range(4):
            if gi == 4 - O.post: A("s_waitcnt vmcnt(0)")
            for x in w2_read(gi, 8192 * gi): A(x)
        A(f"s_cmp_eq_u32 s{S_WAVE}, 2")
        A(f"s_cbranch_scc0 L_now3w2")
        A(f"s_lshl_b32 s{T+11}, s{S_J}, 7")
        A(f"s_add_u32 s{T+11}, s{T+11}, {3*448*1024}")
        A("s_waitcnt lgkmcnt(0)")
        for gi in range(4):
            for x in w2_group(gi, f"s{S_PM}", 8192 * gi, f"s{T+11}"): A(x)
        A("L_now3w2:")
    def fin():
        if O.lf2: lf_signal(A, LF_2)
        else:
            signal_issue(A, CNT_2)
        for gi in range(4):
            for x in w1_read(gi): A(x)
        w2_addr(A, 65536)
        if not O.lf2: signal_finish(A, FLG_2)
    split_wave3(A, rd, fin)
    stamp(A, "modv")
    NB = 8
    def rdv(e):
        A(f"ds_read_b128 {v(192+4*(e%NB),4)}, v47")
        A(f"v_add_u32 v47, v47, v46")
    for e in range(NB): rdv(e)
    for e in range(32):
        A(f"v_mfma_f32_16x16x32_bf16 v[48:51], {a(4*e,4)}, {v(192+4*(e%NB),4)}, {'0' if e == 0 else 'v[48:51]'}")
        if e + NB < 32: rdv(e + NB)
    A(f"v_lshrrev_b32 v4, 4, v{L}")
    A(f"v_and_b32 v6, 15, v{L}")
    A(f"s_lshl_b32 s{T+13}, s{S_WAVE}, 9")
    A(f"s_add_u32 s{T+13}, s{T+13}, {LDS_CS}")
    A(f"v_and_b32 v5, 1, v6")
    A(f"v_lshlrev_b32 v5, 6, v5")
    A(f"v_lshl_add_u32 v5, v4, 4, v5")
    A(f"v_lshrrev_b32 v7, 1, v6")
    A(f"v_lshl_add_u32 v5, v7, 8, v5")
    A(f"v_add_u32 v5, s{T+13}, v5")
    A(f"s_mov_b32 exec_lo, 0x000f000f")
    A(f"s_mov_b32 exec_hi, 0x000f000f")
    A(f"ds_write_b128 v5, v[48:51]")
    A("s_mov_b64 exec, -1")
    A(f"v_lshrrev_b32 v5, 5, v{L}")
    A(f"v_lshlrev_b32 v5, 4, v5")
    A(f"v_add_u32 v5, s{T+13}, v5")
    A("s_waitcnt lgkmcnt(0)")
    for k in range(4):
        A(f"ds_read_b128 {v(VCS+4*k,4)}, v5 offset:{32*k}")
        A(f"ds_read_b128 {v(VSBW+4*k,4)}, v5 offset:{256+32*k}")
    A(f"v_mov_b32 v6, {hex(NLOG2E)}")
    for r in range(0, 16, 2):
        A(f"v_pk_mul_f32 {v(VSBW+r,2)}, {v(VSBW+r,2)}, v[6:7] op_sel_hi:[1,0]")
    stamp(A, "colsums")
    A(f"s_cmp_eq_u32 s{S_WAVE}, {O.poll2}")
    A(f"s_cbranch_scc0 L_np2")
    if O.lf2: lf_poll(A, LF_2, 100, O.isleep2)
    else: poll(A, 16, 128, WS_SYNC + 128 * FLG_2)
    A("L_np2:")
    A("s_waitcnt vmcnt(0)")
    A("s_barrier")
    stamp(A, "2 released")

def silu_ops(acc, rin, mr, tmp, out, packed=True):
    L = []
    W = O.sw; tmp = 48 if W <= 8 else 112
    for g0 in range(0, 16, W):
        for r in range(0, W, 2):
            L.append(f"v_pk_fma_f32 {v(tmp+r,2)}, {v(VCS+g0+r,2)}, {v(rin,2)}, {v(VSBW+g0+r,2)} op_sel:[0,1,0] op_sel_hi:[1,1,1]")
        for r in range(0, W, 2):
            L.append(f"v_pk_fma_f32 {v(acc+g0+r,2)}, {v(acc+g0+r,2)}, {v(rin,2)}, {v(tmp+r,2)} op_sel:[0,0,0] op_sel_hi:[1,0,1]")
        for i in range(W): L.append(f"v_exp_f32 v{tmp+i}, v{acc+g0+i}")
        for r in range(0, W, 2): L.append(f"v_pk_add_f32 {v(tmp+r,2)}, {v(tmp+r,2)}, 1.0 op_sel_hi:[1,0]")
        for i in range(W): L.append(f"v_rcp_f32 v{tmp+i}, v{tmp+i}")
        for r in range(0, W, 2): L.append(f"v_pk_mul_f32 {v(tmp+r,2)}, {v(tmp+r,2)}, {v(acc+g0+r,2)}")
        for r in range(0, W, 2): L.append(f"v_cvt_pk_bf16_f32 v{out+(g0+r)//2}, v{tmp+r}, v{tmp+r+1}")
    return L

def mix(x, y):
    out = []; k = 0
    for i, a_ in enumerate(x):
        out.append(a_)
        while k < len(y) and k * len(x) < (i + 1) * len(y):
            out.append(y[k]); k += 1
    return out + y[k:]

def cost(ins):
    return 8 if ins.startswith(("v_exp", "v_rcp")) else 4

def own_flag(A, base):
    A(f"s_lshl_b32 s{S_TMP}, s{S_WG}, 7")
    A(f"s_add_u32 s{S_TMP}, s{S_TMP}, {WS_SYNC + 128*base}")
    A("s_mov_b64 exec, 1")
    A(f"v_mov_b32 v252, 0")
    A(f"v_mov_b32 v253, 1")
    A(f"buffer_store_dword v253, v252, {s(SRD_WS,4)}, s{S_TMP} offen sc1")
    A("s_mov_b64 exec, -1")

def recheck(A, cmp, reload_):
    u = uid()
    A(f"s_mov_b32 s{S_SPIN}, 0x80000")
    A(f"L_rc{u}:")
    for x in cmp: A(x)
    A(f"s_cbranch_vccz L_rcx{u}")
    A(f"s_sleep {O.rs}")
    for x in reload_: A(x)
    A(f"s_sub_u32 s{S_SPIN}, s{S_SPIN}, 1")
    A("s_waitcnt vmcnt(0)")
    A(f"s_cbranch_scc0 L_rc{u}")
    A(f"L_rcx{u}:")

def gemm1(A):
    L = V_LANE
    XF = 192; VRS = 96; SG = 104; TMP, OUT = 20, 24
    A("; ---- GEMM 1 ----")
    def chunk(n, src=None):
        h = 4 * (n >> 3)
        return [f"s_add_u32 m0, s{T+2}, {8192*n}",
                f"s_and_b32 s{T+5}, s{T+5}, 0x1fffff",
                f"buffer_load_dwordx4 v{56+h}, {s(SRD_K,4)}, s{T+5} offen sc1 lds",
                f"buffer_load_dwordx4 v{57+h}, {s(SRD_K,4)}, s{T+5} offen offset:1024 sc1 lds",
                f"s_add_u32 s{T+5}, s{T+5}, 262144"]
    xres = [f"s_lshl_b32 s{T+12}, s{S_J}, 18",
            f"s_lshl_b32 s{T+13}, s{S_WAVE}, 16",
            f"s_add_u32 s{T+12}, s{T+12}, s{T+13}",
            f"s_lshl_b32 s{T+13}, s{S_RT}, 6",
            f"s_add_u32 s{T+12}, s{T+12}, s{T+13}",
            f"s_add_u32 m0, s{T+2}, {LDS_XR}",
            f"s_add_u32 s{T+12}, s{T+12}, {WS_X1}",
            f"buffer_load_dwordx4 v58, {s(SRD_WS,4)}, s{T+12} offen sc1 lds",
            f"buffer_load_dwordx4 v59, {s(SRD_WS,4)}, s{T+12} offen offset:1024 sc1 lds"]
    def w3w2():
        for gi in range(O.w2e):
            for x in w2_read(gi, 8192 * gi): A(x)
        A("s_waitcnt lgkmcnt(0)")
    w2b = lambda gi: w2_group(4 + gi, f"s{S_PM}", 8192 * gi if gi < 2 else 65536)
    A(f"s_lshl_b32 s{S_PM}, s{S_WAVE}, 14")
    A(f"s_cmp_ge_u32 s{S_C}, 14")
    A(f"s_cbranch_scc1 L_stat")
    for n in range(4):
        for x in chunk(n, WS_X1C): A(x)
    only_wave3(A, w3w2)
    def xread(st, e):
        return [f"ds_read_b64_tr_b16 {v(XF+4*((2*e+(st&1))%8)+2*h,2)}, v{8+st} offset:{2048*e+512*h}" for h in range(2)]
    def hstore(st, out):
        return [f"s_add_u32 s{T+4}, s{T+3}, {112*1024*st}"] + [f"buffer_store_dwordx4 {v(out+4*k,4)}, v18, {s(SRD_WS,4)}, s{T+4} offen offset:{1024*k} {['sc1', 'sc0 sc1', 'sc1 nt'][O.hs]}" for k in range(2)]
    def mf(st, e):
        acc = ACC1 + 16 * st
        return f"v_mfma_f32_32x32x16_bf16 {v(acc,16)}, {a(4*e,4)}, {v(XF+4*((2*e+(st&1))%8),4)}, {'0' if e == 0 else v(acc,16)}"
    sld = [f"buffer_load_dwordx4 {v(SG+4*h,4)}, v18, {s(SRD_WS,4)}, s{T+7} offen offset:{1024*h} sc1" for h in range(2)]
    side = sum([chunk(n, WS_X1C + 128 * (n >> 3)) for n in range(4, 16)], []) + xres
    ops = [1] * 8
    def emit(x, tile=0):
        A(x)
        if x.startswith("buffer"): ops.append(tile)
    def put(k):
        for _ in range(k):
            if side: emit(side.pop(0), 1)
    def ckpt(need, name=None):
        while sum(ops) < need: put(1)
        pos = [k for k, t in enumerate(ops) if t][need - 1]
        A(f"s_waitcnt vmcnt({len(ops) - 1 - pos})")
        A("s_barrier")
        if name: stamp(A, name)
    LOOK = O.look
    gates = {0: 4, 8: 8, 16: 16, 32: 20, 40: 24, 48: 34} if O.prog else {0: 4, 8: 8, 16: 16, 32: 34}
    ckpt(4, "ckpt0")
    for n in range(LOOK):
        for st in range(2):
            for x in xread(st, n): A(x)
    for e in range(32):
        n = e + LOOK
        if n in gates:
            ckpt(gates[n], "half1" if n == 32 else None)
            if n == 32:
                for x in sld: emit(x)
        if O.wmerge: A(f"s_waitcnt lgkmcnt({4 * (LOOK - 1)})")
        for st in range(2):
            A(mf(st, e))
            for x in xread(st + 2 * (n >> 5), n & 31): A(x)
            put(O.pa0 if e < 8 else O.pa)
    def spread(h):
        Ls = []
        for k in range(2):
            Ls += [f"v_mov_b32 v{VRS+4*h+k}, v{SG+4*h+2*k}", f"v_mov_b32 v{VRS+4*h+2+k}, v{SG+4*h+2*k}"]
        for k in range(2):
            Ls += [f"v_permlane32_swap_b32 v{VRS+4*h+k}, v{VRS+4*h+2+k}"]
        return Ls
    def scheck(h):
        recheck(A, [f"v_and_b32 v{TMP}, v{SG+4*h+1}, v{SG+4*h+3}", f"v_cmp_ne_u32 vcc, 1, v{TMP}"], [sld[h]])
    xr = [f"ds_read_b64_tr_b16 {v(VXR+2*k,2)}, v{44-(k&2)+(k&1)} offset:{1024*(k&1)}" for k in range(4)]
    grp = lambda gi: w2_group(gi, f"s{S_PM}", 8192 * (gi & 1))
    E = O.w2e
    late = grp(E) + grp(E + 1) + xr
    rds = []
    w2_addr(A, f"s{S_PM}")
    def step(e, st):
        if st == 2:
            if e + LOOK + 32 in gates: ckpt(gates[e + LOOK + 32])
            A(f"s_waitcnt lgkmcnt({4 * min(LOOK - 1, 31 - e)})")
        A(mf(st, e))
        if e + LOOK < 32:
            for x in xread(st, e + LOOK): A(x)
    todo = [(e, st) for e in range(32) for st in (2, 3)]
    nst = None
    while todo:
        e, st = todo.pop(0)
        if (e, st) == (16, 2): stamp(A, "B16")
        step(e, st)
        if side: put(2)
        elif e > 48 - 32 - LOOK and nst is not None and late:
            for _ in range(O.pb):
                if late and not late[0].startswith("ds_read"): emit(late.pop(0))
        if (e, st) == (O.sck, 3):
            scheck(0)
            stamp(A, "stats0")
            for x in spread(0): A(x)
            for q in range(2):
                prev = ""
                for x in silu_ops(ACC1 + 16 * q, VRS + 2 * q, VRS + 2 * q + 1, TMP, OUT + 8 * q, True) + hstore(q, OUT + 8 * q):
                    if O.ovl and x[:5] in ("v_exp", "v_rcp") and prev[:5] != x[:5] and todo[0] != (16, 2):
                        step(*todo.pop(0))
                    emit(x, 0); prev = x
            nst = len(ops)
            stamp(A, "burst0")
        if (e, st) == (O.f0at, 3):
            A(f"s_waitcnt vmcnt({len(ops) - nst})")
            A("s_barrier")
            only_wave3(A, lambda: own_flag(A, FLG_4))
    for x in late: emit(x)
    stamp(A, "g1 mfma")
    scheck(1)
    for x in spread(1): A(x)
    for st in range(2, 4):
        for x in silu_ops(ACC1 + 16 * st, VRS + 2 * st, VRS + 2 * st + 1, TMP, OUT + 8 * (st & 1), True): A(x)
        if st == 3: A(f"buffer_load_dword v12, v14, {s(SRD_WS,4)}, s{T+8} offen sc1")
        for x in hstore(st, OUT + 8 * (st & 1)): A(x)
    stamp(A, "H stored")
    A("s_branch L_g1done")
    stub(A)
    A("L_stat:")
    del _stamps[-7:]
    for n in range(5):
        for x in chunk(n, WS_X1): A(x)
    tr_addr16(A, 12, 5)
    A(f"s_lshl_b32 s{T+14}, s{S_WAVE}, 5")
    A(f"v_xor_b32 v12, s{T+14}, v12")
    ONES, GR, SM = 36, ACC1, ACC1 + 4
    for i in range(4): A(f"v_mov_b32 v{ONES+i}, s{S_ONES}")
    for c in range(4):
        A(f"s_waitcnt vmcnt({6 if c == 0 else 4 * (3 - c)})")
        A("s_barrier")
        if c == 0:
            stamp(A, "ckpt0")
            for n in range(5, 8):
                for x in chunk(n, WS_X1): A(x)
        for e in range(4 * c, 4 * c + 4):
            for h in range(2):
                A(f"ds_read_b64_tr_b16 {v(XF+4*(e%4)+2*h,2)}, v12 offset:{4096*e+512*h}")
        for e in range(4 * c, 4 * c + 4):
            f = v(XF + 4 * (e % 4), 4)
            A(f"v_mfma_f32_16x16x32_bf16 {v(GR,4)}, {f}, {f}, {'0' if e == 0 else v(GR,4)}")
            A(f"v_mfma_f32_16x16x32_bf16 {v(SM,4)}, {v(ONES,4)}, {f}, {'0' if e == 0 else v(SM,4)}")
    stamp(A, "half1")
    for e in ("stats0", "burst0", "B16"): stamp(A, e)
    for r, m in ((1, "0x22222222"), (2, "0x44444444"), (3, "0x88888888")):
        A(f"s_mov_b32 vcc_lo, {m}")
        A(f"s_mov_b32 vcc_hi, {m}")
        A(f"v_cndmask_b32 v{GR}, v{GR}, v{GR+r}, vcc")
    ln_finish(A, [(SM, GR, GR + 8, GR + 10)], GR + 1, hex(NLOG2E))
    A(f"v_mov_b32 v{GR+9}, 1")
    A(f"v_mov_b32 v{GR+11}, 1")
    A(f"v_and_b32 v5, 15, v{L}")
    A(f"v_lshlrev_b32 v5, 4, v5")
    A(f"s_and_b32 s{T+13}, s{S_C}, 1")
    A(f"s_lshl_b32 s{T+13}, s{T+13}, 10")
    A(f"s_lshl_b32 s{T+14}, s{S_WAVE}, 8")
    A(f"s_add_u32 s{T+13}, s{T+13}, s{T+14}")
    A(f"s_add_u32 s{T+13}, s{T+13}, s{T+7}")
    A(f"s_mov_b32 exec_lo, 0x00f0000f")
    A(f"s_mov_b32 exec_hi, 0xf0000f00")
    A(f"buffer_store_dwordx4 {v(GR+8,4)}, v5, {s(SRD_WS,4)}, s{T+13} offen sc1")
    A("s_mov_b64 exec, -1")
    stamp(A, "g1 mfma")
    for x in xres: A(x)
    only_wave3(A, w3w2)
    A("s_waitcnt vmcnt(0)")
    A("s_barrier")
    w2_addr(A, f"s{S_PM}")
    for x in grp(E) + grp(E + 1) + xr: A(x)
    if E < 4:
        A("s_waitcnt vmcnt(0)")
        for x in w2_read(E, 0) + w2_read(E + 1, 8192): A(x)
        A("s_waitcnt lgkmcnt(0)")
        for x in grp(E + 2) + grp(E + 3): A(x)
    if O.stq:
        A("v_mov_b32 v12, 0")
        recheck(A, [f"v_cmp_ne_u32 vcc, 1, v12"], [f"s_sleep {O.stq & 127}", f"buffer_load_dword v12, v14, {s(SRD_WS,4)}, s{T+8+(O.stq>>7)} offen sc1"])
    A(f"buffer_load_dword v12, v14, {s(SRD_WS,4)}, s{T+8} offen sc1")
    A("s_waitcnt vmcnt(0)")
    stamp(A, "H stored")
    stub(A, "L_g1done")
    A("L_g1done:")

def gemm2(A):
    L = V_LANE
    ACC = 32; HF = 96; NB = 32
    fl = lambda r, sr: f"buffer_load_dword v{r}, v14, {s(SRD_WS,4)}, s{sr} offen sc1"
    w2_addr(A, f"s{S_PM}")
    A(f"v_lshrrev_b32 v5, 5, v{L}")
    A(f"v_lshlrev_b32 v5, 4, v5")
    A(f"s_lshl_b32 s{T+1}, s{S_WAVE}, 6")
    A(f"s_add_u32 s{T+1}, s{T+1}, {LDS_GB}")
    A(f"v_add_u32 v5, s{T+1}, v5")
    A(f"s_mov_b32 s{T}, s{S_RT}")
    A(f"s_mul_i32 s{T+2}, s{T}, {112*1024}")
    A(f"v_lshlrev_b32 v6, 4, v{L}")
    A(f"v_add_u32 v3, s{T+2}, v6")
    A(f"v_add_u32 v4, {2*112*1024}, v3")
    A(f"s_mul_i32 s{T+4}, s{S_WAVE}, {28*1024}")
    A(f"s_add_u32 s{T+4}, s{T+4}, {WS_H}")
    A(f"s_add_u32 s{T+5}, s{T+4}, {28*1024}")
    A(f"s_lshl_b32 s{T+2}, s{S_PE}, 12")
    A(f"s_add_u32 s{T+2}, s{T+2}, s{T+4}")
    A("s_waitcnt vmcnt(5)")
    for gi in range(2):
        for x in w2_read((4 if O.w2e else 2) + gi, 8192 * gi): A(x)
    def hload(n):
        st, e = divmod(n, 28)
        Ls = [f"buffer_load_dwordx4 {v(HF+4*(n%NB),4)}, v{3+st}, {s(SRD_WS,4)}, s{T+2} offen offset:{1024*(e&3)} {['sc1', 'sc0 sc1', 'sc1 nt'][O.hl]}"]
        if e % 4 == 3:
            Ls += [f"s_add_u32 s{T+2}, s{T+2}, 4096", f"s_cmp_eq_u32 s{T+2}, s{T+5}", f"s_cselect_b32 s{T+2}, s{T+4}, s{T+2}"]
        return Ls
    def first():
        recheck(A, [f"v_cmp_ne_u32 vcc, 1, v12"], [fl(12, T + 8)])
        stamp(A, "F0 seen")
        for n in range(O.hp0):
            for x in hload(n): A(x)
    if O.early0: first()
    A(f"s_waitcnt vmcnt({O.hp0 if O.early0 else 0})")
    A("s_barrier")
    stamp(A, "H acked")
    def f1():
        A(f"s_cmp_ge_u32 s{S_C}, 14")
        A(f"s_cbranch_scc1 L_nof1")
        own_flag(A, FLG_3)
        A("L_nof1:")
    only_wave3(A, f1)
    if not O.early0: first()
    for n in range(O.hp0, O.hpre):
        for x in hload(n): A(x)
        if n == O.f1pos and O.hpre > O.f1pos: A(fl(13, T + 9))
    if O.w2e == 0:
        for x in w2_group(4, f"s{S_PM}", 65536) + w2_group(5, f"s{S_PM}", 65536 + 8192) + ["s_waitcnt lgkmcnt(0)"] + w2_group(6, f"s{S_PM}", 0): A(x)
    elif not O.g6late:
        for x in w2_group(6, f"s{S_PM}", 65536): A(x)
    for k in range(2):
        A(f"ds_read_b128 {v(16+4*k,4)}, v5 offset:{32*k}")
    A(f"v_add_u32 v7, s{S_PM}, v6")
    for k in range(1, 4):
        A(f"s_xor_b32 s{T+6}, s{S_WAVE}, {k}")
        A(f"s_lshl_b32 s{T+6}, s{T+6}, 14")
        A(f"v_add_u32 v{8+k}, s{T+6}, v6")
    A(f"v_and_b32 v8, 31, v{L}")
    A(f"v_lshlrev_b32 v8, 10, v8")
    A(f"v_lshrrev_b32 v5, 5, v{L}")
    A(f"v_lshl_add_u32 v8, v5, 4, v8")
    A(f"s_lshl_b32 s{T+7}, s{T}, 15")
    A(f"s_lshl_b32 s{T+6}, s{S_J}, 7")
    A(f"s_add_u32 s{T+7}, s{T+7}, s{T+6}")
    A(f"s_lshl_b32 s{T+6}, s{S_WAVE}, 5")
    A(f"s_add_u32 s{T+7}, s{T+7}, s{T+6}")
    A(f"s_add_u32 s{T+6}, s{T+7}, {2*32768}")
    def red_write(st):
        return [f"ds_write_b128 v7, {v(ACC+32*(k>>1)+16*st+8*(k&1)+4*q,4)} offset:{6144*st+2048*(k-1)+1024*q}" for k in range(1, 4) for q in range(2)]
    def red_finish(st, PP, packed):
        P = PP[0]
        own = ACC + 16 * st
        Ls = [f"ds_read_b128 {v(PP[k]+4*q,4)}, v{9+k} offset:{6144*st+2048*k+1024*q}" for k in range(3) for q in range(2)]
        for k in range(4):
            Ls += [f"v_lshlrev_b32 v{24+2*k}, 16, v{VXR+4*st+k}", f"v_and_b32 v{25+2*k}, 0xffff0000, v{VXR+4*st+k}"]
        if packed:
            Ls += [f"v_pk_add_f32 {v(own+r,2)}, {v(own+r,2)}, {v(PP[k]+r,2)}" for k in range(3) for r in range(0, 8, 2)]
            Ls += [f"v_pk_fma_f32 {v(own+r,2)}, {v(own+r,2)}, {v(16+r,2)}, {v(24+r,2)}" for r in range(0, 8, 2)]
        else:
            Ls += [f"v_add_f32 v{own+r}, v{own+r}, v{PP[k]+r}" for k in range(3) for r in range(8)]
            Ls += [f"v_fma_f32 v{own+r}, v{own+r}, v{16+r}, v{24+r}" for r in range(8)]
        if O.err:
            import struct
            Ls += [f"v_mul_f32 v{own+r}, {hex(struct.unpack('<I', struct.pack('<f', 1 + O.err / 1000))[0])}, v{own+r}" for r in range(8)]
        Ls += [f"v_cvt_pk_bf16_f32 v{P+r//2}, v{own+r}, v{own+r+1}" for r in range(0, 8, 2)]
        Ls += [f"v_permlane32_swap_b32 v{P}, v{P+2}", f"v_permlane32_swap_b32 v{P+1}, v{P+3}"]
        Ls += [f"buffer_store_dwordx4 {v(P,4)}, v8, {s(SRD_OUT,4)}, s{T+7-st} offen{['', ' sc1', ' nt', ' sc0 sc1', ' sc1 nt'][(O.om >> (4 * st)) & 15]}"]
        return Ls
    shadow = []
    nxt = O.hpre
    mark = len(A.items)
    for n in range(56):
        st, e = divmod(n, 28)
        for u in range(2):
            acc = ACC + 32 * u + 16 * st
            A(f"v_mfma_f32_32x32x16_bf16 {v(acc,16)}, {a(w2frag(u,e),4)}, {v(HF+4*(n%NB),4)}, {'0' if e == 0 else v(acc,16)}")
            if n == O.f1pos - 1 and u == 1:
                recheck(A, [f"v_cmp_ne_u32 vcc, 1, v13"], [fl(13, T + 9)])
                stamp(A, "F1 seen")
            open_ = (n, u) >= (O.f1pos - 1, 1)
            for _ in range(2 if open_ else 1):
                if nxt < (56 if open_ else 28) and nxt < n + NB and nxt - n < O.hmax and (u == 0 or n % 2 == 0 or open_):
                    for x in hload(nxt): A(x)
                    nxt += 1
                    if nxt == O.f1pos + 1: A(fl(13, T + 9))
            for _ in range(2):
                if shadow: A(shadow.pop(0))
        if O.g6late and n == O.g6late:
            for x in w2_group(6, f"s{S_PM}", 65536): A(x)
            mark = len(A.items)
        if n in (0, 6, 12): stamp(A, f"n{n}")
        if n == 29: shadow = red_write(0)
        if n == O.red0:
            A("s_waitcnt lgkmcnt(0)")
            A("s_barrier")
            shadow = red_finish(0, [ACC + 8, ACC + 32, ACC + 40], False)
        if n == O.g6at:
            A(f"s_waitcnt vmcnt({sum('buffer_load' in y[1].text for y in A.items[mark:] if y[0] == 'i' and 'rc' not in y[1].text)})")
            if O.w2e == 0:
                for x in w2_read(6, 0): A(x)
            for k in range(4): A(f"v_add_u32 v{VW2H+k}, 0x10000, v{VW2H+k}")
            for x in (w2_read(4, 0) + w2_read(5, 8192) if O.w2e == 0 else w2_read(6, 0)): A(x)
    stamp(A, "g2 mfma")
    for x in shadow + red_write(1): A(x)
    A("s_waitcnt lgkmcnt(0)")
    A("s_barrier")
    for x in red_finish(1, [HF, HF + 8, HF + 16], True): A(x)
    stamp(A, "end")
    stamp_flush(A, 2)

HEADER = open("cdna_kernels/" + NAME + ".s.ref").read().split("; Override launch")[0]

def build():
    A = Asm()
    name = NAME + "_kernel"
    A('.amdgcn_target "amdgcn-amd-amdhsa--gfx950"')
    A(".text"); A(f".globl {name}"); A(".p2align 8"); A(f".type {name},@function"); A(f"{name}:")
    prologue(A)
    phase0(A)
    conv(A)
    window3(A)
    gemm1(A)
    gemm2(A)
    A("L_end:")
    A("s_endpgm")
    k = A.items.index(("d", ".warmup"))
    W = Asm()
    if O.warm:
        for w in range(4):
            W(f"s_cmp_eq_u32 s{S_WAVE}, {w}")
            W(f"s_cbranch_scc0 L_wu{w}")
            for n in STUBS[w::4]: W(f"s_call_b64 s[74:75], {n}")
            W(f"L_wu{w}:")
    A.items[k:k+1] = W.items
    A.autowait()
    A.pad()
    out = HEADER + f"; @launch grid=(256,1,1) block=(256,1,1) lds={LDS_TOTAL}\n" + A.text()
    out += f""".section .rodata,"a"
.p2align 6
.amdhsa_kernel {name}
  .amdhsa_next_free_vgpr 512
  .amdhsa_next_free_sgpr 102
  .amdhsa_accum_offset 256
  .amdhsa_group_segment_fixed_size 0
  .amdhsa_kernarg_size 112
  .amdhsa_user_sgpr_count 2
  .amdhsa_user_sgpr_kernarg_segment_ptr 1
  .amdhsa_system_sgpr_workgroup_id_x 1
  .amdhsa_float_denorm_mode_32 3
.end_amdhsa_kernel
"""
    return out

if __name__ == "__main__":
    path = sys.argv[1]
    O.prof = "--prof" in sys.argv
    O.cyc = "--cyc" in sys.argv
    for x in sys.argv[2:]:
        if "=" in x:
            k_, v_ = x.split("="); setattr(O, k_, int(v_))
    open(path, "w").write(build())
    if O.prof:
        import json; json.dump(STAMPS, open(path + ".stamps.json", "w"))
    print("wrote", path)
```

```python
import re

def v(n, c=1): return f"v{n}" if c == 1 else f"v[{n}:{n+c-1}]"
def a(n, c=1): return f"a{n}" if c == 1 else f"a[{n}:{n+c-1}]"
def s(n, c=1): return f"s{n}" if c == 1 else f"s[{n}:{n+c-1}]"

TRANS = ("v_exp_f32", "v_log_f32", "v_rcp_f32", "v_rsq_f32", "v_sqrt_f32", "v_sin_f32", "v_cos_f32", "v_rcp_iflag_f32")
_REG = re.compile(r"^-?\|?(?:abs\()?([vas])(?:(\d+)|\[(\d+):(\d+)\])\)?\|?$")

def regs_of(op):
    op = op.strip()
    if op == "vcc": return {("s", "vcc")}
    if op == "exec": return {("s", "exec")}
    if op == "m0": return {("s", "m0")}
    m = _REG.match(op)
    if not m: return set()
    k = m.group(1)
    if m.group(2) is not None: lo = hi = int(m.group(2))
    else: lo, hi = int(m.group(3)), int(m.group(4))
    return {(k, i) for i in range(lo, hi + 1)}

class Ins:
    def __init__(self, text):
        self.text = text
        t = text.split(";")[0].strip()
        parts = t.split(None, 1)
        self.op = parts[0]
        rest = parts[1] if len(parts) > 1 else ""
        ops = [x.strip() for x in rest.split(",")] if rest else []
        mods = ""
        if ops:
            last = ops[-1].split()
            k = 0
            while len(ops) > 1 and ("[" in ops[-1] and "]" not in ops[-1] or ops[-1].count("]") > ops[-1].count("[")):
                ops[-2] = ops[-2] + "," + ops[-1]; ops.pop()
            toks = []
            for i, o in enumerate(ops):
                w = o.split()
                toks.append(w[0] if w else "")
                if len(w) > 1: mods += " " + " ".join(w[1:])
            ops = toks
        self.ops = ops; self.mods = mods
        op = self.op
        self.is_mfma = op.startswith("v_mfma")
        self.is_valu = op.startswith("v_") and not self.is_mfma
        self.is_salu = op.startswith("s_")
        self.is_ds = op.startswith("ds_")
        self.is_vmem = op.startswith(("buffer_", "global_", "flat_"))
        self.is_trans = any(op.startswith(x) for x in TRANS)
        self.is_dot = op.startswith("v_dot")
        self.is_dpp = "_dpp" in op or any(x in mods for x in ("quad_perm", "row_shr", "row_shl", "row_ror", "row_bcast", "row_mirror", "row_half_mirror", "wave_sh", "wave_ro", "row_newbcast"))
        self.is_permlane = op.startswith("v_permlane")
        self.is_lds_dma = (self.is_vmem and (" lds" in mods or "_lds_" in op))
        self.passes = 0
        if self.is_mfma:
            self.passes = 8 if "32x32x16" in op else 4
        w, r = set(), set()
        R = [regs_of(o) for o in ops]
        self.srcc = set(); self.srcab = set(); self.storedata = set(); self.wide_store = False
        if self.is_mfma:
            w |= R[0]; self.srcab = R[1] | R[2]; self.srcc = R[3]; r |= self.srcab | self.srcc
        elif self.is_permlane:
            w |= R[0] | R[1]; r |= R[0] | R[1]
        elif op.startswith("v_cmp"):
            w |= R[0]
            for x in R[1:]: r |= x
            if op.startswith("v_cmpx"): w |= {("s", "exec")}
        elif op.startswith(("v_add_co", "v_sub_co", "v_addc_co", "v_subb_co")):
            w |= R[0] | R[1]
            for x in R[2:]: r |= x
        elif self.is_valu:
            w |= R[0]
            for x in R[1:]: r |= x
            if op.startswith(("v_fmac", "v_dot2c", "v_pk_fmac", "v_writelane")) or self.is_dpp: r |= R[0]
            if op.startswith("v_cndmask") and len(ops) == 3: r |= {("s", "vcc")}
        elif self.is_ds:
            if op.startswith(("ds_read", "ds_bpermute", "ds_permute", "ds_swizzle")) or "_rtn" in op:
                w |= R[0]
                for x in R[1:]: r |= x
            else:
                for x in R: r |= x
        elif self.is_vmem:
            if "store" in op:
                for x in R: r |= x
                d = R[0] if op.startswith("buffer_") else R[1]
                self.storedata = d; self.wide_store = op.endswith(("x3", "x4"))
            elif "atomic" in op:
                for x in R: r |= x
                if "sc0" in mods: w |= R[0]
            elif self.is_lds_dma:
                for x in R: r |= x
                r |= {("s", "m0")}
            elif op.startswith("buffer_inv") or op.startswith("buffer_wbl2"):
                pass
            else:
                w |= R[0]
                for x in R[1:]: r |= x
        elif self.is_salu:
            if op.startswith(("s_cmp", "s_cbranch", "s_branch", "s_waitcnt", "s_nop", "s_barrier", "s_sleep", "s_endpgm", "s_setprio", "s_bitcmp")):
                for x in R: r |= x
            else:
                if R: w |= R[0]
                for x in R[1:]: r |= x
                if "saveexec" in op: w |= {("s", "exec")}
        self.w, self.r = w, r
        self.states = 1
        if op == "s_nop": self.states = int(ops[0], 0) + 1

def required(p, c):
    n = 0
    pv = {x for x in p.w if x[0] in "va"}
    ps = {x for x in p.w if x[0] == "s"}
    if p.is_valu:
        if pv & c.r:
            if c.is_dpp: n = max(n, 2)
            if c.is_permlane: n = max(n, 2)
            if c.is_mfma: n = max(n, 2)
            if c.op.startswith(("v_readlane", "v_readfirstlane")): n = max(n, 1)
            if p.is_trans and c.is_valu and not c.is_trans: n = max(n, 1)
            if p.is_trans and c.is_valu: n = max(n, 1)
            if "sdwa" in p.op and c.is_valu: n = max(n, 1)
        if p.is_dot and (pv & (c.r | c.w)):
            same = c.op == p.op
            if not same: n = max(n, 3)
            else:
                cab = set()
                for o in c.ops[1:3]: cab |= regs_of(o)
                if pv & cab: n = max(n, 3)
        if ps & c.r:
            if c.is_valu or c.is_mfma: n = max(n, 2)
            if c.op.startswith(("v_readlane", "v_writelane")): n = max(n, 4)
            if c.is_vmem: n = max(n, 5)
            if c.is_salu: n = max(n, 1)
        if ("s", "exec") in ps:
            if c.is_dpp: n = max(n, 5)
            if c.is_mfma or c.is_permlane or c.op.startswith(("v_readlane", "v_readfirstlane", "v_writelane")): n = max(n, 4)
    if p.is_salu and ("s", "m0") in ps and c.is_lds_dma: n = max(n, 1)
    if p.is_mfma:
        big = p.passes == 8
        if c.is_mfma:
            if pv & c.srcab: n = max(n, 12 if big else 8)
            if pv & c.srcc:
                if not (c.srcc == pv and c.passes == p.passes): n = max(n, 10 if big else 6)
            elif pv & c.w: n = max(n, 12 if big else 8)
        elif (c.is_valu or c.is_vmem or c.is_ds) and (pv & (c.r | c.w)):
            n = max(n, 12 if big else 8)
        if c.is_valu and (p.srcc & c.w): n = max(n, 7 if big else 3)
    if p.is_vmem and p.wide_store and (p.storedata & c.w):
        n = max(n, 2 if c.is_valu else 1)
    return n

class Asm:
    def __init__(self):
        self.items = []
    def __call__(self, text):
        for line in text.split("\n"):
            line = line.strip()
            if not line: continue
            if line.startswith(";"):
                self.items.append(("c", line))
            elif line.endswith(":"):
                self.items.append(("l", line[:-1]))
            elif line.startswith("."):
                self.items.append(("d", line))
            else:
                self.items.append(("i", Ins(line)))
    def label(self, n): self.items.append(("l", n))
    def pad(self):
        MAXD = 13
        changed = True
        total = 0
        start = 0
        while changed:
            changed = False
            items = self.items
            idx = [i for i, it in enumerate(items) if it[0] == "i"]
            labels = {}
            for i, it in enumerate(items):
                if it[0] == "l": labels[it[1]] = i
            branches_to = {}
            for i in idx:
                ins = items[i][1]
                if ins.op.startswith(("s_cbranch", "s_branch")):
                    branches_to.setdefault(labels[ins.ops[0]], []).append(i)
            def preds(i):
                out = []
                j = i - 1
                while j >= 0:
                    k = items[j][0]
                    if k == "i":
                        if items[j][1].op not in ("s_branch", "s_endpgm", "s_setpc_b64"): out.append(j)
                        break
                    if k == "l": out += branches_to.get(j, [])
                    j -= 1
                return out
            for i in idx:
                if i < start: continue
                c = items[i][1]
                need = 0
                stack = [(p, 0) for p in preds(i)]
                seen = {}
                while stack:
                    j, d = stack.pop()
                    if seen.get(j, 99) <= d: continue
                    seen[j] = d
                    p = items[j][1]
                    rq = required(p, c)
                    if rq > d: need = max(need, rq - d)
                    d2 = d + p.states
                    if d2 < MAXD:
                        for q in preds(j): stack.append((q, d2))
                if need > 0:
                    items.insert(i, ("i", Ins(f"s_nop {need-1}")))
                    total += 1
                    changed = True
                    start = i
                    break
            if not changed and start > 0:
                start = 0
                changed = True
        return total
    def autowait(self):
        out = []
        vm, lg = [], []
        saved = {}
        dead = False
        def merge(p, q):
            d = {}
            for regs, n in p + q:
                d[regs] = min(n, d.get(regs, 1 << 30))
            return sorted(d.items(), key=lambda x: -x[1])
        seen = set()
        for k, x in self.items:
            if k == "l":
                seen.add(x)
                if x in saved:
                    svm, slg = saved[x]
                    if dead: vm, lg = list(svm), list(slg)
                    else: vm, lg = merge(vm, svm), merge(lg, slg)
                if not x.startswith("L_stub"): dead = False
                out.append((k, x)); continue
            if k != "i":
                out.append((k, x)); continue
            ins = x
            if ins.op == "s_waitcnt":
                m = re.search(r"vmcnt\((\d+)\)", ins.text); n = re.search(r"lgkmcnt\((\d+)\)", ins.text)
                if m: vm = [e for e in vm if e[1] < int(m.group(1))]
                if n: lg = [e for e in lg if e[1] < int(n.group(1))]
                out.append((k, x)); continue
            touch = ins.r | ins.w
            nv = min([n for d, n in vm if d & touch], default=None)
            nl = min([n for d, n in lg if d & touch], default=None)
            if nv is not None or nl is not None:
                w = "s_waitcnt"
                if nv is not None:
                    nv = min(nv, 63); w += f" vmcnt({nv})"; vm = [e for e in vm if e[1] < nv]
                if nl is not None:
                    nl = min(nl, 15); w += f" lgkmcnt({nl})"; lg = [e for e in lg if e[1] < nl]
                out.append(("i", Ins(w)))
            dst = frozenset(y for y in ins.w if y[0] in "va") if "nowait" not in ins.text else frozenset()
            if ins.is_vmem and not ins.op.startswith(("buffer_inv", "buffer_wbl2")):
                vm = [(d, n + 1) for d, n in vm] + ([(dst, 0)] if dst else [])
            if ins.is_ds:
                lg = [(d, n + 1) for d, n in lg] + ([(dst, 0)] if dst else [])
            if ins.op.startswith(("s_cbranch", "s_branch")):
                tgt = ins.ops[0]
                if tgt not in seen:
                    if tgt in saved: saved[tgt] = (merge(saved[tgt][0], vm), merge(saved[tgt][1], lg))
                    else: saved[tgt] = (list(vm), list(lg))
                if ins.op == "s_branch": dead = True
            if ins.op == "s_endpgm": vm, lg, dead = [], [], True
            if ins.op == "s_setpc_b64": dead = True
            out.append((k, x))
        self.items = out
    def check_scc(self):
        NOSCC = ("s_mov", "s_movk", "s_cselect", "s_mul_i32", "s_waitcnt", "s_barrier", "s_sleep", "s_nop", "s_branch", "s_cbranch", "s_load", "s_memtime",
                 "s_memrealtime", "s_getpc", "s_setpc", "s_call", "s_endpgm", "s_setprio")
        last = None; dist = 0
        for k, x in self.items:
            if k != "i": continue
            if x.op.startswith(("s_cselect", "s_cbranch_scc")):
                ok = last is not None and (last.op.startswith(("s_cmp", "s_bitcmp")) or (x.op.startswith("s_cbranch") and last.op in ("s_sub_u32", "s_or_b64")))
                assert ok, f"SCC for '{x.text}' comes from '{last.text if last else None}'"
                assert dist <= 12, f"SCC for '{x.text}' set {dist} instructions earlier by '{last.text}'"
            if x.op.startswith("s_addc"): assert last.op == "s_add_u32" and dist == 0
            dist += 1
            if x.is_salu and not x.op.startswith(NOSCC): last = x; dist = 0
    def text(self):
        out = []
        for k, x in self.items:
            if k == "i": out.append("    " + x.text)
            elif k == "l": out.append(x + ":")
            elif k == "d": out.append(x)
            else: out.append("    " + x)
        return "\n".join(out) + "\n"
```

```python
import sys
sys.path.insert(0, "dev")
from asmlib import Asm, v, a, s

NAME = "adaLN_cond__ssm_conv_h3__dense_activation_silu__prompt"
STAGE = 4
REC_LAYOUT = 2
H_SCALE = -0.6931471805599453

WS_REC = 0
WS_X1 = 4 << 20
WS_X1C = 6 << 20
WS_H = 8 << 20
WS_STAT = 16 << 20
WS_MODP = (16 << 20) + 65536
WS_SYNC = 17 << 20
WS_PROF = (17 << 20) + (512 << 10)
WS_SIZE = 18 << 20
FLG_A, EPOCH, CNT_2, FLG_2, FLG_3 = 0, 2, 16, 32, 128
FLG_4 = 1280
WS_ST2 = (16 << 20) + (128 << 10)
LF_A, LF_2, LF_B = 512, 768, 1024

S_WG = 2; S_WAVE = 3
SRD_Q, SRD_K, SRD_V, SRD_SSMK, SRD_W1, SRD_W2, SRD_WMOD, SRD_OUT, SRD_WS, SRD_SHK, SRD_C, SRD_SSMD = [4 + 4 * i for i in range(12)]
S_DBG = 52
T = 54
S_PI, S_PM, S_PS, S_PE = 88, 89, 90, 91
S_RB, S_J, S_ROT, S_CH, S_CARRY, S_SPIN = 92, 93, 94, 95, 96, 97
S_TMP = 98
S_SIG = 87
S_C = 88
S_RT = 0
S_TAG = 84
S_PO = 86
S_SELLO, S_SELHI, S_ONES = 99, 100, 101

KARG = {SRD_Q: (0, 2097152), SRD_K: (8, 2097152), SRD_V: (16, 2097152), SRD_SHK: (24, 4096), SRD_SSMK: (32, 2097152),
        SRD_SSMD: (40, 1024), SRD_W1: (56, 512 * 1792 * 2), SRD_W2: (64, 512 * 1792 * 2), SRD_C: (72, 1024),
        SRD_WMOD: (80, 512 * 3072 * 2), SRD_OUT: (88, 2097152), SRD_WS: (104, WS_SIZE)}
NLOG2E = 0xbfb8aa3b

LDS_XC = 0
LDS_X1 = 65536
LDS_GM = 98304
LDS_SC = 114688
LDS_REC = 98304
LDS_KC = 131072
LDS_CARRY = 153216
LDS_MODV = 147968
LDS_CS = 150144
LDS_ST2 = 152192
LDS_GB = 152960
LDS_STA = 116736
LDS_STB = 157440
LDS_XR = 131072
LDS_RED = 0
LDS_TOTAL = 163840

V_LANE = 2
VW1 = 238
VW3 = 236
VW2H = 232
VW2 = 244
VW2S = 228

class Opt:
    prof = False; cyc = False
    w1_depth = 8
    wpf = 1; xpre = 2; hpre = 12; f1pos = 21; sck = 8; f0at = 20; r2same = 1; post = 1; mvearly = 1; poll2 = 0; hp0 = 4; fine = 0; om = 0; g6late = 0; jit = 0; err = 0; dbgC = 0; fs = 18; pa = 1; pa0 = 1; sw = 4; pb = 1; hs = 0; hl = 0; epv = 0; lite = 0; kcm = 1; w3d = 0; stq = 8; rs = 1; w3split = 0; isleep2 = 0; tlb = 0; bthr = 24; ovl = 0; red0 = 33; bsleep = 24; isleep = 28; sigfirst = 0; eplate = 1; stsw = 1; w2e = 4; w2w1 = 0; rd01 = 24; dbgB = 0; look = 3; wmerge = 1; prog = 1; early0 = 1; w2te = 0; w1t = 0; stl = 0; kb = 0; vx = 0; s0 = 1; s1at = 18; stall = 8; lth = 5; f1k = 13; g6at = 7; hmax = 24; recperm = 1; kc_late = 1; sleep = 1
    conv_groups = 4; w3_depth = 10; tailg = 2; cs_early = 1; n_w1 = 3; w5 = 1; lfa = 1; lf2 = 1; kc_early = 0; n_rd = 2; poller2 = 3; map84 = 0; touch = 0; cpf = 3; warm = 0; w2t = 1; outsc = 0; w2l2 = 1; g01late = 0; pp = 0; bsplit = 0; t3 = 0; xpre2 = 3; fb = 28; w2side = 4; tg = 1
O = Opt()

_uid = [0]
def uid():
    _uid[0] += 1; return _uid[0]
_stamps = []
STAMPS = {}
def stamp(A, name):
    jitter(A)
    if not O.prof: return
    if O.lite:
        if name == "issued": A("s_waitcnt lgkmcnt(0)"); A(f"v_writelane_b32 v250, s76, 0")
        if name == "end":
            A("s_memrealtime s[74:75]"); A("s_waitcnt lgkmcnt(0)"); A(f"v_writelane_b32 v250, s74, 1")
        return
    n = len(_stamps); _stamps.append(name)
    A(f"s_memtime s[74:75]" if O.cyc else f"s_memrealtime s[74:75]")
    A("s_waitcnt lgkmcnt(0)")
    if n == 1: A(f"v_writelane_b32 v250, s76, 0")
    A(f"v_writelane_b32 v250, s74, {n}")
def stamp_flush(A, kidx):
    if not O.prof or kidx != 2: return
    A(f"s_lshl_b32 s74, s{S_WG}, 2")
    A(f"s_add_u32 s74, s74, s{S_WAVE}")
    A(f"s_lshl_b32 s74, s74, 8")
    A(f"s_add_u32 s74, s74, {WS_PROF}")
    A(f"v_lshlrev_b32 v254, 2, v{V_LANE}")
    A(f"buffer_store_dword v250, v254, {s(SRD_WS,4)}, s74 offen")
    STAMPS[0] = list(_stamps)

_jn = [0]
def jitter(A):
    if not O.jit: return
    _jn[0] += 1
    u = uid()
    A(f"s_lshl_b32 s74, s{S_WG}, 2")
    A(f"s_add_u32 s74, s74, s{S_WAVE}")
    A(f"s_mul_i32 s74, s74, {(2654435761 * (O.jit + 7 * _jn[0])) & 0x7fffffff | 1}")
    A(f"s_lshr_b32 s74, s74, 27")
    A(f"s_cmp_gt_u32 s74, 7")
    A(f"s_cselect_b32 s74, 0, s74")
    A(f"L_j{u}:")
    A(f"s_cmp_eq_u32 s74, 0")
    A(f"s_cbranch_scc1 L_jx{u}")
    A(f"s_sleep 40")
    A(f"s_sub_u32 s74, s74, 1")
    A(f"s_branch L_j{u}")
    A(f"L_jx{u}:")

def dma_voff(A, d0, d1, rowstride, tmp):
    A(f"v_lshrrev_b32 v{tmp}, 3, v{V_LANE}")
    A(f"v_and_b32 v{d1}, 2, v{tmp}")
    A(f"v_lshlrev_b32 v{d1}, 5, v{d1}")
    A(f"v_and_b32 v{d0}, 7, v{V_LANE}")
    A(f"v_lshlrev_b32 v{d0}, 4, v{d0}")
    A(f"v_xor_b32 v{d0}, v{d0}, v{d1}")
    A(f"v_mul_u32_u24 v{tmp}, {rowstride}, v{tmp}")
    A(f"v_add_u32 v{d0}, v{d0}, v{tmp}")
    A(f"v_xor_b32 v{d1}, 32, v{d0}")

def tr_addr32(A, d, tmp, rowmul):
    L = V_LANE
    A(f"v_lshrrev_b32 v{tmp}, 5, v{L}")
    A(f"v_bfe_u32 v{tmp+1}, v{L}, 2, 2")
    A(f"v_lshl_add_u32 v{d}, v{tmp}, {3 if rowmul == 8 else 2}, v{tmp+1}")
    A(f"v_lshlrev_b32 v{d}, 7, v{d}")
    A(f"v_and_b32 v{tmp+1}, 2, v{tmp+1}")
    if rowmul == 8: A(f"v_or_b32 v{tmp+1}, v{tmp+1}, v{tmp}")
    A(f"v_bfe_u32 v{tmp}, v{L}, 4, 1")
    A(f"v_xor_b32 v{tmp+1}, v{tmp+1}, v{tmp}")
    A(f"v_lshl_add_u32 v{d}, v{tmp+1}, 5, v{d}")
    A(f"v_and_b32 v{tmp}, 3, v{L}")
    A(f"v_lshl_add_u32 v{d}, v{tmp}, 3, v{d}")

def tr_addr16(A, d, tmp):
    L = V_LANE
    A(f"v_lshrrev_b32 v{tmp}, 4, v{L}")
    A(f"v_bfe_u32 v{tmp+1}, v{L}, 2, 2")
    A(f"v_lshl_add_u32 v{d}, v{tmp}, 3, v{tmp+1}")
    A(f"v_lshlrev_b32 v{d}, 7, v{d}")
    A(f"v_and_b32 v{tmp+1}, 2, v{tmp+1}")
    A(f"v_and_b32 v{tmp}, 1, v{tmp}")
    A(f"v_or_b32 v{tmp+1}, v{tmp+1}, v{tmp}")
    A(f"v_lshl_add_u32 v{d}, v{tmp+1}, 5, v{d}")
    A(f"v_and_b32 v{tmp}, 3, v{L}")
    A(f"v_lshl_add_u32 v{d}, v{tmp}, 3, v{d}")

def ln_finish(A, rows, tmp, scale=None):
    steps = [
        lambda su, sq, o1, o2, t: [f"v_mul_f32 v{su}, 0x3b000000, v{su}", f"v_mul_f32 v{sq}, 0x3b000000, v{sq}"],
        lambda su, sq, o1, o2, t: [f"v_fma_f32 v{sq}, -v{su}, v{su}, v{sq}"],
        lambda su, sq, o1, o2, t: [f"v_max_f32 v{sq}, 0, v{sq}"],
        lambda su, sq, o1, o2, t: [f"v_cvt_pk_bf16_f32 v{t}, v{su}, v{sq}"],
        lambda su, sq, o1, o2, t: [f"v_lshlrev_b32 v{su}, 16, v{t}", f"v_and_b32 v{sq}, 0xffff0000, v{t}"],
        lambda su, sq, o1, o2, t: [f"v_add_f32 v{sq}, 0x3727c5ac, v{sq}"],
        lambda su, sq, o1, o2, t: [f"v_cvt_pk_bf16_f32 v{sq}, v{sq}, v{sq}"],
        lambda su, sq, o1, o2, t: [f"v_lshlrev_b32 v{sq}, 16, v{sq}"],
        lambda su, sq, o1, o2, t: [f"v_sqrt_f32 v{sq}, v{sq}"],
        lambda su, sq, o1, o2, t: [f"v_cvt_pk_bf16_f32 v{sq}, v{sq}, v{sq}"],
        lambda su, sq, o1, o2, t: [f"v_lshlrev_b32 v{sq}, 16, v{sq}"],
        lambda su, sq, o1, o2, t: [f"v_rcp_f32 v{o1}, v{sq}"],
        lambda su, sq, o1, o2, t: [f"v_mul_f32 v{o1}, {scale}, v{o1}"] if scale else [],
        lambda su, sq, o1, o2, t: [f"v_mul_f32 v{o2}, -v{su}, v{o1}"],
    ]
    for st in steps:
        for i, r in enumerate(rows):
            for x in st(*r, tmp + i): A(x)


def signal_issue(A, cnt):
    A(f"s_and_b32 s{S_SIG}, s{S_WG}, 15")
    A(f"s_lshl_b32 s{S_SIG}, s{S_SIG}, 7")
    A(f"s_add_u32 s{S_SIG}, s{S_SIG}, {WS_SYNC}")
    A("s_mov_b64 exec, 1")
    A(f"v_mov_b32 v252, {128*cnt}")
    A(f"v_mov_b32 v253, 1")
    A(f"buffer_atomic_add v253, v252, {s(SRD_WS,4)}, s{S_SIG} offen sc0 sc1")
    A("s_mov_b64 exec, -1")

def signal_finish(A, flag):
    u = uid()
    A("s_mov_b64 exec, 1")
    A(f"v_cmp_eq_u32 vcc, 15, v253")
    A(f"v_mov_b32 v252, {128*flag}")
    A(f"v_mov_b32 v253, 1")
    A(f"s_cbranch_vccz L_sig{u}")
    A(f"buffer_store_dword v253, v252, {s(SRD_WS,4)}, s{S_SIG} offen sc1")
    A(f"L_sig{u}:")
    A("s_mov_b64 exec, -1")

def poll(A, nlanes, stride, base, want=1):
    u = uid()
    A(f"s_mov_b64 exec, {hex((1 << nlanes) - 1)}")
    if stride: A(f"v_mul_u32_u24 v252, {stride}, v{V_LANE}")
    A(f"s_mov_b32 s{S_TMP}, {base}")
    A(f"s_mov_b32 s{S_SPIN}, 0x80000")
    ld = lambda r: A(f"buffer_load_dword v{r}, v252, {s(SRD_WS,4)}, s{S_TMP} offen sc1 ; nowait")
    if O.pp: ld(253)
    A(f"L_poll{u}:")
    if O.pp:
        for k in range(2):
            A(f"s_sleep {O.sleep+1}")
            ld(254 - k)
            A("s_waitcnt vmcnt(1)")
            A(f"v_cmp_ne_u32 vcc, {want}, v{253+k}")
            A(f"s_cbranch_vccz L_pollx{u}")
    else:
        ld(253)
        A("s_waitcnt vmcnt(0)")
        A(f"v_cmp_ne_u32 vcc, {want}, v253")
        A(f"s_cbranch_vccz L_pollx{u}")
        A(f"s_sleep {O.sleep}")
    A(f"s_sub_u32 s{S_SPIN}, s{S_SPIN}, 1")
    A(f"s_cbranch_scc0 L_poll{u}")
    A(f"L_pollx{u}:")
    A("s_mov_b64 exec, -1")

def lf_signal(A, base):
    A(f"s_lshl_b32 s{S_TMP}, s{S_WG}, 7")
    A(f"s_add_u32 s{S_TMP}, s{S_TMP}, {WS_SYNC + 128*base}")
    A("s_mov_b64 exec, 1")
    A(f"v_mov_b32 v252, 0")
    A(f"v_mov_b32 v254, s{S_TAG}")
    A(f"v_mov_b32 v255, s{S_TAG+1}")
    A(f"buffer_store_dwordx2 v[254:255], v252, {s(SRD_WS,4)}, s{S_TMP} offen sc1")
    A("s_mov_b64 exec, -1")

def lf_poll(A, base, tmpv, first=0):
    u = uid(); M = 76
    A(f"v_lshlrev_b32 v{tmpv+16}, 7, v{V_LANE}")
    for i in range(4):
        A(f"s_mov_b64 {s(M+2*i,2)}, -1")
        if i: A(f"v_add_u32 v{tmpv+16+i}, {8192*i}, v{tmpv+16}")
    A(f"s_mov_b32 s{S_TMP}, {WS_SYNC + 128*base}")
    A(f"s_mov_b32 s{S_SPIN}, 0x40000")
    if first: A(f"s_sleep {first}")
    def issue(k):
        for i in range(4):
            A(f"s_or_b64 exec, {s(M+2*i,2)}, 1")
            A(f"buffer_load_dwordx2 {v(tmpv+8*k+2*i,2)}, v{tmpv+16+i}, {s(SRD_WS,4)}, s{S_TMP} offen sc1 ; nowait")
    def check(k):
        for i in range(4):
            A(f"s_mov_b64 exec, {s(M+2*i,2)}")
            A(f"v_cmp_ne_u64 {s(M+2*i,2)}, {s(S_TAG,2)}, {v(tmpv+8*k+2*i,2)}")
        A(f"s_or_b64 vcc, {s(M,2)}, {s(M+2,2)}")
        A(f"s_or_b64 vcc, vcc, {s(M+4,2)}")
        A(f"s_or_b64 vcc, vcc, {s(M+6,2)}")
        A(f"s_cbranch_scc0 L_lfx{u}")
    if O.pp:
        issue(0)
        A(f"L_lf{u}:")
        for k in range(2):
            A(f"s_sleep {O.sleep}")
            issue(1 - k)
            A("s_waitcnt vmcnt(4)")
            check(k)
    else:
        A(f"L_lf{u}:")
        issue(0)
        A("s_waitcnt vmcnt(0)")
        check(0)
        A(f"s_bcnt1_i32_b64 s{S_PO}, vcc")
        A(f"s_cmp_gt_u32 s{S_PO}, {O.bthr}")
        A(f"s_cbranch_scc0 L_lfs{u}")
        A(f"s_sleep {O.bsleep}")
        A(f"L_lfs{u}:")
        A(f"s_sleep {O.sleep}")
    A(f"s_sub_u32 s{S_SPIN}, s{S_SPIN}, 1")
    A(f"s_cbranch_scc0 L_lf{u}")
    A(f"L_lfx{u}:")
    A("s_mov_b64 exec, -1")

STUBS = []
def stub(A, jump=None):
    if not O.warm: return
    if jump: A(f"s_branch {jump}")
    n = f"L_stub{len(STUBS)}"
    STUBS.append(n)
    A(f"{n}:")
    A("s_setpc_b64 s[74:75]")

def only_wave3(A, body):
    u = uid()
    A(f"s_cmp_eq_u32 s{S_WAVE}, 3")
    A(f"s_cbranch_scc0 L_w3_{u}")
    body()
    A(f"L_w3_{u}:")

def split_wave3(A, others, w3):
    u = uid()
    A(f"s_cmp_eq_u32 s{S_WAVE}, 3")
    A(f"s_cbranch_scc1 L_s3a_{u}")
    others()
    A(f"s_branch L_s3b_{u}")
    stub(A)
    A(f"L_s3a_{u}:")
    w3()
    stub(A, f"L_s3b_{u}")
    A(f"L_s3b_{u}:")

def pieces8(vbase, srd, step4, depth=0):
    L = []
    for p in range(8):
        if p == 4: L += [f"s_add_u32 m0, m0, 4096", f"s_add_u32 s{S_PO}, s{S_PO}, {step4}"]
        L.append(f"buffer_load_dwordx4 v{vbase+(p&3)}, {s(srd,4)}, s{S_PO} offen offset:{1024*(p&3)} lds")
        if depth: L.append(f"s_waitcnt vmcnt({depth-1})")
    return L

def w1_group(gi, tile, ldsbase, tmp, depth=0):
    L = [f"s_add_u32 s{S_TMP}, s{S_ROT}, {gi}",
         f"s_lshl_b32 m0, {gi}, 13",
         f"s_bitcmp1_b32 s{S_TMP}, 2\ns_cselect_b64 vcc, -1, 0",
         f"s_add_u32 m0, m0, {ldsbase}",
         f"s_and_b32 s{S_TMP}, s{S_TMP}, 3",
         f"v_cndmask_b32 v245, v{VW3}, v{VW3+1}, vcc"]
    L += [f"v_add_u32 v{tmp+k}, v245, v{VW1+k}" for k in range(4)]
    L += [f"s_mul_i32 s{S_PO}, s{S_TMP}, {64*3584}",
          f"s_lshl_b32 s{S_TMP}, s{S_C}, 8",
          f"s_add_u32 s{S_PO}, s{S_PO}, s{S_TMP}",
          f"s_lshl_b32 s{S_TMP}, {tile}, 6",
          f"s_add_u32 s{S_PO}, s{S_PO}, s{S_TMP}"]
    return L + pieces8(tmp, SRD_W1, 32 * 3584, depth)

def loop(A, body, n):
    u = uid()
    A(f"s_mov_b32 s{S_SPIN}, {n}")
    A(f"L_lp{u}:")
    for x in body: A(x)
    A(f"s_sub_u32 s{S_SPIN}, s{S_SPIN}, 1")
    A(f"s_cmp_lg_u32 s{S_SPIN}, 0")
    A(f"s_cbranch_scc1 L_lp{u}")

def w1_read(gi):
    return [f"ds_read_b64_tr_b16 {a((16*t+4*gi+e)*4+2*h,2)}, v{242+t} offset:{8192*gi+2048*e+512*h}" for e in range(4) for t in range(2) for h in range(2)]

LDS_ST1 = 114944
def prologue(A):
    VK, VV, VQ, VSH, VST, VC = 10, 28, 36, 44, 48, 56
    L = V_LANE
    A(f"s_cmp_ge_u32 s{S_WG}, 256")
    A(f"s_cbranch_scc1 L_end")
    if O.prof:
        A("s_memtime s[76:77]" if O.cyc else "s_memrealtime s[76:77]")
        _stamps.append("start")
    first = [SRD_Q, SRD_C, SRD_K, SRD_V, SRD_SHK, SRD_WS] + ([SRD_WMOD] if O.kb else [])
    rest = ([] if O.kb else [SRD_WMOD]) + [SRD_SSMK, SRD_SSMD, SRD_W1, SRD_W2, SRD_OUT]
    for r in first:
        A(f"s_load_dwordx2 {s(r,2)}, s[0:1], {KARG[r][0]}")
    if O.cpf >= 3:
        A("; wave 0 pulls an 8 KB slice of this kernel's code into the L2")
        A(f"s_getpc_b64 s[{T+16}:{T+17}]")
        A("L_pc:")
        A(f"s_bfe_u32 s{T+11}, s{S_WG}, 0x30003")
        A(f"s_lshl_b32 s{T+11}, s{T+11}, 13")
        A(f"v_and_b32 v254, 63, v0")
        A(f"v_lshlrev_b32 v254, 7, v254")
        A(f"v_add_u32 v255, s{T+11}, v254")
        A(f"v_cmp_gt_u32 vcc, 64, v0")
        A(f"v_cndmask_b32 v254, v254, v255, vcc")
        A(f"v_min_u32 v254, L_end-L_pc, v254")
        A(f"v_cmp_gt_u32 vcc, {64 if O.cpf == 3 else (128 if O.cpf == 4 else 96)}, v0")
        A(f"s_and_saveexec_b64 s[{T+12}:{T+13}], vcc")
        A(f"s_cbranch_execz L_nopf")
        A(f"global_load_dword v255, v254, s[{T+16}:{T+17}] ; nowait")
        A("L_nopf:")
        A("s_mov_b64 exec, -1")
    A(f"v_lshrrev_b32 v1, 6, v0")
    A(f"v_and_b32 v{L}, 63, v0")
    A(f"v_readfirstlane_b32 s{S_WAVE}, v1")
    for r in first:
        A(f"s_mov_b32 s{r+2}, {KARG[r][1]}")
        A(f"s_mov_b32 s{r+3}, 0x20000")
    A(f"s_lshr_b32 s{T}, s{S_WG}, 1")
    A(f"s_and_b32 s{T+1}, s{S_WG}, 1")
    A(f"s_lshl_b32 s{T+1}, s{T+1}, 2")
    A(f"s_add_u32 s{T+1}, s{T+1}, s{S_WAVE}")
    A(f"s_lshl_b32 s{T+1}, s{T+1}, 5")
    A(f"v_and_b32 v3, 31, v0")
    A(f"v_add_u32 v5, s{T+1}, v3")
    A(f"v_bfe_u32 v4, v0, 5, 1")
    A(f"v_lshlrev_b32 v6, 2, v5")
    A(f"v_lshl_add_u32 v6, v4, 10, v6")
    A(f"s_lshl_b32 s{T+2}, s{T}, 14")
    for k in range(1, 4):
        A(f"s_add_u32 s{T+2+k}, s{T+2}, {4096*k}")
    A(f"s_sub_u32 s{T+6}, s{T+2}, 3072")
    A(f"v_add_u32 v8, s{T+6}, v6")
    A(f"v_add_u32 v9, 1024, v8")
    A(f"v_add_u32 v57, 2048, v8")
    A(f"v_lshlrev_b32 v7, 4, v5")
    A(f"s_lshl_b32 s{T+7}, s{S_WG}, 2")
    A(f"s_add_u32 s{T+7}, s{T+7}, s{S_WAVE}")
    A(f"s_lshl_b32 s{T+8}, s{T+7}, 11")
    A(f"v_lshlrev_b32 v58, 4, v{L}")
    A(f"s_mul_i32 s{T+9}, s{S_WG}, 1366")
    A(f"s_lshr_b32 s{T+9}, s{T+9}, 16")
    A(f"v_and_b32 v59, 127, v0")
    A(f"v_lshlrev_b32 v59, 1, v59")
    A(f"s_lshl_b32 s{T+12}, s{T+9}, 8")
    A(f"v_lshlrev_b32 v252, 11, v{L}")
    A(f"s_lshl_b32 s{T+11}, s{S_WG}, 7")
    A(f"v_mov_b32 v253, {128*FLG_3}")
    A(f"v_cmp_eq_u32 vcc, 4, v{L}")
    A(f"s_add_u32 s{T+11}, s{T+11}, {WS_SYNC}")
    A(f"v_cndmask_b32 v252, v252, v253, vcc")
    A(f"v_mov_b32 v253, {128*FLG_4}")
    A(f"v_cmp_eq_u32 vcc, 3, v{L}")
    A(f"v_cndmask_b32 v252, v252, v253, vcc")
    A(f"v_mov_b32 v253, 0")
    A("s_waitcnt lgkmcnt(0)")
    def clr():
        A(f"s_mov_b64 exec, 0x18")
        A(f"buffer_store_dword v253, v252, {s(SRD_WS,4)}, s{T+11} offen sc1")
        A("s_mov_b64 exec, -1")
    if O.kb:
        A(f"s_add_u32 s{T+16}, s{SRD_WS}, {WS_SYNC + 128*EPOCH}")
        A(f"s_addc_u32 s{T+17}, s{SRD_WS+1}, 0")
        A(f"s_load_dwordx2 {s(S_TAG,2)}, s[{T+16}:{T+17}], 0")
        for r in rest:
            A(f"s_load_dwordx2 {s(r,2)}, s[0:1], {KARG[r][0]}")
    only_wave3(A, clr)
    A(f"buffer_load_dwordx4 {v(VST,4)}, v58, {s(SRD_Q,4)}, s{T+8} offen")
    A(f"buffer_load_dwordx4 {v(VST+4,4)}, v58, {s(SRD_Q,4)}, s{T+8} offen offset:1024")
    A(f"buffer_load_ushort v{VC}, v59, {s(SRD_C,4)}, s{T+12} offen")
    A(f"buffer_load_dword v{VK}, v8, {s(SRD_K,4)}, 0 offen")
    A(f"buffer_load_dword v{VK+1}, v9, {s(SRD_K,4)}, 0 offen")
    A(f"buffer_load_dword v{VK+2}, v57, {s(SRD_K,4)}, 0 offen")
    for r in range(15):
        A(f"buffer_load_dword v{VK+3+r}, v6, {s(SRD_K,4)}, s{T+2+(r>>2)} offen offset:{1024*(r&3)}")
    A(f"buffer_load_dwordx4 {v(VSH,4)}, v7, {s(SRD_SHK,4)}, 0 offen")
    for k in range(8):
        A(f"buffer_load_dword v{VV+k}, v6, {s(SRD_V,4)}, s{T+2+(k>>1)} offen offset:{2048*(k&1)}")
    for k in range(8):
        A(f"buffer_load_dword v{VQ+k}, v6, {s(SRD_Q,4)}, s{T+2+(k>>1)} offen offset:{2048*(k&1)}")
    if not O.kb:
        for r in rest:
            A(f"s_load_dwordx2 {s(r,2)}, s[0:1], {KARG[r][0]}")
    if O.cpf < 3:
        A("; wave 0 pulls a slice of this kernel's code into the L2")
        A(f"s_getpc_b64 s[{T+16}:{T+17}]")
        A("L_pc:")
        A(f"s_cmp_eq_u32 s{S_WAVE}, {0 if O.cpf == 1 else 7}" if O.cpf < 2 else f"s_cmp_lt_u32 s{S_WG}, 64")
        A(f"s_cbranch_scc0 L_nopf")
        A(f"s_bfe_u32 s{T+11}, s{S_WG}, {'0x30003' if O.cpf < 2 else '0x10003'}")
        A(f"s_lshl_b32 s{T+11}, s{T+11}, {13 if O.cpf < 2 else 15}")
        A(f"v_lshlrev_b32 v254, 7, v0")
        A(f"v_add_u32 v254, s{T+11}, v254")
        A(f"v_min_u32 v254, L_end-L_pc, v254")
        A(f"global_load_dword v255, v254, s[{T+16}:{T+17}] ; nowait")
        A("L_nopf:")
    for r in rest:
        A(f"s_mov_b32 s{r+2}, {KARG[r][1]}")
        A(f"s_mov_b32 s{r+3}, 0x20000")
    A(f"s_mul_i32 s{T+10}, s{T+9}, 48")
    A(f"s_sub_u32 s{T+10}, s{S_WG}, s{T+10}")
    dma_voff(A, 60, 61, 6144, 62)
    A(f"s_lshl_b32 s{T+12}, s{T+9}, 7")
    A(f"s_lshl_b32 s{T+13}, s{S_WAVE}, 5")
    A(f"s_add_u32 s{T+12}, s{T+12}, s{T+13}")
    A(f"s_mul_i32 s{T+12}, s{T+12}, 6144")
    A(f"s_lshl_b32 s{T+11}, s{T+10}, 7")
    A(f"s_add_u32 s{T+12}, s{T+12}, s{T+11}")
    A(f"s_lshl_b32 s{T+14}, s{S_WAVE}, 12")
    A(f"s_add_u32 m0, s{T+14}, {LDS_GM}")
    if not O.kb: A("s_waitcnt lgkmcnt(0)")
    stamp(A, "issued")
    for i in range(4):
        if i:
            A(f"s_add_u32 m0, m0, 1024")
            A(f"s_add_u32 s{T+12}, s{T+12}, {8*6144}")
        A(f"buffer_load_dwordx4 v{60+(i&1)}, {s(SRD_WMOD,4)}, s{T+12} offen lds")
    if O.epv:
        A(f"v_mov_b32 v178, {WS_SYNC + 128*EPOCH}")
        A(f"buffer_load_dwordx2 v[178:179], v178, {s(SRD_WS,4)}, 0 offen sc1")
    elif not O.kb:
        A(f"s_add_u32 s{T+16}, s{SRD_WS}, {WS_SYNC + 128*EPOCH}")
        A(f"s_addc_u32 s{T+17}, s{SRD_WS+1}, 0")
        A(f"s_load_dwordx2 {s(S_TAG,2)}, s[{T+16}:{T+17}], 0")
    if O.stl:
        A("; scalar reads from the pages later phases touch first")
        k = 0
        for r, offs in ((SRD_SSMK, (0, 0xffffc)), (SRD_W1, (0, 0xffffc)), (SRD_W2, (0, 0xffffc)), (SRD_OUT, (0, 0xffffc))):
            for o in offs[:O.stl]:
                A(f"s_load_dword s{76+(k&7)}, {s(r,2)}, {o}"); k += 1
        A(f"s_mov_b32 s{T+16}, s{SRD_WS}")
        A(f"s_mov_b32 s{T+17}, s{SRD_WS+1}")
        for p in range(8):
            A(f"s_load_dword s{76+(k&7)}, s[{T+16}:{T+17}], 0"); k += 1
            A(f"s_add_u32 s{T+16}, s{T+16}, 0x200000")
            A(f"s_addc_u32 s{T+17}, s{T+17}, 0")
    A(f"s_mov_b32 s{S_SELLO}, 0x05040100")
    A(f"s_mov_b32 s{S_SELHI}, 0x07060302")
    A(f"s_mov_b32 s{S_ONES}, 0x3f803f80")
    A(f"s_xor_b32 s1, s{S_WG}, {O.vx}")
    A(f"s_bfe_u32 s{S_RB}, s1, 0x20001")
    A(f"s_lshl_b32 s{S_RB}, s{S_RB}, 2")
    A(f"s_lshr_b32 s{S_TMP}, s1, 6")
    A(f"s_add_u32 s{S_RB}, s{S_RB}, s{S_TMP}")
    A(f"s_bfe_u32 s{S_J}, s1, 0x30003")
    A(f"s_add_u32 s{S_ROT}, s{S_J}, s{S_TMP}")
    A(f"s_and_b32 s{S_ROT}, s{S_ROT}, 7")
    A(f"s_and_b32 s{S_PE}, s1, 1")
    A(f"s_mul_i32 s{S_C}, s{S_PE}, 7")
    A(f"s_add_u32 s{S_C}, s{S_C}, s{S_J}")
    A(f"s_add_u32 s{S_PE}, s{S_PE}, 14")
    A(f"s_cmp_eq_u32 s{S_J}, 7")
    A(f"s_cselect_b32 s{S_C}, s{S_PE}, s{S_C}")
    A(f"s_and_b32 s{S_RT}, s1, 7")
    A(f"s_lshl_b32 s{S_RT}, s{S_RT}, 3")
    A(f"s_lshr_b32 s{S_PE}, s1, 7")
    A(f"s_lshl_b32 s{S_PE}, s{S_PE}, 2")
    A(f"s_add_u32 s{S_RT}, s{S_RT}, s{S_PE}")
    A(f"s_bfe_u32 s{S_PE}, s1, 0x10006")
    A(f"s_add_u32 s{S_RT}, s{S_RT}, s{S_PE}")
    A(f"s_lshl_b32 s{S_PE}, s{S_TMP}, 1")
    A(f"s_add_u32 s{S_PE}, s{S_PE}, s{S_J}")
    if O.r2same: A(f"s_mov_b32 s{S_PE}, s{S_J}")
    A(f"s_cmp_ge_u32 s{S_C}, 14")
    A(f"s_cselect_b32 s{SRD_W1+2}, 0, s{SRD_W1+2}")
    A(f"s_cmp_ge_u32 s{S_PE}, 7")
    A(f"s_cselect_b32 s{S_TMP}, 7, 0")
    A(f"s_sub_u32 s{S_PE}, s{S_PE}, s{S_TMP}")
    A(f"s_cmp_ge_u32 s{S_PE}, 7")
    A(f"s_cselect_b32 s{S_TMP}, 7, 0")
    A(f"s_sub_u32 s{S_PE}, s{S_PE}, s{S_TMP}")

def phase0(A):
    VK, VV, VQ, VSH, VST, VC = 10, 28, 36, 44, 48, 56
    L = V_LANE
    stamp(A, "issued2")
    if O.tlb:
        A("; wave 1 touches the pages that later phases use")
        A(f"s_cmp_eq_u32 s{S_WAVE}, 1")
        A(f"s_cbranch_scc0 L_notlb")
        A(f"v_lshlrev_b32 v254, {O.tlb}, v{L}")
        A(f"s_lshl_b32 s{T+14}, s{S_WG}, 7")
        A(f"buffer_load_dword v255, v254, {s(SRD_WS,4)}, s{T+14} offen ; nowait")
        for r in (SRD_OUT, SRD_W1, SRD_W2, SRD_SSMK):
            A(f"buffer_load_dword v255, v254, {s(r,4)}, s{T+14} offen ; nowait")
        A("L_notlb:")
    if O.w1t:
        A("; every wave touches a quarter of this workgroup's share of the w1 (and filter) lines")
        A(f"s_mul_i32 s{T+14}, s{S_WG}, 7168")
        A(f"s_mul_i32 s{T+15}, s{S_WAVE}, 1792")
        A(f"s_add_u32 s{T+14}, s{T+14}, s{T+15}")
        A(f"v_lshlrev_b32 v254, 7, v{L}")
        A(f"s_mov_b64 exec, {'0x3fff' if O.w1t & 1 else '1'}")
        A(f"s_mov_b32 s{SRD_SHK}, s{SRD_W1}")
        A(f"s_mov_b32 s{SRD_SHK+1}, s{SRD_W1+1}")
        A(f"s_mov_b32 s{SRD_SHK+2}, {512*1792*2}")
        A(f"buffer_load_dword v255, v254, {s(SRD_SHK,4)}, s{T+14} offen ; nowait")
        if O.w1t & 2:
            A(f"s_lshl_b32 s{T+14}, s{S_WG}, 13")
            A(f"s_lshl_b32 s{T+15}, s{S_WAVE}, 11")
            A(f"s_add_u32 s{T+14}, s{T+14}, s{T+15}")
            A(f"s_mov_b64 exec, 0xffff")
            A(f"buffer_load_dword v255, v254, {s(SRD_SSMK,4)}, s{T+14} offen ; nowait")
        A(f"s_mov_b64 exec, -1")
    A(f"s_cmp_eq_u32 s{S_WAVE}, 2")
    A(f"s_cbranch_scc0 L_noclr2")
    A(f"s_lshl_b32 s{T+14}, s{S_WG}, 7")
    A(f"s_add_u32 s{T+14}, s{T+14}, {WS_ST2}")
    A(f"v_lshlrev_b32 v64, 2, v{L}")
    A(f"s_mov_b32 exec_hi, 0")
    A(f"buffer_store_dword v253, v64, {s(SRD_WS,4)}, s{T+14} offen sc1")
    A("s_mov_b64 exec, -1")
    A("L_noclr2:")
    dma_voff(A, VW1, VW1 + 1, 3584, 64)
    A(f"s_mov_b32 s{T+14}, {256*3584}")
    A(f"v_bfe_u32 v64, v{VW1}, 6, 1")
    A(f"v_mul_lo_u32 v65, v64, s{T+14}")
    A(f"v_lshlrev_b32 v64, 6, v64")
    A(f"v_sub_u32 v{VW3}, v65, v64")
    A(f"v_sub_u32 v65, s{T+14}, v65")
    A(f"v_sub_u32 v{VW3+1}, v65, v64")
    A(f"v_add_u32 v{VW1+1}, {8*3584-1024}, v{VW1+1}")
    A(f"v_add_u32 v{VW1+2}, {2*(8*3584-1024)}, v{VW1}")
    A(f"v_add_u32 v{VW1+3}, {2*(8*3584-1024)}, v{VW1+1}")
    tr_addr32(A, 242, 64, 8)
    A(f"s_lshl_b32 s{T+14}, s{S_WAVE}, 15")
    A(f"v_add_u32 v242, s{T+14}, v242")
    A(f"v_xor_b32 v243, 64, v242")
    A(f"s_lshl_b32 s{S_PM}, s{S_WAVE}, 15")
    w2_setup(A)
    A(f"s_lshr_b32 s{T+11}, s{S_WAVE}, 1")
    A(f"s_lshl_b32 s{S_CH}, s{S_WG}, 1")
    A(f"s_add_u32 s{S_CH}, s{S_CH}, s{T+11}")
    A(f"s_mul_i32 s{S_CARRY}, s{T+11}, 2080")
    A(f"s_add_u32 s{S_CARRY}, s{S_CARRY}, {LDS_CARRY}")
    A(f"s_mul_i32 s{T+13}, s{S_WAVE}, 4224")
    A(f"s_add_u32 s{T+13}, s{T+13}, {LDS_KC}")
    A(f"s_and_b32 s{T+11}, s{S_WAVE}, 1")
    A(f"s_lshl_b32 s{T+14}, s{T+11}, 2")
    A(f"s_sub_u32 s{T+14}, 4, s{T+14}")
    A(f"v_add_u32 v62, s{T+14}, v58")
    A(f"v_and_b32 v64, 7, v3")
    A(f"v_lshlrev_b32 v65, 2, v4")
    A(f"v_xor_b32 v64, v64, v65")
    A(f"v_lshlrev_b32 v57, 7, v3")
    A(f"v_lshl_add_u32 v57, v64, 4, v57")
    A(f"s_lshl_b32 s{T+14}, s{S_WAVE}, 15")
    A(f"s_add_u32 s{T+14}, s{T+14}, 24576")
    A(f"v_add_u32 v57, s{T+14}, v57")
    A(f"v_lshrrev_b32 v64, 3, v{L}")
    A(f"v_and_b32 v65, 7, v{L}")
    A(f"v_xor_b32 v66, v65, v64")
    A(f"v_lshlrev_b32 v9, 7, v64")
    A(f"v_lshl_add_u32 v9, v66, 4, v9")
    A(f"v_add_u32 v9, s{T+14}, v9")
    A(f"v_lshlrev_b32 v65, 4, v65")
    for b in range(4):
        A(f"v_add_u32 v66, s{T+1}, v64")
        if b: A(f"v_add_u32 v66, {8*b}, v66")
        if O.recperm:
            A(f"v_xor_b32 v67, s{T}, v66")
            A(f"v_and_b32 v67, 127, v67")
        else:
            A(f"v_mov_b32 v67, s{T}")
        A(f"v_lshl_add_u32 v66, v66, 7, v67")
        A(f"v_lshl_add_u32 v{168+b}, v66, 7, v65")
    for k in range(1, 4): A(f"v_xor_b32 v{173+k}, {16*k}, v57")
    B = 172
    tr_addr16(A, B, 64)
    A(f"s_lshl_b32 s{T+16}, s{S_WAVE}, 5")
    A(f"v_xor_b32 v{B}, s{T+16}, v{B}")
    A(f"v_add_u32 v{B}, {LDS_GM}, v{B}")
    A(f"v_lshrrev_b32 v{B+1}, 4, v{L}")
    A(f"v_lshlrev_b32 v{B+1}, 4, v{B+1}")
    A(f"v_add_u32 v{B+1}, {LDS_SC}, v{B+1}")
    A(f"s_mul_i32 s{T+16}, s{T+9}, {3072*4}")
    A(f"s_lshl_b32 s{T+17}, s{T+10}, 8")
    A(f"s_add_u32 s{T+16}, s{T+16}, s{T+17}")
    A(f"s_lshl_b32 s{T+17}, s{S_WAVE}, 6")
    A(f"s_add_u32 s{T+16}, s{T+16}, s{T+17}")
    A(f"s_add_u32 s{T+16}, s{T+16}, {WS_MODP}")
    A(f"s_lshl_b32 s{T+15}, s{S_WG}, 6")
    A(f"s_add_u32 s{T+15}, s{T+15}, {WS_STAT}")
    A(f"s_lshl_b32 s{T+17}, s{S_WAVE}, 3")
    A(f"s_add_u32 s{T+17}, s{T+17}, {LDS_ST1}")
    A(f"v_mov_b32 v177, s{T+17}")
    A(f"v_add_u32 v59, {LDS_SC}, v59")
    def kcopy():
        A(f"s_lshl_b32 s{T+18}, s{S_CH}, 12")
        A(f"s_add_u32 m0, s{T+13}, 32")
        A(f"v_mov_b32 v63, 0")
        A(f"buffer_load_dword v63, v63, {s(SRD_SSMK,4)}, s{T+18} offen")
        for i in range(4):
            A(f"buffer_load_dwordx4 v62, {s(SRD_SSMK,4)}, s{T+18} offen offset:{1024*i} lds")
    if O.kc_early: kcopy()
    A(".warmup")
    R = 152
    for r in range(2):
        A(f"v_dot2_f32_bf16 v{R+2*r}, v{VST+4*r}, s{S_ONES}, 0")
        A(f"v_dot2_f32_bf16 v{R+2*r+1}, v{VST+4*r}, v{VST+4*r}, 0")
    for q in range(1, 4):
        for r in range(2):
            A(f"v_dot2_f32_bf16 v{R+2*r}, v{VST+4*r+q}, s{S_ONES}, v{R+2*r}")
            A(f"v_dot2_f32_bf16 v{R+2*r+1}, v{VST+4*r+q}, v{VST+4*r+q}, v{R+2*r+1}")
    X = 164
    A(f"v_lshlrev_b32 v{X}, 16, v{VC}")
    A(f"v_mul_f32 v{X+1}, {hex(NLOG2E)}, v{X}")
    A(f"v_exp_f32 v{X+1}, v{X+1}")
    for n, m in enumerate(("row_shr:1", "row_shr:2", "row_shr:4", "row_shr:8")):
        for i in range(4):
            A(f"v_add_f32_dpp v{R+i}, v{R+i}, v{R+i} {m} row_mask:0xf bank_mask:0xf bound_ctrl:0")
        A([f"v_add_f32 v{X+1}, 1.0, v{X+1}", f"v_rcp_f32 v{X+1}, v{X+1}", f"v_mul_f32 v{X+1}, v{X}, v{X+1}", f"v_cvt_pk_bf16_f32 v{X+1}, v{X+1}, v{X+1}"][n])
    A(f"ds_write_b16 v59, v{X+1}")
    for m, rm in (("row_bcast:15", "0xa"), ("row_bcast:31", "0xc")):
        for i in range(4):
            A(f"v_add_f32_dpp v{R+i}, v{R+i}, v{R+i} {m} row_mask:{rm} bank_mask:0xf")
    ln_finish(A, [(R, R+1, R+4, R+6), (R+2, R+3, R+5, R+7)], R + 8)
    A("s_lshl_b64 exec, 1, 63")
    A(f"ds_write_b64 v177, {v(R+4,2)}")
    A(f"ds_write_b64 v177, {v(R+6,2)} offset:32")
    A("s_mov_b64 exec, -1")
    stamp(A, "stats")
    A("; ---- kv ----")
    VW, VP, VKS, VVU, CA, CB = 64, 68, 86, 102, 120, 136
    for k in range(9):
        A(f"v_perm_b32 v{VP+2*k}, v{VK+2*k+1}, v{VK+2*k}, s{S_SELLO}")
        A(f"v_perm_b32 v{VP+2*k+1}, v{VK+2*k+1}, v{VK+2*k}, s{S_SELHI}")
    A(f"v_alignbit_b32 v{VW}, v{VSH+1}, v{VSH+1}, 16")
    A(f"v_alignbit_b32 v{VW+1}, v{VSH}, v{VSH}, 16")
    A(f"v_alignbit_b32 v{VW+2}, v{VSH+3}, v{VSH+3}, 16")
    A(f"v_alignbit_b32 v{VW+3}, v{VSH+2}, v{VSH+2}, 16")
    for k in range(8):
        for c in range(2):
            A(f"v_dot2_f32_bf16 v{VKS+2*k+c}, v{VP+2*k+c}, v{VW+2*c}, 0")
    for k in range(8):
        for c in range(2):
            A(f"v_dot2_f32_bf16 v{VKS+2*k+c}, v{VP+2*k+2+c}, v{VW+2*c+1}, v{VKS+2*k+c}")
    for k in range(8):
        A(f"v_lshlrev_b32 v{VVU+2*k}, 16, v{VV+k}")
        A(f"v_and_b32 v{VVU+2*k+1}, 0xffff0000, v{VV+k}")
    for k in range(8):
        A(f"v_pk_mul_f32 {v(VKS+2*k,2)}, {v(VKS+2*k,2)}, {v(VVU+2*k,2)}")
    for c in range(2):
        for q in range(4):
            A(f"v_cvt_pk_bf16_f32 v{CA+4*c+q}, v{VKS+2*(7-2*q)+c}, v{VKS+2*(6-2*q)+c}")
        A(f"ds_write_b128 v{173+c if c else 57}, {v(CA+4*c,4)}")
    for c in range(2):
        for q in range(4):
            A(f"v_perm_b32 v{CA+8+4*c+q}, v{VQ+6-2*q}, v{VQ+7-2*q}, s{S_SELHI if c else S_SELLO}")
        A(f"ds_write_b128 v{175+c}, {v(CA+8+4*c,4)}")
    stamp(A, "kvq landed")
    A("s_waitcnt lgkmcnt(0)")
    for b in range(4):
        A(f"ds_read_b128 {v(CB+4*b,4)}, v9 offset:{1024*b}")
    for b in range(4):
        A(f"buffer_store_dwordx4 {v(CB+4*b,4)}, v{168+b}, {s(SRD_WS,4)}, 0 offen sc1")
    stamp(A, "rec stored")
    if O.bsplit:
        A(f"s_waitcnt vmcnt(0) lgkmcnt(0)")
        A("s_barrier")
        stamp(A, "rec acked")
        A(f"s_add_u32 s{S_TAG}, s{S_TAG}, 1")
        only_wave3(A, lambda: lf_signal(A, LF_A))
    else:
        A(f"s_waitcnt vmcnt({9 if O.kc_early else 4}) lgkmcnt(0)")
        A("s_barrier")
    A(f"v_add_u32 v177, {LDS_ST1}, v58")
    A(f"ds_read_b128 {v(R,4)}, v177")
    FA, FB, ACC = 72, 88, 104
    for e in range(4):
        A(f"ds_read_b128 {v(FA+4*e,4)}, v{B+1} offset:{64*e}")
        A(f"ds_read_b64_tr_b16 {v(FB+4*e,2)}, v{B} offset:{4096*e}")
        A(f"ds_read_b64_tr_b16 {v(FB+4*e+2,2)}, v{B} offset:{4096*e+512}")
    A(f"s_cmp_eq_u32 s{S_WAVE}, 0")
    A(f"s_cbranch_scc0 L_nost1")
    A("s_mov_b64 exec, 0xf")
    A(f"buffer_store_dwordx4 {v(R,4)}, v58, {s(SRD_WS,4)}, s{T+15} offen sc1")
    A("s_mov_b64 exec, -1")
    A("L_nost1:")
    for e in range(4):
        A(f"v_mfma_f32_16x16x32_bf16 {v(ACC,4)}, {v(FA+4*e,4)}, {v(FB+4*e,4)}, {'0' if e == 0 else v(ACC,4)}")
    A(f"v_lshlrev_b32 v64, 2, v{L}")
    A(f"s_cmp_ge_u32 s{S_WG}, 192")
    A(f"s_cbranch_scc1 L_nogemv")
    A("s_mov_b64 exec, 0xffff")
    A(f"buffer_store_dword v{ACC}, v64, {s(SRD_WS,4)}, s{T+16} offen sc1")
    A("s_mov_b64 exec, -1")
    A("L_nogemv:")
    if O.epv:
        A(f"v_readfirstlane_b32 s{S_TAG}, v178")
        A(f"v_readfirstlane_b32 s{S_TAG+1}, v179")
    A(f"s_add_u32 s{S_TAG}, s{S_TAG}, 1")
    stamp(A, "mod stored")
    if O.bsplit:
        def kc0():
            kcopy()
            A("s_waitcnt vmcnt(5)")
        split_wave3(A, kc0, lambda: A("s_waitcnt vmcnt(0)"))
        A("s_barrier")
        stamp(A, "B acked")
    elif O.kcm:
        def kc1():
            kcopy()
            n = 5
            for gi in range(O.kcm - 1):
                for x in w1_group(gi, f"s{S_WAVE}", f"s{S_PM}", 64): A(x)
                n += 8
            A(f"s_waitcnt vmcnt({n})")
        split_wave3(A, kc1, lambda: A("s_waitcnt vmcnt(0)"))
        stamp(A, "own ack")
        A("s_barrier")
        stamp(A, "rec acked")
    else:
        A("s_waitcnt vmcnt(0)")
        stamp(A, "own ack")
        A("s_barrier")
        stamp(A, "rec acked")
    def others2():
        if not O.kc_early:
            if not O.bsplit and not O.kcm: kcopy()
            A(f"s_cmp_eq_u32 s{S_WAVE}, 2")
            A(f"s_cbranch_scc0 L_nokc3")
            A(f"s_mov_b32 m0, {LDS_KC + 3*4224 + 32}")
            for i in range(4):
                A(f"buffer_load_dwordx4 v58, {s(SRD_SSMK,4)}, s{T+18} offen offset:{1024*i} lds")
            A("L_nokc3:")
        for gi in range(max(O.kcm - 1, 0), O.n_w1):
            for x in w1_group(gi, f"s{S_WAVE}", f"s{S_PM}", 64, O.w1_depth): A(x)
        if O.w2te:
            A(f"s_mul_i32 s{T+18}, s{S_WG}, 7168")
            A(f"s_mul_i32 s{T+17}, s{S_WAVE}, {19*128}")
            A(f"s_add_u32 s{T+18}, s{T+18}, s{T+17}")
            A(f"v_lshlrev_b32 v254, 7, v{L}")
            A(f"s_mov_b64 exec, 0x7ffff")
            A(f"buffer_load_dword v255, v254, {s(SRD_W2,4)}, s{T+18} offen ; nowait")
            A(f"s_mov_b64 exec, -1")
        stamp(A, "w1r0/sig")
    def sigA():
        if O.lfa:
            if O.bsplit: lf_signal(A, LF_B)
            else:
                lf_signal(A, LF_A)
            if O.w2t >= 2:
                A(f"s_mul_i32 s{T+18}, s{S_WG}, 7168")
                A(f"v_lshlrev_b32 v254, 7, v{L}")
                A(f"s_mov_b32 exec_hi, 0xffffff")
                A(f"buffer_load_dword v255, v254, {s(SRD_W2,4)}, s{T+18} offen ; nowait")
                if O.w2t == 3:
                    A(f"s_mov_b32 s{SRD_SHK}, s{SRD_W1}")
                    A(f"s_mov_b32 s{SRD_SHK+1}, s{SRD_W1+1}")
                    A(f"s_mov_b32 s{SRD_SHK+2}, {512*1792*2}")
                    A(f"buffer_load_dword v255, v254, {s(SRD_SHK,4)}, s{T+18} offen ; nowait")
                A(f"s_mov_b64 exec, -1")
            del _stamps[-1:]
            stamp(A, "w1r0/sig")
            return
        u = uid()
        A(f"s_and_b32 s{S_SIG}, s{S_WG}, 1")
        A(f"s_lshl_b32 s{S_SIG}, s{S_SIG}, 7")
        A("s_mov_b64 exec, 1")
        A(f"v_mov_b32 v252, s{S_SIG}")
        A(f"v_mov_b32 v253, 1")
        A(f"global_atomic_add v253, v252, v253, {s(S_DBG,2)} sc0 sc1")
        A(f"v_mov_b32 v254, s{S_TAG}")
        A(f"v_mov_b32 v255, s{S_TAG+1}")
        A(f"s_mov_b32 s{S_TMP}, {WS_SYNC + 128*FLG_A}")
        A(f"v_cmp_eq_u32 vcc, 127, v253")
        A(f"s_cbranch_vccz L_sig{u}")
        A(f"buffer_store_dwordx2 v[254:255], v252, {s(SRD_WS,4)}, s{S_TMP} offen sc1")
        A(f"L_sig{u}:")
        A("s_mov_b64 exec, -1")
        del _stamps[-1:]
        stamp(A, "w1r0/sig")
    split_wave3(A, others2, sigA)
    A(f"s_mul_i32 s{T+11}, s{T+11}, 64")
    A(f"s_add_u32 s{T+11}, s{T+11}, 7")
    A(f"v_lshlrev_b32 v62, 2, v{L}")
    A(f"v_add_u32 v62, s{T+13}, v62")

TSETS = ([7, 4, 3, 0], [6, 5, 2, 1])
def conv(A):
    VAB, VAA, VAE = 8, 16, 17
    VST = 24; VKX = 200; VGH, VX0 = 72, 88; ACC = 104; U = 56
    L = V_LANE
    A(f"v_lshrrev_b32 v3, 3, v{L}")
    if O.recperm:
        A(f"s_and_b32 s{T+6}, s{S_WG}, 7")
        A(f"v_xor_b32 v3, s{T+6}, v3")
    A(f"v_lshlrev_b32 v3, 7, v3")
    A(f"v_lshrrev_b32 v4, 4, v{L}")
    A(f"v_and_b32 v7, 7, v{L}")
    A(f"v_xor_b32 v7, v7, v4")
    A(f"v_lshl_add_u32 v3, v7, 4, v3")
    A(f"v_xor_b32 v7, 64, v3")
    A(f"s_lshl_b32 s{T+6}, s{S_WG}, 14")
    A(f"s_bfe_u32 s{T+8}, s{S_WG}, 0x40003")
    A(f"s_lshl_b32 s{T+8}, s{T+8}, 10")
    A(f"s_lshl_b32 s{T+7}, s{S_WAVE}, 12")
    A(f"v_and_b32 v21, 3, v{L}")
    A(f"v_mul_u32_u24 v21, 12288, v21")
    A(f"v_bfe_u32 v22, v{L}, 2, 2")
    A(f"v_lshl_add_u32 v21, v22, 11, v21")
    A(f"v_add_u32 v23, 2048, v21")
    A(f"v_cmp_eq_u32 vcc, 3, v22")
    A(f"s_lshl_b32 s{T+9}, s{S_CH}, 2")
    A(f"s_add_u32 s{T+9}, s{T+9}, {WS_MODP}")
    A(f"v_cndmask_b32 v21, v21, v23, vcc")
    A(f"s_lshl_b32 s{T+10}, s{S_CH}, 1")
    A(f"v_and_b32 v6, 15, v{L}")
    A(f"v_lshrrev_b32 v18, 1, v4")
    A(f"v_lshlrev_b32 v18, 2, v18")
    A(f"v_and_b32 v23, 1, v4")
    A(f"v_or_b32 v18, v18, v23")
    A(f"v_lshrrev_b32 v23, 1, v6")
    A(f"v_xor_b32 v18, v18, v23")
    A(f"v_lshlrev_b32 v23, 7, v6")
    A(f"v_lshl_add_u32 v23, v18, 4, v23")
    A(f"v_add_u32 v23, {LDS_STA}, v23")
    A(f"v_xor_b32 v216, 32, v23")
    A(f"v_lshlrev_b32 v5, 4, v{L}")
    A(f"v_lshlrev_b32 v18, 4, v4")
    A(f"v_xor_b32 v226, v5, v18")
    A(f"v_xor_b32 v227, 64, v226")
    A(f"v_lshlrev_b32 v18, 3, v0")
    A(f"v_add_u32 v18, {LDS_REC}, v18")
    A(f"v_mov_b32 v{VGH}, 0")
    A(f"v_mov_b32 v{VGH+1}, 0")
    A(f"ds_write_b64 v18, {v(VGH,2)}")
    A(f"v_mov_b32 v18, s{S_CARRY}")
    A(f"ds_write_b32 v18, v{VGH}")
    A(f"s_lshr_b32 s{T+12}, s{S_WAVE}, 1")
    for b in range(4):
        A(f"v_sub_u32 v18, v6, v4")
        A(f"v_add_u32 v18, {16-4*b}, v18")
        A(f"v_bfe_u32 v19, v18, 1, 3")
        A(f"v_xor_b32 v19, s{T+12}, v19")
        A(f"v_lshlrev_b32 v18, 7, v18")
        A(f"v_lshl_add_u32 v18, v19, 4, v18")
        A(f"v_add_u32 v{VAB+2*b}, {LDS_REC}, v18")
        A(f"v_xor_b32 v{VAB+2*b+1}, 64, v{VAB+2*b}")
    A(f"v_bfe_u32 v18, v{L}, 2, 2")
    A(f"v_and_b32 v19, 1, v18")
    A(f"v_add_u32 v18, 1, v18")
    A(f"v_lshrrev_b32 v18, 1, v18")
    A(f"v_and_b32 v20, 3, v{L}")
    A(f"v_add_u32 v18, v18, v20")
    A(f"v_lshlrev_b32 v18, 3, v18")
    A(f"v_lshl_add_u32 v18, v4, 5, v18")
    A(f"v_mul_u32_u24 v19, 4224, v19")
    A(f"s_mul_i32 s{T+13}, s{T+12}, 8448")
    A(f"s_add_u32 s{T+13}, s{T+13}, {LDS_KC}")
    A(f"v_add3_u32 v{VAA}, v18, v19, s{T+13}")
    A(f"v_bfe_u32 v19, v6, 1, 3")
    A(f"v_xor_b32 v19, s{T+12}, v19")
    A(f"v_lshlrev_b32 v18, 7, v6")
    A(f"v_lshl_add_u32 v18, v19, 4, v18")
    A(f"v_sub_u32 v19, 3, v4")
    A(f"v_lshl_add_u32 v18, v19, 2, v18")
    A(f"v_add_u32 v{VAE}, {LDS_REC+2048}, v18")
    A(f"v_xor_b32 v{VAE+1}, 64, v{VAE}")
    A(f"v_xor_b32 v{VAE+2}, 32, v{VAE}")
    A(f"v_xor_b32 v{VAE+3}, 96, v{VAE}")
    A(f"v_lshl_add_u32 v218, v6, 2, v4")
    A(f"v_lshl_add_u32 v218, v218, 2, s{S_CARRY}")
    A(f"s_add_u32 s{T+14}, s{T+7}, {LDS_KC}")
    A(f"v_bfe_u32 v24, v6, 2, 1")
    A(f"v_lshlrev_b32 v24, 1, v24")
    A(f"v_xor_b32 v24, v24, v4")
    A(f"v_lshlrev_b32 v219, 5, v6")
    A(f"v_lshl_add_u32 v219, v24, 3, v219")
    A(f"v_add_u32 v219, s{T+14}, v219")
    A(f"v_bfe_u32 v24, v{L}, 3, 1")
    A(f"v_lshlrev_b32 v24, 4, v24")
    A(f"v_xor_b32 v220, v24, v5")
    A(f"v_add_u32 v220, s{T+14}, v220")
    A(f"s_bitcmp1_b32 s{S_WAVE}, 0")
    for u in range(2):
        A(f"s_cselect_b32 s{T+14}, {TSETS[1][2*u]}, {TSETS[0][2*u]}")
        A(f"s_cselect_b32 s{T+15}, {TSETS[1][2*u+1]}, {TSETS[0][2*u+1]}")
        A(f"v_mov_b32 v24, s{T+14}")
        A(f"v_mov_b32 v25, s{T+15}")
        A(f"s_mov_b32 vcc_lo, 0")
        A(f"s_mov_b32 vcc_hi, -1")
        A(f"v_cndmask_b32 v24, v24, v25, vcc")
        A(f"v_and_b32 v25, 0x1ff, v5")
        A(f"v_lshl_add_u32 v{221+u}, v24, 9, v25")
    A(f"s_lshl_b32 s{S_CARRY}, s{S_CH}, 12")
    A(f"v_mov_b32 v22, 0")
    A(f"buffer_load_ushort v22, v22, {s(SRD_SSMD,4)}, s{T+10} offen")
    def pollA():
        u = uid()
        if O.lfa:
            lf_poll(A, LF_A, 24, 0 if O.bsplit else O.isleep)
            return
        A(f"s_mov_b64 exec, 3")
        A(f"v_lshlrev_b32 v252, 7, v{L}")
        A(f"s_mov_b32 s{S_TMP}, {WS_SYNC + 128*FLG_A}")
        A(f"s_mov_b32 s{S_SPIN}, 0x80000")
        A(f"L_poll{u}:")
        A(f"buffer_load_dwordx2 v[254:255], v252, {s(SRD_WS,4)}, s{S_TMP} offen sc1")
        A(f"s_sub_u32 s{S_SPIN}, s{S_SPIN}, 1")
        A(f"s_cbranch_scc1 L_pollx{u}")
        A("s_waitcnt vmcnt(0)")
        A(f"v_cmp_ne_u64 vcc, {s(S_TAG,2)}, v[254:255]")
        A(f"s_cbranch_vccz L_pollx{u}")
        A(f"s_sleep {O.sleep}")
        A(f"s_branch L_poll{u}")
        A(f"L_pollx{u}:")
        A("s_waitcnt vmcnt(0)")
        A(f"s_cmp_eq_u32 s{S_WG}, 0")
        A(f"s_cbranch_scc0 L_noep{u}")
        A("s_mov_b64 exec, 1")
        A(f"buffer_store_dwordx2 v[254:255], v252, {s(SRD_WS,4)}, s{S_TMP} offen offset:{128*(EPOCH-FLG_A)} sc1")
        A(f"L_noep{u}:")
        A("s_mov_b64 exec, -1")
    def w3A():
        pollA()
        stamp(A, "A released")
        A(f"s_mov_b32 m0, {LDS_REC+2048}")
        for i in range(16):
            if i: A(f"s_add_u32 m0, m0, 1024")
            A(f"s_xor_b32 s{T}, s{T+8}, {1024*i}")
            A(f"s_add_u32 s{T}, s{T}, s{T+6}")
            A(f"buffer_load_dwordx4 v{7 if i&1 else 3}, {s(SRD_WS,4)}, s{T} offen sc1 lds")
        if O.bsplit: lf_poll(A, LF_B, 24)
        A(f"s_cmp_eq_u32 s{S_WG}, 0")
        A(f"s_cbranch_scc0 L_noep")
        lf_signal(A, EPOCH)
        A(f"L_noep:")
        for i in range(16):
            if i % 4 == 0 or i == 14:
                A(f"s_mov_b32 m0, {LDS_STA + 4096*(i>>2) if i < 14 else LDS_STB - 2048}")
                A(f"s_mov_b32 s{T}, {WS_STAT + 4096*(i>>2)}")
            A(f"buffer_load_dwordx4 v{226+(i&1)}, {s(SRD_WS,4)}, s{T} offen offset:{1024*(i&3)} sc1 lds")
        A(f"s_mul_i32 s{T+18}, s{S_WG}, 7168")
        A(f"v_lshlrev_b32 v254, 7, v{L}")
        A(f"s_mov_b32 exec_hi, 0xffffff")
        if O.w2te or O.w2t != 1: A(f"s_mov_b64 exec, 1")
        A(f"buffer_load_dword v255, v254, {s(SRD_W2,4)}, s{T+18} offen ; nowait")
        A(f"s_mov_b64 exec, -1")
        A("s_waitcnt vmcnt(17)")
    def oA():
        for gi in range(O.n_w1):
            A(f"s_waitcnt vmcnt({8 * (O.n_w1 - 1 - gi) + 1 + O.w2te})")
            for x in w1_read(gi): A(x)
        if O.w2w1:
            A("s_waitcnt lgkmcnt(0)")
            for gi in range(O.w2w1):
                for x in w2_group(gi, f"s{S_PM}", 8192 * gi):
                    A(x)
                    if x.startswith("buffer"): A(f"s_waitcnt vmcnt({O.w1_depth-1})")
        stamp(A, "A released")
        del _stamps[-1:]
    split_wave3(A, oA, w3A)
    A(f"v_cmp_eq_u32 vcc, s{T+11}, v{L}")
    A(f"v_cndmask_b32 v63, 0, v63, vcc")
    A("s_mov_b64 exec, 0xff")
    A(f"ds_write_b32 v62, v63")
    A("s_mov_b64 exec, -1")
    A("s_waitcnt lgkmcnt(0)")
    A("s_barrier")
    stamp(A, "rec landed")
    A(f"s_bitcmp1_b32 s{S_WAVE}, 0")
    A(f"s_cbranch_scc1 L_conv1")
    for var in range(3):
        par = min(var, 1)
        TS = TSETS[par]
        if var == 1:
            stub(A)
            A(f"L_conv1:")
            A(f"s_cmp_eq_u32 s{S_WAVE}, 3")
            A(f"s_cbranch_scc1 L_conv3")
        if var == 2:
            stub(A)
            A("L_conv3:")
        def afrag(buf, a_): return 136 + 32 * buf + 4 * a_
        def bfrag(buf, p, d): return 128 + 64 * buf + 32 * p + 4 * d
        def order(b):
            pairs = [(a_, J) for a_ in range(8) for J in TS if J >= a_]
            if b == 3: return [(a_, J, p) for p in (1, 0) for a_, J in pairs]
            return [(a_, J, p) for a_, J in pairs for p in range(2)]
        def reads(b):
            buf = b & 1
            seq = []; seen = set()
            for a_, J, p in order(b):
                if a_ not in seen:
                    seen.add(a_)
                    for h in range(2):
                        seq.append(f"ds_read_b64_tr_b16 {v(afrag(buf,a_)+2*h,2)}, v{VAA} offset:{512*a_+128*b+16*h}")
                if (J - a_, p) not in seen:
                    seen.add((J - a_, p))
                    seq.append(f"ds_read_b128 {a(bfrag(buf,p,J-a_),4)}, v{VAB+2*b+p} offset:{2048*(J-a_)}")
            return seq
        mark = len(A.items)
        r0 = reads(0)
        for x in r0[:O.fs]: A(x)
        ml = [f"buffer_load_dword v21, v21, {s(SRD_WS,4)}, s{T+9} offen sc1"] + modv_loads(24)
        scal = [f"v_add_f32_dpp v21, v21, v21 quad_perm:[1,0,3,2] row_mask:0xf bank_mask:0xf",
                  f"v_lshlrev_b32 v1, 16, v22",
                  f"v_add_f32_dpp v21, v21, v21 quad_perm:[2,3,0,1] row_mask:0xf bank_mask:0xf",
                  f"v_cvt_pk_bf16_f32 v21, v21, v21",
                  f"v_lshlrev_b32 v21, 16, v21",
                  f"v_add_f32 v5, 1.0, v21",
                  f"v_cvt_pk_bf16_f32 v5, v5, v5",
                  f"v_lshlrev_b32 v5, 16, v5",
                  f"v_readlane_b32 s{T+16}, v21, 0",
                  f"v_readlane_b32 s{T+18}, v21, 8",
                  f"v_readlane_b32 s{T+17}, v5, 4",
                  f"v_readlane_b32 s{T+19}, v5, 12",
                  f"v_mov_b32 v5, s{T+18}",
                  f"v_mul_f32 v7, s{T+17}, v5",
                  f"v_mul_f32 v21, s{T+16}, v5",
                  f"v_mov_b32 v217, s{T+19}"]
        kx = []
        for ti, J in enumerate(TS):
            so = 2048 * J if J < 7 else LDS_STB - LDS_STA
            kx += [f"ds_read_b32 v{VKX+4*ti+k}, v{VAE+k} offset:{2048*J}" for k in range(4)]
            kx += [f"ds_read_b128 {v(VST+4*ti,4)}, v23 offset:{so}", f"ds_read_b128 {v(VST+16+4*ti,4)}, v216 offset:{so}"]
        side = []; side2 = []; side3 = []; ntouch = 0; postg = []
        if var < 2:
            allg = [w1_group(gi, f"s{S_WAVE}", f"s{S_PM}", 224) for gi in range(O.n_w1, 4)] + [w2_group(gi, f"s{S_PM}", 8192 * gi) for gi in range(O.w2w1, min(O.w2e, O.w2side))]
            for x in allg[:len(allg) - O.post]: side.extend(x)
            postg = sum(allg[len(allg) - O.post:], [])
            if O.n_w1 < 4 and O.w2side == 4:
                postg = sum([w1_read(gi) for gi in range(O.n_w1, 4)], []) + ["s_waitcnt lgkmcnt(0)"] + postg
        pre = []
        for ti in range(4):
            d = VKX + 4 * ti + 2
            x = VX0 + 4 * ti
            pre += [f"v_and_b32 v{x}, 0xffff0000, v{d}", f"v_and_b32 v{x+1}, 0xffff0000, v{d+1}",
                    f"v_lshlrev_b32 v{x+2}, 16, v{d}", f"v_lshlrev_b32 v{x+3}, 16, v{d+1}"]
            for r in range(4): pre.append(f"v_fma_f32 v{VGH+4*ti+r}, v{x+r}, v{VST+4*ti+r}, v{VST+16+4*ti+r}")
            for r in range(4): pre.append(f"v_fma_f32 v{VGH+4*ti+r}, v{VGH+4*ti+r}, v7, v21")
        pre.insert(0, "s_waitcnt lgkmcnt(15)")
        started = set()
        if O.dbgC & 1: side = []
        if O.dbgC & 4: pre = []; kx = []
        nside = len(side)
        tailg = w1_group(f"s{S_WAVE}", 3, 3 * 32768, 60)
        mv = modv_ops(24) if O.mvearly else []
        if O.dbgC & 2: mv = []; scal = []
        if O.dbgC & 8: tailg = []
        pre = kx + pre
        for b in range(4):
            nxt = reads(b + 1) if b < 3 else []
            if b == 0: nxt = r0[O.fs:] + nxt
            if b == 2:
                if var == 2: A(f"s_waitcnt vmcnt({2 + 8 * O.mvearly})")
                A("s_barrier")
            for n, (a_, J, p) in enumerate(order(b)):
                acc = ACC + 8 * TS.index(J) + 4 * p
                c = v(acc, 4) if (J, p) in started else "0"
                started.add((J, p))
                if b == 0:
                    need = (v(afrag(0,a_)+2,2) + ",", a(bfrag(0,p,J-a_),4) + ",")
                    while any(x.split()[1] in need for x in nxt): A(nxt.pop(0))
                A(f"v_mfma_f32_16x16x32_bf16 {v(acc,4)}, {v(afrag(b&1,a_),4)}, {a(bfrag(b&1,p,J-a_),4)}, {c}")
                if nxt: A(nxt.pop(0))
                slot = 36 * b + n
                if b == 0 and nxt and len(nxt) > 34 - n: A(nxt.pop(0))
                elif ml: A(ml.pop(0))
                elif side and slot * nside >= (nside - len(side)) * 124: A(side.pop(0))
                elif b == 1 and (scal or mv): A((scal or mv).pop(0))
                elif b >= 2 and pre: A(pre.pop(0))
                if b == 3:
                    if n == 21:
                        for ti, JJ in enumerate(TS):
                            A(f"ds_write_b32 v218, v{ACC+8*ti+7} offset:{256*JJ+4}")
                    elif n == 24:
                        assert not side and not any(x.startswith("ds_read") for x in pre)
                        A("s_waitcnt lgkmcnt(0)")
                        A("s_barrier")
                        for tj, JJ in enumerate(TS):
                            A(f"ds_read_b32 v{U+tj}, v218 offset:{256*JJ}")
                    elif n > 24:
                        for _ in range(2):
                            if tailg: A(tailg.pop(0))
                    elif pre: A(pre.pop(0))
            for x in nxt: A(x)
            if b == 1:
                assert not ml
                for x in scal + mv: A(x)
        if var: del _stamps[-(5 if O.fine else 1):]
        stamp(A, "conv mfma")
        for x in side: A(x)
        for x in pre + tailg: A(x)
        for ti in range(4):
            z1, g_, x0 = ACC + 8 * ti + 4, VGH + 4 * ti, VX0 + 4 * ti
            A(f"v_fmac_f32 v{x0}, v{g_}, v{U+ti}")
            for r in range(1, 4):
                A(f"v_fmac_f32 v{x0+r}, v{g_+r}, v{z1+r-1}")
        for ti in range(4):
            for r in range(4):
                A(f"v_dot2_f32_bf16 v{ACC+8*ti+r}, v{VKX+4*ti+(r&1)}, v{1 if r < 2 else 22}, v{ACC+8*ti+r}")
        if O.fine:
            stamp(A, "e:prebar"); stamp(A, "e:bar")
        A(f"s_add_u32 s{T+15}, s{S_CARRY}, {WS_X1C}")
        A(f"s_add_u32 s{T+14}, s{S_CARRY}, {WS_X1}")
        O1, O2 = 136, 144
        for ti in range(4):
            z0, g_, x0 = ACC + 8 * ti, VGH + 4 * ti, VX0 + 4 * ti
            for h in range(2):
                A(f"v_pk_fma_f32 {v(x0+2*h,2)}, {v(g_+2*h,2)}, {v(z0+2*h,2)}, {v(x0+2*h,2)}")
            for h in range(2):
                A(f"v_pk_mul_f32 {v(VST+4*ti+2*h,2)}, {v(x0+2*h,2)}, v[216:217] op_sel:[0,1] op_sel_hi:[1,1]")
            for h in range(2):
                A(f"v_cvt_pk_bf16_f32 v{O2+2*ti+h}, v{VST+4*ti+2*h}, v{VST+4*ti+2*h+1}")
            A(f"ds_write_b64 v219, {v(O2+2*ti,2)} offset:{512*ti}")
        for ti in range(4):
            x0 = VX0 + 4 * ti
            for h in range(2):
                A(f"v_cvt_pk_bf16_f32 v{O1+2*ti+h}, v{x0+2*h}, v{x0+2*h+1}")
            A(f"ds_write_b64 v219, {v(O1+2*ti,2)} offset:{2048+512*ti}")
        A("s_waitcnt lgkmcnt(4)")
        for k in range(2): A(f"ds_read_b128 {v(152+4*k,4)}, v220 offset:{1024*k}")
        A("s_waitcnt lgkmcnt(2)")
        for k in range(2, 4): A(f"ds_read_b128 {v(152+4*k,4)}, v220 offset:{1024*k}")
        for k in range(4):
            A(f"buffer_store_dwordx4 {v(152+4*k,4)}, v{221+(k&1)}, {s(SRD_WS,4)}, s{T+15-(k>>1)} offen sc1")
        if O.fine: stamp(A, "e:stored")
        if postg and O.n_w1 < 4: A(f"s_waitcnt vmcnt({12 + 8 * (4 - O.post)})")
        for x in postg: A(x)
        if O.fine: stamp(A, "e:post")
        if var == 2 and O.post: A("s_waitcnt vmcnt(0)")
        if var < 2: A(f"s_branch L_convdone")
    stub(A, "L_convdone")
    A(f"L_convdone:")
    stamp(A, "x1 stored")
    stamp_flush(A, 0)

VCS, VSBW = 64, 80
ACC1 = 128
VXR = 236

def w2frag(u, e):
    return (128 + 8 * e if e < 16 else 8 * (e - 16)) + 4 * u

def w2_setup(A):
    dma_voff(A, VW2S, VW2S + 1, 1024, 64)
    A(f"v_add_u32 v{VW2S+1}, {8*1024-1024}, v{VW2S+1}")
    A(f"v_add_u32 v{VW2S+2}, {2*(8*1024-1024)}, v{VW2S}")
    A(f"v_add_u32 v{VW2S+3}, {2*(8*1024-1024)}, v{VW2S+1}")
    tr_addr32(A, VW2 + 2, 64, 4)
    A(f"s_lshl_b32 s{S_TMP}, s{S_WAVE}, 5")
    A(f"v_xor_b32 v{VW2+2}, s{S_TMP}, v{VW2+2}")
    A(f"v_xor_b32 v{VW2+3}, 32, v{VW2+2}")
    A(f"v_xor_b32 v{VW2+4}, 64, v{VW2+2}")
    A(f"v_xor_b32 v{VW2+5}, 96, v{VW2+2}")
    A(f"s_mul_i32 s{S_PS}, s{S_WAVE}, {448*1024}")
    A(f"s_lshl_b32 s{S_TMP}, s{S_J}, 7")
    A(f"s_add_u32 s{S_PS}, s{S_PS}, s{S_TMP}")

def w2_group(gi, ldsreg, ldsoff, src=None):
    src = src or f"s{S_PS}"
    return [f"s_add_u32 s{S_TMP}, s{S_PE}, {gi}",
            f"s_add_u32 m0, {ldsreg}, {ldsoff}",
            f"s_cmp_ge_u32 s{S_TMP}, 7\ns_cselect_b32 s{S_PO}, 7, 0",
            f"s_sub_u32 s{S_TMP}, s{S_TMP}, s{S_PO}",
            f"s_lshl_b32 s{S_PO}, s{S_TMP}, 16",
            f"s_add_u32 s{S_PO}, s{S_PO}, {src}"] + pieces8(VW2S, SRD_W2, 32768)

def w2_addr(A, base):
    for k in range(4): A(f"v_add_u32 v{VW2H+k}, {base}, v{VW2+2+k}")

def w2_read(gi, off):
    return [f"ds_read_b64_tr_b16 {a(w2frag(u, 4*gi+e)+2*h,2)}, v{VW2H+2*u+h} offset:{off+2048*e+1024*h}" for e in range(4) for u in range(2) for h in range(2)]

def gemm1_setup(A):
    L = V_LANE
    dma_voff(A, 56, 57, 4096, 5)
    A(f"v_bfe_u32 v5, v56, 6, 1")
    A(f"v_lshl_add_u32 v58, v5, 6, v56")
    A(f"v_lshl_add_u32 v59, v5, 6, v57")
    A(f"v_add_u32 v57, {8*4096-1024}, v57")
    A(f"v_add_u32 v59, {8*4096-1024}, v59")
    A(f"s_lshl_b32 s{T}, s{S_WAVE}, 16")
    A(f"s_lshl_b32 s{T+1}, s{S_RB}, 8")
    A(f"s_add_u32 s{T}, s{T}, s{T+1}")
    A(f"s_and_b32 s{T+2}, s{S_C}, 1")
    A(f"s_lshl_b32 s{T+2}, s{T+2}, 7")
    A(f"s_add_u32 s{T+2}, s{T+2}, {WS_X1}")
    A(f"s_cmp_ge_u32 s{S_C}, 14")
    A(f"s_cselect_b32 s{T+2}, s{T+2}, {WS_X1C}")
    A(f"s_add_u32 s{T}, s{T}, s{T+2}")
    A(f"s_add_u32 s{SRD_K}, s{SRD_WS}, s{T}")
    A(f"s_addc_u32 s{SRD_K+1}, s{SRD_WS+1}, 0")
    A(f"v_add_u32 v60, 128, v56")
    A(f"v_add_u32 v61, 128, v57")
    A(f"s_lshl_b32 s{T+2}, s{S_WAVE}, 11")
    A(f"s_lshl_b32 s{T+5}, s{S_ROT}, 18")
    tr_addr32(A, 8, 5, 8)
    A(f"v_xor_b32 v9, 64, v8")
    A(f"v_add_u32 v10, 0x10000, v8")
    A(f"v_add_u32 v11, 0x10000, v9")
    A(f"v_lshlrev_b32 v18, 4, v{L}")
    A(f"s_mul_i32 s{T+3}, s{S_RB}, {4*112*1024}")
    A(f"s_lshl_b32 s{T+4}, s{S_C}, 13")
    A(f"s_add_u32 s{T+3}, s{T+3}, s{T+4}")
    A(f"s_add_u32 s{T+3}, s{T+3}, s{T+2}")
    A(f"s_add_u32 s{T+3}, s{T+3}, {WS_H}")
    tr_addr32(A, 44, 5, 4)
    A(f"s_add_u32 s{T+6}, s{T+2}, {LDS_XR}")
    A(f"v_add_u32 v44, s{T+6}, v44")
    A(f"v_xor_b32 v45, 32, v44")
    A(f"v_xor_b32 v42, 64, v44")
    A(f"v_xor_b32 v43, 96, v44")
    A(f"s_lshl_b32 s{T+7}, s{S_RB}, 11")
    A(f"s_add_u32 s{T+7}, s{T+7}, {WS_ST2}")
    A(f"s_lshr_b32 s{T+8}, s{S_RT}, 4")
    A(f"s_lshl_b32 s{T+8}, s{T+8}, 1")
    A(f"s_bfe_u32 s{T+9}, s{S_RT}, 0x20002")
    A(f"s_lshl_b32 s{T+9}, s{T+9}, 6")
    A(f"s_add_u32 s{T+8}, s{T+8}, s{T+9}")
    A(f"s_lshl_b32 s{T+8}, s{T+8}, 7")
    A(f"s_add_u32 s{T+9}, s{T+8}, {WS_SYNC + 128*FLG_3}")
    A(f"s_add_u32 s{T+8}, s{T+8}, {WS_SYNC + 128*FLG_4}")
    A(f"v_min_u32 v14, 13, v{L}")
    A(f"v_and_b32 v5, 1, v14")
    A(f"v_lshrrev_b32 v14, 1, v14")
    A(f"v_lshlrev_b32 v14, 10, v14")
    A(f"v_lshl_add_u32 v14, v5, 7, v14")

def modv_loads(M):
    L = [f"v_lshlrev_b32 v{M+20}, 4, v0"]
    L += [f"s_mov_b32 s{T+p}, {WS_MODP + 12288*p + 1536*4}" for p in range(4)]
    L += [f"buffer_load_dwordx4 {v(M+4*p,4)}, v{M+20}, {s(SRD_WS,4)}, s{T+p} offen sc1" for p in range(4)]
    L += [f"v_lshlrev_b32 v{M+21}, 2, v{V_LANE}", f"s_lshl_b32 s{T+4}, s{S_J}, 8"]
    L += [f"s_add_u32 s{T+p}, s{T+4}, {WS_MODP + 12288*p + 2560*4}" for p in range(4)]
    L += [f"buffer_load_dword v{M+16+p}, v{M+21}, {s(SRD_WS,4)}, s{T+p} offen sc1" for p in range(4)]
    return L

def modv_ops(M):
    L = [f"s_lshr_b32 s{T+5}, s{S_WAVE}, 1",
         f"v_cvt_f32_u32 v{M+22}, s{T+5}",
         f"s_xor_b32 s{T+5}, s{T+5}, 1",
         f"s_lshl_b32 s{T+5}, s{T+5}, 10",
         f"s_add_u32 s{T+5}, s{T+5}, {LDS_MODV}",
         f"s_lshl_b32 s{T+4}, s{S_ROT}, 7",
         f"v_lshrrev_b32 v{M+20}, 1, v{M+20}",
         f"v_subrev_u32 v{M+20}, s{T+4}, v{M+20}",
         f"v_and_b32 v{M+20}, 0x3ff, v{M+20}",
         f"v_add_u32 v{M+20}, s{T+5}, v{M+20}"]
    for k in range(4): L += [f"v_add_f32 v{M+k}, v{M+k}, v{M+4+k}", f"v_add_f32 v{M+8+k}, v{M+8+k}, v{M+12+k}"]
    for k in range(4): L += [f"v_add_f32 v{M+k}, v{M+k}, v{M+8+k}"]
    L += [f"v_add_f32 v{M+16}, v{M+16}, v{M+17}", f"v_add_f32 v{M+18}, v{M+18}, v{M+19}"]
    for k in range(2): L += [f"v_cvt_pk_bf16_f32 v{M+4+k}, v{M+2*k}, v{M+2*k+1}"]
    L += [f"v_add_f32 v{M+16}, v{M+16}, v{M+18}"]
    for k in range(2): L += [f"v_lshlrev_b32 v{M+2*k}, 16, v{M+4+k}", f"v_and_b32 v{M+2*k+1}, 0xffff0000, v{M+4+k}"]
    L += [f"v_cvt_pk_bf16_f32 v{M+16}, v{M+16}, v{M+16}"]
    for k in range(4): L += [f"v_add_f32 v{M+k}, v{M+22}, v{M+k}"]
    L += [f"v_lshlrev_b32 v{M+16}, 16, v{M+16}"]
    for k in range(2): L += [f"v_cvt_pk_bf16_f32 v{M+4+k}, v{M+2*k}, v{M+2*k+1}"]
    L += [f"v_mul_f32 v{M+16}, 0xbf317218, v{M+16}",
          f"ds_write_b64 v{M+20}, {v(M+4,2)}",
          f"v_add_u32 v{M+21}, {LDS_GB}, v{M+21}",
          f"ds_write_b32 v{M+21}, v{M+16}",
          f"v_mov_b32 v{M+17}, 0",
          f"v_and_b32 v{M+18}, 60, v{M+21}",
          f"v_add_u32 v{M+18}, {LDS_MODV+2048}, v{M+18}",
          f"ds_write_b32 v{M+18}, v{M+17}"]
    return L

def window3(A):
    L = V_LANE
    M = 168
    A(f"v_xor_b32 v7, v6, v4")
    A(f"v_and_b32 v7, 1, v7")
    A(f"v_lshrrev_b32 v45, 2, v6")
    A(f"v_or_b32 v7, v7, v45")
    A(f"v_lshrrev_b32 v45, 1, v6")
    A(f"v_lshlrev_b32 v45, 10, v45")
    A(f"v_lshrrev_b32 v46, 1, v4")
    A(f"v_lshl_add_u32 v45, v46, 4, v45")
    A(f"v_add_u32 v45, {LDS_MODV}, v45")
    A(f"v_cmp_eq_u32 vcc, 0, v7")
    A(f"v_mov_b32 v47, {LDS_MODV+2048}")
    A(f"v_cndmask_b32 v47, v47, v45, vcc")
    A(f"v_mov_b32 v46, 32")
    A(f"v_cndmask_b32 v46, 0, v46, vcc")
    w2_addr(A, f"s{S_PM}")
    gemm1_setup(A)
    A(f"s_waitcnt vmcnt({8 * O.post})")
    A("s_barrier")
    stamp(A, "x1 acked")
    def rd():
        for gi in range(4):
            if gi == 4 - O.post: A("s_waitcnt vmcnt(0)")
            for x in w2_read(gi, 8192 * gi): A(x)
        A(f"s_cmp_eq_u32 s{S_WAVE}, 2")
        A(f"s_cbranch_scc0 L_now3w2")
        A(f"s_lshl_b32 s{T+11}, s{S_J}, 7")
        A(f"s_add_u32 s{T+11}, s{T+11}, {3*448*1024}")
        A("s_waitcnt lgkmcnt(0)")
        for gi in range(4):
            for x in w2_group(gi, f"s{S_PM}", 8192 * gi, f"s{T+11}"): A(x)
        A("L_now3w2:")
    def fin():
        if O.lf2: lf_signal(A, LF_2)
        else:
            signal_issue(A, CNT_2)
        for gi in range(4):
            for x in w1_read(gi): A(x)
        w2_addr(A, 65536)
        if not O.lf2: signal_finish(A, FLG_2)
    split_wave3(A, rd, fin)
    stamp(A, "modv")
    NB = 8
    def rdv(e):
        A(f"ds_read_b128 {v(192+4*(e%NB),4)}, v47")
        A(f"v_add_u32 v47, v47, v46")
    for e in range(NB): rdv(e)
    for e in range(32):
        A(f"v_mfma_f32_16x16x32_bf16 v[48:51], {a(4*e,4)}, {v(192+4*(e%NB),4)}, {'0' if e == 0 else 'v[48:51]'}")
        if e + NB < 32: rdv(e + NB)
    A(f"v_lshrrev_b32 v4, 4, v{L}")
    A(f"v_and_b32 v6, 15, v{L}")
    A(f"s_lshl_b32 s{T+13}, s{S_WAVE}, 9")
    A(f"s_add_u32 s{T+13}, s{T+13}, {LDS_CS}")
    A(f"v_and_b32 v5, 1, v6")
    A(f"v_lshlrev_b32 v5, 6, v5")
    A(f"v_lshl_add_u32 v5, v4, 4, v5")
    A(f"v_lshrrev_b32 v7, 1, v6")
    A(f"v_lshl_add_u32 v5, v7, 8, v5")
    A(f"v_add_u32 v5, s{T+13}, v5")
    A(f"s_mov_b32 exec_lo, 0x000f000f")
    A(f"s_mov_b32 exec_hi, 0x000f000f")
    A(f"ds_write_b128 v5, v[48:51]")
    A("s_mov_b64 exec, -1")
    A(f"v_lshrrev_b32 v5, 5, v{L}")
    A(f"v_lshlrev_b32 v5, 4, v5")
    A(f"v_add_u32 v5, s{T+13}, v5")
    A("s_waitcnt lgkmcnt(0)")
    for k in range(4):
        A(f"ds_read_b128 {v(VCS+4*k,4)}, v5 offset:{32*k}")
        A(f"ds_read_b128 {v(VSBW+4*k,4)}, v5 offset:{256+32*k}")
    A(f"v_mov_b32 v6, {hex(NLOG2E)}")
    for r in range(0, 16, 2):
        A(f"v_pk_mul_f32 {v(VSBW+r,2)}, {v(VSBW+r,2)}, v[6:7] op_sel_hi:[1,0]")
    stamp(A, "colsums")
    A(f"s_cmp_eq_u32 s{S_WAVE}, {O.poll2}")
    A(f"s_cbranch_scc0 L_np2")
    if O.lf2: lf_poll(A, LF_2, 100, O.isleep2)
    else: poll(A, 16, 128, WS_SYNC + 128 * FLG_2)
    A("L_np2:")
    A("s_waitcnt vmcnt(0)")
    A("s_barrier")
    stamp(A, "2 released")

def silu_ops(acc, rin, mr, tmp, out, packed=True):
    L = []
    W = O.sw; tmp = 48 if W <= 8 else 112
    for g0 in range(0, 16, W):
        for r in range(0, W, 2):
            L.append(f"v_pk_fma_f32 {v(tmp+r,2)}, {v(VCS+g0+r,2)}, {v(rin,2)}, {v(VSBW+g0+r,2)} op_sel:[0,1,0] op_sel_hi:[1,1,1]")
        for r in range(0, W, 2):
            L.append(f"v_pk_fma_f32 {v(acc+g0+r,2)}, {v(acc+g0+r,2)}, {v(rin,2)}, {v(tmp+r,2)} op_sel:[0,0,0] op_sel_hi:[1,0,1]")
        for i in range(W): L.append(f"v_exp_f32 v{tmp+i}, v{acc+g0+i}")
        for r in range(0, W, 2): L.append(f"v_pk_add_f32 {v(tmp+r,2)}, {v(tmp+r,2)}, 1.0 op_sel_hi:[1,0]")
        for i in range(W): L.append(f"v_rcp_f32 v{tmp+i}, v{tmp+i}")
        for r in range(0, W, 2): L.append(f"v_pk_mul_f32 {v(tmp+r,2)}, {v(tmp+r,2)}, {v(acc+g0+r,2)}")
        for r in range(0, W, 2): L.append(f"v_cvt_pk_bf16_f32 v{out+(g0+r)//2}, v{tmp+r}, v{tmp+r+1}")
    return L

def mix(x, y):
    out = []; k = 0
    for i, a_ in enumerate(x):
        out.append(a_)
        while k < len(y) and k * len(x) < (i + 1) * len(y):
            out.append(y[k]); k += 1
    return out + y[k:]

def cost(ins):
    return 8 if ins.startswith(("v_exp", "v_rcp")) else 4

def own_flag(A, base):
    A(f"s_lshl_b32 s{S_SIG}, s1, 7")
    A(f"s_add_u32 s{S_SIG}, s{S_SIG}, {WS_SYNC + 128*base}")
    A("s_mov_b64 exec, 1")
    A(f"v_mov_b32 v252, 0")
    A(f"v_mov_b32 v253, 1")
    A(f"buffer_store_dword v253, v252, {s(SRD_WS,4)}, s{S_SIG} offen sc1")
    A("s_mov_b64 exec, -1")

def recheck(A, cmp, reload_):
    u = uid()
    A(f"s_mov_b32 s{S_SPIN}, 0x80000")
    A(f"L_rc{u}:")
    for x in cmp: A(x)
    A(f"s_cbranch_vccz L_rcx{u}")
    A(f"s_sleep {O.rs}")
    for x in reload_: A(x)
    A(f"s_sub_u32 s{S_SPIN}, s{S_SPIN}, 1")
    A("s_waitcnt vmcnt(0)")
    A(f"s_cbranch_scc0 L_rc{u}")
    A(f"L_rcx{u}:")

def gemm1(A):
    L = V_LANE
    XF = 192; VRS = 96; SG = 104; TMP, OUT = 20, 24
    A("; ---- GEMM 1 ----")
    def chunk(n, src=None):
        h = 4 * (n >> 3)
        return [f"s_add_u32 m0, s{T+2}, {8192*n}",
                f"s_and_b32 s{T+5}, s{T+5}, 0x1fffff",
                f"buffer_load_dwordx4 v{56+h}, {s(SRD_K,4)}, s{T+5} offen sc1 lds",
                f"buffer_load_dwordx4 v{57+h}, {s(SRD_K,4)}, s{T+5} offen offset:1024 sc1 lds",
                f"s_add_u32 s{T+5}, s{T+5}, 262144"]
    xres = [f"s_lshl_b32 s{T+12}, s{S_J}, 18",
            f"s_lshl_b32 s{T+13}, s{S_WAVE}, 16",
            f"s_add_u32 s{T+12}, s{T+12}, s{T+13}",
            f"s_lshl_b32 s{T+13}, s{S_RT}, 6",
            f"s_add_u32 s{T+12}, s{T+12}, s{T+13}",
            f"s_add_u32 m0, s{T+2}, {LDS_XR}",
            f"s_add_u32 s{T+12}, s{T+12}, {WS_X1}",
            f"buffer_load_dwordx4 v58, {s(SRD_WS,4)}, s{T+12} offen sc1 lds",
            f"buffer_load_dwordx4 v59, {s(SRD_WS,4)}, s{T+12} offen offset:1024 sc1 lds"]
    def w3w2():
        for gi in range(O.w2e):
            for x in w2_read(gi, 8192 * gi): A(x)
        A("s_waitcnt lgkmcnt(0)")
    w2b = lambda gi: w2_group(4 + gi, f"s{S_PM}", 8192 * gi if gi < 2 else 65536)
    A(f"s_lshl_b32 s{S_PM}, s{S_WAVE}, 14")
    A(f"s_cmp_ge_u32 s{S_C}, 14")
    A(f"s_cbranch_scc1 L_stat")
    for n in range(4):
        for x in chunk(n, WS_X1C): A(x)
    only_wave3(A, w3w2)
    def xread(st, e):
        return [f"ds_read_b64_tr_b16 {v(XF+4*((2*e+(st&1))%8)+2*h,2)}, v{8+st} offset:{2048*e+512*h}" for h in range(2)]
    def hstore(st, out):
        return [f"s_add_u32 s{T+4}, s{T+3}, {112*1024*st}"] + [f"buffer_store_dwordx4 {v(out+4*k,4)}, v18, {s(SRD_WS,4)}, s{T+4} offen offset:{1024*k} {['sc1', 'sc0 sc1', 'sc1 nt'][O.hs]}" for k in range(2)]
    def mf(st, e):
        acc = ACC1 + 16 * st
        return f"v_mfma_f32_32x32x16_bf16 {v(acc,16)}, {a(4*e,4)}, {v(XF+4*((2*e+(st&1))%8),4)}, {'0' if e == 0 else v(acc,16)}"
    sld = [f"buffer_load_dwordx4 {v(SG+4*h,4)}, v18, {s(SRD_WS,4)}, s{T+7} offen offset:{1024*h} sc1" for h in range(2)]
    side = sum([chunk(n, WS_X1C + 128 * (n >> 3)) for n in range(4, 16)], []) + xres
    ops = [1] * 8
    def emit(x, tile=0):
        A(x)
        if x.startswith("buffer"): ops.append(tile)
    def put(k):
        for _ in range(k):
            if side: emit(side.pop(0), 1)
    def ckpt(need, name=None):
        while sum(ops) < need: put(1)
        pos = [k for k, t in enumerate(ops) if t][need - 1]
        A(f"s_waitcnt vmcnt({len(ops) - 1 - pos})")
        A("s_barrier")
        if name: stamp(A, name)
    LOOK = O.look
    gates = {0: 4, 8: 8, 16: 16, 32: 20, 40: 24, 48: 34} if O.prog else {0: 4, 8: 8, 16: 16, 32: 34}
    ckpt(4, "ckpt0")
    for n in range(LOOK):
        for st in range(2):
            for x in xread(st, n): A(x)
    for e in range(32):
        n = e + LOOK
        if n in gates:
            ckpt(gates[n], "half1" if n == 32 else None)
            if n == 32 and O.s0 < 0:
                for x in sld: emit(x)
        if O.wmerge: A(f"s_waitcnt lgkmcnt({4 * (LOOK - 1)})")
        for st in range(2):
            A(mf(st, e))
            for x in xread(st + 2 * (n >> 5), n & 31): A(x)
            put(O.pa0 if e < 8 else O.pa)
    def spread(h):
        Ls = []
        for k in range(2):
            Ls += [f"v_mov_b32 v{VRS+4*h+k}, v{SG+4*h+2*k}", f"v_mov_b32 v{VRS+4*h+2+k}, v{SG+4*h+2*k}"]
        for k in range(2):
            Ls += [f"v_permlane32_swap_b32 v{VRS+4*h+k}, v{VRS+4*h+2+k}"]
        return Ls
    def scheck(h):
        recheck(A, [f"v_and_b32 v{TMP}, v{SG+4*h+1}, v{SG+4*h+3}", f"v_cmp_ne_u32 vcc, 1, v{TMP}"], [sld[h]])
    xr = [f"ds_read_b64_tr_b16 {v(VXR+2*k,2)}, v{44-(k&2)+(k&1)} offset:{1024*(k&1)}" for k in range(4)]
    grp = lambda gi: w2_group(gi, f"s{S_PM}", 8192 * (gi & 1))
    E = O.w2e
    late = grp(E) + grp(E + 1) + xr
    rds = []
    w2_addr(A, f"s{S_PM}")
    def step(e, st):
        if st == 2:
            if e + LOOK + 32 in gates: ckpt(gates[e + LOOK + 32])
            A(f"s_waitcnt lgkmcnt({4 * min(LOOK - 1, 31 - e)})")
        A(mf(st, e))
        if e + LOOK < 32:
            for x in xread(st, e + LOOK): A(x)
    todo = [(e, st) for e in range(32) for st in (2, 3)]
    nst = None
    while todo:
        e, st = todo.pop(0)
        if (e, st) == (16, 2): stamp(A, "B16")
        step(e, st)
        if O.s0 >= 0 and (e, st) == (O.s0, 2): emit(sld[0])
        if O.s0 >= 0 and (e, st) == (O.s1at, 2): emit(sld[1])
        if side: put(2)
        elif e > O.lth and nst is not None and late:
            for _ in range(O.pb):
                if late and not late[0].startswith("ds_read"): emit(late.pop(0))
        if (e, st) == (O.sck, 3):
            scheck(0)
            stamp(A, "stats0")
            for x in spread(0): A(x)
            for q in range(2):
                prev = ""
                for x in silu_ops(ACC1 + 16 * q, VRS + 2 * q, VRS + 2 * q + 1, TMP, OUT + 8 * q, True) + hstore(q, OUT + 8 * q):
                    if O.ovl and x[:5] in ("v_exp", "v_rcp") and prev[:5] != x[:5] and todo[0] != (16, 2):
                        step(*todo.pop(0))
                    emit(x, 0); prev = x
            nst = len(ops)
            stamp(A, "burst0")
        if (e, st) == (O.f0at, 3):
            if O.fine: stamp(A, "f0pre")
            A(f"s_waitcnt vmcnt({len(ops) - nst})")
            if O.fine: stamp(A, "f0ack")
            A("s_barrier")
            only_wave3(A, lambda: own_flag(A, FLG_4))
    for x in late: emit(x)
    stamp(A, "g1 mfma")
    scheck(1)
    if O.fine: stamp(A, "sck1")
    for x in spread(1): A(x)
    for st in range(2, 4):
        for x in silu_ops(ACC1 + 16 * st, VRS + 2 * st, VRS + 2 * st + 1, TMP, OUT + 8 * (st & 1), True): A(x)
        if O.fine: stamp(A, f"q{st}")
        if st == 3: A(f"buffer_load_dword v12, v14, {s(SRD_WS,4)}, s{T+8} offen sc1")
        for x in hstore(st, OUT + 8 * (st & 1)): A(x)
    stamp(A, "H stored")
    A("s_branch L_g1done")
    stub(A)
    A("L_stat:")
    keep = _stamps[-(12 if O.fine else 7):]
    del _stamps[-(12 if O.fine else 7):]
    for n in range(O.stall):
        for x in chunk(n, WS_X1): A(x)
    tr_addr16(A, 12, 5)
    A(f"s_lshl_b32 s{T+14}, s{S_WAVE}, 5")
    A(f"v_xor_b32 v12, s{T+14}, v12")
    ONES, GR, SM = 36, ACC1, ACC1 + 4
    for i in range(4): A(f"v_mov_b32 v{ONES+i}, s{S_ONES}")
    for c in range(4):
        A(f"s_waitcnt vmcnt({2 * O.stall - 4 if c == 0 else 4 * (3 - c)})")
        A("s_barrier")
        if c == 0:
            stamp(A, "ckpt0")
            for n in range(O.stall, 8):
                for x in chunk(n, WS_X1): A(x)
        for e in range(4 * c, 4 * c + 4):
            for h in range(2):
                A(f"ds_read_b64_tr_b16 {v(XF+4*(e%4)+2*h,2)}, v12 offset:{4096*e+512*h}")
        for e in range(4 * c, 4 * c + 4):
            f = v(XF + 4 * (e % 4), 4)
            A(f"v_mfma_f32_16x16x32_bf16 {v(GR,4)}, {f}, {f}, {'0' if e == 0 else v(GR,4)}")
            A(f"v_mfma_f32_16x16x32_bf16 {v(SM,4)}, {v(ONES,4)}, {f}, {'0' if e == 0 else v(SM,4)}")
    stamp(A, "half1")
    for e in ("stats0", "burst0", "B16") + (("f0pre", "f0ack") if O.fine else ()): stamp(A, e)
    for r, m in ((1, "0x22222222"), (2, "0x44444444"), (3, "0x88888888")):
        A(f"s_mov_b32 vcc_lo, {m}")
        A(f"s_mov_b32 vcc_hi, {m}")
        A(f"v_cndmask_b32 v{GR}, v{GR}, v{GR+r}, vcc")
    ln_finish(A, [(SM, GR, GR + 8, GR + 10)], GR + 1, hex(NLOG2E))
    A(f"v_mov_b32 v{GR+9}, 1")
    A(f"v_mov_b32 v{GR+11}, 1")
    A(f"v_and_b32 v5, 15, v{L}")
    A(f"v_lshlrev_b32 v5, 4, v5")
    A(f"s_and_b32 s{T+13}, s{S_C}, 1")
    A(f"s_lshl_b32 s{T+13}, s{T+13}, 10")
    A(f"s_lshl_b32 s{T+14}, s{S_WAVE}, 8")
    A(f"s_add_u32 s{T+13}, s{T+13}, s{T+14}")
    A(f"s_add_u32 s{T+13}, s{T+13}, s{T+7}")
    A(f"s_mov_b32 exec_lo, 0x00f0000f")
    A(f"s_mov_b32 exec_hi, 0xf0000f00")
    A(f"buffer_store_dwordx4 {v(GR+8,4)}, v5, {s(SRD_WS,4)}, s{T+13} offen sc1")
    A("s_mov_b64 exec, -1")
    stamp(A, "g1 mfma")
    if O.fine:
        for e in ("sck1", "q2", "q3"): stamp(A, e)
    for x in xres: A(x)
    only_wave3(A, w3w2)
    A("s_waitcnt vmcnt(0)")
    A("s_barrier")
    w2_addr(A, f"s{S_PM}")
    for x in grp(E) + grp(E + 1) + xr: A(x)
    if E < 4:
        A("s_waitcnt vmcnt(0)")
        for x in w2_read(E, 0) + w2_read(E + 1, 8192): A(x)
        A("s_waitcnt lgkmcnt(0)")
        for x in grp(E + 2) + grp(E + 3): A(x)
    if O.stq:
        A("v_mov_b32 v12, 0")
        recheck(A, [f"v_cmp_ne_u32 vcc, 1, v12"], [f"s_sleep {O.stq & 127}", f"buffer_load_dword v12, v14, {s(SRD_WS,4)}, s{T+8+(O.stq>>7)} offen sc1"])
    A(f"buffer_load_dword v12, v14, {s(SRD_WS,4)}, s{T+8} offen sc1")
    A("s_waitcnt vmcnt(0)")
    stamp(A, "H stored")
    stub(A, "L_g1done")
    A("L_g1done:")

def gemm2(A):
    L = V_LANE
    ACC = 32; HF = 96; NB = 32
    fl = lambda r, sr: f"buffer_load_dword v{r}, v14, {s(SRD_WS,4)}, s{sr} offen sc1"
    w2_addr(A, f"s{S_PM}")
    A(f"v_lshrrev_b32 v5, 5, v{L}")
    A(f"v_lshlrev_b32 v5, 4, v5")
    A(f"s_lshl_b32 s{T+1}, s{S_WAVE}, 6")
    A(f"s_add_u32 s{T+1}, s{T+1}, {LDS_GB}")
    A(f"v_add_u32 v5, s{T+1}, v5")
    A(f"s_mov_b32 s{T}, s{S_RT}")
    A(f"s_mul_i32 s{T+2}, s{T}, {112*1024}")
    A(f"v_lshlrev_b32 v6, 4, v{L}")
    A(f"v_add_u32 v3, s{T+2}, v6")
    A(f"v_add_u32 v4, {2*112*1024}, v3")
    A(f"s_mul_i32 s{T+4}, s{S_WAVE}, {28*1024}")
    A(f"s_add_u32 s{T+4}, s{T+4}, {WS_H}")
    A(f"s_add_u32 s{T+5}, s{T+4}, {28*1024}")
    A(f"s_lshl_b32 s{T+2}, s{S_PE}, 12")
    A(f"s_add_u32 s{T+2}, s{T+2}, s{T+4}")
    A("s_waitcnt vmcnt(5)")
    for gi in range(2):
        for x in w2_read((4 if O.w2e else 2) + gi, 8192 * gi): A(x)
    def hload(n):
        st, e = divmod(n, 28)
        Ls = [f"buffer_load_dwordx4 {v(HF+4*(n%NB),4)}, v{3+st}, {s(SRD_WS,4)}, s{T+2} offen offset:{1024*(e&3)} {['sc1', 'sc0 sc1', 'sc1 nt'][O.hl]}"]
        if e % 4 == 3:
            Ls += [f"s_add_u32 s{T+2}, s{T+2}, 4096", f"s_cmp_eq_u32 s{T+2}, s{T+5}", f"s_cselect_b32 s{T+2}, s{T+4}, s{T+2}"]
        return Ls
    def first():
        recheck(A, [f"v_cmp_ne_u32 vcc, 1, v12"], [fl(12, T + 8)])
        stamp(A, "F0 seen")
        for n in range(O.hp0):
            for x in hload(n): A(x)
    if O.early0: first()
    A(f"s_waitcnt vmcnt({O.hp0 if O.early0 else 0})")
    A("s_barrier")
    stamp(A, "H acked")
    def f1():
        A(f"s_cmp_ge_u32 s{S_C}, 14")
        A(f"s_cbranch_scc1 L_nof1")
        own_flag(A, FLG_3)
        A("L_nof1:")
    only_wave3(A, f1)
    if not O.early0: first()
    for n in range(O.hp0, O.hpre):
        for x in hload(n): A(x)
        if n == O.f1pos and O.hpre > O.f1pos: A(fl(13, T + 9))
    if O.w2e == 0:
        for x in w2_group(4, f"s{S_PM}", 65536) + w2_group(5, f"s{S_PM}", 65536 + 8192) + ["s_waitcnt lgkmcnt(0)"] + w2_group(6, f"s{S_PM}", 0): A(x)
    elif not O.g6late:
        for x in w2_group(6, f"s{S_PM}", 65536): A(x)
    for k in range(2):
        A(f"ds_read_b128 {v(16+4*k,4)}, v5 offset:{32*k}")
    A(f"v_add_u32 v7, s{S_PM}, v6")
    for k in range(1, 4):
        A(f"s_xor_b32 s{T+6}, s{S_WAVE}, {k}")
        A(f"s_lshl_b32 s{T+6}, s{T+6}, 14")
        A(f"v_add_u32 v{8+k}, s{T+6}, v6")
    A(f"v_and_b32 v8, 31, v{L}")
    A(f"v_lshlrev_b32 v8, 10, v8")
    A(f"v_lshrrev_b32 v5, 5, v{L}")
    A(f"v_lshl_add_u32 v8, v5, 4, v8")
    A(f"s_lshl_b32 s{T+7}, s{T}, 15")
    A(f"s_lshl_b32 s{T+6}, s{S_J}, 7")
    A(f"s_add_u32 s{T+7}, s{T+7}, s{T+6}")
    A(f"s_lshl_b32 s{T+6}, s{S_WAVE}, 5")
    A(f"s_add_u32 s{T+7}, s{T+7}, s{T+6}")
    A(f"s_add_u32 s{T+6}, s{T+7}, {2*32768}")
    def red_write(st):
        return [f"ds_write_b128 v7, {v(ACC+32*(k>>1)+16*st+8*(k&1)+4*q,4)} offset:{6144*st+2048*(k-1)+1024*q}" for k in range(1, 4) for q in range(2)]
    def red_finish(st, PP, packed):
        P = PP[0]
        own = ACC + 16 * st
        Ls = [f"ds_read_b128 {v(PP[k]+4*q,4)}, v{9+k} offset:{6144*st+2048*k+1024*q}" for k in range(3) for q in range(2)]
        for k in range(4):
            Ls += [f"v_lshlrev_b32 v{24+2*k}, 16, v{VXR+4*st+k}", f"v_and_b32 v{25+2*k}, 0xffff0000, v{VXR+4*st+k}"]
        if packed:
            Ls += [f"v_pk_add_f32 {v(own+r,2)}, {v(own+r,2)}, {v(PP[k]+r,2)}" for k in range(3) for r in range(0, 8, 2)]
            Ls += [f"v_pk_fma_f32 {v(own+r,2)}, {v(own+r,2)}, {v(16+r,2)}, {v(24+r,2)}" for r in range(0, 8, 2)]
        else:
            Ls += [f"v_add_f32 v{own+r}, v{own+r}, v{PP[k]+r}" for k in range(3) for r in range(8)]
            Ls += [f"v_fma_f32 v{own+r}, v{own+r}, v{16+r}, v{24+r}" for r in range(8)]
        if O.err:
            import struct
            Ls += [f"v_mul_f32 v{own+r}, {hex(struct.unpack('<I', struct.pack('<f', 1 + O.err / 1000))[0])}, v{own+r}" for r in range(8)]
        Ls += [f"v_cvt_pk_bf16_f32 v{P+r//2}, v{own+r}, v{own+r+1}" for r in range(0, 8, 2)]
        Ls += [f"v_permlane32_swap_b32 v{P}, v{P+2}", f"v_permlane32_swap_b32 v{P+1}, v{P+3}"]
        Ls += [f"buffer_store_dwordx4 {v(P,4)}, v8, {s(SRD_OUT,4)}, s{T+7-st} offen{['', ' sc1', ' nt', ' sc0 sc1', ' sc1 nt'][(O.om >> (4 * st)) & 15]}"]
        return Ls
    shadow = []
    nxt = O.hpre
    mark = len(A.items)
    for n in range(56):
        st, e = divmod(n, 28)
        for u in range(2):
            acc = ACC + 32 * u + 16 * st
            A(f"v_mfma_f32_32x32x16_bf16 {v(acc,16)}, {a(w2frag(u,e),4)}, {v(HF+4*(n%NB),4)}, {'0' if e == 0 else v(acc,16)}")
            if n == O.f1k and u == 1:
                recheck(A, [f"v_cmp_ne_u32 vcc, 1, v13"], [fl(13, T + 9)])
                stamp(A, "F1 seen")
            open_ = (n, u) >= (O.f1k, 1)
            for _ in range(2 if open_ else 1):
                if nxt < (56 if open_ else 28) and nxt < n + NB and nxt - n < O.hmax and (u == 0 or n % 2 == 0 or open_):
                    for x in hload(nxt): A(x)
                    nxt += 1
                    if nxt == O.f1pos + 1: A(fl(13, T + 9))
            for _ in range(2):
                if shadow: A(shadow.pop(0))
        if O.g6late and n == O.g6late:
            for x in w2_group(6, f"s{S_PM}", 65536): A(x)
            mark = len(A.items)
        if n in (0, 6, 12): stamp(A, f"n{n}")
        if n == 29: shadow = red_write(0)
        if n == O.red0:
            A("s_waitcnt lgkmcnt(0)")
            A("s_barrier")
            shadow = red_finish(0, [ACC + 8, ACC + 32, ACC + 40], False)
        if n == O.g6at:
            A(f"s_waitcnt vmcnt({sum('buffer_load' in y[1].text for y in A.items[mark:] if y[0] == 'i' and 'rc' not in y[1].text)})")
            if O.w2e == 0:
                for x in w2_read(6, 0): A(x)
            for k in range(4): A(f"v_add_u32 v{VW2H+k}, 0x10000, v{VW2H+k}")
            for x in (w2_read(4, 0) + w2_read(5, 8192) if O.w2e == 0 else w2_read(6, 0)): A(x)
    stamp(A, "g2 mfma")
    for x in shadow + red_write(1): A(x)
    A("s_waitcnt lgkmcnt(0)")
    A("s_barrier")
    for x in red_finish(1, [HF, HF + 8, HF + 16], True): A(x)
    stamp(A, "end")
    stamp_flush(A, 2)

HEADER = open("cdna_kernels/" + NAME + ".s.ref").read().split("; Override launch")[0]

NOTES = """; One persistent launch, one workgroup (4 waves) per CU, four phases joined by hand-offs through d_ws:
"""

def build():
    A = Asm()
    name = NAME + "_kernel"
    A('.amdgcn_target "amdgcn-amd-amdhsa--gfx950"')
    A(".text"); A(f".globl {name}"); A(".p2align 8"); A(f".type {name},@function"); A(f"{name}:")
    prologue(A)
    phase0(A)
    conv(A)
    window3(A)
    gemm1(A)
    gemm2(A)
    A("L_end:")
    A("s_endpgm")
    k = A.items.index(("d", ".warmup"))
    W = Asm()
    if O.warm:
        for w in range(4):
            W(f"s_cmp_eq_u32 s{S_WAVE}, {w}")
            W(f"s_cbranch_scc0 L_wu{w}")
            for n in STUBS[w::4]: W(f"s_call_b64 s[74:75], {n}")
            W(f"L_wu{w}:")
    A.items[k:k+1] = W.items
    A.autowait()
    A.pad()
    A.check_scc()
    out = HEADER + f"; @launch grid=(256,1,1) block=(256,1,1) lds={LDS_TOTAL}\n" + NOTES + A.text()
    out += f""".section .rodata,"a"
.p2align 6
.amdhsa_kernel {name}
  .amdhsa_next_free_vgpr 512
  .amdhsa_next_free_sgpr 102
  .amdhsa_accum_offset 256
  .amdhsa_group_segment_fixed_size 0
  .amdhsa_kernarg_size 112
  .amdhsa_user_sgpr_count 2
  .amdhsa_user_sgpr_kernarg_segment_ptr 1
  .amdhsa_system_sgpr_workgroup_id_x 1
  .amdhsa_float_denorm_mode_32 3
.end_amdhsa_kernel
"""
    return out

if __name__ == "__main__":
    path = sys.argv[1]
    O.prof = "--prof" in sys.argv
    O.cyc = "--cyc" in sys.argv
    for x in sys.argv[2:]:
        if "=" in x:
            k_, v_ = x.split("="); setattr(O, k_, int(v_))
    open(path, "w").write(build())
    if O.prof:
        import json; json.dump(STAMPS, open(path + ".stamps.json", "w"))
    print("wrote", path)
```
